```python
import torch

def _softmax(x, axis=-1):
    return torch.softmax(x, dim=axis)

def _gelu(x):
    return torch.nn.functional.gelu(x, approximate='tanh')

def _silu(x):
    return torch.nn.functional.silu(x)

def _sigmoid(x):
    return torch.sigmoid(x)

def _layernorm(x, axis=-1, eps=1e-05):
    m = x.mean(dim=axis, keepdim=True)
    v = x.var(dim=axis, keepdim=True, unbiased=False)
    return (x - m) / torch.sqrt(v + eps)

def _scatter_add(tgt, idx, src, axis=0):
    return tgt.clone().index_add_(axis, idx, src)

def _segment_sum(src, seg, n):
    out = torch.zeros((n,) + src.shape[1:], dtype=src.dtype)
    return out.index_add_(0, seg, src)

def _pad(x, pw):
    flat = tuple((v for pair in reversed(pw) for v in pair))
    return torch.nn.functional.pad(x, flat)
kernel_name = 'adaLN_cond__sliding_block_cached__dense_activation_silu__decode'

def setup_inputs():

    _w = lambda a: (lambda t: t.to(torch.bfloat16) if t.is_floating_point() else t)(torch.as_tensor(a))

    def _A_setup():
        B, Sq, D = (8, 1, 640)
        Hq, Hkv, Sk, Dh = (32, 32, 4096, 128)
        assert Hq % Hkv == 0, (Hq, Hkv)
        return {'x': _w((lambda *s: torch.randn(*s, dtype=torch.bfloat16) * 0.1)(B, Sq, D)), 'k_cache': _w((lambda *s: torch.randn(*s, dtype=torch.bfloat16) * 0.8)(B, Hkv, Sk, Dh)), 'v_cache': _w((lambda *s: torch.randn(*s, dtype=torch.bfloat16) * 3.2)(B, Hkv, Sk, Dh)), 'wq': _w((lambda *s: torch.randn(*s, dtype=torch.bfloat16) * 0.8)(D, Hq * Dh) * D ** (-0.5)), 'wo': _w((lambda *s: torch.randn(*s, dtype=torch.bfloat16) * 3.2)(Hq * Dh, D) * (Hq * Dh) ** (-0.5))}
    _A_in = _A_setup()

    def _B_setup():
        B, S, D, F = (8, 1, 640, 1728)
        return {'x': _w((lambda *s: torch.randn(*s, dtype=torch.bfloat16) * 0.1)(B, S, D)), 'w1': _w((lambda *s: torch.randn(*s, dtype=torch.bfloat16) * 3.2)(D, F) * D ** (-0.5)), 'w2': _w((lambda *s: torch.randn(*s, dtype=torch.bfloat16) * 3.2)(F, D) * F ** (-0.5))}
    _B_in = _B_setup()
    return {'A_x': _A_in['x'], 'A_k_cache': _A_in['k_cache'], 'A_v_cache': _A_in['v_cache'], 'A_wq': _A_in['wq'], 'A_wo': _A_in['wo'], 'B_x': _B_in['x'], 'B_w1': _B_in['w1'], 'B_w2': _B_in['w2'], 'c': _w((lambda *s: torch.randn(*s, dtype=torch.bfloat16) * 0.1)(8, 640) * 8.0), 'w_mod': _w((lambda *s: torch.randn(*s, dtype=torch.bfloat16) * 0.1)(640, 6 * 640) * 640 ** (-0.5) * 8.0)}

def reference(A_x, A_k_cache, A_v_cache, A_wq, A_wo, B_x, B_w1, B_w2, c, w_mod):

    def _A_ref(x, k_cache, v_cache, wq, wo):
        B, Sq, D = x.shape
        Hq, Dh = (32, 128)
        Hkv, Sk = (k_cache.shape[1], k_cache.shape[2])
        W = min(4096, max(256, Sk // 4))
        rep = Hq // Hkv
        q = (lambda x, *d: x.permute(*d))((x @ wq).reshape(B, Sq, Hq, Dh), 0, 2, 1, 3)
        k = (lambda x, n, axis: torch.repeat_interleave(x, n, dim=axis))(k_cache[:, :, Sk - W:, :], rep, axis=1)
        v = (lambda x, n, axis: torch.repeat_interleave(x, n, dim=axis))(v_cache[:, :, Sk - W:, :], rep, axis=1)
        scores = torch.einsum('bhqd,bhkd->bhqk', q, k) * Dh ** (-0.5)
        p = _softmax(scores, axis=-1)
        o = torch.einsum('bhqk,bhkd->bhqd', p, v)
        return (lambda x, *d: x.permute(*d))(o, 0, 2, 1, 3).reshape(B, Sq, Hq * Dh) @ wo

    def _B_ref(x, w1, w2):
        h = torch.einsum('bsd,df->bsf', x, w1)
        h = _silu(h)
        out = torch.einsum('bsf,fd->bsd', h, w2)
        return out
    x = A_x
    mod = (_silu(c) @ w_mod).reshape(c.shape[0], 6, 1, -1)
    sa, ca, ga, sb, cb, gb = (mod[:, 0].clone(), mod[:, 1].clone(), mod[:, 2].clone(), mod[:, 3].clone(), mod[:, 4].clone(), mod[:, 5].clone())
    h = _layernorm(x, axis=-1) * (1 + ca) + sa
    x = x + ga * _A_ref(h, A_k_cache, A_v_cache, A_wq, A_wo)
    h = _layernorm(x, axis=-1) * (1 + cb) + sb
    x = x + gb * _B_ref(h, B_w1, B_w2)
    return x
```

```python
import sys, argparse
NAME = "adaLN_cond__sliding_block_cached__dense_activation_silu__decode"

WS_MOD  = 0x00000
WS_FLG  = 61440
WS_FLG2 = 62464
NCLR    = 10
WS_X1   = 0x20000
WS_DUM  = 0x28000
WS_AP   = 0x60000
WS_QP   = 0x100000
WS_OP   = 0x180000
WS_END  = WS_OP + 54*20480
STAMP_OFF = 0x20000000
L_TA  = 0
L_TB  = 40960
L_WQ  = 81920
L_ACT = 102400
L_XN  = 112640
L_Q   = 122880
L_SM  = L_Q + 256
L_R1  = L_SM + 256
L_R2  = L_R1 + 4096
L_G1  = L_R2 + 20480
L_END = L_G1 + 8192
LOG2E = 0x3fb8aa3b
NLOG2E = 0xbfb8aa3b
SCALE = 0x3db504f3
INV640 = 0x3acccccd
EPS = 0x3727c5ac
K, V, WS, WO, TA, TB, X, C, OUT, DBG, WQ = 44, 48, 52, 56, 60, 64, 68, 72, 76, 80, 92
KH = C
STS = 40
sr = lambda r: f"s[{r}:{r+3}]"
DPPF = "row_mask:0xf bank_mask:0xf"

class G:
    def __init__(self, **kw):
        self.L = []; self.lab = 0
        self.stamps = False; self.depth = 4; self.d0 = 2; self.n0 = 16; self.kvf = "nt"; self.wof = "nt"; self.tf = "nt"
        self.limit = 40000; self.codepf = True; self.d2 = 8; self.redw = 7; self.hlate = False; self.exp = 0; self.nm = 6
        self.__dict__.update(kw)
    def A(self, s):
        for x in s.split("\n"):
            x = x.strip()
            if x: self.L.append(("" if x.endswith(":") else "    ") + x)
    def newlab(self, p="L"):
        self.lab += 1; return f"{p}_{self.lab}"
    def stamp(self, k):
        if self.stamps: self.A(f"s_memrealtime s[{16+2*k}:{17+2*k}]")
    def srd(self, d, lo, hi, size):
        self.A(f"s_mov_b32 s{d}, {lo}\ns_mov_b32 s{d+1}, {hi}\ns_mov_b32 s{d+2}, {size}\ns_mov_b32 s{d+3}, 0x20000")
    def srdo(self, d, lo, hi, off, size):
        self.A(f"s_add_u32 s{d}, {lo}, {off}\ns_addc_u32 s{d+1}, {hi}, 0\ns_mov_b32 s{d+2}, {size}\ns_mov_b32 s{d+3}, 0x20000")
    def unpack(self, lo, hi, src):
        self.A(f"v_lshlrev_b32 v{lo}, 16, v{src}\nv_and_b32 v{hi}, 0xffff0000, v{src}")
    def maxtree(self, dst, regs):
        regs = list(regs); A = self.A
        if len(regs) == 2:
            A(f"v_max_u32 v{dst}, v{regs[0]}, v{regs[1]}"); return
        A(f"v_max3_u32 v{dst}, v{regs[0]}, v{regs[1]}, v{regs[2]}"); regs = regs[3:]
        while len(regs) >= 2:
            A(f"v_max3_u32 v{dst}, v{dst}, v{regs[0]}, v{regs[1]}"); regs = regs[2:]
        if regs: A(f"v_max_u32 v{dst}, v{dst}, v{regs[0]}")
    def poll(self, loads, regs, tmp, code, first_loaded=False, sleep=1):
        A = self.A
        lp = self.newlab("Lpoll"); ck = self.newlab("Lchk"); dn = self.newlab("Lpd")
        A(f"s_mov_b32 s14, {self.limit}")
        if first_loaded: A(f"s_branch {ck}")
        A(f"{lp}:")
        for l in loads: A(l)
        A("s_waitcnt vmcnt(0)")
        A(f"{ck}:")
        self.maxtree(tmp, regs)
        A(f"v_cmp_eq_u32 vcc, -1, v{tmp}")
        A(f"s_cbranch_vccz {dn}")
        A("s_mov_b64 exec, vcc")
        if sleep: A(f"s_sleep {sleep}")
        A("s_sub_u32 s14, s14, 1")
        A(f"s_cbranch_scc0 {lp}")
        A(f"s_or_b32 s15, s15, {code}")
        A(f"{dn}:")
        A("s_mov_b64 exec, -1")
    def silu(self, regs, tmps):
        A = self.A
        for r, t in zip(regs, tmps): A(f"v_mul_f32 v{t}, {hex(NLOG2E)}, v{r}")
        for t in tmps: A(f"v_exp_f32 v{t}, v{t}")
        A("s_nop 0")
        for t in tmps: A(f"v_add_f32 v{t}, 1.0, v{t}")
        for t in tmps: A(f"v_rcp_f32 v{t}, v{t}")
        A("s_nop 0")
        for r, t in zip(regs, tmps): A(f"v_mul_f32 v{r}, v{r}, v{t}")

    def prologue(self):
        A = self.A
        self.L += [f"; @launch grid=(256,1,1) block=(512,1,1) lds={L_END}",
                   '.amdgcn_target "amdgcn-amd-amdhsa--gfx950"', ".text", f".globl {NAME}_kernel", ".p2align 8",
                   f".type {NAME}_kernel,@function", f"{NAME}_kernel:"]
        A("""
        s_cmp_ge_u32 s2, 256
        s_cbranch_scc1 L_end
        s_getpc_b64 s[100:101]
        s_load_dwordx16 s[16:31], s[0:1], 0
        s_load_dwordx8 s[32:39], s[0:1], 64
        s_load_dwordx2 s[40:41], s[0:1], 96
        """)
        if self.stamps: A("s_memrealtime s[42:43]")
        A("""
        v_lshrrev_b32 v1, 6, v0
        s_and_b32 s4, s2, 7
        v_readfirstlane_b32 s3, v1
        """)
        if self.codepf:
            A("v_lshlrev_b32 v8, 5, v0\nglobal_load_dwordx4 v[24:27], v8, s[100:101] offset:-16")
        A("""
        v_and_b32 v1, 63, v0
        v_lshrrev_b32 v2, 4, v1
        v_and_b32 v3, 15, v1
        v_lshlrev_b32 v4, 6, v3
        v_lshl_add_u32 v4, v2, 4, v4
        v_lshlrev_b32 v5, 4, v1
        v_lshlrev_b32 v6, 2, v1
        s_lshr_b32 s5, s2, 3
        s_lshl_b32 s6, s4, 2
        s_and_b32 s8, s5, 3
        s_add_u32 s6, s6, s8
        s_lshr_b32 s7, s5, 2
        s_lshl_b32 s8, s7, 5
        s_add_u32 s84, s8, s6
        s_lshl_b32 s8, s84, 20
        s_lshl_b32 s9, s3, 15
        s_add_u32 s8, s8, s9
        s_add_u32 s8, s8, 0xC0000
        s_mov_b32 s15, 0
        s_mul_i32 s97, s3, 1280
        s_lshl_b32 s10, s3, 6
        v_lshlrev_b32 v7, 9, v2
        v_lshl_add_u32 v7, v3, 2, v7
        v_add_u32 v7, s10, v7
        v_and_b32 v13, 3, v1
        v_mul_u32_u24 v0, 5120, v2
        v_lshl_add_u32 v0, v3, 4, v0
        s_waitcnt lgkmcnt(0)
        """)
        self.srdo(K, "s18", "s19", "s8", "0x8000")
        self.srdo(V, "s20", "s21", "s8", "0x8000")
        self.srd(WS, "s40", "s41", hex(WS_END))
        self.srd(X, "s16", "s17", 10240); self.srd(C, "s32", "s33", 10240)
        self.srd(DBG, "s38", "s39", 256)
        self.srd(TA, "s34", "s35", 0); self.srd(TB, "s34", "s35", 0)
        A(f"""
        s_lshl_b32 s8, s2, 7
        s_add_u32 s89, s8, {hex(WS_DUM)}
        s_mov_b32 s85, 0
        s_mov_b32 s90, -1
        s_mov_b32 s99, 7680
        s_sub_u32 s96, s5, 12
        s_and_b32 s8, s5, 15
        s_lshr_b32 s8, s8, 1
        s_lshl_b32 s8, s8, 3
        s_add_u32 s8, s8, s4
        s_lshl_b32 s91, s8, 1
        s_and_b32 s10, s5, 1
        s_add_u32 s91, s91, s10
        s_lshl_b32 s10, s91, 6
        s_cmp_ge_u32 s5, 24
        s_cbranch_scc1 L_role_red
        s_cmp_lt_u32 s5, 16
        s_cbranch_scc1 L_role_mod
        s_cmp_ge_u32 s91, 54
        s_cbranch_scc0 L_role_mlp
        s_mov_b32 s85, 8
        s_sub_u32 s91, s91, 54
        s_branch L_role_done
        L_role_mlp:
        s_mov_b32 s85, 4
        s_mov_b32 s99, 3456
        s_add_u32 s{TA}, s28, s10
        s_addc_u32 s{TA+1}, s29, 0
        s_sub_u32 s{TA+2}, {640*3456}, s10
        s_mul_i32 s10, s91, 40960
        s_add_u32 s{TB}, s30, s10
        s_addc_u32 s{TB+1}, s31, 0
        s_mov_b32 s{TB+2}, 40960
        s_branch L_role_done
        L_role_mod:
        s_cmp_ge_u32 s91, 120
        s_cbranch_scc1 L_role_done
        s_mov_b32 s85, 2
        s_add_u32 s{TA}, s34, s10
        s_addc_u32 s{TA+1}, s35, 0
        s_sub_u32 s{TA+2}, {640*7680}, s10
        s_cmp_ge_u32 s5, 12
        s_cbranch_scc1 L_role_done
        s_mov_b32 s96, s5
        L_role_red:
        s_lshl_b32 s11, s96, 7
        s_mul_i32 s90, s4, 2560
        s_add_u32 s90, s90, s11
        s_add_u32 s89, s90, {hex(WS_X1)}
        L_role_done:
        """)
    def setup2(self):
        A = self.A
        A("""
        s_lshl_b32 s8, s6, 7
        s_lshl_b32 s9, s3, 4
        s_add_u32 s8, s8, s9
        s_mul_i32 s8, s8, 1280
        """)
        self.srdo(WO, "s24", "s25", "s8", 20480)
        self.srd(OUT, "s36", "s37", 10240)
        A("s_lshl_b32 s8, s84, 20\ns_add_u32 s8, s8, 0xC0000")
        self.srdo(KH, "s18", "s19", "s8", "0x8000")
        A("s_mul_i32 s87, s3, 5120\ns_sub_u32 s87, s87, 5120")
        A(f"""
        s_lshr_b32 s8, s7, 1
        s_mul_i32 s8, s8, {160*8192}
        s_lshl_b32 s9, s6, 8
        s_add_u32 s8, s8, s9
        s_and_b32 s9, s7, 1
        s_lshl_b32 s9, s9, 7
        s_add_u32 s8, s8, s9
        s_add_u32 s{WQ}, s22, s8
        s_addc_u32 s{WQ+1}, s23, 0
        s_sub_u32 s{WQ+2}, {640*8192}, s8
        s_mov_b32 s{WQ+3}, 0x20000
        v_and_b32 v8, 1, v3
        v_lshlrev_b32 v8, 4, v8
        v_mov_b32 v9, 0xffff
        v_lshlrev_b32 v9, v8, v9
        v_lshrrev_b32 v8, 1, v3
        """)
        for r in range(4):
            A(f"v_cmp_eq_u32 vcc, {r}, v8\ns_nop 1\nv_cndmask_b32 v{16+r}, 0, v9, vcc")
        if self.stamps: A("s_mov_b32 s16, s42\ns_mov_b32 s17, s43")
        A("s_mov_b32 s98, 2048")

    def gen(self):
        A = self.A; d = self.depth
        KR = 64
        VR = [192 + 4*i for i in range(8)] + [64 + 4*i for i in range(24)]
        WOR = [224 + 4*i for i in range(8)] + [160 + 4*i for i in range(8)] + [48 + 4*i for i in range(4)]
        def kload(i):
            if i % 4 == 0: A(f"s_mov_b32 s86, {i*1024}")
            A(f"buffer_load_dwordx4 v[{KR+4*i}:{KR+4*i+3}], v4, {sr(K)}, s86 offen offset:{(i%4)*1024} {self.kvf}")
        def vload(i):
            if i % 4 == 0: A(f"s_mov_b32 s86, {i*1024}")
            A(f"buffer_load_dwordx4 v[{VR[i]}:{VR[i]+3}], v5, {sr(V)}, s86 offen offset:{(i%4)*1024} {self.kvf}")
        def woload(j):
            g, cb = divmod(j, 5)
            off = g*1280 + cb*256
            so = "0" if off < 4096 else "s98"
            if off >= 4096: off -= 2048
            A(f"buffer_load_dwordx4 v[{WOR[j]}:{WOR[j]+3}], v0, {sr(WO)}, {so} offen offset:{off} {self.wof}")
        def hload(u):
            A(f"s_add_u32 s8, s87, {u*1024}\ns_add_u32 m0, s8, {L_TB}\ns_nop 0")
            A(f"buffer_load_dwordx4 v4, {sr(KH)}, s8 offen {self.kvf} lds")
        kseq = []
        for i in range(32):
            kseq.append(("K", i))
            if i >= 8 and (i - 8) % 3 == 0: kseq.append(("W", (i - 8)//3))
            if i >= 7 and (i - 7) % 3 == 0 and (i - 7)//3 < 5: kseq.append(("H", (i - 7)//3))
        def issue(op): {"K": kload, "V": vload, "W": woload, "H": hload}[op[0]](op[1])
        d0 = self.d0

        self.prologue()
        if self.exp:
            A(f"s_mov_b32 s85, 0\ns_mov_b32 s90, -1\ns_mov_b32 s{TA+2}, 0\ns_mov_b32 s{TB+2}, 0")
            A("s_cmp_eq_u32 s3, 0\ns_cbranch_scc0 L_exp_done")
            A("s_call_b64 s[12:13], F_setup2")
            if self.exp & 2: A("s_call_b64 s[12:13], F_wqtile")
            if self.exp & 8:
                A(f"s_lshl_b32 s8, s2, 13\ns_add_u32 s8, s8, 0x10000\ns_add_u32 s9, s8, 4096")
                for i in range(8): A(f"buffer_store_dwordx4 v[8:11], v5, {sr(WS)}, {'s8' if i < 4 else 's9'} offen offset:{(i%4)*1024} sc1")
            for j in range(8): woload(j)
            for j in range(8): vload(j)
            if self.exp & 4:
                A(f"""
                s_memrealtime s[8:9]
                s_lshl_b32 s87, s2, 13
                s_add_u32 s87, s87, 0x10000
                s_waitcnt lgkmcnt(0)
                s_add_u32 s8, s8, 1000
                L_exp_poll:
                buffer_load_dwordx4 v[24:27], v5, {sr(WS)}, s87 offen sc1
                buffer_load_dwordx4 v[28:31], v5, {sr(WS)}, s87 offen offset:1024 sc1
                s_waitcnt vmcnt(0)
                s_sleep 4
                s_memrealtime s[10:11]
                s_waitcnt lgkmcnt(0)
                s_sub_u32 s10, s8, s10
                s_cmp_gt_i32 s10, 0
                s_cbranch_scc1 L_exp_poll
                """)
            A("s_branch L_exp_bar\nL_exp_done:")
        A("s_cmp_eq_u32 s3, 0\ns_cbranch_scc1 L_helper")
        A("s_cmp_eq_u32 s85, 2\ns_cbranch_scc0 L_k0")
        A("s_call_b64 s[12:13], F_modtile")
        A("L_k0:")
        for i in range(d0): kload(i)
        A("s_call_b64 s[12:13], F_setup2")
        A("s_cmp_eq_u32 s85, 2\ns_cbranch_scc0 L_k1")
        nm = self.nm
        for op in kseq[d0:nm]: issue(op)
        A(f"s_waitcnt vmcnt({5+nm})")
        A("s_call_b64 s[12:13], F_init1")
        A(f"s_waitcnt vmcnt({nm})")
        A("s_call_b64 s[12:13], F_init2")
        A("s_branch L_k2")
        A("L_k1:")
        for n, op in enumerate(kseq):
            if n < d0: continue
            if n == nm: A("L_k2:")
            A(f"s_waitcnt vmcnt({(d0 if n < self.n0 else d)-1})")
            issue(op)
        assert all(op[0] != "H" for op in kseq[-d:])
        for i in range(8): vload(i)
        A("s_barrier")
        A("s_branch L_qk")
        A("L_helper:")
        A(f"""
        s_setprio 3
        v_mov_b32 v8, -1
        v_mov_b32 v9, -1
        v_mov_b32 v10, -1
        v_mov_b32 v11, -1
        s_cmp_eq_u32 s85, 8
        s_cbranch_scc0 L_h_noclr
        s_mul_i32 s8, s91, 7168
        s_add_u32 s9, s8, 4096
        """)
        for i in range(7):
            A(f"buffer_store_dwordx4 v[8:11], v5, {sr(WS)}, {'s8' if i < 4 else 's9'} offen offset:{(i%4)*1024} sc1")
        A(f"""
        s_waitcnt vmcnt(0)
        v_mov_b32 v14, 1
        s_mov_b64 exec, 1
        buffer_atomic_add v14, off, {sr(DBG)}, 0 sc1
        s_mov_b64 exec, -1
        L_h_noclr:
        s_lshl_b32 s88, s6, 3
        s_add_u32 s88, s88, s7
        s_lshl_b32 s88, s88, 11
        s_add_u32 s88, s88, {hex(WS_QP)}
        buffer_store_dwordx4 v[8:11], v5, {sr(WS)}, s88 offen sc1
        buffer_store_dwordx4 v[8:11], v5, {sr(WS)}, s88 offen offset:1024 sc1
        s_cmp_eq_u32 s85, 2
        s_cbranch_scc1 L_h_mod
        s_call_b64 s[12:13], F_setup2
        s_call_b64 s[12:13], F_wqtile
        s_call_b64 s[12:13], F_waitcnt
        """)
        self.stamp(1)
        A(f"""
        s_branch L_h_q
        L_h_mod:
        s_call_b64 s[12:13], F_modtile
        s_call_b64 s[12:13], F_setup2
        s_waitcnt vmcnt(5)
        s_call_b64 s[12:13], F_init1
        s_waitcnt vmcnt(0)
        s_call_b64 s[12:13], F_init2
        """)
        self.stamp(9)
        A("s_call_b64 s[12:13], F_waitcnt")
        self.stamp(1)
        A(f"""
        v_and_b32 v8, 7, v3
        v_lshrrev_b32 v9, 3, v3
        v_lshlrev_b32 v14, 10, v9
        v_lshl_add_u32 v14, v2, 8, v14
        v_lshl_add_u32 v14, v8, 4, v14
        v_add_u32 v14, {L_G1}, v14
        """)
        for k in range(4): A(f"ds_read_b128 v[{24+4*k}:{27+4*k}], v14 offset:{k*2048}")
        A(f"""
        v_lshlrev_b32 v15, 6, v8
        v_lshl_add_u32 v15, v9, 5, v15
        v_lshl_add_u32 v15, v2, 3, v15
        s_lshl_b32 s9, s91, 9
        s_add_u32 s8, s9, {L_XN - 20*512}
        v_add_u32 v14, s8, v15
        s_waitcnt lgkmcnt(0)
        """)
        for r in range(4): A(f"v_add_f32 v{24+r}, v{24+r}, v{28+r}")
        for r in range(4): A(f"v_add_f32 v{32+r}, v{32+r}, v{36+r}")
        for r in range(4): A(f"v_add_f32 v{24+r}, v{24+r}, v{32+r}")
        A("v_cvt_pk_bf16_f32 v40, v24, v25\nv_cvt_pk_bf16_f32 v41, v26, v27")
        A("s_sub_u32 s8, s91, 20\ns_cmp_lt_u32 s8, 20\ns_cbranch_scc0 L_h_pub")
        A("ds_read_b64 v[42:43], v14")
        for j in range(2): self.unpack(24+2*j, 25+2*j, 40+j)
        for r in range(4): A(f"v_add_f32 v{24+r}, 1.0, v{24+r}")
        for j in range(2): A(f"v_cvt_pk_bf16_f32 v{40+j}, v{24+2*j}, v{25+2*j}")
        for j in range(2): self.unpack(24+2*j, 25+2*j, 40+j)
        A("s_waitcnt lgkmcnt(0)")
        for j in range(2): self.unpack(28+2*j, 29+2*j, 42+j)
        for r in range(4): A(f"v_mul_f32 v{24+r}, v{24+r}, v{28+r}")
        for j in range(2): A(f"v_cvt_pk_bf16_f32 v{40+j}, v{24+2*j}, v{25+2*j}")
        A("L_h_pub:")
        for j in range(2): A(f"v_min_u32 v{40+j}, -2, v{40+j}")
        assert WS_MOD == 0
        A(f"buffer_store_dwordx2 v[40:41], v15, {sr(WS)}, s9 offen sc1")
        self.stamp(8)
        A("s_call_b64 s[12:13], F_wqtile\ns_waitcnt vmcnt(0)")
        A("L_h_q:")
        A(f"""
        v_mov_b32 v8, -1
        v_mov_b32 v9, -1
        v_mov_b32 v10, -1
        v_mov_b32 v11, -1
        s_mul_i32 s8, s84, 2560
        s_add_u32 s8, s8, {hex(WS_AP)}
        buffer_store_dwordx4 v[8:11], v5, {sr(WS)}, s8 offen sc1
        buffer_store_dwordx4 v[8:11], v5, {sr(WS)}, s8 offen offset:1024 sc1
        s_mov_b32 exec_hi, 0
        buffer_store_dwordx4 v[8:11], v5, {sr(WS)}, s8 offen offset:2048 sc1
        s_mov_b64 exec, 0xff
        buffer_store_dwordx4 v[8:11], v5, {sr(WS)}, s89 offen sc1
        s_mov_b64 exec, -1
        s_cmp_eq_u32 s85, 4
        s_cbranch_scc0 L_h_noop
        s_mul_i32 s8, s91, 20480
        s_add_u32 s8, s8, {hex(WS_OP)}
        s_add_u32 s9, s8, 20480
        L_h_clrop:
        buffer_store_dwordx4 v[8:11], v5, {sr(WS)}, s8 offen sc1
        s_add_u32 s8, s8, 1024
        s_cmp_lt_u32 s8, s9
        s_cbranch_scc1 L_h_clrop
        L_h_noop:
        """)
        if not self.hlate:
            for j in range(8): woload(j)
            for j in range(8): vload(j)
        A(f"""
        v_lshrrev_b32 v8, 2, v3
        v_lshlrev_b32 v10, 10, v2
        v_lshl_add_u32 v10, v8, 7, v10
        v_lshl_add_u32 v10, v13, 3, v10
        v_add_u32 v10, {L_WQ}, v10
        """)
        for k in range(5):
            for nt in range(4):
                r = 64 + 4*(k*4+nt)
                A(f"ds_read_b64_tr_b16 v[{r}:{r+1}], v10 offset:{k*4096 + nt*32}")
                A(f"ds_read_b64_tr_b16 v[{r+2}:{r+3}], v10 offset:{k*4096 + nt*32 + 512}")
        A(f"""
        v_and_b32 v8, 7, v3
        v_lshrrev_b32 v9, 3, v3
        v_mul_u32_u24 v12, 10240, v9
        v_lshl_add_u32 v12, v8, 6, v12
        v_lshl_add_u32 v12, v2, 4, v12
        v_lshlrev_b32 v14, 2, v8
        v_lshlrev_b32 v15, 11, v8
        v_lshl_add_u32 v15, v9, 6, v15
        v_lshl_add_u32 v15, v2, 4, v15
        s_lshr_b32 s10, s7, 1
        s_mul_i32 s8, s10, 2560
        s_lshl_b32 s9, s6, 5
        s_add_u32 s9, s9, {WS_FLG}
        s_lshl_b32 s11, s6, 14
        s_lshl_b32 s10, s7, 8
        s_add_u32 s11, s11, s10
        s_add_u32 s11, s11, {hex(WS_QP)}
        """)
        loads = [f"buffer_load_dwordx4 v[{24+4*k}:{27+4*k}], v12, {sr(WS)}, s8 offen offset:{k*512} sc1" for k in range(5)]
        loads.append(f"buffer_load_dword v44, v14, {sr(WS)}, s9 offen sc1")
        self.poll(loads, range(24, 45), 45, 2, sleep=4)
        self.stamp(2)
        for j in range(0, 20, 2):
            self.unpack(48, 49, 24+j); self.unpack(50, 51, 25+j)
            for r in range(4): A(f"v_add_f32_dpp v{52+r}, v{48+r}, v{48+r} row_ror:8 {DPPF}")
            A(f"v_cvt_pk_bf16_f32 v{24+j}, v52, v53\nv_cvt_pk_bf16_f32 v{25+j}, v54, v55")
        A("v_cmp_lt_u32 vcc, 7, v3\ns_waitcnt lgkmcnt(0)")
        for k in range(5):
            for nt in range(4):
                r = 64 + 4*(k*4+nt); a = 144 + 4*nt
                c = "0" if k == 0 else f"v[{a}:{a+3}]"
                A(f"v_mfma_f32_16x16x32_bf16 v[{a}:{a+3}], v[{r}:{r+3}], v[{24+4*k}:{27+4*k}], {c}")
        A("s_nop 5")
        for j in range(2):
            for r in range(4): A(f"v_cndmask_b32 v{160+4*j+r}, v{144+8*j+r}, v{148+8*j+r}, vcc")
            for r in range(4): A(f"v_min_u32 v{160+4*j+r}, -2, v{160+4*j+r}")
            A(f"buffer_store_dwordx4 v[{160+4*j}:{163+4*j}], v15, {sr(WS)}, s11 offen offset:{j*128} sc1")
        A(f"s_mov_b64 exec, 1\nbuffer_store_dword v1, off, {sr(WS)}, s87 offset:1024 sc1\ns_mov_b64 exec, -1")
        if self.hlate:
            for j in range(8): woload(j)
            for j in range(8): vload(j)
        A(f"v_lshlrev_b32 v12, 3, v1\nv_add_u32 v14, {L_Q}, v6")
        loads = [f"buffer_load_dwordx2 v[{24+2*k}:{25+2*k}], v12, {sr(WS)}, s88 offen offset:{k*512} sc1" for k in range(4)]
        self.poll(loads, range(24, 32), 45, 4, sleep=2)
        A("""
        v_add_f32 v24, v24, v26
        v_add_f32 v25, v25, v27
        v_add_f32 v28, v28, v30
        v_add_f32 v29, v29, v31
        v_add_f32 v24, v24, v28
        v_add_f32 v25, v25, v29
        v_cvt_pk_bf16_f32 v24, v24, v25
        ds_write_b32 v14, v24
        """)
        self.stamp(3)
        A("s_setprio 0")
        A("L_exp_bar:")
        A(f"v_add_u32 v8, {L_TB}, v5\ns_waitcnt lgkmcnt(0)\ns_barrier")
        for i in range(32): A(f"ds_read_b128 v[{KR+4*i}:{KR+4*i+3}], v8 offset:{i*1024}")
        A("L_qk:")
        order = list(kseq) + [("V", i) for i in range(8)]
        def iss(op):
            issue(op); order.append(op)
        def waitfor(op):
            A(f"s_waitcnt vmcnt({len(order) - 1 - order.index(op)})")
        A(f"""
        v_lshlrev_b32 v8, 6, v13
        v_lshl_add_u32 v8, v2, 4, v8
        v_add_u32 v8, {L_Q}, v8
        ds_read_b128 v[24:27], v8
        v_lshrrev_b32 v9, 2, v3
        s_waitcnt lgkmcnt(0)
        """)
        for t in range(4):
            A(f"v_cmp_eq_u32 vcc, {t}, v9\ns_nop 1")
            for r in range(4): A(f"v_cndmask_b32 v{32+4*t+r}, 0, v{24+r}, vcc")
        A("s_nop 1")
        for half in range(2):
            for gg in range(4):
                g = half*4 + gg
                waitfor(("K", 4*g+3))
                for t in range(4):
                    i = 4*g + t
                    c = "0" if t == 0 else f"v[{48+4*gg}:{51+4*gg}]"
                    A(f"v_mfma_f32_16x16x32_bf16 v[{48+4*gg}:{51+4*gg}], v[{KR+4*i}:{KR+4*i+3}], v[{32+4*t}:{35+4*t}], {c}")
            A("s_nop 7")
            for j in range(4):
                for gg in range(4):
                    g = half*4 + gg
                    if j == 0: A(f"v_mov_b32_dpp v{24+g}, v{48+4*gg} quad_perm:[0,0,0,0] {DPPF}")
                    else: A(f"v_add_f32_dpp v{24+g}, v{48+4*gg+j}, v{24+g} quad_perm:[{j},{j},{j},{j}] {DPPF}")
            A("s_nop 1")
        self.stamp(4)
        post = []
        for j in range(12): post += [("W", 8+j), ("V", 8+2*j), ("V", 9+2*j)]
        for op in post[:self.d2]: iss(op)
        post = post[self.d2:]
        self.softmax()
        self.stamp(5)
        def abuild(i):
            base = 32 + 4*(i % 2)
            for r in range(4):
                A(f"v_and_b32_dpp v{base+r}, v{24+i//4}, v{16+r} row_newbcast:{4*(i%4)} {DPPF}")
        abuild(0)
        for i in range(32):
            if i + 1 < 32: abuild(i+1)
            else: A("s_nop 1")
            waitfor(("V", i))
            r = VR[i]; base = 32 + 4*(i % 2)
            c = "0" if i == 0 else "v[20:23]"
            A(f"v_mfma_f32_16x16x32_bf16 v[20:23], v[{base}:{base+3}], v[{r}:{r+3}], {c}")
            if i == 12: self.small_loads()
            had = bool(post)
            while post and (len(order) - 1 - order.index(("V", i))) < self.d2:
                iss(post.pop(0))
            if had and not post:
                A("s_call_b64 s[12:13], F_mlptile")
                for u in range(10): order.append(("T", u))
        assert not post
        self.tail1(WOR)
        A("s_cmp_eq_u32 s85, 4\ns_cbranch_scc1 L_mlp")
        A("s_cmp_eq_u32 s90, -1\ns_cbranch_scc1 L_fin")
        A(f"s_cmp_eq_u32 s3, {self.redw}\ns_cbranch_scc0 L_fin")
        self.reducer()
        self.mlp()
        self.finish()
        self.subs()
        L = self.L
        L.append(f".fill (16384 - (. - {NAME}_kernel))/4, 4, 0xbf800000")
        L += ['.section .rodata,"a"', ".p2align 6", f".amdhsa_kernel {NAME}_kernel",
              "  .amdhsa_next_free_vgpr 256", "  .amdhsa_next_free_sgpr 102", "  .amdhsa_accum_offset 256",
              "  .amdhsa_group_segment_fixed_size 0", "  .amdhsa_kernarg_size 104", "  .amdhsa_user_sgpr_count 2",
              "  .amdhsa_user_sgpr_kernarg_segment_ptr 1", "  .amdhsa_system_sgpr_workgroup_id_x 1", ".end_amdhsa_kernel"]
        return "\n".join(L) + "\n"

    def softmax(self):
        A = self.A
        A(f"s_mov_b32 s8, {hex(SCALE)}")
        for g in range(0, 8, 2):
            A(f"v_cvt_pk_bf16_f32 v8, v{24+g}, v{25+g}")
            self.unpack(24+g, 25+g, 8)
            A(f"v_mul_f32 v{24+g}, s8, v{24+g}\nv_mul_f32 v{25+g}, s8, v{25+g}")
            A(f"v_cvt_pk_bf16_f32 v8, v{24+g}, v{25+g}")
            self.unpack(24+g, 25+g, 8)
        def wred(op, sdst):
            for c in (f"row_ror:4 {DPPF}", f"row_ror:8 {DPPF}", "row_bcast:15 row_mask:0xa bank_mask:0xf", "row_bcast:31 row_mask:0xc bank_mask:0xf"):
                A(f"s_nop 1\n{op}_dpp v8, v8, v8 {c}")
            A(f"s_nop 1\nv_readlane_b32 {sdst}, v8, 63")
        A("v_max3_f32 v8, v24, v25, v26\nv_max3_f32 v8, v8, v27, v28\nv_max3_f32 v8, v8, v29, v30\nv_max_f32 v8, v8, v31")
        wred("v_max_f32", "s9")
        A(f"s_mov_b32 s8, {hex(LOG2E)}\ns_nop 1")
        for g in range(8): A(f"v_subrev_f32 v{24+g}, s9, v{24+g}")
        for g in range(8): A(f"v_mul_f32 v{24+g}, s8, v{24+g}")
        for g in range(8): A(f"v_exp_f32 v{24+g}, v{24+g}")
        A("""
        s_nop 0
        v_add_f32 v8, v24, v25
        v_add_f32 v9, v26, v27
        v_add_f32 v10, v28, v29
        v_add_f32 v11, v30, v31
        v_add_f32 v8, v8, v9
        v_add_f32 v10, v10, v11
        v_add_f32 v8, v8, v10
        """)
        wred("v_add_f32", "s10")
        A(f"""
        s_lshl_b32 s11, s3, 3
        s_add_u32 s11, s11, {L_SM}
        v_mov_b32 v10, s9
        v_mov_b32 v11, s10
        v_mov_b32 v9, s11
        ds_write_b64 v9, v[10:11]
        v_and_b32 v9, 7, v1
        v_lshlrev_b32 v9, 3, v9
        v_add_u32 v9, {L_SM}, v9
        s_waitcnt lgkmcnt(0)
        s_barrier
        ds_read_b64 v[10:11], v9
        s_waitcnt lgkmcnt(0)
        v_max_f32_dpp v8, v10, v10 row_ror:4 {DPPF}
        s_nop 1
        v_max_f32_dpp v8, v8, v8 row_ror:2 {DPPF}
        s_nop 1
        v_max_f32_dpp v8, v8, v8 row_ror:1 {DPPF}
        v_sub_f32 v10, v10, v8
        v_sub_f32 v12, s9, v8
        v_mul_f32 v10, s8, v10
        v_mul_f32 v12, s8, v12
        v_exp_f32 v10, v10
        v_exp_f32 v12, v12
        s_nop 0
        v_mul_f32 v10, v10, v11
        s_nop 1
        v_add_f32_dpp v10, v10, v10 quad_perm:[1,0,3,2] {DPPF}
        s_nop 1
        v_add_f32_dpp v10, v10, v10 quad_perm:[2,3,0,1] {DPPF}
        s_nop 1
        v_add_f32_dpp v10, v10, v10 row_half_mirror {DPPF}
        v_rcp_f32 v10, v10
        s_nop 0
        v_mul_f32 v10, v10, v12
        """)
        for g in range(8): A(f"v_mul_f32 v{24+g}, v10, v{24+g}")
        for g in range(8): A(f"v_cvt_pk_bf16_f32 v{24+g}, v{24+g}, v{24+g}")
        A("s_nop 1")

    def tail1(self, WOR):
        A = self.A
        A(f"""
        s_lshl_b32 s8, s3, 9
        s_add_u32 s8, s8, {L_R1}
        v_lshlrev_b32 v8, 5, v3
        v_lshl_add_u32 v8, v2, 4, v8
        v_add_u32 v9, s8, v8
        s_lshl_b32 s9, s3, 6
        s_add_u32 s9, s9, {L_R1}
        v_and_b32 v10, 7, v3
        v_lshlrev_b32 v10, 9, v10
        v_lshl_add_u32 v10, v2, 4, v10
        v_add_u32 v10, s9, v10
        s_mul_i32 s8, s3, 2560
        s_add_u32 s8, s8, {L_R2}
        v_add_u32 v11, s8, v8
        s_mov_b32 exec_hi, 0
        ds_write_b128 v9, v[20:23]
        s_mov_b64 exec, -1
        s_waitcnt lgkmcnt(0)
        s_barrier
        """)
        self.stamp(6)
        A("ds_read_b128 v[24:27], v10\ns_waitcnt lgkmcnt(0)")
        for sh in (4, 2, 1):
            for r in range(4): A(f"v_add_f32_dpp v{24+r}, v{24+r}, v{24+r} row_ror:{sh} {DPPF}")
        for r in range(4): A(f"v_cvt_pk_bf16_f32 v{24+r}, v{24+r}, v{24+r}")
        for g in range(4):
            for r in range(4): A(f"v_and_b32 v{32+4*g+r}, v{24+g}, v{16+r}")
        A("s_nop 1")
        ACC = 64
        for g in range(4):
            for cb in range(5):
                r = WOR[g*5+cb]
                c = "0" if g == 0 else f"v[{ACC+4*cb}:{ACC+4*cb+3}]"
                A(f"v_mfma_f32_16x16x32_bf16 v[{ACC+4*cb}:{ACC+4*cb+3}], v[{32+4*g}:{35+4*g}], v[{r}:{r+3}], {c}")
        A("s_mov_b32 exec_hi, 0\ns_nop 3")
        for cb in range(5):
            A(f"ds_write_b128 v11, v[{ACC+4*cb}:{ACC+4*cb+3}] offset:{cb*512}")
        A(f"""
        s_mov_b64 exec, -1
        s_lshl_b32 s8, s3, 9
        s_add_u32 s9, s8, {L_R2}
        v_add_u32 v9, s9, v5
        s_mul_i32 s9, s84, 2560
        s_add_u32 s9, s9, s8
        s_add_u32 s9, s9, {hex(WS_AP)}
        s_waitcnt lgkmcnt(0)
        s_barrier
        s_cmp_ge_u32 s3, 5
        s_cbranch_scc1 L_apdone
        s_mov_b32 exec_hi, 0
        """)
        for j in range(8): A(f"ds_read_b128 v[{64+4*j}:{67+4*j}], v9 offset:{j*2560}")
        for j in range(0, 8, 2):
            A(f"s_waitcnt lgkmcnt({6-j})")
            for r in range(4): A(f"v_add_f32 v{64+4*j+r}, v{64+4*j+r}, v{68+4*j+r}")
        for r in range(4): A(f"v_add_f32 v{64+r}, v{64+r}, v{72+r}")
        for r in range(4): A(f"v_add_f32 v{80+r}, v{80+r}, v{88+r}")
        for r in range(4): A(f"v_add_f32 v{64+r}, v{64+r}, v{80+r}")
        for r in range(4): A(f"v_min_u32 v{64+r}, -2, v{64+r}")
        A(f"buffer_store_dwordx4 v[64:67], v5, {sr(WS)}, s9 offen sc1")
        A("s_mov_b64 exec, -1")
        A("L_apdone:")
        self.stamp(7)

    def flg(self):
        return f"s_mov_b32 s10, {WS_FLG2}\nbuffer_load_dwordx4 v[204:207], v5, {sr(WS)}, s10 offen sc1"
    def red_small(self):
        return [self.flg(), f"buffer_load_dwordx2 v[192:193], v198, {sr(WS)}, s42 offen sc1",
                f"buffer_load_dwordx2 v[194:195], v198, {sr(WS)}, s43 offen sc1"]
    def mlp_small(self):
        o = [self.flg()]
        for i in range(5): o.append(f"s_mov_b32 s9, {WS_MOD + 80*512 + i*2048}\nbuffer_load_dword v{192+i}, v7, {sr(WS)}, s9 offen sc1")
        for i in range(5): o.append(f"s_mov_b32 s9, {WS_MOD + 60*512 + i*2048}\nbuffer_load_dword v{197+i}, v7, {sr(WS)}, s9 offen sc1")
        return o
    def small_loads(self):
        A = self.A
        A("s_cmp_eq_u32 s85, 4\ns_cbranch_scc0 L_sm_nomlp")
        for l in self.mlp_small(): A(l)
        A("s_branch L_sm_done\nL_sm_nomlp:")
        A("s_cmp_eq_u32 s90, -1\ns_cbranch_scc1 L_sm_done")
        A(f"s_cmp_eq_u32 s3, {self.redw}\ns_cbranch_scc0 L_sm_done")
        A(f"""
        v_lshrrev_b32 v198, 3, v1
        v_lshlrev_b32 v198, 3, v198
        s_lshl_b32 s42, s96, 9
        s_lshl_b32 s9, s4, 6
        s_add_u32 s42, s42, s9
        s_add_u32 s42, s42, {WS_MOD + 40*512}
        s_add_u32 s43, s42, {60*512}
        s_lshr_b32 s9, s90, 1
        """)
        for l in self.red_small(): A(l)
        A(f"buffer_load_dwordx2 v[196:197], v198, {sr(X)}, s9 offen")
        A("L_sm_done:")
    def red_fin(self, g, x):
        A = self.A
        for c in ("quad_perm:[1,0,3,2]", "quad_perm:[2,3,0,1]", "row_half_mirror"):
            for r in range(4): A(f"v_add_f32_dpp v{64+r}, v{64+r}, v{64+r} {c} {DPPF}")
        A("v_cvt_pk_bf16_f32 v68, v64, v65\nv_cvt_pk_bf16_f32 v69, v66, v67")
        self.unpack(64, 65, 68); self.unpack(66, 67, 69)
        for r in range(4): A(f"v_mul_f32 v{64+r}, v{64+r}, v{g+r}")
        A("v_cvt_pk_bf16_f32 v68, v64, v65\nv_cvt_pk_bf16_f32 v69, v66, v67")
        self.unpack(64, 65, 68); self.unpack(66, 67, 69)
        for r in range(4): A(f"v_add_f32 v{64+r}, v{64+r}, v{x+r}")
        A("v_cvt_pk_bf16_f32 v68, v64, v65\nv_cvt_pk_bf16_f32 v69, v66, v67")

    def reducer(self):
        A = self.A
        self.poll(self.red_small(), [192, 193, 194, 195, 204, 205, 206, 207], 8, 8, first_loaded=True)
        self.unpack(200, 201, 192); self.unpack(202, 203, 193)
        self.unpack(204, 205, 194); self.unpack(206, 207, 195)
        self.unpack(208, 209, 196); self.unpack(210, 211, 197)
        A(f"""
        v_and_b32 v8, 7, v1
        v_lshrrev_b32 v9, 3, v1
        v_mul_u32_u24 v10, 2560, v8
        v_lshl_add_u32 v10, v9, 4, v10
        v_mul_u32_u24 v11, 20480, v8
        v_lshl_add_u32 v11, v9, 4, v11
        v_lshlrev_b32 v12, 3, v9
        s_mul_i32 s8, s4, {32*2560}
        s_lshl_b32 s9, s96, 7
        s_add_u32 s8, s8, s9
        s_add_u32 s8, s8, {hex(WS_AP)}
        s_add_u32 s9, s8, 20480
        s_add_u32 s10, s8, 40960
        s_add_u32 s11, s8, 61440
        """)
        loads = [f"buffer_load_dwordx4 v[{64+4*i}:{67+4*i}], v10, {sr(WS)}, s{8+i} offen sc1" for i in range(4)]
        self.poll(loads, range(64, 80), 13, 16)
        self.stamp(8)
        for r in range(4): A(f"v_add_f32 v{64+r}, v{64+r}, v{68+r}")
        for r in range(4): A(f"v_add_f32 v{72+r}, v{72+r}, v{76+r}")
        for r in range(4): A(f"v_add_f32 v{64+r}, v{64+r}, v{72+r}")
        self.red_fin(200, 208)
        A(f"""
        v_min_u32 v68, -2, v68
        v_min_u32 v69, -2, v69
        s_mov_b32 s8, 0x01010101
        s_mov_b32 s9, 0x01010101
        s_mov_b64 exec, s[8:9]
        buffer_store_dwordx2 v[68:69], v12, {sr(WS)}, s89 offen sc1
        s_mov_b64 exec, -1
        """)
        self.unpack(208, 209, 68); self.unpack(210, 211, 69)
        A(f"s_add_u32 s8, s90, {hex(WS_OP)}")
        loads = [f"s_add_u32 s9, s8, {i*8*20480}\nbuffer_load_dwordx4 v[{64+4*i}:{67+4*i}], v11, {sr(WS)}, s9 offen sc1" for i in range(7)]
        self.poll(loads, range(64, 92), 13, 32)
        self.stamp(9)
        for a, b in ((64, 68), (72, 76), (80, 84), (64, 72), (80, 88), (64, 80)):
            for r in range(4): A(f"v_add_f32 v{a+r}, v{a+r}, v{b+r}")
        self.red_fin(204, 208)
        A(f"""
        s_lshr_b32 s10, s90, 1
        s_mov_b32 s8, 0x01010101
        s_mov_b32 s9, 0x01010101
        s_mov_b64 exec, s[8:9]
        buffer_store_dwordx2 v[68:69], v12, {sr(OUT)}, s10 offen
        s_mov_b64 exec, -1
        s_branch L_fin
        """)

    def mlp(self):
        A = self.A
        A("L_mlp:")
        self.poll(self.mlp_small(), list(range(192, 202)) + [204, 205, 206, 207], 8, 64, first_loaded=True)
        for i in range(5):
            self.unpack(208+2*i, 209+2*i, 192+i)
            A(f"v_add_f32 v{208+2*i}, 1.0, v{208+2*i}\nv_add_f32 v{209+2*i}, 1.0, v{209+2*i}")
            A(f"v_cvt_pk_bf16_f32 v8, v{208+2*i}, v{209+2*i}")
            self.unpack(208+2*i, 209+2*i, 8)
            self.unpack(218+2*i, 219+2*i, 197+i)
        A(f"""
        v_lshrrev_b32 v8, 2, v3
        v_and_b32 v9, 3, v3
        v_lshlrev_b32 v10, 9, v2
        v_lshl_add_u32 v10, v8, 6, v10
        v_lshl_add_u32 v10, v9, 3, v10
        s_lshr_b32 s8, s3, 1
        s_mul_i32 s9, s8, 10240
        s_and_b32 s10, s3, 1
        s_lshl_b32 s11, s10, 5
        s_add_u32 s9, s9, s11
        v_add_u32 v10, s9, v10
        v_lshl_add_u32 v11, v2, 2, v8
        v_mul_u32_u24 v11, 1280, v11
        v_lshl_add_u32 v11, v9, 3, v11
        s_mul_i32 s9, s3, 160
        s_add_u32 s9, s9, {L_TB}
        v_add_u32 v11, s9, v11
        """)
        A("s_waitcnt vmcnt(0)\ns_barrier")
        self.stamp(1)
        for k in range(5):
            A(f"ds_read_b64_tr_b16 v[{128+4*k}:{129+4*k}], v10 offset:{L_TA + k*2048}")
            A(f"ds_read_b64_tr_b16 v[{130+4*k}:{131+4*k}], v10 offset:{L_TA + k*2048 + 256}")
        for k in range(5):
            A(f"ds_read_b64_tr_b16 v[{148+4*k}:{149+4*k}], v11 offset:{k*32}")
            A(f"ds_read_b64_tr_b16 v[{150+4*k}:{151+4*k}], v11 offset:{k*32 + 16*1280}")
        A(f"""
        v_and_b32 v8, 7, v3
        v_lshlrev_b32 v168, 6, v8
        v_lshl_add_u32 v168, v2, 4, v168
        s_mul_i32 s9, s8, 2560
        s_add_u32 s9, s9, {L_ACT}
        v_add_u32 v168, s9, v168
        s_lshl_b32 s9, s3, 10
        s_add_u32 s9, s9, {L_G1}
        v_add_u32 v169, s9, v5
        v_lshrrev_b32 v9, 3, v3
        v_lshlrev_b32 v170, 10, v9
        v_lshl_add_u32 v170, v2, 8, v170
        v_lshl_add_u32 v170, v8, 4, v170
        v_add_u32 v170, {L_G1}, v170
        v_add_u32 v171, {L_ACT}, v7
        v_lshlrev_b32 v172, 7, v2
        v_lshl_add_u32 v172, v3, 2, v172
        v_mul_u32_u24 v173, 2560, v8
        v_lshl_add_u32 v173, v2, 4, v173
        s_mul_i32 s8, s3, 2560
        s_add_u32 s8, s8, {hex(WS_X1)}
        s_mul_i32 s42, s91, 20480
        s_mul_i32 s9, s3, 320
        s_add_u32 s42, s42, s9
        s_add_u32 s42, s42, {hex(WS_OP)}
        s_waitcnt lgkmcnt(0)
        """)
        loads = [f"buffer_load_dword v{24+i}, v172, {sr(WS)}, s8 offen offset:{i*512} sc1" for i in range(5)]
        self.poll(loads, range(24, 29), 8, 128)
        self.stamp(8)
        A("s_call_b64 s[12:13], F_ln")
        for i in range(5): self.unpack(32+2*i, 33+2*i, 24+i)
        for j in range(10): A(f"v_mul_f32 v{32+j}, v{32+j}, v{208+j}")
        for i in range(5): A(f"v_cvt_pk_bf16_f32 v{24+i}, v{32+2*i}, v{33+2*i}")
        for i in range(5): self.unpack(32+2*i, 33+2*i, 24+i)
        for j in range(10): A(f"v_add_f32 v{32+j}, v{32+j}, v{218+j}")
        for i in range(5):
            A(f"v_cvt_pk_bf16_f32 v{24+i}, v{32+2*i}, v{33+2*i}")
            A(f"ds_write_b32 v171, v{24+i} offset:{i*2048}")
        A("s_waitcnt lgkmcnt(0)\ns_barrier")
        for k in range(5): A(f"ds_read_b128 v[{32+4*k}:{35+4*k}], v168 offset:{k*512}")
        for k in range(5):
            A(f"s_waitcnt lgkmcnt({4-k})")
            c = "0" if k == 0 else "v[20:23]"
            A(f"v_mfma_f32_16x16x32_bf16 v[20:23], v[{128+4*k}:{131+4*k}], v[{32+4*k}:{35+4*k}], {c}")
        A("s_nop 7\nds_write_b128 v169, v[20:23]\ns_waitcnt lgkmcnt(0)\ns_barrier")
        for k in range(4): A(f"ds_read_b128 v[{32+4*k}:{35+4*k}], v170 offset:{k*2048}")
        A("s_waitcnt lgkmcnt(2)")
        for r in range(4): A(f"v_add_f32 v{32+r}, v{32+r}, v{36+r}")
        A("s_waitcnt lgkmcnt(0)")
        for r in range(4): A(f"v_add_f32 v{40+r}, v{40+r}, v{44+r}")
        for r in range(4): A(f"v_add_f32 v{32+r}, v{32+r}, v{40+r}")
        A("v_cvt_pk_bf16_f32 v8, v32, v33\nv_cvt_pk_bf16_f32 v9, v34, v35")
        self.unpack(32, 33, 8); self.unpack(34, 35, 9)
        self.silu([32, 33, 34, 35], [36, 37, 38, 39])
        A(f"""
        v_cvt_pk_bf16_f32 v24, v32, v33
        v_cvt_pk_bf16_f32 v25, v34, v35
        s_nop 1
        v_mov_b32_dpp v26, v24 row_ror:8 {DPPF}
        v_mov_b32_dpp v27, v25 row_ror:8 {DPPF}
        s_nop 1
        """)
        for k in range(5):
            A(f"v_mfma_f32_16x16x32_bf16 v[{64+4*k}:{67+4*k}], v[{148+4*k}:{151+4*k}], v[24:27], 0")
        A("s_mov_b32 s8, 0x00ff00ff\ns_mov_b32 s9, 0x00ff00ff\ns_mov_b64 exec, s[8:9]\ns_nop 1")
        for k in range(5):
            for r in range(4): A(f"v_min_u32 v{64+4*k+r}, -2, v{64+4*k+r}")
            A(f"buffer_store_dwordx4 v[{64+4*k}:{67+4*k}], v173, {sr(WS)}, s42 offen offset:{k*64} sc1")
        A("s_mov_b64 exec, -1")
        self.stamp(9)

    def finish(self):
        A = self.A
        A("L_fin:")
        A("s_cmp_eq_u32 s15, 0\ns_cbranch_scc1 L_noerr")
        A(f"v_mov_b32 v8, s15\ns_mov_b64 exec, 1\nbuffer_atomic_or v8, off, {sr(DBG)}, 0 offset:4 sc1\ns_mov_b64 exec, -1")
        A("L_noerr:")
        if self.stamps:
            self.stamp(10)
            A("s_waitcnt lgkmcnt(0)")
            self.srdo(STS, f"s{WS}", f"s{WS+1}", hex(STAMP_OFF), "0x100000")
            A("s_getreg_b32 s38, hwreg(HW_REG_XCC_ID)\ns_mov_b32 s39, s85")
            A(f"s_mul_i32 s8, s2, {12*8*2}")
            A(f"s_cmp_eq_u32 s3, 0\ns_cbranch_scc1 L_st\ns_cmp_eq_u32 s3, {self.redw}\ns_cbranch_scc0 L_end\ns_add_u32 s8, s8, 96\nL_st:")
            A("s_mov_b64 exec, 1")
            for k in range(12):
                A(f"v_mov_b32 v8, s{16+2*k}\nv_mov_b32 v9, s{17+2*k}\nbuffer_store_dwordx2 v[8:9], off, {sr(STS)}, s8 offset:{8*k}\ns_nop 1")
        A("L_end:\ns_endpgm")

    def tile_a(self, lab):
        self.A(f"""
        v_lshrrev_b32 v12, 2, v1
        v_mul_lo_u32 v12, v12, s99
        v_lshl_add_u32 v12, v13, 4, v12
        s_lshl_b32 s11, s99, 4
        s_mul_i32 s8, s3, s11
        s_mul_i32 s8, s8, 5
        s_mul_i32 s10, s3, 5120
        s_mov_b32 m0, s10
        s_add_u32 s9, s10, 5120
        {lab}:
        buffer_load_dwordx4 v12, {sr(TA)}, s8 offen {self.tf} lds
        s_add_u32 m0, m0, 1024
        s_add_u32 s8, s8, s11
        s_cmp_lt_u32 m0, s9
        s_cbranch_scc1 {lab}
        """)
    def subs(self):
        A = self.A
        A("F_modtile:")
        for i in range(5): A(f"buffer_load_dword v{24+i}, v6, {sr(X)}, s97 offen offset:{i*256}")
        for i in range(5): A(f"buffer_load_dword v{56+i}, v6, {sr(C)}, s97 offen offset:{i*256}")
        self.tile_a("L_mt")
        A(f"""
        s_mov_b32 s{TA+2}, 0
        s_setpc_b64 s[12:13]
        F_wqtile:
        v_lshrrev_b32 v12, 3, v1
        v_lshlrev_b32 v12, 13, v12
        v_and_b32 v14, 7, v1
        v_lshl_add_u32 v12, v14, 4, v12
        s_mov_b32 m0, {L_WQ}
        s_mov_b32 s8, 0
        L_wt:
        buffer_load_dwordx4 v12, {sr(WQ)}, s8 offen {self.tf} lds
        s_add_u32 m0, m0, 1024
        s_add_u32 s8, s8, 65536
        s_cmp_lt_u32 s8, {20*65536}
        s_cbranch_scc1 L_wt
        s_setpc_b64 s[12:13]
        F_mlptile:
        """)
        self.tile_a("L_lt")
        A(f"s_add_u32 m0, s10, {L_TB}\ns_add_u32 s8, s10, 4096")
        for u in range(4): A(f"buffer_load_dwordx4 v5, {sr(TB)}, s10 offen offset:{u*1024} {self.tf} lds")
        A(f"s_add_u32 m0, m0, 4096\ns_nop 0\nbuffer_load_dwordx4 v5, {sr(TB)}, s8 offen {self.tf} lds\ns_setpc_b64 s[12:13]")
        A("F_setup2:")
        self.setup2()
        A("s_setpc_b64 s[12:13]")
        A("F_init1:")
        A("s_mov_b64 s[42:43], s[12:13]")
        for i in range(5): self.unpack(32+2*i, 33+2*i, 56+i)
        self.silu(list(range(32, 42)), list(range(44, 54)))
        A(f"v_add_u32 v14, {L_ACT}, v7")
        for i in range(5):
            A(f"v_cvt_pk_bf16_f32 v{56+i}, v{32+2*i}, v{33+2*i}")
            A(f"ds_write_b32 v14, v{56+i} offset:{i*2048}")
        A("s_call_b64 s[12:13], F_ln")
        for i in range(5): A(f"ds_write_b32 v14, v{24+i} offset:{L_XN - L_ACT + i*2048}")
        A("s_setpc_b64 s[42:43]")
        A(f"""
        F_init2:
        s_waitcnt lgkmcnt(0)
        s_barrier
        v_lshrrev_b32 v8, 2, v3
        v_lshlrev_b32 v10, 9, v2
        v_lshl_add_u32 v10, v8, 6, v10
        v_lshl_add_u32 v10, v13, 3, v10
        s_lshr_b32 s8, s3, 1
        s_mul_i32 s9, s8, 10240
        s_and_b32 s10, s3, 1
        s_lshl_b32 s10, s10, 5
        s_add_u32 s9, s9, s10
        v_add_u32 v10, s9, v10
        v_and_b32 v8, 7, v3
        v_lshlrev_b32 v11, 6, v8
        v_lshl_add_u32 v11, v2, 4, v11
        s_mul_i32 s9, s8, 2560
        s_add_u32 s9, s9, {L_ACT}
        v_add_u32 v11, s9, v11
        """)
        for k in range(5): A(f"ds_read_b128 v[{24+4*k}:{27+4*k}], v11 offset:{k*512}")
        for k in range(5):
            r = 128 + 4*k
            A(f"ds_read_b64_tr_b16 v[{r}:{r+1}], v10 offset:{k*2048}")
            A(f"ds_read_b64_tr_b16 v[{r+2}:{r+3}], v10 offset:{k*2048 + 256}")
        A(f"s_lshl_b32 s9, s3, 10\ns_add_u32 s9, s9, {L_G1}\nv_add_u32 v11, s9, v5")
        A("s_waitcnt lgkmcnt(0)")
        for k in range(5):
            r = 128 + 4*k
            c = "0" if k == 0 else "v[44:47]"
            A(f"v_mfma_f32_16x16x32_bf16 v[44:47], v[{r}:{r+3}], v[{24+4*k}:{27+4*k}], {c}")
        A("""
        s_nop 7
        ds_write_b128 v11, v[44:47]
        s_waitcnt lgkmcnt(0)
        s_barrier
        s_setpc_b64 s[12:13]
        """)
        A("F_ln:")
        for i in range(5): self.unpack(32+2*i, 33+2*i, 24+i)
        A("v_readfirstlane_b32 s8, v32\ns_nop 1")
        for j in range(10): A(f"v_subrev_f32 v{42+j}, s8, v{32+j}")
        A("v_add_f32 v52, v42, v43\nv_mul_f32 v53, v42, v42\nv_fmac_f32 v53, v43, v43")
        for j in range(2, 10): A(f"v_add_f32 v52, v52, v{42+j}\nv_fmac_f32 v53, v{42+j}, v{42+j}")
        A("s_nop 0")
        for c in (f"row_ror:1 {DPPF}", f"row_ror:2 {DPPF}", f"row_ror:4 {DPPF}", f"row_ror:8 {DPPF}",
                  "row_bcast:15 row_mask:0xa bank_mask:0xf", "row_bcast:31 row_mask:0xc bank_mask:0xf"):
            A(f"v_add_f32_dpp v52, v52, v52 {c}\nv_add_f32_dpp v53, v53, v53 {c}\ns_nop 0")
        A(f"""
        v_readlane_b32 s9, v52, 63
        v_readlane_b32 s10, v53, 63
        v_mov_b32 v54, {hex(INV640)}
        s_nop 0
        v_mul_f32 v52, s9, v54
        v_mul_f32 v53, s10, v54
        v_fma_f32 v53, -v52, v52, v53
        v_add_f32 v52, s8, v52
        v_max_f32 v53, 0, v53
        v_cvt_pk_bf16_f32 v54, v52, v53
        v_lshlrev_b32 v52, 16, v54
        v_and_b32 v53, 0xffff0000, v54
        v_add_f32 v53, {hex(EPS)}, v53
        v_cvt_pk_bf16_f32 v54, v53, v53
        v_and_b32 v53, 0xffff0000, v54
        v_sqrt_f32 v53, v53
        """)
        for j in range(10): A(f"v_sub_f32 v{32+j}, v{32+j}, v52")
        A("v_cvt_pk_bf16_f32 v54, v53, v53\nv_and_b32 v53, 0xffff0000, v54\nv_rcp_f32 v53, v53")
        for i in range(5): A(f"v_cvt_pk_bf16_f32 v{24+i}, v{32+2*i}, v{33+2*i}")
        for i in range(5): self.unpack(32+2*i, 33+2*i, 24+i)
        for j in range(10): A(f"v_mul_f32 v{32+j}, v{32+j}, v53")
        for i in range(5): A(f"v_cvt_pk_bf16_f32 v{24+i}, v{32+2*i}, v{33+2*i}")
        A("s_setpc_b64 s[12:13]")
        A(f"""
        F_waitcnt:
        s_mov_b32 s14, {self.limit}
        L_wc:
        buffer_load_dword v8, off, {sr(DBG)}, 0 sc1
        s_waitcnt vmcnt(0)
        v_readfirstlane_b32 s8, v8
        s_nop 0
        s_cmp_ge_u32 s8, {NCLR}
        s_cbranch_scc1 L_wcd
        s_sleep 4
        s_sub_u32 s14, s14, 1
        s_cbranch_scc0 L_wc
        s_or_b32 s15, s15, 1
        L_wcd:
        s_lshl_b32 s87, s6, 3
        s_add_u32 s87, s87, s7
        s_lshl_b32 s87, s87, 2
        s_add_u32 s87, s87, {WS_FLG}
        s_mov_b64 exec, 1
        buffer_store_dword v1, off, {sr(WS)}, s87 sc1
        s_mov_b64 exec, -1
        s_setpc_b64 s[12:13]
        """)

if __name__ == "__main__":
    ap = argparse.ArgumentParser()
    ap.add_argument("-o", default="k.s"); ap.add_argument("--stamps", action="store_true")
    ap.add_argument("--depth", type=int, default=4)
    ap.add_argument("--kv", default="nt"); ap.add_argument("--wo", default="nt"); ap.add_argument("--tile", default="nt")
    ap.add_argument("--d0", type=int, default=2); ap.add_argument("--n0", type=int, default=16); ap.add_argument("--hlate", action="store_true")
    ap.add_argument("--nm", type=int, default=6)
    ap.add_argument("--exp", type=int, default=0)
    ap.add_argument("--nopf", action="store_true"); ap.add_argument("--d2", type=int, default=8)
    a = ap.parse_args()
    open(a.o, "w").write(G(stamps=a.stamps, depth=a.depth, kvf=a.kv, wof=a.wo, tf=a.tile, codepf=not a.nopf, d2=a.d2, d0=a.d0, n0=a.n0, hlate=a.hlate, nm=a.nm, exp=a.exp).gen())
```

```python
import sys, argparse
NAME = "adaLN_cond__sliding_block_cached__dense_activation_silu__decode"

WS_MOD  = 0x00000
WS_FLG  = 61440
WS_FLG2 = 62464
NCLR    = 8
WS_X1   = 0x20000
WS_DUM  = 0x28000
WS_AP   = 0x60000
WS_QP   = 0x100000
WS_OP   = 0x180000
WS_END  = WS_OP + 27*20480
STAMP_OFF = 0x20000000
L_Q   = 0
L_SM  = 256
L_FL  = 384
L_ACT = 1024
L_XN  = 11264
L_TA  = 21504
L_ST  = 62464
L_KH  = L_ST
L_WL  = L_ST + 35840
L_BN  = L_WL + 7*8192
L_END = L_BN + 2048
L_SB  = L_ACT
L_SH  = L_SB + 35840
assert L_SH + 13*1024 <= L_ST
L_W1  = L_TA
L_W2  = L_W1 + 81920
L_R2  = L_W2 + 16384
L_R1  = L_R2 + 20480
L_G1  = L_R2
assert L_R1 + 4096 <= L_END <= 163840
LOG2E = 0x3fb8aa3b
NLOG2E = 0xbfb8aa3b
SCALE = 0x3db504f3
INV640 = 0x3acccccd
EPS = 0x3727c5ac
K, V, WS, WO, TA, TB, X, C, OUT, DBG, T0 = 44, 48, 52, 56, 60, 64, 68, 72, 76, 80, 92
KH = C
STS = 40
sr = lambda r: f"s[{r}:{r+3}]"
DPPF = "row_mask:0xf bank_mask:0xf"

class G:
    def __init__(self, **kw):
        self.L = []; self.lab = 0
        self.stamps = False; self.depth = 4; self.d0 = 2; self.n0 = 16; self.kvf = "nt"; self.wof = "nt"; self.tf = "nt"
        self.limit = 40000; self.codepf = True; self.d2 = 8; self.redw = 7; self.hlate = False; self.chk = 3; self.gran = 1; self.rot = 0; self.mdeep = False; self.prio = 0; self.npat = 36; self.par = 0; self.pat = [4]; self.nref = 100; self.dl = 3; self.wx = 20; self.sr = 0; self.sx = 0; self.wo_ = 0; self.w1 = 0; self.w3 = 0; self.d1 = 4; self.nl = 13; self.hs = 'sc1'; self.ism = 18; self.te = 3; self.w1f = ''; self.oprobe = False; self.w2 = 0; self.s1 = 2; self.s2 = 2; self.probe = False; self.x = ''; self.tlate = True; self.diag = 0; self.pad = 16384; self.nfree = 8; self.nclr = 8; self.exp = 0; self.nm = 6
        self.__dict__.update(kw)
    def A(self, s):
        for x in s.split("\n"):
            x = x.strip()
            if x: self.L.append(("" if x.endswith(":") else "    ") + x)
    def newlab(self, p="L"):
        self.lab += 1; return f"{p}_{self.lab}"
    def stamp(self, k, diag=0):
        if self.stamps and diag == self.diag: self.A(f"s_memrealtime s[{16+2*k}:{17+2*k}]")
    def srd(self, d, lo, hi, size):
        self.A(f"s_mov_b32 s{d}, {lo}\ns_mov_b32 s{d+1}, {hi}\ns_mov_b32 s{d+2}, {size}\ns_mov_b32 s{d+3}, 0x20000")
    def srdo(self, d, lo, hi, off, size):
        self.A(f"s_add_u32 s{d}, {lo}, {off}\ns_addc_u32 s{d+1}, {hi}, 0\ns_mov_b32 s{d+2}, {size}\ns_mov_b32 s{d+3}, 0x20000")
    def unpack(self, lo, hi, src):
        self.A(f"v_lshlrev_b32 v{lo}, 16, v{src}\nv_and_b32 v{hi}, 0xffff0000, v{src}")
    def maxtree(self, dst, regs):
        regs = list(regs); A = self.A
        if len(regs) == 2:
            A(f"v_max_u32 v{dst}, v{regs[0]}, v{regs[1]}"); return
        A(f"v_max3_u32 v{dst}, v{regs[0]}, v{regs[1]}, v{regs[2]}"); regs = regs[3:]
        while len(regs) >= 2:
            A(f"v_max3_u32 v{dst}, v{dst}, v{regs[0]}, v{regs[1]}"); regs = regs[2:]
        if regs: A(f"v_max_u32 v{dst}, v{dst}, v{regs[0]}")
    def poll(self, loads, regs, tmp, code, first_loaded=False, sleep=1):
        A = self.A
        lp = self.newlab("Lpoll"); ck = self.newlab("Lchk"); dn = self.newlab("Lpd")
        A(f"s_mov_b32 s14, {self.limit}")
        if first_loaded: A(f"s_branch {ck}")
        A(f"{lp}:")
        for l in loads: A(l)
        A("s_waitcnt vmcnt(0)")
        A(f"{ck}:")
        self.maxtree(tmp, regs)
        A(f"v_cmp_eq_u32 vcc, -1, v{tmp}")
        A(f"s_cbranch_vccz {dn}")
        A("s_mov_b64 exec, vcc")
        if sleep: A(f"s_sleep {sleep}")
        A("s_sub_u32 s14, s14, 1")
        A(f"s_cbranch_scc0 {lp}")
        A(f"s_or_b32 s15, s15, {code}")
        A(f"{dn}:")
        A("s_mov_b64 exec, -1")
    def sleep(self, n):
        while n > 0:
            self.A(f"s_sleep {min(n, 120)}"); n -= 120
    def spin(self, off, target, code, vt=12, va=15, sleep=1):
        a = self.newlab("Lsp"); b = self.newlab("Lspd")
        self.A(f"""
        s_mov_b32 s14, {self.limit*8}
        {a}:
        ds_read_b32 v{vt}, v{va} offset:{off}
        s_waitcnt lgkmcnt(0)
        v_readfirstlane_b32 s8, v{vt}
        s_nop 0
        s_cmp_ge_u32 s8, {target}
        s_cbranch_scc1 {b}
        s_sleep {sleep}
        s_sub_u32 s14, s14, 1
        s_cbranch_scc0 {a}
        s_or_b32 s15, s15, {code}
        {b}:
        """)
    def bump(self, off, vt=12, va=15):
        self.A(f"v_mov_b32 v{vt}, 1\ns_mov_b64 exec, 1\nds_add_u32 v{va}, v{vt} offset:{off}\ns_mov_b64 exec, -1")
    def silu(self, regs, tmps):
        A = self.A
        for r, t in zip(regs, tmps): A(f"v_mul_f32 v{t}, {hex(NLOG2E)}, v{r}")
        for t in tmps: A(f"v_exp_f32 v{t}, v{t}")
        A("s_nop 0")
        for t in tmps: A(f"v_add_f32 v{t}, 1.0, v{t}")
        for t in tmps: A(f"v_rcp_f32 v{t}, v{t}")
        A("s_nop 0")
        for r, t in zip(regs, tmps): A(f"v_mul_f32 v{r}, v{r}, v{t}")

    def prologue(self):
        A = self.A
        self.L += [f"; @launch grid=(256,1,1) block=(512,1,1) lds={L_END}",
                   '.amdgcn_target "amdgcn-amd-amdhsa--gfx950"', ".text", f".globl {NAME}_kernel", ".p2align 8",
                   f".type {NAME}_kernel,@function", f"{NAME}_kernel:"]
        A("""
        s_cmp_ge_u32 s2, 256
        s_cbranch_scc1 L_end
        s_getpc_b64 s[100:101]
        s_load_dwordx16 s[16:31], s[0:1], 0
        s_load_dwordx8 s[32:39], s[0:1], 64
        s_load_dwordx2 s[40:41], s[0:1], 96
        """)
        if self.stamps: A("s_memrealtime s[42:43]")
        A("""
        v_lshrrev_b32 v1, 6, v0
        s_and_b32 s4, s2, 7
        v_readfirstlane_b32 s3, v1
        """)
        if self.codepf:
            A(f"v_mul_u32_u24 v8, {self.pad//512}, v0\nglobal_load_dwordx4 v[24:27], v8, s[100:101] offset:-16")
        A(f"""
        v_and_b32 v1, 63, v0
        v_lshrrev_b32 v2, 4, v1
        v_and_b32 v3, 15, v1
        v_lshlrev_b32 v4, 6, v3
        v_lshl_add_u32 v4, v2, 4, v4
        v_lshlrev_b32 v5, 4, v1
        v_lshlrev_b32 v6, 2, v1
        v_and_b32 v13, 3, v1
        s_lshr_b32 s5, s2, 3
        s_lshl_b32 s6, s4, 2
        s_and_b32 s8, s5, 3
        s_add_u32 s6, s6, s8
        s_lshr_b32 s7, s5, 2
        s_lshl_b32 s8, s7, 5
        s_add_u32 s84, s8, s6
        s_lshl_b32 s14, s84, 20
        s_mul_i32 s9, s3, {self.gran*1024}
        s_add_u32 s14, s14, s9
        s_mul_i32 s89, s2, {self.rot*1024}
        s_and_b32 s89, s89, 0x3ffff
        s_add_u32 s14, s14, 0xC0000
        s_mov_b32 s15, 0
        s_mul_i32 s97, s3, 1280
        s_and_b32 s8, s5, 15
        s_lshr_b32 s8, s8, 1
        s_lshl_b32 s9, s8, 3
        s_add_u32 s9, s9, s4
        s_lshl_b32 s91, s9, 1
        s_and_b32 s10, s5, 1
        s_add_u32 s91, s91, s10
        s_mul_i32 s11, s3, 5120
        s_add_u32 m0, s11, {L_TA}
        v_mov_b32 v15, {L_FL}
        v_mov_b32 v8, 0
        v_mov_b32 v9, 0
        v_mov_b32 v10, 0
        v_mov_b32 v11, 0
        ds_write_b128 v15, v[8:11]
        s_nop 1
        v_mov_b32 v8, -1
        v_mov_b32 v9, -1
        v_mov_b32 v10, -1
        v_mov_b32 v11, -1
        s_cmp_lt_u32 s5, 16
        s_cbranch_scc1 L_p_mod
        s_mov_b32 s85, 1
        v_lshrrev_b32 v12, 3, v1
        v_lshlrev_b32 v12, 13, v12
        v_and_b32 v14, 7, v1
        v_lshl_add_u32 v12, v14, 4, v12
        s_lshl_b32 s99, s4, 3
        s_add_u32 s99, s99, s8
        s_lshl_b32 s9, s99, 7
        s_mul_i32 s10, s10, {320*8192}
        s_add_u32 s9, s9, s10
        s_mov_b32 s11, {8*8192}
        s_waitcnt lgkmcnt(0)
        s_add_u32 s{T0}, s22, s9
        s_addc_u32 s{T0+1}, s23, 0
        s_sub_u32 s{T0+2}, {640*8192}, s9
        s_branch L_p_j
        L_p_mod:
        s_mov_b32 s85, 2
        v_lshrrev_b32 v12, 2, v1
        v_mul_u32_u24 v12, 7680, v12
        v_lshl_add_u32 v12, v13, 4, v12
        s_lshl_b32 s9, s91, 6
        s_mov_b32 s11, {16*7680}
        """)
        if 'f' in self.x: A(f"""
        v_lshrrev_b32 v12, 3, v1
        v_mul_u32_u24 v12, 7680, v12
        v_and_b32 v14, 7, v1
        v_lshl_add_u32 v12, v14, 4, v12
        s_lshr_b32 s9, s91, 1
        s_lshl_b32 s9, s9, 7
        s_mul_i32 s10, s10, {320*7680}
        s_add_u32 s9, s9, s10
        s_mov_b32 s11, {8*7680}
        """)
        A(f"""
        s_mov_b32 s99, 0
        s_waitcnt lgkmcnt(0)
        s_add_u32 s{T0}, s34, s9
        s_addc_u32 s{T0+1}, s35, 0
        s_sub_u32 s{T0+2}, {640*7680}, s9
        s_cmp_lt_u32 s91, 120
        s_cbranch_scc1 L_p_j
        s_mov_b32 s85, 8
        s_mov_b32 s{T0+2}, 0
        L_p_j:
        s_mov_b32 s{T0+3}, 0x20000
        """)
        if 'n' in self.x: A(f"s_mov_b32 s{T0+2}, 0\ns_mov_b32 s85, 1")
        self.srd(WS, "s40", "s41", hex(WS_END))
        self.srd(DBG, "s38", "s39", 256)
        self.srd(X, "s16", "s17", 10240); self.srd(C, "s32", "s33", 10240)
        A(f"""
        s_cmp_eq_u32 s3, 0
        s_cbranch_scc0 L_p_nh
        s_setprio 3
        s_cmp_eq_u32 s85, 8
        s_cbranch_scc0 L_p_nc
        s_sub_u32 s8, s91, 120
        s_lshl_b32 s8, s8, 13
        s_add_u32 s9, s8, 4096
        """)
        for i in range(8):
            A(f"buffer_store_dwordx4 v[8:11], v5, {sr(WS)}, {'s8' if i < 4 else 's9'} offen offset:{(i%4)*1024} sc1")
        A(f"""
        s_waitcnt vmcnt(0)
        v_mov_b32 v14, 1
        s_mov_b64 exec, 1
        buffer_atomic_add v14, off, {sr(DBG)}, 0 sc1
        s_mov_b64 exec, -1
        L_p_nc:
        s_lshl_b32 s87, s6, 3
        s_add_u32 s87, s87, s7
        s_lshl_b32 s8, s87, 10
        s_add_u32 s8, s8, {hex(WS_QP)}
        buffer_store_dwordx4 v[8:11], v5, {sr(WS)}, s8 offen sc1
        L_p_nh:
        s_cmp_eq_u32 s85, 2
        s_cbranch_scc0 L_p_nxc
        """)
        for i in range(5): A(f"buffer_load_dword v{24+i}, v6, {sr(X)}, s97 offen offset:{i*256}")
        for i in range(5): A(f"buffer_load_dword v{56+i}, v6, {sr(C)}, s97 offen offset:{i*256}")
        A("L_p_nxc:\ns_mul_i32 s8, s3, s11\ns_mul_i32 s8, s8, 5")
        for u in range(5):
            A(f"buffer_load_dwordx4 v12, {sr(T0)}, s8 offen {self.tf} lds")
            if u < 4: A("s_add_u32 m0, m0, 1024\ns_add_u32 s8, s8, s11")
        self.srdo(K, "s18", "s19", "s14", 0x40000 - 7*self.gran*1024)
        A("s_waitcnt lgkmcnt(0)\ns_barrier")

    def setup2(self):
        A = self.A
        self.srdo(V, "s20", "s21", "s14", 0x40000 - 7*self.gran*1024)
        A("""
        s_lshl_b32 s8, s6, 7
        s_lshl_b32 s9, s3, 4
        s_add_u32 s8, s8, s9
        s_mul_i32 s8, s8, 1280
        """)
        self.srdo(WO, "s24", "s25", "s8", 20480)
        self.srd(OUT, "s36", "s37", 10240)
        A("s_lshl_b32 s8, s84, 20\ns_add_u32 s8, s8, 0xC0000")
        self.srdo(KH, "s18", "s19", "s8", "0x40000")
        A(f"""
        s_sub_u32 s96, 31, s5
        s_mul_i32 s8, s96, 52
        s_lshr_b32 s8, s8, 8
        s_mul_i32 s9, s8, 5
        s_sub_u32 s9, s96, s9
        s_lshl_b32 s8, s8, 3
        s_add_u32 s8, s8, s4
        s_lshl_b32 s10, s8, 7
        s_add_u32 s{TA}, s28, s10
        s_addc_u32 s{TA+1}, s29, 0
        s_sub_u32 s{TA+2}, {640*3456}, s10
        s_mov_b32 s{TA+3}, 0x20000
        s_mul_i32 s10, s8, {64*1280}
        s_lshl_b32 s11, s9, 8
        s_add_u32 s10, s10, s11
        s_add_u32 s{TB}, s30, s10
        s_addc_u32 s{TB+1}, s31, 0
        s_sub_u32 s{TB+2}, {64*1280}, s11
        s_mov_b32 s{TB+3}, 0x20000
        s_mul_i32 s101, s8, 20480
        s_lshl_b32 s11, s9, 12
        s_add_u32 s101, s101, s11
        s_add_u32 s101, s101, {hex(WS_OP)}
        s_cmp_lt_u32 s8, 27
        s_cselect_b32 s100, 1, 0
        s_sub_u32 s96, s96, 20
        s_cmp_lt_u32 s96, 10
        s_cselect_b32 s100, 2, s100
        s_lshl_b32 s96, s96, 1
        s_and_b32 s8, s3, 1
        s_add_u32 s96, s96, s8
        s_lshl_b32 s11, s96, 7
        s_mul_i32 s90, s4, 2560
        s_add_u32 s90, s90, s11
        """)
        if 't' in self.x: A("s_mov_b32 s100, 0")
        A(f"""
        s_lshl_b32 s88, s3, 13
        s_add_u32 s88, s88, {L_WL - 8192}
        s_lshl_b32 s10, s3, 6
        v_lshlrev_b32 v7, 9, v2
        v_lshl_add_u32 v7, v3, 2, v7
        v_add_u32 v7, s10, v7
        v_mul_u32_u24 v0, 5120, v2
        v_lshl_add_u32 v0, v3, 4, v0
        v_and_b32 v8, 1, v3
        v_lshlrev_b32 v8, 4, v8
        v_mov_b32 v9, 0xffff
        v_lshlrev_b32 v9, v8, v9
        v_lshrrev_b32 v8, 1, v3
        """)
        for r in range(4):
            A(f"v_cmp_eq_u32 vcc, {r}, v8\ns_nop 1\nv_cndmask_b32 v{16+r}, 0, v9, vcc")
        if self.stamps: A("s_mov_b32 s16, s42\ns_mov_b32 s17, s43")
        A("s_mov_b32 s98, 2048")

    def gen(self):
        A = self.A; d = self.depth
        KR = 64
        VR = [192 + 4*i for i in range(16)] + [64 + 4*i for i in range(16)]
        WOR = [128 + 4*i for i in range(16)] + [48 + 4*i for i in range(4)]
        gr = self.gran
        assert self.rot % (8*gr) == 0
        def soff(i):
            if i % gr == 0:
                if self.rot: A(f"s_add_u32 s86, s89, {(i//gr)*gr*8192}\ns_and_b32 s86, s86, 0x3ffff")
                else: A(f"s_mov_b32 s86, {(i//gr)*gr*8192}")
        def kload(i):
            soff(i)
            A(f"buffer_load_dwordx4 v[{KR+4*i}:{KR+4*i+3}], v4, {sr(K)}, s86 offen offset:{(i%gr)*1024} {self.kvf}")
        def vload(i):
            soff(i)
            A(f"buffer_load_dwordx4 v[{VR[i]}:{VR[i]+3}], v5, {sr(V)}, s86 offen offset:{(i%gr)*1024} {self.kvf}")
        def woload(j):
            g, cb = divmod(j, 5)
            off = g*1280 + cb*256
            so = "0" if off < 4096 else "s98"
            if off >= 4096: off -= 2048
            A(f"buffer_load_dwordx4 v[{WOR[j]}:{WOR[j]+3}], v0, {sr(WO)}, {so} offen offset:{off} {self.wof}")
        def hload(u):
            A(f"""
            s_add_u32 s8, s3, {7*u - 1}
            s_lshl_b32 s9, s8, 10
            s_add_u32 m0, s9, {L_KH}
            s_and_b32 s10, s9, {(gr-1)*1024}
            s_sub_u32 s9, s9, s10
            s_lshl_b32 s9, s9, 3
            s_add_u32 s9, s9, s89
            s_and_b32 s9, s9, 0x3ffff
            s_add_u32 s9, s9, s10
            """)
            if u == 4: A("s_cmp_ge_u32 s8, 32\ns_cselect_b32 s9, 0x40000, s9")
            A(f"buffer_load_dwordx4 v4, {sr(KH)}, s9 offen {self.kvf} lds")
        def wlload(j, helper=False):
            g, cb = divmod(j, 5); off = g*1280 + cb*256
            if helper: A(f"s_mov_b32 m0, {L_SH + j*1024 - off}\ns_nop 0")
            elif j < 8: A(f"s_add_u32 m0, s88, {j*1024 - off}\ns_nop 0")
            else:
                if j == 8:
                    A(f"""
                    s_mov_b32 s14, {self.limit*8}
                    L_sb:
                    ds_read_b32 v12, v15
                    s_waitcnt lgkmcnt(0)
                    v_readfirstlane_b32 s8, v12
                    s_nop 0
                    s_cmp_lg_u32 s8, 0
                    s_cbranch_scc1 L_sbd
                    s_sleep 2
                    s_sub_u32 s14, s14, 1
                    s_cbranch_scc0 L_sb
                    s_or_b32 s15, s15, 512
                    L_sbd:
                    """)
                A(f"s_mov_b32 s8, {off}\ns_add_u32 m0, s87, {L_SB + (j-8)*1024}\ns_nop 0")
                A(f"buffer_load_dwordx4 v0, {sr(WO)}, s8 offen {self.wof} lds"); return
            A(f"buffer_load_dwordx4 v0, {sr(WO)}, 0 offen offset:{off} {self.wof} lds")
        nl = self.nl
        kseq = []
        base = []
        for i in range(32):
            base.append(("K", i))
            if i % 6 == 5 and i//6 < 5: base.append(("H", i//6))
        for i in range(16): base.append(("V", i))
        lo, hi = 9, len(base) - self.depth
        pos = {lo + (j*(hi - lo))//nl: j for j in range(nl)}
        assert len(pos) == nl
        for n, op in enumerate(base):
            if n in pos: kseq.append(("L", pos[n]))
            kseq.append(op)
        def issue(op): {"K": kload, "V": vload, "W": woload, "H": hload, "L": wlload}[op[0]](op[1])
        d0 = self.d0

        self.prologue()
        nm = self.nm
        assert all(op[0] == "K" for op in kseq[:nm]) and nm <= 10
        A("s_cmp_eq_u32 s3, 0\ns_cbranch_scc1 L_c_j")
        for i in range(nm): kload(i)
        A("L_c_j:")
        self.setup2()
        self.stamp(1, 1)
        A(f"s_cmp_eq_u32 s85, 2\ns_cbranch_scc0 L_c_a\ns_waitcnt vmcnt({5+nm})")
        A("s_cmp_eq_u32 s3, 0\ns_cbranch_scc0 L_c_i1\ns_waitcnt vmcnt(5)\nL_c_i1:")
        self.stamp(2, 1)
        self.init1()
        A("L_c_a:")
        self.stamp(3, 1)
        A("s_cmp_eq_u32 s3, 0\ns_cbranch_scc1 L_helper")
        AF = lambda k, nt: (64 + 4*(k*4+nt)) if k < 8 else (208 + 4*((k-8)*4+nt))
        A(f"""
        s_mul_i32 s87, s3, 5120
        s_sub_u32 s87, s87, 5120
        s_mov_b64 vcc, -1
        v_mov_b32 v14, 1
        """)
        if self.prio == 1: A("s_cmp_ge_u32 s3, 4\ns_cbranch_scc0 L_np\ns_setprio 1\nL_np:")
        if self.prio == 2: A("s_cmp_ge_u32 s3, 3\ns_cbranch_scc0 L_np\ns_setprio 1\ns_cmp_ge_u32 s3, 6\ns_cbranch_scc0 L_np\ns_setprio 2\nL_np:")
        A(f"""
        s_getreg_b32 s8, hwreg(HW_REG_XCC_ID)
        s_and_b32 s8, s8, 7
        s_bitcmp1_b32 {self.par}, s8
        s_cselect_b32 s94, -1, 2
        """)
        if self.mdeep: A("s_cmp_eq_u32 s85, 2\ns_cselect_b32 s94, 0, s94\ns_cselect_b64 vcc, 0, -1")
        A(f"""
        s_waitcnt vmcnt({nm}) lgkmcnt(0)
        s_mov_b64 exec, 1
        ds_add_u32 v15, v14 offset:4
        s_mov_b64 exec, -1
        """)
        self.stamp(4, 1)
        hdone = kseq.index(("H", 4)) + d
        for n, op in enumerate(kseq):
            if n < nm: continue
            if n == self.nclr: self.late_clears()
            if n < self.n0: A(f"s_waitcnt vmcnt({d0-1})")
            else:
                if (n - self.n0) % self.chk == 0 and n <= self.nref:
                    if n > self.n0: A("s_waitcnt lgkmcnt(0)\nv_cmp_gt_u32 vcc, s94, v14")
                    A("ds_read_b32 v14, v15")
                lb = self.newlab("Ld")
                A(f"s_cbranch_vccz {lb}\ns_waitcnt vmcnt({(d0 if n < self.npat else self.pat[n % len(self.pat)])-1})\n{lb}:\ns_waitcnt vmcnt({d-1})")
            if n == hdone: self.bump(8)
            issue(op)
            if n in (16, 32, 48): self.stamp(n//16)
        assert all(op[0] not in "HL" for op in kseq[-d:])
        self.stamp(9); self.stamp(1, 3)
        A("s_cmp_eq_u32 s94, -1\ns_cselect_b64 s[92:93], -1, 0")
        self.spin(0, 2, 1024)
        A("s_branch L_qk")
        A(f"""
        L_helper:
        """)
        if 'p' in self.x or 'r' in self.x: A("s_branch L_noexp")
        if 'e' in self.x: A("v_mov_b32 v11, 1\nds_write_b32 v15, v11")
        if 'e' in self.x or 'p' in self.x or 'r' in self.x: A(f"""
        L_exp:
        s_add_u32 s8, s16, {self.exp*100}
        L_exp_poll:
        s_sleep 4
        s_memrealtime s[10:11]
        s_waitcnt lgkmcnt(0)
        s_sub_u32 s10, s8, s10
        s_cmp_gt_i32 s10, 0
        s_cbranch_scc1 L_exp_poll
        ds_write_b32 v15, v15
        s_branch L_exp_j
        L_noexp:
        """)
        A("s_waitcnt vmcnt(0)")
        A(f"buffer_load_dword v12, off, {sr(DBG)}, 0 sc1" if 'b' not in self.x else "v_mov_b32 v12, 8")
        A(f"""
        s_mov_b32 s14, {self.limit*8}
        L_ht:
        ds_read_b32 v14, v15 offset:4
        s_waitcnt lgkmcnt(0)
        v_readfirstlane_b32 s8, v14
        s_nop 0
        s_cmp_ge_u32 s8, 7
        s_cbranch_scc1 L_htd
        s_sleep 1
        s_sub_u32 s14, s14, 1
        s_cbranch_scc0 L_ht
        s_or_b32 s15, s15, 256
        L_htd:
        """)
        self.stamp(9); self.stamp(5, 1)
        A(f"""
        v_lshrrev_b32 v8, 2, v3
        s_cmp_eq_u32 s85, 2
        s_cbranch_scc1 L_h_mod
        v_lshlrev_b32 v10, 10, v2
        v_lshl_add_u32 v10, v8, 7, v10
        v_lshl_add_u32 v10, v13, 3, v10
        """)
        for k in range(10):
            for nt in range(4):
                r = AF(k, nt)
                A(f"ds_read_b64_tr_b16 v[{r}:{r+1}], v10 offset:{L_TA + k*4096 + nt*32}")
                A(f"ds_read_b64_tr_b16 v[{r+2}:{r+3}], v10 offset:{L_TA + k*4096 + nt*32 + 512}")
        A(f"""
        v_and_b32 v8, 7, v3
        v_lshrrev_b32 v9, 3, v3
        s_branch L_h_cnt
        L_h_mod:
        v_lshlrev_b32 v10, 9, v2
        v_lshl_add_u32 v10, v8, 6, v10
        v_lshl_add_u32 v10, v13, 3, v10
        """)
        def rd(i):
            A(f"ds_read_b128 v[{24+4*i}:{27+4*i}], v4 offset:{L_ACT + i*1024}")
            for par in range(2):
                for nt in range(2):
                    r = 64 + 4*((2*i+par)*2+nt)
                    A(f"ds_read_b64_tr_b16 v[{r}:{r+1}], v10 offset:{L_TA + (2*i+par)*2048 + nt*32}")
                    A(f"ds_read_b64_tr_b16 v[{r+2}:{r+3}], v10 offset:{L_TA + (2*i+par)*2048 + nt*32 + 256}")
        if self.stamps: A("s_waitcnt lgkmcnt(0)")
        rd(0)
        for i in range(10):
            if i < 9:
                rd(i+1); A("s_waitcnt lgkmcnt(9)")
            else: A("s_waitcnt lgkmcnt(0)")
            for par in range(2):
                for nt in range(2):
                    r = 64 + 4*((2*i+par)*2+nt); a_ = 224 + 8*par + 4*nt
                    c = "0" if i == 0 else f"v[{a_}:{a_+3}]"
                    A(f"v_mfma_f32_16x16x32_bf16 v[{a_}:{a_+3}], v[{r}:{r+3}], v[{24+4*i}:{27+4*i}], {c}")
        A(f"""
        v_and_b32 v8, 7, v3
        v_lshrrev_b32 v9, 3, v3
        v_lshlrev_b32 v15, 6, v8
        v_lshl_add_u32 v15, v9, 5, v15
        v_lshl_add_u32 v15, v2, 3, v15
        s_lshl_b32 s9, s91, 9
        s_add_u32 s8, s9, {L_XN - 20*512}
        v_add_u32 v14, s8, v15
        s_nop 1
        """)
        for r in range(4):
            A(f"v_add_f32_dpp v{24+r}, v{232+r}, v{224+r} row_ror:8 row_mask:0xf bank_mask:0x3")
            A(f"v_add_f32_dpp v{24+r}, v{228+r}, v{236+r} row_ror:8 row_mask:0xf bank_mask:0xc")
        A("v_cvt_pk_bf16_f32 v40, v24, v25\nv_cvt_pk_bf16_f32 v41, v26, v27")
        A("s_sub_u32 s8, s91, 20\ns_cmp_lt_u32 s8, 20\ns_cbranch_scc0 L_h_pub")
        A("ds_read_b64 v[42:43], v14")
        for j in range(2): self.unpack(24+2*j, 25+2*j, 40+j)
        for r in range(4): A(f"v_add_f32 v{24+r}, 1.0, v{24+r}")
        for j in range(2): A(f"v_cvt_pk_bf16_f32 v{40+j}, v{24+2*j}, v{25+2*j}")
        for j in range(2): self.unpack(24+2*j, 25+2*j, 40+j)
        A("s_waitcnt lgkmcnt(0)")
        for j in range(2): self.unpack(28+2*j, 29+2*j, 42+j)
        for r in range(4): A(f"v_mul_f32 v{24+r}, v{24+r}, v{28+r}")
        for j in range(2): A(f"v_cvt_pk_bf16_f32 v{40+j}, v{24+2*j}, v{25+2*j}")
        A("L_h_pub:")
        for j in range(2): A(f"v_min_u32 v{40+j}, -2, v{40+j}")
        A(f"v_add_u32 v15, {L_BN}, v15\nv_add_u32 v14, {L_BN}, v5\nds_write_b64 v15, v[40:41]\nds_read_b128 v[40:43], v14")
        A(f"""
        L_h_cnt:
        v_mov_b32 v10, {L_FL}
        v_mov_b32 v11, 1
        s_waitcnt lgkmcnt(0)
        ds_write_b32 v10, v11
        s_mov_b32 s14, {self.limit}
        L_wc:
        s_waitcnt vmcnt(0)
        v_readfirstlane_b32 s8, v12
        s_nop 0
        s_cmp_ge_u32 s8, {NCLR}
        s_cbranch_scc1 L_wcd
        s_sleep 2
        buffer_load_dword v12, off, {sr(DBG)}, 0 sc1
        s_sub_u32 s14, s14, 1
        s_cbranch_scc0 L_wc
        s_or_b32 s15, s15, 1
        L_wcd:
        s_cmp_eq_u32 s85, 2
        s_cbranch_scc0 L_h_np
        s_mov_b32 exec_hi, 0
        buffer_store_dwordx4 v[40:43], v5, {sr(WS)}, s9 offen sc1
        L_h_np:
        s_lshl_b32 s8, s87, 2
        s_add_u32 s8, s8, {WS_FLG}
        s_mov_b64 exec, 1
        """)
        if 'a' not in self.x: A(f"buffer_store_dword v1, off, {sr(WS)}, s8 sc1")
        A("s_mov_b64 exec, -1")
        if 'p' in self.x: A(f"v_mov_b32 v15, {L_FL}\ns_branch L_exp")
        self.stamp(1); self.stamp(6, 1)
        A("s_bitcmp1_b32 s85, 0\ns_cbranch_scc0 L_h_getq0")
        A(f"""
        v_mul_u32_u24 v12, 10240, v9
        v_lshl_add_u32 v12, v8, 6, v12
        v_lshl_add_u32 v12, v2, 4, v12
        v_lshlrev_b32 v14, 2, v8
        v_lshlrev_b32 v15, 8, v8
        v_lshl_add_u32 v15, v9, 6, v15
        v_lshl_add_u32 v15, v2, 4, v15
        v_add_u32 v15, {L_BN}, v15
        s_and_b32 s10, s5, 1
        s_mul_i32 s8, s10, 5120
        s_add_u32 s42, s8, 2560
        s_lshr_b32 s11, s99, 1
        s_lshl_b32 s9, s11, 5
        s_add_u32 s9, s9, {WS_FLG}
        s_lshl_b32 s11, s11, 13
        s_lshl_b32 s10, s10, 9
        s_add_u32 s11, s11, s10
        s_and_b32 s10, s99, 1
        s_lshl_b32 s10, s10, 8
        s_add_u32 s11, s11, s10
        s_add_u32 s11, s11, {hex(WS_QP)}
        """)
        loads = [f"buffer_load_dwordx4 v[{24+4*k}:{27+4*k}], v12, {sr(WS)}, {'s8' if k < 5 else 's42'} offen offset:{(k%5)*512} sc1" for k in range(10)]
        if self.probe:
            A(f"""
            v_lshlrev_b32 v10, 9, v1
            v_add_u32 v10, 508, v10
            v_add_u32 v11, 5120, v10
            v_cmp_lt_u32 vcc, 9, v1
            s_nop 1
            v_cndmask_b32 v10, v10, v11, vcc
            s_mov_b64 exec, 0xfffff
            """)
            self.poll([f"buffer_load_dword v240, v10, {sr(WS)}, s8 offen sc1"], [240, 240], 241, 2, sleep=self.s1)
        if 'i' in self.x:
            for _ in range(3): A("s_sleep 64")
            for l in loads: A(l)
            A("s_waitcnt vmcnt(0)")
        else:
            self.sleep(self.w1)
            self.poll(loads, list(range(24, 64)), 241, 2, sleep=self.s1)
        fl = f"buffer_load_dword v12, v14, {sr(WS)}, s9 offen sc1"
        A(fl)
        self.stamp(2)
        A("v_cmp_lt_u32 vcc, 7, v3\ns_waitcnt lgkmcnt(0)")
        for k in range(10):
            for j in (4*k, 4*k+2):
                self.unpack(240, 241, 24+j); self.unpack(242, 243, 25+j)
                for r in range(4): A(f"v_add_f32_dpp v{244+r}, v{240+r}, v{240+r} row_ror:8 {DPPF}")
                A(f"v_cvt_pk_bf16_f32 v{24+j}, v244, v245\nv_cvt_pk_bf16_f32 v{25+j}, v246, v247")
            if k >= 1:
                kk = k - 1
                for nt in range(4):
                    r = AF(kk, nt); a_ = [8, 20, 248, 252][nt]
                    c = "0" if kk == 0 else f"v[{a_}:{a_+3}]"
                    A(f"v_mfma_f32_16x16x32_bf16 v[{a_}:{a_+3}], v[{r}:{r+3}], v[{24+4*kk}:{27+4*kk}], {c}")
        for nt in range(4):
            r = AF(9, nt); a_ = [8, 20, 248, 252][nt]
            A(f"v_mfma_f32_16x16x32_bf16 v[{a_}:{a_+3}], v[{r}:{r+3}], v[60:63], v[{a_}:{a_+3}]")
        A("s_nop 5")
        for j, (a0, a1) in enumerate(((8, 20), (248, 252))):
            for r in range(4): A(f"v_cndmask_b32 v{24+4*j+r}, v{a0+r}, v{a1+r}, vcc")
            for r in range(4): A(f"v_min_u32 v{24+4*j+r}, -2, v{24+4*j+r}")
        A(f"""
        ds_write_b128 v15, v[24:27]
        ds_write_b128 v15, v[28:31] offset:128
        v_add_u32 v15, {L_BN}, v5
        ds_read_b128 v[32:35], v15
        ds_read_b128 v[36:39], v15 offset:1024
        v_lshlrev_b32 v15, 10, v2
        v_lshl_add_u32 v15, v3, 4, v15
        s_add_u32 s10, s11, 4096
        s_waitcnt vmcnt(0)
        """)
        self.poll([fl], [12, 12], 241, 2, first_loaded=True, sleep=4)
        A(f"""
        s_waitcnt lgkmcnt(0)
        buffer_store_dwordx4 v[32:35], v15, {sr(WS)}, s11 offen sc1
        buffer_store_dwordx4 v[36:39], v15, {sr(WS)}, s10 offen sc1
        """)
        self.stamp(8)
        self.sleep(self.w3)
        A("s_branch L_h_getq\nL_h_getq0:")
        self.sleep(self.w2)
        A(f"""
        L_h_getq:
        """)
        if 'r' in self.x: A(f"v_mov_b32 v15, {L_FL}\ns_branch L_exp")
        A(f"""
        v_lshlrev_b32 v12, 3, v1
        v_add_u32 v14, {L_Q}, v6
        s_lshl_b32 s8, s87, 10
        s_add_u32 s8, s8, {hex(WS_QP)}
        """)
        loads = [f"buffer_load_dwordx2 v[{40+2*k}:{41+2*k}], v12, {sr(WS)}, s8 offen offset:{k*512} sc1" for k in range(2)]
        self.poll(loads, range(40, 44), 45, 4, sleep=self.s2)
        A(f"""
        v_add_f32 v32, v40, v42
        v_add_f32 v33, v41, v43
        v_mov_b32 v15, {L_FL}
        v_cvt_pk_bf16_f32 v32, v32, v33
        ds_write_b32 v14, v32
        s_waitcnt lgkmcnt(0)
        ds_write_b32 v15, v15
        """)
        self.stamp(3)
        A("L_exp_j:\ns_setprio 0")
        for j in range(nl): wlload(j, True)
        for i in range(16): vload(i)
        A("s_mov_b64 s[92:93], 0")
        self.spin(8, 7, 2048)
        A(f"""
        s_lshl_b32 s8, s2, 2
        s_add_u32 s8, s8, {WS_FLG2}
        s_mov_b64 exec, 1
        buffer_store_dword v1, off, {sr(WS)}, s8 sc1
        s_mov_b64 exec, -1
        v_add_u32 v8, {L_KH}, v5
        """)
        for i in range(32): A(f"ds_read_b128 v[{KR+4*i}:{KR+4*i+3}], v8 offset:{i*1024}")
        A("L_qk:")
        order = [op for op in kseq if op[0] in "KV"]
        def iss(op):
            issue(op); order.append(op)
        def waitfor(op):
            A(f"s_waitcnt vmcnt({len(order) - 1 - order.index(op)})")
        A(f"""
        v_lshlrev_b32 v8, 6, v13
        v_lshl_add_u32 v8, v2, 4, v8
        v_add_u32 v8, {L_Q}, v8
        ds_read_b128 v[24:27], v8
        v_lshrrev_b32 v9, 2, v3
        s_waitcnt lgkmcnt(0)
        """)
        for t in range(4):
            A(f"v_cmp_eq_u32 vcc, {t}, v9\ns_nop 1")
            for r in range(4): A(f"v_cndmask_b32 v{32+4*t+r}, 0, v{24+r}, vcc")
        A("s_nop 1")
        for half in range(2):
            for gg in range(4):
                g = half*4 + gg
                waitfor(("K", 4*g+3))
                for t in range(4):
                    i = 4*g + t
                    c = "0" if t == 0 else f"v[{48+4*gg}:{51+4*gg}]"
                    A(f"v_mfma_f32_16x16x32_bf16 v[{48+4*gg}:{51+4*gg}], v[{KR+4*i}:{KR+4*i+3}], v[{32+4*t}:{35+4*t}], {c}")
            A("s_nop 7")
            for j in range(4):
                for gg in range(4):
                    g = half*4 + gg
                    if j == 0: A(f"v_mov_b32_dpp v{24+g}, v{48+4*gg} quad_perm:[0,0,0,0] {DPPF}")
                    else: A(f"v_add_f32_dpp v{24+g}, v{48+4*gg+j}, v{24+g} quad_perm:[{j},{j},{j},{j}] {DPPF}")
            A("s_nop 1")
        self.stamp(4)
        A(f"""
        s_add_u32 s9, s87, {L_SB}
        s_cmp_eq_u32 s3, 0
        s_cselect_b32 s8, {L_SH}, s88
        s_cselect_b32 s9, {L_SH + 8192}, s9
        v_add_u32 v8, s8, v5
        v_add_u32 v9, s9, v5
        s_waitcnt vmcnt(16)
        """)
        for j in range(nl): A(f"ds_read_b128 v[{WOR[j]}:{WOR[j]+3}], {'v8' if j < 8 else 'v9'} offset:{(j%8)*1024}")
        post = []
        ws_ = list(range(nl, 20)); vs_ = list(range(16, 32))
        while ws_ or vs_:
            if ws_: post.append(("W", ws_.pop(0)))
            if vs_: post.append(("V", vs_.pop(0)))
        npre = self.d1; assert npre < len(post)
        for op in post[:npre]: iss(op)
        self.softmax1()
        A("s_mov_b64 vcc, s[92:93]")
        for n, op in enumerate(post[npre:]):
            if self.par:
                lb = self.newlab("Ld")
                A(f"s_cbranch_vccz {lb}\ns_waitcnt vmcnt({self.pat[n % len(self.pat)]-1})\n{lb}:")
            A(f"s_waitcnt vmcnt({self.d2-1})")
            iss(op)
        self.stamp(5)
        self.softmax2()
        def abuild(i):
            base = 32 + 4*(i % 2)
            for r in range(4):
                A(f"v_and_b32_dpp v{base+r}, v{24+i//4}, v{16+r} row_newbcast:{4*(i%4)} {DPPF}")
        abuild(0)
        last = self.d2
        for i in range(32):
            if i + 1 < 32: abuild(i+1)
            else: A("s_nop 1")
            n = len(order) - 1 - order.index(("V", i))
            if n < last: A(f"s_waitcnt vmcnt({n})"); last = n
            r = VR[i]; base = 32 + 4*(i % 2)
            c = "0" if i == 0 else "v[20:23]"
            A(f"v_mfma_f32_16x16x32_bf16 v[20:23], v[{base}:{base+3}], v[{r}:{r+3}], {c}")
            if i == 8:
                self.small_loads()
                for u in range(11): order.append(("S", u))
                last += 11
        self.stamp(2, 3)
        if self.te:
            A("s_cmp_eq_u32 s100, 1\ns_cbranch_scc0 L_not")
            self.tload(0, self.te)
            A("L_not:")
        self.tail1(WOR)
        if 's' in self.x: A("s_branch L_fin")
        A("s_cmp_eq_u32 s100, 1\ns_cbranch_scc1 L_mlp")
        A("s_cmp_eq_u32 s100, 2\ns_cbranch_scc0 L_fin")
        A("s_cmp_lt_u32 s3, 6\ns_cbranch_scc1 L_fin")
        self.reducer()
        self.mlp()
        self.finish()
        self.subs()
        L = self.L
        L.append(f".fill ({self.pad} - (. - {NAME}_kernel))/4, 4, 0xbf800000")
        L += ['.section .rodata,"a"', ".p2align 6", f".amdhsa_kernel {NAME}_kernel",
              "  .amdhsa_next_free_vgpr 256", "  .amdhsa_next_free_sgpr 102", "  .amdhsa_accum_offset 256",
              "  .amdhsa_group_segment_fixed_size 0", "  .amdhsa_kernarg_size 104", "  .amdhsa_user_sgpr_count 2",
              "  .amdhsa_user_sgpr_kernarg_segment_ptr 1", "  .amdhsa_system_sgpr_workgroup_id_x 1", ".end_amdhsa_kernel"]
        return "\n".join(L) + "\n"

    def late_clears(self):
        self.A(f"""
        v_mov_b32 v8, -1
        v_mov_b32 v9, -1
        v_mov_b32 v10, -1
        v_mov_b32 v11, -1
        s_cmp_gt_u32 s3, 3
        s_cbranch_scc1 L_lc_b
        s_mul_i32 s8, s84, 2560
        s_lshl_b32 s9, s3, 10
        s_add_u32 s8, s8, s9
        s_add_u32 s8, s8, {WS_AP - 1024}
        s_cmp_lt_u32 s3, 3
        s_cbranch_scc1 L_lc_st
        s_mov_b32 exec_hi, 0
        s_branch L_lc_st
        L_lc_b:
        s_cmp_eq_u32 s100, 1
        s_cbranch_scc1 L_lc_op
        s_cmp_eq_u32 s100, 2
        s_cbranch_scc0 L_lc_done
        s_cmp_eq_u32 s3, 4
        s_cbranch_scc0 L_lc_done
        s_mov_b64 exec, 0xffff
        s_add_u32 s8, s90, {hex(WS_X1)}
        s_branch L_lc_st
        L_lc_op:
        s_lshl_b32 s8, s3, 10
        s_add_u32 s8, s8, s101
        s_sub_u32 s8, s8, 4096
        L_lc_st:
        buffer_store_dwordx4 v[8:11], v5, {sr(WS)}, s8 offen sc1
        s_mov_b64 exec, -1
        L_lc_done:
        """)
    def tload(self, u0, u1):
        A = self.A
        if u0 == 0:
            A(f"""
            v_lshrrev_b32 v14, 3, v1
            v_mul_u32_u24 v14, 3456, v14
            v_and_b32 v15, 7, v1
            v_lshl_add_u32 v14, v15, 4, v14
            v_mul_u32_u24 v15, 1280, v2
            v_lshl_add_u32 v15, v3, 4, v15
            s_mul_i32 s86, s3, {80*3456}
            s_mul_i32 s87, s3, 10240
            s_add_u32 s87, s87, {L_W1}
            """)
        for u in range(u0, u1):
            if u < 10:
                A(f"s_add_u32 m0, s87, {u*1024}\ns_add_u32 s88, s86, {u*8*3456}")
                A(f"buffer_load_dwordx4 v14, {sr(TA)}, s88 offen {self.w1f} lds")
            else:
                A(f"s_lshl_b32 s88, s3, 11\ns_add_u32 m0, s88, {L_W2 + (u-10)*1024}\ns_mul_i32 s88, s3, 10240\ns_add_u32 s88, s88, {(u-10)*5120}")
                A(f"buffer_load_dwordx4 v15, {sr(TB)}, s88 offen {self.tf} lds")
    def softmax1(self):
        A = self.A
        A(f"s_mov_b32 s8, {hex(SCALE)}")
        for g in range(0, 8, 2):
            A(f"v_cvt_pk_bf16_f32 v8, v{24+g}, v{25+g}")
            self.unpack(24+g, 25+g, 8)
            A(f"v_mul_f32 v{24+g}, s8, v{24+g}\nv_mul_f32 v{25+g}, s8, v{25+g}")
            A(f"v_cvt_pk_bf16_f32 v8, v{24+g}, v{25+g}")
            self.unpack(24+g, 25+g, 8)
        def wred(op, sdst):
            for c in (f"row_ror:4 {DPPF}", f"row_ror:8 {DPPF}", "row_bcast:15 row_mask:0xa bank_mask:0xf", "row_bcast:31 row_mask:0xc bank_mask:0xf"):
                A(f"s_nop 1\n{op}_dpp v8, v8, v8 {c}")
            A(f"s_nop 1\nv_readlane_b32 {sdst}, v8, 63")
        A("v_max3_f32 v8, v24, v25, v26\nv_max3_f32 v8, v8, v27, v28\nv_max3_f32 v8, v8, v29, v30\nv_max_f32 v8, v8, v31")
        wred("v_max_f32", "s9")
        A(f"s_mov_b32 s8, {hex(LOG2E)}\ns_nop 1")
        for g in range(8): A(f"v_subrev_f32 v{24+g}, s9, v{24+g}")
        for g in range(8): A(f"v_mul_f32 v{24+g}, s8, v{24+g}")
        for g in range(8): A(f"v_exp_f32 v{24+g}, v{24+g}")
        A("""
        s_nop 0
        v_add_f32 v8, v24, v25
        v_add_f32 v9, v26, v27
        v_add_f32 v10, v28, v29
        v_add_f32 v11, v30, v31
        v_add_f32 v8, v8, v9
        v_add_f32 v10, v10, v11
        v_add_f32 v8, v8, v10
        """)
        wred("v_add_f32", "s10")
        A(f"""
        s_lshl_b32 s11, s3, 3
        s_add_u32 s11, s11, {L_SM}
        v_mov_b32 v10, s9
        v_mov_b32 v11, s10
        v_mov_b32 v9, s11
        ds_write_b64 v9, v[10:11]
        s_mov_b32 s95, s9
        s_waitcnt lgkmcnt(0)
        """)
        self.bump(12)
    def softmax2(self):
        A = self.A
        self.spin(12, 8, 4096)
        A(f"""
        v_and_b32 v9, 7, v1
        v_lshlrev_b32 v9, 3, v9
        s_mov_b32 s8, {hex(LOG2E)}
        s_mov_b32 s9, s95
        ds_read_b64 v[10:11], v9 offset:{L_SM}
        s_waitcnt lgkmcnt(0)
        v_max_f32_dpp v8, v10, v10 row_ror:4 {DPPF}
        s_nop 1
        v_max_f32_dpp v8, v8, v8 row_ror:2 {DPPF}
        s_nop 1
        v_max_f32_dpp v8, v8, v8 row_ror:1 {DPPF}
        v_sub_f32 v10, v10, v8
        v_sub_f32 v12, s9, v8
        v_mul_f32 v10, s8, v10
        v_mul_f32 v12, s8, v12
        v_exp_f32 v10, v10
        v_exp_f32 v12, v12
        s_nop 0
        v_mul_f32 v10, v10, v11
        s_nop 1
        v_add_f32_dpp v10, v10, v10 quad_perm:[1,0,3,2] {DPPF}
        s_nop 1
        v_add_f32_dpp v10, v10, v10 quad_perm:[2,3,0,1] {DPPF}
        s_nop 1
        v_add_f32_dpp v10, v10, v10 row_half_mirror {DPPF}
        v_rcp_f32 v10, v10
        s_nop 0
        v_mul_f32 v10, v10, v12
        """)
        for g in range(8): A(f"v_mul_f32 v{24+g}, v10, v{24+g}")
        for g in range(8): A(f"v_cvt_pk_bf16_f32 v{24+g}, v{24+g}, v{24+g}")
        A("s_nop 1")

    def tail1(self, WOR):
        A = self.A
        A(f"""
        s_lshl_b32 s8, s3, 9
        s_add_u32 s8, s8, {L_R1}
        v_lshlrev_b32 v8, 5, v3
        v_lshl_add_u32 v8, v2, 4, v8
        v_add_u32 v9, s8, v8
        s_lshl_b32 s9, s3, 6
        s_add_u32 s9, s9, {L_R1}
        v_and_b32 v10, 7, v3
        v_lshlrev_b32 v10, 9, v10
        v_lshl_add_u32 v10, v2, 4, v10
        v_add_u32 v10, s9, v10
        s_mul_i32 s8, s3, 2560
        s_add_u32 s8, s8, {L_R2}
        v_add_u32 v11, s8, v8
        s_mov_b32 exec_hi, 0
        ds_write_b128 v9, v[20:23]
        s_mov_b64 exec, -1
        s_waitcnt lgkmcnt(0)
        s_barrier
        """)
        self.stamp(6); self.stamp(1, 2)
        A("ds_read_b128 v[24:27], v10\ns_waitcnt lgkmcnt(0)")
        for sh in (4, 2, 1):
            for r in range(4): A(f"v_add_f32_dpp v{24+r}, v{24+r}, v{24+r} row_ror:{sh} {DPPF}")
        for r in range(4): A(f"v_cvt_pk_bf16_f32 v{24+r}, v{24+r}, v{24+r}")
        for r in range(4): A(f"v_and_b32 v{32+r}, v24, v{16+r}")
        ACC = 64
        self.stamp(2, 2)
        for g in range(4):
            if g == 0:
                for r in range(2): A(f"v_and_b32 v{36+r}, v25, v{16+r}")
            for cb in range(5):
                r = WOR[g*5+cb]
                c = "0" if g == 0 else f"v[{ACC+4*cb}:{ACC+4*cb+3}]"
                A(f"v_mfma_f32_16x16x32_bf16 v[{ACC+4*cb}:{ACC+4*cb+3}], v[{32+4*g}:{35+4*g}], v[{r}:{r+3}], {c}")
                if g == 0 and cb < 5:
                    for t in range(2):
                        j = 6 + 2*cb + t
                        A(f"v_and_b32 v{32+j}, v{24+j//4}, v{16+j%4}")
        A("s_mov_b32 exec_hi, 0\ns_nop 3")
        for cb in range(5):
            A(f"ds_write_b128 v11, v[{ACC+4*cb}:{ACC+4*cb+3}] offset:{cb*512}")
        A(f"""
        s_mov_b64 exec, -1
        s_lshl_b32 s8, s3, 9
        s_add_u32 s9, s8, {L_R2}
        v_add_u32 v9, s9, v5
        s_mul_i32 s9, s84, 2560
        s_add_u32 s9, s9, s8
        s_add_u32 s9, s9, {hex(WS_AP)}
        s_waitcnt lgkmcnt(0)
        s_barrier
        """)
        self.stamp(3, 2)
        if self.stamps and self.diag == 2: A("s_waitcnt lgkmcnt(0)")
        A("""
        s_cmp_ge_u32 s3, 5
        s_cbranch_scc1 L_apdone
        s_mov_b32 exec_hi, 0
        """)
        for j in range(8): A(f"ds_read_b128 v[{64+4*j}:{67+4*j}], v9 offset:{j*2560}")
        for j in range(0, 8, 2):
            A(f"s_waitcnt lgkmcnt({6-j})")
            for r in (0, 2): self.pk("add", 64+4*j+r, 64+4*j+r, f"v[{68+4*j+r}:{69+4*j+r}]")
            if j == 2:
                for r in (0, 2): self.pk("add", 64+r, 64+r, f"v[{72+r}:{73+r}]")
        for r in (0, 2): self.pk("add", 80+r, 80+r, f"v[{88+r}:{89+r}]")
        for r in (0, 2): self.pk("add", 64+r, 64+r, f"v[{80+r}:{81+r}]")
        for r in range(4): A(f"v_min_u32 v{64+r}, -2, v{64+r}")
        A(f"buffer_store_dwordx4 v[64:67], v5, {sr(WS)}, s9 offen sc1")
        A("s_mov_b64 exec, -1")
        A("L_apdone:")
        self.stamp(7); self.stamp(4, 2)

    def flg(self):
        return f"s_mov_b32 s10, {WS_FLG2}\nbuffer_load_dwordx4 v[204:207], v5, {sr(WS)}, s10 offen sc1"
    def red_small(self):
        return [f"buffer_load_dword v212, v218, {sr(WS)}, s42 offen sc1",
                f"buffer_load_dword v213, v219, {sr(WS)}, s43 offen sc1"]
    def mlp_small(self):
        o = [self.flg()]
        for i in range(5): o.append(f"s_mov_b32 s9, {WS_MOD + 80*512 + i*2048}\nbuffer_load_dword v{192+i}, v7, {sr(WS)}, s9 offen sc1")
        for i in range(5): o.append(f"s_mov_b32 s9, {WS_MOD + 60*512 + i*2048}\nbuffer_load_dword v{197+i}, v7, {sr(WS)}, s9 offen sc1")
        return o
    def small_loads(self):
        A = self.A
        A(f"""
        v_and_b32 v216, 7, v1
        v_and_b32 v217, 1, v2
        v_lshlrev_b32 v217, 2, v217
        v_lshl_add_u32 v218, v216, 3, v217
        v_lshl_add_u32 v219, v216, 6, v217
        s_cmp_eq_u32 s100, 2
        s_cbranch_scc0 L_sm_done
        s_cmp_lt_u32 s3, 6
        s_cbranch_scc1 L_sm_done
        s_lshl_b32 s43, s96, 9
        s_lshl_b32 s9, s4, 6
        s_add_u32 s42, s43, s9
        s_add_u32 s42, s42, {WS_MOD + 40*512}
        s_lshl_b32 s9, s4, 3
        s_add_u32 s43, s43, s9
        s_add_u32 s43, s43, {WS_MOD + 100*512}
        s_lshr_b32 s9, s90, 1
        """)
        for l in self.red_small(): A(l)
        A(f"buffer_load_dword v214, v218, {sr(X)}, s9 offen")
        A("L_sm_done:")
        for l in self.mlp_small(): A(l)
    def pk(self, op, d, a, b, mods=""):
        self.A(f"v_pk_{op}_f32 v[{d}:{d+1}], v[{a}:{a+1}], {b} {mods}")
    def reducer(self):
        A = self.A
        A("s_waitcnt vmcnt(0)")
        self.poll([self.flg()] + self.red_small(), [212, 213, 204, 205, 206, 207], 8, 8, first_loaded=True)
        A(f"""
        v_lshrrev_b32 v8, 1, v2
        v_lshlrev_b32 v8, 4, v8
        v_sub_u32 v14, 16, v8
        v_lshlrev_b32 v200, v14, v212
        v_and_b32 v200, 0xffff0000, v200
        v_lshlrev_b32 v201, v14, v214
        v_and_b32 v201, 0xffff0000, v201
        v_lshrrev_b32 v9, 3, v1
        v_mul_u32_u24 v10, 2560, v9
        v_lshl_add_u32 v10, v216, 4, v10
        v_mul_u32_u24 v11, 20480, v9
        v_lshl_add_u32 v11, v216, 4, v11
        v_lshlrev_b32 v12, 3, v1
        v_mul_u32_u24 v15, 2560, v216
        v_add_u32 v15, v15, v217
        s_mul_i32 s8, s4, {32*2560}
        s_lshl_b32 s9, s96, 7
        s_add_u32 s8, s8, s9
        s_add_u32 s8, s8, {hex(WS_AP)}
        s_add_u32 s9, s8, 20480
        s_add_u32 s10, s8, 40960
        s_add_u32 s11, s8, 61440
        s_add_u32 s88, s90, {hex(WS_X1)}
        s_call_b64 s[12:13], F_red
        v_min_u32 v68, -2, v68
        v_min_u32 v69, -2, v69
        s_mov_b64 exec, 0xff
        buffer_store_dwordx2 v[68:69], v12, {sr(WS)}, s88 offen sc1
        s_mov_b64 exec, -1
        """)
        self.stamp(8)
        A(f"""
        v_lshlrev_b32 v200, v14, v213
        v_and_b32 v200, 0xffff0000, v200
        v_mov_b32 v10, v11
        v_mul_u32_u24 v12, 1280, v1
        s_lshl_b32 s86, s96, 3
        s_add_u32 s86, s86, s4
        s_lshl_b32 s8, s86, 7
        s_add_u32 s8, s8, {hex(WS_OP)}
        s_add_u32 s9, s8, {8*20480}
        s_add_u32 s10, s8, {16*20480}
        s_add_u32 s11, s8, {24*20480}
        s_lshl_b32 s88, s86, 3
        s_lshl_b32 s86, s96, 7
        s_lshl_b32 s87, s4, 3
        s_add_u32 s86, s86, s87
        s_add_u32 s86, s86, {hex(WS_X1)}
        """)
        self.sleep(self.wx)
        self.poll([f"buffer_load_dword v214, v15, {sr(WS)}, s86 offen sc1"], [214, 214], 13, 32, sleep=4)
        A("v_lshlrev_b32 v201, v14, v214\nv_and_b32 v201, 0xffff0000, v201")
        self.sleep(self.wo_)
        A(f"""
        s_call_b64 s[12:13], F_red
        s_mov_b64 exec, 0xff
        buffer_store_dwordx2 v[68:69], v12, {sr(OUT)}, s88 offen
        s_mov_b64 exec, -1
        """)
        self.stamp(9)
        A("s_branch L_fin")
    def f_red(self):
        A = self.A
        A("F_red:")
        loads = [f"buffer_load_dwordx4 v[{64+4*i}:{67+4*i}], v10, {sr(WS)}, s{8+i} offen sc1" for i in range(4)]
        self.poll(loads, range(64, 80), 13, 16, sleep=self.sr)
        for a_, b_ in ((64, 68), (72, 76), (64, 72)):
            for r in (0, 2): self.pk("add", a_+r, a_+r, f"v[{b_+r}:{b_+r+1}]")
        A(f"""
        s_nop 0
        v_permlane32_swap_b32 v64, v65
        v_permlane32_swap_b32 v66, v67
        v_add_f32 v64, v64, v65
        v_add_f32 v66, v66, v67
        s_nop 1
        v_permlane16_swap_b32 v64, v66
        v_add_f32 v64, v64, v66
        s_nop 1
        v_add_f32_dpp v64, v64, v64 row_ror:8 {DPPF}
        v_cvt_pk_bf16_f32 v64, v64, v64
        v_and_b32 v64, 0xffff0000, v64
        v_mul_f32 v64, v64, v200
        v_cvt_pk_bf16_f32 v64, v64, v64
        v_and_b32 v64, 0xffff0000, v64
        v_add_f32 v64, v64, v201
        v_mov_b32 v65, v64
        s_nop 1
        v_permlane32_swap_b32 v64, v65
        v_cvt_pk_bf16_f32 v68, v64, v65
        v_cvt_pk_bf16_f32 v69, v64, v65
        s_nop 1
        v_permlane16_swap_b32 v68, v69
        s_setpc_b64 s[12:13]
        """)

    def mlp(self):
        A = self.A
        A("L_mlp:")
        self.tload(self.te, 12)
        A("s_waitcnt vmcnt(12)")
        self.poll(self.mlp_small(), list(range(192, 202)) + [204, 205, 206, 207], 8, 64, first_loaded=True)
        for i in range(5):
            self.unpack(208+2*i, 209+2*i, 192+i)
            A(f"v_add_f32 v{208+2*i}, 1.0, v{208+2*i}\nv_add_f32 v{209+2*i}, 1.0, v{209+2*i}")
            A(f"v_cvt_pk_bf16_f32 v8, v{208+2*i}, v{209+2*i}")
            self.unpack(208+2*i, 209+2*i, 8)
            self.unpack(218+2*i, 219+2*i, 197+i)
        A(f"""
        v_lshrrev_b32 v8, 2, v3
        v_lshlrev_b32 v10, 10, v2
        v_lshl_add_u32 v10, v8, 7, v10
        v_lshl_add_u32 v10, v13, 3, v10
        s_lshr_b32 s8, s3, 1
        s_mul_i32 s9, s8, 20480
        s_and_b32 s10, s3, 1
        s_lshl_b32 s11, s10, 6
        s_add_u32 s9, s9, s11
        s_add_u32 s9, s9, {L_W1}
        v_add_u32 v10, s9, v10
        v_lshl_add_u32 v11, v2, 2, v8
        v_lshlrev_b32 v11, 8, v11
        v_lshl_add_u32 v11, v13, 3, v11
        s_and_b32 s9, s3, 3
        s_lshl_b32 s9, s9, 6
        s_add_u32 s9, s9, {L_W2}
        v_add_u32 v11, s9, v11
        v_and_b32 v8, 7, v3
        v_lshlrev_b32 v168, 6, v8
        v_lshl_add_u32 v168, v2, 4, v168
        s_mul_i32 s9, s8, 2560
        v_add_u32 v168, s9, v168
        s_lshl_b32 s9, s3, 11
        s_add_u32 s9, s9, {L_G1}
        v_add_u32 v169, s9, v5
        v_lshrrev_b32 v9, 3, v3
        v_lshlrev_b32 v170, 10, v9
        v_lshl_add_u32 v170, v2, 8, v170
        v_lshl_add_u32 v170, v8, 4, v170
        v_add_u32 v170, {L_G1}, v170
        v_lshlrev_b32 v172, 7, v2
        v_lshl_add_u32 v172, v3, 2, v172
        v_lshlrev_b32 v173, 4, v8
        v_lshl_add_u32 v173, v2, 7, v173
        s_mul_i32 s43, s3, 2560
        s_add_u32 s43, s43, {hex(WS_X1)}
        s_lshl_b32 s9, s3, 10
        s_add_u32 s42, s101, s9
        s_mov_b32 s86, 0x00ff00ff
        s_mov_b32 s87, 0x00ff00ff
        s_waitcnt vmcnt(0)
        s_barrier
        """)
        self.stamp(1)
        for k in range(5):
            for t in range(2):
                r = 128 + 8*k + 4*t
                A(f"ds_read_b64_tr_b16 v[{r}:{r+1}], v10 offset:{k*4096 + t*32}")
                A(f"ds_read_b64_tr_b16 v[{r+2}:{r+3}], v10 offset:{k*4096 + t*32 + 512}")
        for m in range(2):
            for j in range(2):
                r = 176 + 8*m + 4*j
                A(f"ds_read_b64_tr_b16 v[{r}:{r+1}], v11 offset:{j*8192 + m*32}")
                A(f"ds_read_b64_tr_b16 v[{r+2}:{r+3}], v11 offset:{j*8192 + 4096 + m*32}")
        loads = [f"buffer_load_dword v{24+i}, v172, {sr(WS)}, s43 offen offset:{i*512} sc1" for i in range(5)]
        self.poll(loads, range(24, 29), 8, 128, sleep=self.sx)
        self.stamp(8); self.stamp(5, 2)
        A("s_call_b64 s[12:13], F_ln")
        self.stamp(6, 2)
        for i in range(5): self.unpack(32+2*i, 33+2*i, 24+i)
        for i in range(5): self.pk("mul", 32+2*i, 32+2*i, f"v[{208+2*i}:{209+2*i}]")
        for i in range(5): A(f"v_cvt_pk_bf16_f32 v{24+i}, v{32+2*i}, v{33+2*i}")
        for i in range(5): self.unpack(32+2*i, 33+2*i, 24+i)
        for i in range(5): self.pk("add", 32+2*i, 32+2*i, f"v[{218+2*i}:{219+2*i}]")
        for i in range(5):
            A(f"v_cvt_pk_bf16_f32 v{24+i}, v{32+2*i}, v{33+2*i}")
            A(f"ds_write_b32 v7, v{24+i} offset:{L_ACT + i*2048}")
        self.stamp(7, 2)
        A("s_waitcnt lgkmcnt(0)\ns_barrier")
        self.stamp(8, 2)
        if self.stamps and self.diag == 2: A("s_waitcnt lgkmcnt(0)")
        for k in range(5): A(f"ds_read_b128 v[{32+4*k}:{35+4*k}], v168 offset:{L_ACT + k*512}")
        for k in range(5):
            A(f"s_waitcnt lgkmcnt({4-k})")
            for t in range(2):
                r = 128 + 8*k + 4*t; a_ = 64 + 4*t
                c = "0" if k == 0 else f"v[{a_}:{a_+3}]"
                A(f"v_mfma_f32_16x16x32_bf16 v[{a_}:{a_+3}], v[{r}:{r+3}], v[{32+4*k}:{35+4*k}], {c}")
        A("s_nop 6\nds_write_b128 v169, v[64:67]\nds_write_b128 v169, v[68:71] offset:1024\ns_waitcnt lgkmcnt(0)\ns_barrier")
        self.stamp(9, 2)
        if self.stamps and self.diag == 2: A("s_waitcnt lgkmcnt(0)")
        A("s_cmp_ge_u32 s3, 4\ns_cbranch_scc1 L_fin")
        for j in range(2):
            for k in range(4): A(f"ds_read_b128 v[{64+16*j+4*k}:{67+16*j+4*k}], v170 offset:{k*4096 + j*2048}")
        for j in range(2):
            b0 = 64 + 16*j
            A(f"s_waitcnt lgkmcnt({4-4*j})")
            for a_, b_ in ((0, 4), (8, 12), (0, 8)):
                for r in (0, 2): self.pk("add", b0+a_+r, b0+a_+r, f"v[{b0+b_+r}:{b0+b_+r+1}]")
            A(f"v_cvt_pk_bf16_f32 v8, v{b0}, v{b0+1}\nv_cvt_pk_bf16_f32 v9, v{b0+2}, v{b0+3}")
            self.unpack(32+4*j, 33+4*j, 8); self.unpack(34+4*j, 35+4*j, 9)
        self.silu(list(range(32, 40)), list(range(40, 48)))
        A(f"""
        v_cvt_pk_bf16_f32 v24, v32, v33
        v_cvt_pk_bf16_f32 v25, v34, v35
        v_cvt_pk_bf16_f32 v28, v36, v37
        v_cvt_pk_bf16_f32 v29, v38, v39
        v_mov_b32_dpp v26, v24 row_ror:8 {DPPF}
        v_mov_b32_dpp v27, v25 row_ror:8 {DPPF}
        v_mov_b32_dpp v30, v28 row_ror:8 {DPPF}
        v_mov_b32_dpp v31, v29 row_ror:8 {DPPF}
        v_mfma_f32_16x16x32_bf16 v[64:67], v[176:179], v[24:27], 0
        v_mfma_f32_16x16x32_bf16 v[68:71], v[184:187], v[24:27], 0
        v_mfma_f32_16x16x32_bf16 v[64:67], v[180:183], v[28:31], v[64:67]
        v_mfma_f32_16x16x32_bf16 v[68:71], v[188:191], v[28:31], v[68:71]
        s_mov_b64 exec, s[86:87]
        s_nop 5
        """)
        for m in range(2):
            for r in range(4): A(f"v_min_u32 v{64+4*m+r}, -2, v{64+4*m+r}")
            A(f"buffer_store_dwordx4 v[{64+4*m}:{67+4*m}], v173, {sr(WS)}, s42 offen offset:{m*512} sc1")
        A("s_mov_b64 exec, -1")
        self.stamp(9); self.stamp(10, 2)

    def finish(self):
        A = self.A
        A("L_fin:")
        A("s_cmp_eq_u32 s15, 0\ns_cbranch_scc1 L_noerr")
        A(f"v_mov_b32 v8, s15\ns_mov_b64 exec, 1\nbuffer_atomic_or v8, off, {sr(DBG)}, 0 offset:4 sc1\ns_mov_b64 exec, -1")
        A("L_noerr:")
        if self.stamps:
            self.stamp(10)
            A("s_waitcnt lgkmcnt(0)")
            self.srdo(STS, f"s{WS}", f"s{WS+1}", hex(STAMP_OFF), "0x100000")
            A("s_getreg_b32 s38, hwreg(HW_REG_XCC_ID)\ns_lshl_b32 s39, s100, 8\ns_or_b32 s39, s39, s85")
            A(f"s_mul_i32 s8, s2, {12*8*2}")
            if self.diag == 3:
                A("s_mul_i32 s9, s3, 24\ns_add_u32 s8, s8, s9\ns_mov_b64 exec, 1")
                for k in range(3):
                    A(f"v_mov_b32 v8, s{16+2*k}\nv_mov_b32 v9, s{17+2*k}\nbuffer_store_dwordx2 v[8:9], off, {sr(STS)}, s8 offset:{8*k}\ns_nop 1")
                A("s_endpgm")
            A(f"s_cmp_eq_u32 s3, 0\ns_cbranch_scc1 L_st\ns_cmp_eq_u32 s3, {self.redw}\ns_cbranch_scc0 L_end\ns_add_u32 s8, s8, 96\nL_st:")
            A("s_mov_b64 exec, 1")
            for k in range(12):
                A(f"v_mov_b32 v8, s{16+2*k}\nv_mov_b32 v9, s{17+2*k}\nbuffer_store_dwordx2 v[8:9], off, {sr(STS)}, s8 offset:{8*k}\ns_nop 1")
        A("L_end:\ns_endpgm")

    def init1(self):
        A = self.A
        for i in range(5): self.unpack(32+2*i, 33+2*i, 56+i)
        self.silu(list(range(32, 42)), list(range(44, 54)))
        A(f"v_add_u32 v14, {L_ACT}, v7")
        for i in range(5):
            A(f"v_cvt_pk_bf16_f32 v{56+i}, v{32+2*i}, v{33+2*i}")
            A(f"ds_write_b32 v14, v{56+i} offset:{i*2048}")
        A("s_sub_u32 s8, s91, 20\ns_cmp_lt_u32 s8, 20\ns_cbranch_scc0 L_c_a")
        A("s_call_b64 s[12:13], F_ln")
        for i in range(5): A(f"ds_write_b32 v14, v{24+i} offset:{L_XN - L_ACT + i*2048}")
    def subs(self):
        A = self.A
        self.f_red()
        A("F_ln:")
        for i in range(5): self.unpack(32+2*i, 33+2*i, 24+i)
        A("v_readfirstlane_b32 s8, v32\ns_nop 1")
        NEG = "op_sel_hi:[1,0] neg_lo:[0,1] neg_hi:[0,1]"
        for i in range(5): self.pk("add", 42+2*i, 32+2*i, "s[8:9]", NEG)
        self.pk("add", 52, 42, "v[44:45]"); self.pk("mul", 54, 42, "v[42:43]")
        for i in range(1, 5):
            if i > 1: self.pk("add", 52, 52, f"v[{42+2*i}:{43+2*i}]")
            A(f"v_pk_fma_f32 v[54:55], v[{42+2*i}:{43+2*i}], v[{42+2*i}:{43+2*i}], v[54:55]")
        A("v_add_f32 v52, v52, v53\nv_add_f32 v53, v54, v55\ns_nop 0")
        for c in (f"row_ror:1 {DPPF}", f"row_ror:2 {DPPF}", f"row_ror:4 {DPPF}", f"row_ror:8 {DPPF}",
                  "row_bcast:15 row_mask:0xa bank_mask:0xf", "row_bcast:31 row_mask:0xc bank_mask:0xf"):
            A(f"v_add_f32_dpp v52, v52, v52 {c}\nv_add_f32_dpp v53, v53, v53 {c}\ns_nop 0")
        A(f"""
        v_readlane_b32 s9, v52, 63
        v_readlane_b32 s10, v53, 63
        v_mov_b32 v54, {hex(INV640)}
        s_nop 0
        v_mul_f32 v52, s9, v54
        v_mul_f32 v53, s10, v54
        v_fma_f32 v53, -v52, v52, v53
        v_add_f32 v52, s8, v52
        v_max_f32 v53, 0, v53
        v_cvt_pk_bf16_f32 v54, v52, v53
        v_lshlrev_b32 v52, 16, v54
        v_and_b32 v54, 0xffff0000, v54
        v_add_f32 v54, {hex(EPS)}, v54
        v_cvt_pk_bf16_f32 v54, v54, v54
        v_and_b32 v54, 0xffff0000, v54
        v_sqrt_f32 v54, v54
        """)
        for i in range(5): self.pk("add", 32+2*i, 32+2*i, "v[52:53]", NEG)
        A("v_cvt_pk_bf16_f32 v54, v54, v54\nv_and_b32 v54, 0xffff0000, v54\nv_rcp_f32 v54, v54")
        for i in range(5): A(f"v_cvt_pk_bf16_f32 v{24+i}, v{32+2*i}, v{33+2*i}")
        for i in range(5): self.unpack(32+2*i, 33+2*i, 24+i)
        for i in range(5): self.pk("mul", 32+2*i, 32+2*i, "v[54:55]", "op_sel_hi:[1,0]")
        for i in range(5): A(f"v_cvt_pk_bf16_f32 v{24+i}, v{32+2*i}, v{33+2*i}")
        A("s_setpc_b64 s[12:13]")

if __name__ == "__main__":
    ap = argparse.ArgumentParser()
    ap.add_argument("-o", default="k.s"); ap.add_argument("--stamps", action="store_true")
    ap.add_argument("--depth", type=int, default=4)
    ap.add_argument("--kv", default="nt"); ap.add_argument("--wo", default=""); ap.add_argument("--tile", default="nt")
    ap.add_argument("--d0", type=int, default=2); ap.add_argument("--n0", type=int, default=16); ap.add_argument("--hlate", action="store_true")
    ap.add_argument("--nm", type=int, default=3)
    ap.add_argument("--exp", type=int, default=0)
    ap.add_argument("--diag", type=int, default=0)
    ap.add_argument("--tearly", action="store_true")
    ap.add_argument("--x", default="")
    ap.add_argument("--s1", type=int, default=2); ap.add_argument("--s2", type=int, default=2); ap.add_argument("--probe", action="store_true")
    ap.add_argument("--w2", type=int, default=0)
    ap.add_argument("--te", type=int, default=3); ap.add_argument("--w1", default=""); ap.add_argument("--oprobe", action="store_true")
    ap.add_argument("--ism", type=int, default=18); ap.add_argument("--sys", action="store_true")
    ap.add_argument("--nl", type=int, default=13)
    ap.add_argument("--d1", type=int, default=4)
    ap.add_argument("--wa", type=int, default=0); ap.add_argument("--w3", type=int, default=0)
    ap.add_argument("--sr", type=int, default=0); ap.add_argument("--sx", type=int, default=0); ap.add_argument("--wop", type=int, default=0)
    ap.add_argument("--wx", type=int, default=20)
    ap.add_argument("--nref", type=int, default=100); ap.add_argument("--dl", type=int, default=3)
    ap.add_argument("--par", type=lambda x: int(x, 0), default=0); ap.add_argument("--pat", default="4"); ap.add_argument("--npat", type=int, default=36)
    ap.add_argument("--prio", type=int, default=0)
    ap.add_argument("--mdeep", action="store_true")
    ap.add_argument("--gran", type=int, default=1); ap.add_argument("--rot", type=int, default=0)
    ap.add_argument("--chk", type=int, default=3)
    ap.add_argument("--nfree", type=int, default=8); ap.add_argument("--nclr", type=int, default=8)
    ap.add_argument("--nopf", action="store_true"); ap.add_argument("--d2", type=int, default=8)
    a = ap.parse_args()
    txt = (G(stamps=a.stamps, depth=a.depth, kvf=a.kv, wof=a.wo, tf=a.tile, codepf=not a.nopf, d2=a.d2, d0=a.d0, n0=a.n0, hlate=a.hlate, nm=a.nm, nfree=a.nfree, nclr=a.nclr, exp=a.exp, chk=a.chk, gran=a.gran, rot=a.rot, mdeep=a.mdeep, prio=a.prio, par=a.par, pat=[int(c) for c in a.pat], npat=a.npat, nref=a.nref, dl=a.dl, wx=a.wx, sr=a.sr, sx=a.sx, wo_=a.wop, w1=a.wa, w3=a.w3, d1=a.d1, nl=a.nl, ism=a.ism, te=a.te, w1f=a.w1, oprobe=a.oprobe, w2=a.w2, s1=a.s1, s2=a.s2, probe=a.probe, x=a.x, tlate=not a.tearly, diag=a.diag, pad=22528).gen())
    if a.sys: txt = "\n".join((l + " sc0" if (l.rstrip().endswith("sc1") and "atomic" not in l) else l) for l in txt.split("\n")).replace("sc1 sc0", "sc0 sc1")
    open(a.o, "w").write(txt)
```

```python
import sys, argparse
NAME = "adaLN_cond__sliding_block_cached__dense_activation_silu__decode"

WS_MOD  = 0x00000
WS_FLG  = 61440
WS_FLG2 = 62464
NCLR    = 8
WS_X1   = 0x20000
WS_DUM  = 0x28000
WS_AP   = 0x60000
WS_QP   = 0x100000
WS_OP   = 0x180000
WS_END  = WS_OP + 27*20480
STAMP_OFF = 0x20000000
L_Q   = 0
L_SM  = 256
L_FL  = 384
L_ACT = 1024
L_XN  = 11264
L_TA  = 21504
L_ST  = 62464
L_KH  = L_ST
L_WL  = L_ST + 35840
L_BN  = L_WL + 7*8192
L_END = L_BN + 2048
L_SB  = L_ACT
L_SH  = L_SB + 35840
assert L_SH + 13*1024 <= L_ST
L_W1  = L_TA
L_W2  = L_W1 + 81920
L_R2  = L_W2 + 16384
L_R1  = L_R2 + 20480
L_G1  = L_R2
assert L_R1 + 4096 <= L_END <= 163840
LOG2E = 0x3fb8aa3b
NLOG2E = 0xbfb8aa3b
SCALE = 0x3db504f3
INV640 = 0x3acccccd
EPS = 0x3727c5ac
K, V, WS, WO, TA, TB, X, C, OUT, DBG, T0 = 44, 48, 52, 56, 60, 64, 68, 72, 76, 80, 92
KH = C
STS = 40
sr = lambda r: f"s[{r}:{r+3}]"
DPPF = "row_mask:0xf bank_mask:0xf"

class G:
    def __init__(self, **kw):
        self.L = []; self.lab = 0
        self.stamps = False; self.depth = 4; self.d0 = 2; self.n0 = 16; self.kvf = "nt"; self.wof = "nt"; self.tf = "nt"
        self.limit = 40000; self.codepf = True; self.d2 = 8; self.redw = 7; self.hlate = False; self.chk = 3; self.fix = 0; self.gran = 1; self.rot = 0; self.mdeep = False; self.prio = 0; self.npat = 36; self.par = 0; self.pat = [4]; self.nref = 100; self.dl = 3; self.wx = 20; self.sr = 0; self.sx = 0; self.wo_ = 0; self.w1 = 0; self.w3 = 0; self.d1 = 4; self.nl = 13; self.hs = 'sc1'; self.ism = 18; self.te = 3; self.w1f = ''; self.oprobe = False; self.w2 = 0; self.s1 = 2; self.s2 = 2; self.probe = False; self.x = ''; self.tlate = True; self.diag = 0; self.pad = 16384; self.nfree = 8; self.nclr = 8; self.exp = 0; self.nm = 6
        self.__dict__.update(kw)
    def A(self, s):
        for x in s.split("\n"):
            x = x.strip()
            if x: self.L.append(("" if x.endswith(":") else "    ") + x)
    def newlab(self, p="L"):
        self.lab += 1; return f"{p}_{self.lab}"
    def stamp(self, k, diag=0):
        if self.stamps and diag == self.diag: self.A(f"s_memrealtime s[{16+2*k}:{17+2*k}]")
    def srd(self, d, lo, hi, size):
        self.A(f"s_mov_b32 s{d}, {lo}\ns_mov_b32 s{d+1}, {hi}\ns_mov_b32 s{d+2}, {size}\ns_mov_b32 s{d+3}, 0x20000")
    def srdo(self, d, lo, hi, off, size):
        self.A(f"s_add_u32 s{d}, {lo}, {off}\ns_addc_u32 s{d+1}, {hi}, 0\ns_mov_b32 s{d+2}, {size}\ns_mov_b32 s{d+3}, 0x20000")
    def unpack(self, lo, hi, src):
        self.A(f"v_lshlrev_b32 v{lo}, 16, v{src}\nv_and_b32 v{hi}, 0xffff0000, v{src}")
    def maxtree(self, dst, regs):
        regs = list(regs); A = self.A
        if len(regs) == 2:
            A(f"v_max_u32 v{dst}, v{regs[0]}, v{regs[1]}"); return
        A(f"v_max3_u32 v{dst}, v{regs[0]}, v{regs[1]}, v{regs[2]}"); regs = regs[3:]
        while len(regs) >= 2:
            A(f"v_max3_u32 v{dst}, v{dst}, v{regs[0]}, v{regs[1]}"); regs = regs[2:]
        if regs: A(f"v_max_u32 v{dst}, v{dst}, v{regs[0]}")
    def poll(self, loads, regs, tmp, code, first_loaded=False, sleep=1):
        A = self.A
        lp = self.newlab("Lpoll"); ck = self.newlab("Lchk"); dn = self.newlab("Lpd")
        A(f"s_mov_b32 s14, {self.limit}")
        if first_loaded: A(f"s_branch {ck}")
        A(f"{lp}:")
        for l in loads: A(l)
        A("s_waitcnt vmcnt(0)")
        A(f"{ck}:")
        self.maxtree(tmp, regs)
        A(f"v_cmp_eq_u32 vcc, -1, v{tmp}")
        A(f"s_cbranch_vccz {dn}")
        A("s_mov_b64 exec, vcc")
        if sleep: A(f"s_sleep {sleep}")
        A("s_sub_u32 s14, s14, 1")
        A(f"s_cbranch_scc0 {lp}")
        A(f"s_or_b32 s15, s15, {code}")
        A(f"{dn}:")
        A("s_mov_b64 exec, -1")
    def sleep(self, n):
        while n > 0:
            self.A(f"s_sleep {min(n, 120)}"); n -= 120
    def spin(self, off, target, code, vt=12, va=15, sleep=1):
        a = self.newlab("Lsp"); b = self.newlab("Lspd")
        self.A(f"""
        s_mov_b32 s14, {self.limit*8}
        {a}:
        ds_read_b32 v{vt}, v{va} offset:{off}
        s_waitcnt lgkmcnt(0)
        v_readfirstlane_b32 s8, v{vt}
        s_nop 0
        s_cmp_ge_u32 s8, {target}
        s_cbranch_scc1 {b}
        s_sleep {sleep}
        s_sub_u32 s14, s14, 1
        s_cbranch_scc0 {a}
        s_or_b32 s15, s15, {code}
        {b}:
        """)
    def bump(self, off, vt=12, va=15):
        self.A(f"v_mov_b32 v{vt}, 1\ns_mov_b64 exec, 1\nds_add_u32 v{va}, v{vt} offset:{off}\ns_mov_b64 exec, -1")
    def silu(self, regs, tmps):
        A = self.A
        for r, t in zip(regs, tmps): A(f"v_mul_f32 v{t}, {hex(NLOG2E)}, v{r}")
        for t in tmps: A(f"v_exp_f32 v{t}, v{t}")
        A("s_nop 0")
        for t in tmps: A(f"v_add_f32 v{t}, 1.0, v{t}")
        for t in tmps: A(f"v_rcp_f32 v{t}, v{t}")
        A("s_nop 0")
        for r, t in zip(regs, tmps): A(f"v_mul_f32 v{r}, v{r}, v{t}")

    def prologue(self):
        A = self.A
        self.L += [f"; @launch grid=(256,1,1) block=(512,1,1) lds={L_END}",
                   '.amdgcn_target "amdgcn-amd-amdhsa--gfx950"', ".text", f".globl {NAME}_kernel", ".p2align 8",
                   f".type {NAME}_kernel,@function", f"{NAME}_kernel:"]
        A("""
        s_cmp_ge_u32 s2, 256
        s_cbranch_scc1 L_end
        s_getpc_b64 s[100:101]
        s_load_dwordx16 s[16:31], s[0:1], 0
        s_load_dwordx8 s[32:39], s[0:1], 64
        s_load_dwordx2 s[40:41], s[0:1], 96
        """)
        if self.stamps or self.fix: A("s_memrealtime s[42:43]")
        A("""
        v_lshrrev_b32 v1, 6, v0
        s_and_b32 s4, s2, 7
        v_readfirstlane_b32 s3, v1
        """)
        if self.codepf:
            A(f"v_mul_u32_u24 v8, {self.pad//512}, v0\nglobal_load_dwordx4 v[24:27], v8, s[100:101] offset:-16")
        A(f"""
        v_and_b32 v1, 63, v0
        v_lshrrev_b32 v2, 4, v1
        v_and_b32 v3, 15, v1
        v_lshlrev_b32 v4, 6, v3
        v_lshl_add_u32 v4, v2, 4, v4
        v_lshlrev_b32 v5, 4, v1
        v_lshlrev_b32 v6, 2, v1
        v_and_b32 v13, 3, v1
        s_lshr_b32 s5, s2, 3
        s_lshl_b32 s6, s4, 2
        s_and_b32 s8, s5, 3
        s_add_u32 s6, s6, s8
        s_lshr_b32 s7, s5, 2
        s_lshl_b32 s8, s7, 5
        s_add_u32 s84, s8, s6
        s_lshl_b32 s14, s84, 20
        s_mul_i32 s9, s3, {self.gran*1024}
        s_add_u32 s14, s14, s9
        s_mul_i32 s89, s2, {self.rot*1024}
        s_and_b32 s89, s89, 0x3ffff
        s_add_u32 s14, s14, 0xC0000
        s_mov_b32 s15, 0
        s_mul_i32 s97, s3, 1280
        s_and_b32 s8, s5, 15
        s_lshr_b32 s8, s8, 1
        s_lshl_b32 s9, s8, 3
        s_add_u32 s9, s9, s4
        s_lshl_b32 s91, s9, 1
        s_and_b32 s10, s5, 1
        s_add_u32 s91, s91, s10
        s_mul_i32 s11, s3, 5120
        s_add_u32 m0, s11, {L_TA}
        v_mov_b32 v15, {L_FL}
        v_mov_b32 v8, 0
        v_mov_b32 v9, 0
        v_mov_b32 v10, 0
        v_mov_b32 v11, 0
        ds_write_b128 v15, v[8:11]
        s_nop 1
        v_mov_b32 v8, -1
        v_mov_b32 v9, -1
        v_mov_b32 v10, -1
        v_mov_b32 v11, -1
        s_cmp_lt_u32 s5, 16
        s_cbranch_scc1 L_p_mod
        s_mov_b32 s85, 1
        v_lshrrev_b32 v12, 3, v1
        v_lshlrev_b32 v12, 13, v12
        v_and_b32 v14, 7, v1
        v_lshl_add_u32 v12, v14, 4, v12
        s_lshl_b32 s99, s4, 3
        s_add_u32 s99, s99, s8
        s_lshl_b32 s9, s99, 7
        s_mul_i32 s10, s10, {320*8192}
        s_add_u32 s9, s9, s10
        s_mov_b32 s11, {8*8192}
        s_waitcnt lgkmcnt(0)
        s_add_u32 s{T0}, s22, s9
        s_addc_u32 s{T0+1}, s23, 0
        s_sub_u32 s{T0+2}, {640*8192}, s9
        s_branch L_p_j
        L_p_mod:
        s_mov_b32 s85, 2
        v_lshrrev_b32 v12, 2, v1
        v_mul_u32_u24 v12, 7680, v12
        v_lshl_add_u32 v12, v13, 4, v12
        s_lshl_b32 s9, s91, 6
        s_mov_b32 s11, {16*7680}
        """)
        if 'f' in self.x: A(f"""
        v_lshrrev_b32 v12, 3, v1
        v_mul_u32_u24 v12, 7680, v12
        v_and_b32 v14, 7, v1
        v_lshl_add_u32 v12, v14, 4, v12
        s_lshr_b32 s9, s91, 1
        s_lshl_b32 s9, s9, 7
        s_mul_i32 s10, s10, {320*7680}
        s_add_u32 s9, s9, s10
        s_mov_b32 s11, {8*7680}
        """)
        A(f"""
        s_mov_b32 s99, 0
        s_waitcnt lgkmcnt(0)
        s_add_u32 s{T0}, s34, s9
        s_addc_u32 s{T0+1}, s35, 0
        s_sub_u32 s{T0+2}, {640*7680}, s9
        s_cmp_lt_u32 s91, 120
        s_cbranch_scc1 L_p_j
        s_mov_b32 s85, 8
        s_mov_b32 s{T0+2}, 0
        L_p_j:
        s_mov_b32 s{T0+3}, 0x20000
        """)
        if 'n' in self.x: A(f"s_mov_b32 s{T0+2}, 0\ns_mov_b32 s85, 1")
        self.srd(WS, "s40", "s41", hex(WS_END))
        self.srd(DBG, "s38", "s39", 256)
        self.srd(X, "s16", "s17", 10240); self.srd(C, "s32", "s33", 10240)
        A(f"""
        s_cmp_eq_u32 s3, 0
        s_cbranch_scc0 L_p_nh
        s_setprio 3
        s_cmp_eq_u32 s85, 8
        s_cbranch_scc0 L_p_nc
        s_sub_u32 s8, s91, 120
        s_lshl_b32 s8, s8, 13
        s_add_u32 s9, s8, 4096
        """)
        for i in range(8):
            A(f"buffer_store_dwordx4 v[8:11], v5, {sr(WS)}, {'s8' if i < 4 else 's9'} offen offset:{(i%4)*1024} sc1")
        A(f"""
        s_waitcnt vmcnt(0)
        v_mov_b32 v14, 1
        s_mov_b64 exec, 1
        buffer_atomic_add v14, off, {sr(DBG)}, 0 sc1
        s_mov_b64 exec, -1
        L_p_nc:
        s_lshl_b32 s87, s6, 3
        s_add_u32 s87, s87, s7
        s_lshl_b32 s8, s87, 10
        s_add_u32 s8, s8, {hex(WS_QP)}
        buffer_store_dwordx4 v[8:11], v5, {sr(WS)}, s8 offen sc1
        L_p_nh:
        s_cmp_eq_u32 s85, 2
        s_cbranch_scc0 L_p_nxc
        """)
        for i in range(5): A(f"buffer_load_dword v{24+i}, v6, {sr(X)}, s97 offen offset:{i*256}")
        for i in range(5): A(f"buffer_load_dword v{56+i}, v6, {sr(C)}, s97 offen offset:{i*256}")
        A("L_p_nxc:\ns_mul_i32 s8, s3, s11\ns_mul_i32 s8, s8, 5")
        for u in range(5):
            A(f"buffer_load_dwordx4 v12, {sr(T0)}, s8 offen {self.tf} lds")
            if u < 4: A("s_add_u32 m0, m0, 1024\ns_add_u32 s8, s8, s11")
        self.srdo(K, "s18", "s19", "s14", 0x40000 - 7*self.gran*1024)
        A("s_waitcnt lgkmcnt(0)\ns_barrier")

    def setup2(self):
        A = self.A
        self.srdo(V, "s20", "s21", "s14", 0x40000 - 7*self.gran*1024)
        A("""
        s_lshl_b32 s8, s6, 7
        s_lshl_b32 s9, s3, 4
        s_add_u32 s8, s8, s9
        s_mul_i32 s8, s8, 1280
        """)
        self.srdo(WO, "s24", "s25", "s8", 20480)
        self.srd(OUT, "s36", "s37", 10240)
        A("s_lshl_b32 s8, s84, 20\ns_add_u32 s8, s8, 0xC0000")
        self.srdo(KH, "s18", "s19", "s8", "0x40000")
        A(f"""
        s_sub_u32 s96, 31, s5
        s_mul_i32 s8, s96, 52
        s_lshr_b32 s8, s8, 8
        s_mul_i32 s9, s8, 5
        s_sub_u32 s9, s96, s9
        s_lshl_b32 s8, s8, 3
        s_add_u32 s8, s8, s4
        s_lshl_b32 s10, s8, 7
        s_add_u32 s{TA}, s28, s10
        s_addc_u32 s{TA+1}, s29, 0
        s_sub_u32 s{TA+2}, {640*3456}, s10
        s_mov_b32 s{TA+3}, 0x20000
        s_mul_i32 s10, s8, {64*1280}
        s_lshl_b32 s11, s9, 8
        s_add_u32 s10, s10, s11
        s_add_u32 s{TB}, s30, s10
        s_addc_u32 s{TB+1}, s31, 0
        s_sub_u32 s{TB+2}, {64*1280}, s11
        s_mov_b32 s{TB+3}, 0x20000
        s_mul_i32 s101, s8, 20480
        s_lshl_b32 s11, s9, 12
        s_add_u32 s101, s101, s11
        s_add_u32 s101, s101, {hex(WS_OP)}
        s_cmp_lt_u32 s8, 27
        s_cselect_b32 s100, 1, 0
        s_sub_u32 s96, s96, 20
        s_cmp_lt_u32 s96, 10
        s_cselect_b32 s100, 2, s100
        s_lshl_b32 s96, s96, 1
        s_and_b32 s8, s3, 1
        s_add_u32 s96, s96, s8
        s_lshl_b32 s11, s96, 7
        s_mul_i32 s90, s4, 2560
        s_add_u32 s90, s90, s11
        """)
        if 't' in self.x: A("s_mov_b32 s100, 0")
        A(f"""
        s_lshl_b32 s88, s3, 13
        s_add_u32 s88, s88, {L_WL - 8192}
        s_lshl_b32 s10, s3, 6
        v_lshlrev_b32 v7, 9, v2
        v_lshl_add_u32 v7, v3, 2, v7
        v_add_u32 v7, s10, v7
        v_mul_u32_u24 v0, 5120, v2
        v_lshl_add_u32 v0, v3, 4, v0
        v_and_b32 v8, 1, v3
        v_lshlrev_b32 v8, 4, v8
        v_mov_b32 v9, 0xffff
        v_lshlrev_b32 v9, v8, v9
        v_lshrrev_b32 v8, 1, v3
        """)
        for r in range(4):
            A(f"v_cmp_eq_u32 vcc, {r}, v8\ns_nop 1\nv_cndmask_b32 v{16+r}, 0, v9, vcc")
        if self.stamps or self.fix: A("s_mov_b32 s16, s42\ns_mov_b32 s17, s43")
        A("s_mov_b32 s98, 2048")

    def gen(self):
        A = self.A; d = self.depth
        KR = 64
        VR = [192 + 4*i for i in range(16)] + [64 + 4*i for i in range(16)]
        WOR = [128 + 4*i for i in range(16)] + [48 + 4*i for i in range(4)]
        gr = self.gran
        assert self.rot % (8*gr) == 0
        def soff(i):
            if i % gr == 0:
                if self.rot: A(f"s_add_u32 s86, s89, {(i//gr)*gr*8192}\ns_and_b32 s86, s86, 0x3ffff")
                else: A(f"s_mov_b32 s86, {(i//gr)*gr*8192}")
        def kload(i):
            soff(i)
            A(f"buffer_load_dwordx4 v[{KR+4*i}:{KR+4*i+3}], v4, {sr(K)}, s86 offen offset:{(i%gr)*1024} {self.kvf}")
        def vload(i):
            soff(i)
            A(f"buffer_load_dwordx4 v[{VR[i]}:{VR[i]+3}], v5, {sr(V)}, s86 offen offset:{(i%gr)*1024} {self.kvf}")
        def woload(j):
            g, cb = divmod(j, 5)
            off = g*1280 + cb*256
            so = "0" if off < 4096 else "s98"
            if off >= 4096: off -= 2048
            A(f"buffer_load_dwordx4 v[{WOR[j]}:{WOR[j]+3}], v0, {sr(WO)}, {so} offen offset:{off} {self.wof}")
        def hload(u):
            A(f"""
            s_add_u32 s8, s3, {7*u - 1}
            s_lshl_b32 s9, s8, 10
            s_add_u32 m0, s9, {L_KH}
            s_and_b32 s10, s9, {(gr-1)*1024}
            s_sub_u32 s9, s9, s10
            s_lshl_b32 s9, s9, 3
            s_add_u32 s9, s9, s89
            s_and_b32 s9, s9, 0x3ffff
            s_add_u32 s9, s9, s10
            """)
            if u == 4: A("s_cmp_ge_u32 s8, 32\ns_cselect_b32 s9, 0x40000, s9")
            A(f"buffer_load_dwordx4 v4, {sr(KH)}, s9 offen {self.kvf} lds")
        def wlload(j, helper=False):
            g, cb = divmod(j, 5); off = g*1280 + cb*256
            if helper: A(f"s_mov_b32 m0, {L_SH + j*1024 - off}\ns_nop 0")
            elif j < 8: A(f"s_add_u32 m0, s88, {j*1024 - off}\ns_nop 0")
            else:
                if j == 8:
                    A(f"""
                    s_mov_b32 s14, {self.limit*8}
                    L_sb:
                    ds_read_b32 v12, v15
                    s_waitcnt lgkmcnt(0)
                    v_readfirstlane_b32 s8, v12
                    s_nop 0
                    s_cmp_lg_u32 s8, 0
                    s_cbranch_scc1 L_sbd
                    s_sleep 2
                    s_sub_u32 s14, s14, 1
                    s_cbranch_scc0 L_sb
                    s_or_b32 s15, s15, 512
                    L_sbd:
                    """)
                A(f"s_mov_b32 s8, {off}\ns_add_u32 m0, s87, {L_SB + (j-8)*1024}\ns_nop 0")
                A(f"buffer_load_dwordx4 v0, {sr(WO)}, s8 offen {self.wof} lds"); return
            A(f"buffer_load_dwordx4 v0, {sr(WO)}, 0 offen offset:{off} {self.wof} lds")
        nl = self.nl
        kseq = []
        base = []
        for i in range(32):
            base.append(("K", i))
            if i % 6 == 5 and i//6 < 5: base.append(("H", i//6))
        for i in range(16): base.append(("V", i))
        lo, hi = 9, len(base) - self.depth
        pos = {lo + (j*(hi - lo))//nl: j for j in range(nl)}
        assert len(pos) == nl
        for n, op in enumerate(base):
            if n in pos: kseq.append(("L", pos[n]))
            kseq.append(op)
        def issue(op): {"K": kload, "V": vload, "W": woload, "H": hload, "L": wlload}[op[0]](op[1])
        d0 = self.d0

        self.prologue()
        nm = self.nm
        assert all(op[0] == "K" for op in kseq[:nm]) and nm <= 10
        A("s_cmp_eq_u32 s3, 0\ns_cbranch_scc1 L_c_j")
        for i in range(nm): kload(i)
        A("L_c_j:")
        self.setup2()
        self.stamp(1, 1)
        A(f"s_cmp_eq_u32 s85, 2\ns_cbranch_scc0 L_c_a\ns_waitcnt vmcnt({5+nm})")
        A("s_cmp_eq_u32 s3, 0\ns_cbranch_scc0 L_c_i1\ns_waitcnt vmcnt(5)\nL_c_i1:")
        self.stamp(2, 1)
        self.init1()
        A("L_c_a:")
        self.stamp(3, 1)
        A("s_cmp_eq_u32 s3, 0\ns_cbranch_scc1 L_helper")
        AF = lambda k, nt: (64 + 4*(k*4+nt)) if k < 8 else (208 + 4*((k-8)*4+nt))
        A(f"""
        s_mul_i32 s87, s3, 5120
        s_sub_u32 s87, s87, 5120
        s_mov_b64 vcc, -1
        v_mov_b32 v14, 1
        """)
        if self.prio == 1: A("s_cmp_ge_u32 s3, 4\ns_cbranch_scc0 L_np\ns_setprio 1\nL_np:")
        if self.prio == 2: A("s_cmp_ge_u32 s3, 3\ns_cbranch_scc0 L_np\ns_setprio 1\ns_cmp_ge_u32 s3, 6\ns_cbranch_scc0 L_np\ns_setprio 2\nL_np:")
        A(f"""
        s_getreg_b32 s8, hwreg(HW_REG_XCC_ID)
        s_and_b32 s8, s8, 7
        s_bitcmp1_b32 {self.par}, s8
        s_cselect_b32 s94, -1, 2
        """)
        if self.mdeep: A("s_cmp_eq_u32 s85, 2\ns_cselect_b32 s94, 0, s94\ns_cselect_b64 vcc, 0, -1")
        A(f"""
        s_waitcnt vmcnt({nm}) lgkmcnt(0)
        s_mov_b64 exec, 1
        ds_add_u32 v15, v14 offset:4
        s_mov_b64 exec, -1
        """)
        self.stamp(4, 1)
        hdone = kseq.index(("H", 4)) + d
        for n, op in enumerate(kseq):
            if n < nm: continue
            if n == self.nclr: self.late_clears()
            if n < self.n0: A(f"s_waitcnt vmcnt({d0-1})")
            else:
                if (n - self.n0) % self.chk == 0 and n <= self.nref:
                    if n > self.n0: A("s_waitcnt lgkmcnt(0)\nv_cmp_gt_u32 vcc, s94, v14")
                    A("ds_read_b32 v14, v15")
                lb = self.newlab("Ld")
                A(f"s_cbranch_vccz {lb}\ns_waitcnt vmcnt({(d0 if n < self.npat else self.pat[n % len(self.pat)])-1})\n{lb}:\ns_waitcnt vmcnt({d-1})")
            if n == hdone: self.bump(8)
            issue(op)
            if n in (16, 32, 48): self.stamp(n//16)
        assert all(op[0] not in "HL" for op in kseq[-d:])
        self.stamp(9); self.stamp(1, 3)
        A("s_cmp_eq_u32 s94, -1\ns_cselect_b64 s[92:93], -1, 0")
        self.spin(0, 2, 1024)
        A("s_branch L_qk")
        A(f"""
        L_helper:
        """)
        if 'p' in self.x or 'r' in self.x: A("s_branch L_noexp")
        if 'e' in self.x: A("v_mov_b32 v11, 1\nds_write_b32 v15, v11")
        if 'e' in self.x or 'p' in self.x or 'r' in self.x: A(f"""
        L_exp:
        s_add_u32 s8, s16, {self.exp*100}
        L_exp_poll:
        s_sleep 4
        s_memrealtime s[10:11]
        s_waitcnt lgkmcnt(0)
        s_sub_u32 s10, s8, s10
        s_cmp_gt_i32 s10, 0
        s_cbranch_scc1 L_exp_poll
        ds_write_b32 v15, v15
        s_branch L_exp_j
        L_noexp:
        """)
        A("s_waitcnt vmcnt(0)")
        A(f"buffer_load_dword v12, off, {sr(DBG)}, 0 sc1" if 'b' not in self.x else "v_mov_b32 v12, 8")
        A(f"""
        s_mov_b32 s14, {self.limit*8}
        L_ht:
        ds_read_b32 v14, v15 offset:4
        s_waitcnt lgkmcnt(0)
        v_readfirstlane_b32 s8, v14
        s_nop 0
        s_cmp_ge_u32 s8, 7
        s_cbranch_scc1 L_htd
        s_sleep 1
        s_sub_u32 s14, s14, 1
        s_cbranch_scc0 L_ht
        s_or_b32 s15, s15, 256
        L_htd:
        """)
        self.stamp(9); self.stamp(5, 1)
        A(f"""
        v_lshrrev_b32 v8, 2, v3
        s_cmp_eq_u32 s85, 2
        s_cbranch_scc1 L_h_mod
        v_lshlrev_b32 v10, 10, v2
        v_lshl_add_u32 v10, v8, 7, v10
        v_lshl_add_u32 v10, v13, 3, v10
        """)
        for k in range(10):
            for nt in range(4):
                r = AF(k, nt)
                A(f"ds_read_b64_tr_b16 v[{r}:{r+1}], v10 offset:{L_TA + k*4096 + nt*32}")
                A(f"ds_read_b64_tr_b16 v[{r+2}:{r+3}], v10 offset:{L_TA + k*4096 + nt*32 + 512}")
        A(f"""
        v_and_b32 v8, 7, v3
        v_lshrrev_b32 v9, 3, v3
        s_branch L_h_cnt
        L_h_mod:
        v_lshlrev_b32 v10, 9, v2
        v_lshl_add_u32 v10, v8, 6, v10
        v_lshl_add_u32 v10, v13, 3, v10
        """)
        def rd(i):
            A(f"ds_read_b128 v[{24+4*i}:{27+4*i}], v4 offset:{L_ACT + i*1024}")
            for par in range(2):
                for nt in range(2):
                    r = 64 + 4*((2*i+par)*2+nt)
                    A(f"ds_read_b64_tr_b16 v[{r}:{r+1}], v10 offset:{L_TA + (2*i+par)*2048 + nt*32}")
                    A(f"ds_read_b64_tr_b16 v[{r+2}:{r+3}], v10 offset:{L_TA + (2*i+par)*2048 + nt*32 + 256}")
        if self.stamps: A("s_waitcnt lgkmcnt(0)")
        rd(0)
        for i in range(10):
            if i < 9:
                rd(i+1); A("s_waitcnt lgkmcnt(9)")
            else: A("s_waitcnt lgkmcnt(0)")
            for par in range(2):
                for nt in range(2):
                    r = 64 + 4*((2*i+par)*2+nt); a_ = 224 + 8*par + 4*nt
                    c = "0" if i == 0 else f"v[{a_}:{a_+3}]"
                    A(f"v_mfma_f32_16x16x32_bf16 v[{a_}:{a_+3}], v[{r}:{r+3}], v[{24+4*i}:{27+4*i}], {c}")
        A(f"""
        v_and_b32 v8, 7, v3
        v_lshrrev_b32 v9, 3, v3
        v_lshlrev_b32 v15, 6, v8
        v_lshl_add_u32 v15, v9, 5, v15
        v_lshl_add_u32 v15, v2, 3, v15
        s_lshl_b32 s9, s91, 9
        s_add_u32 s8, s9, {L_XN - 20*512}
        v_add_u32 v14, s8, v15
        s_nop 1
        """)
        for r in range(4):
            A(f"v_add_f32_dpp v{24+r}, v{232+r}, v{224+r} row_ror:8 row_mask:0xf bank_mask:0x3")
            A(f"v_add_f32_dpp v{24+r}, v{228+r}, v{236+r} row_ror:8 row_mask:0xf bank_mask:0xc")
        A("v_cvt_pk_bf16_f32 v40, v24, v25\nv_cvt_pk_bf16_f32 v41, v26, v27")
        A("s_sub_u32 s8, s91, 20\ns_cmp_lt_u32 s8, 20\ns_cbranch_scc0 L_h_pub")
        A("ds_read_b64 v[42:43], v14")
        for j in range(2): self.unpack(24+2*j, 25+2*j, 40+j)
        for r in range(4): A(f"v_add_f32 v{24+r}, 1.0, v{24+r}")
        for j in range(2): A(f"v_cvt_pk_bf16_f32 v{40+j}, v{24+2*j}, v{25+2*j}")
        for j in range(2): self.unpack(24+2*j, 25+2*j, 40+j)
        A("s_waitcnt lgkmcnt(0)")
        for j in range(2): self.unpack(28+2*j, 29+2*j, 42+j)
        for r in range(4): A(f"v_mul_f32 v{24+r}, v{24+r}, v{28+r}")
        for j in range(2): A(f"v_cvt_pk_bf16_f32 v{40+j}, v{24+2*j}, v{25+2*j}")
        A("L_h_pub:")
        for j in range(2): A(f"v_min_u32 v{40+j}, -2, v{40+j}")
        A(f"v_add_u32 v15, {L_BN}, v15\nv_add_u32 v14, {L_BN}, v5\nds_write_b64 v15, v[40:41]\nds_read_b128 v[40:43], v14")
        A(f"""
        L_h_cnt:
        v_mov_b32 v10, {L_FL}
        v_mov_b32 v11, 1
        s_waitcnt lgkmcnt(0)
        ds_write_b32 v10, v11
        s_mov_b32 s14, {self.limit}
        L_wc:
        s_waitcnt vmcnt(0)
        v_readfirstlane_b32 s8, v12
        s_nop 0
        s_cmp_ge_u32 s8, {NCLR}
        s_cbranch_scc1 L_wcd
        s_sleep 2
        buffer_load_dword v12, off, {sr(DBG)}, 0 sc1
        s_sub_u32 s14, s14, 1
        s_cbranch_scc0 L_wc
        s_or_b32 s15, s15, 1
        L_wcd:
        s_cmp_eq_u32 s85, 2
        s_cbranch_scc0 L_h_np
        s_mov_b32 exec_hi, 0
        buffer_store_dwordx4 v[40:43], v5, {sr(WS)}, s9 offen sc1
        L_h_np:
        s_lshl_b32 s8, s87, 2
        s_add_u32 s8, s8, {WS_FLG}
        s_mov_b64 exec, 1
        """)
        if 'a' not in self.x: A(f"buffer_store_dword v1, off, {sr(WS)}, s8 sc1")
        A("s_mov_b64 exec, -1")
        if 'p' in self.x: A(f"v_mov_b32 v15, {L_FL}\ns_branch L_exp")
        self.stamp(1); self.stamp(6, 1)
        A("s_bitcmp1_b32 s85, 0\ns_cbranch_scc0 L_h_getq0")
        A(f"""
        v_mul_u32_u24 v12, 10240, v9
        v_lshl_add_u32 v12, v8, 6, v12
        v_lshl_add_u32 v12, v2, 4, v12
        v_lshlrev_b32 v14, 2, v8
        v_lshlrev_b32 v15, 8, v8
        v_lshl_add_u32 v15, v9, 6, v15
        v_lshl_add_u32 v15, v2, 4, v15
        v_add_u32 v15, {L_BN}, v15
        s_and_b32 s10, s5, 1
        s_mul_i32 s8, s10, 5120
        s_add_u32 s42, s8, 2560
        s_lshr_b32 s11, s99, 1
        s_lshl_b32 s9, s11, 5
        s_add_u32 s9, s9, {WS_FLG}
        s_lshl_b32 s11, s11, 13
        s_lshl_b32 s10, s10, 9
        s_add_u32 s11, s11, s10
        s_and_b32 s10, s99, 1
        s_lshl_b32 s10, s10, 8
        s_add_u32 s11, s11, s10
        s_add_u32 s11, s11, {hex(WS_QP)}
        """)
        loads = [f"buffer_load_dwordx4 v[{24+4*k}:{27+4*k}], v12, {sr(WS)}, {'s8' if k < 5 else 's42'} offen offset:{(k%5)*512} sc1" for k in range(10)]
        if self.probe:
            A(f"""
            v_lshlrev_b32 v10, 9, v1
            v_add_u32 v10, 508, v10
            v_add_u32 v11, 5120, v10
            v_cmp_lt_u32 vcc, 9, v1
            s_nop 1
            v_cndmask_b32 v10, v10, v11, vcc
            s_mov_b64 exec, 0xfffff
            """)
            self.poll([f"buffer_load_dword v240, v10, {sr(WS)}, s8 offen sc1"], [240, 240], 241, 2, sleep=self.s1)
        if 'i' in self.x:
            for _ in range(3): A("s_sleep 64")
            for l in loads: A(l)
            A("s_waitcnt vmcnt(0)")
        else:
            self.sleep(self.w1)
            self.poll(loads, list(range(24, 64)), 241, 2, sleep=self.s1)
        fl = f"buffer_load_dword v12, v14, {sr(WS)}, s9 offen sc1"
        A(fl)
        self.stamp(2)
        A("v_cmp_lt_u32 vcc, 7, v3\ns_waitcnt lgkmcnt(0)")
        for k in range(10):
            for j in (4*k, 4*k+2):
                self.unpack(240, 241, 24+j); self.unpack(242, 243, 25+j)
                for r in range(4): A(f"v_add_f32_dpp v{244+r}, v{240+r}, v{240+r} row_ror:8 {DPPF}")
                A(f"v_cvt_pk_bf16_f32 v{24+j}, v244, v245\nv_cvt_pk_bf16_f32 v{25+j}, v246, v247")
            if k >= 1:
                kk = k - 1
                for nt in range(4):
                    r = AF(kk, nt); a_ = [8, 20, 248, 252][nt]
                    c = "0" if kk == 0 else f"v[{a_}:{a_+3}]"
                    A(f"v_mfma_f32_16x16x32_bf16 v[{a_}:{a_+3}], v[{r}:{r+3}], v[{24+4*kk}:{27+4*kk}], {c}")
        for nt in range(4):
            r = AF(9, nt); a_ = [8, 20, 248, 252][nt]
            A(f"v_mfma_f32_16x16x32_bf16 v[{a_}:{a_+3}], v[{r}:{r+3}], v[60:63], v[{a_}:{a_+3}]")
        A("s_nop 5")
        for j, (a0, a1) in enumerate(((8, 20), (248, 252))):
            for r in range(4): A(f"v_cndmask_b32 v{24+4*j+r}, v{a0+r}, v{a1+r}, vcc")
            for r in range(4): A(f"v_min_u32 v{24+4*j+r}, -2, v{24+4*j+r}")
        A(f"""
        ds_write_b128 v15, v[24:27]
        ds_write_b128 v15, v[28:31] offset:128
        v_add_u32 v15, {L_BN}, v5
        ds_read_b128 v[32:35], v15
        ds_read_b128 v[36:39], v15 offset:1024
        v_lshlrev_b32 v15, 10, v2
        v_lshl_add_u32 v15, v3, 4, v15
        s_add_u32 s10, s11, 4096
        s_waitcnt vmcnt(0)
        """)
        self.poll([fl], [12, 12], 241, 2, first_loaded=True, sleep=4)
        A(f"""
        s_waitcnt lgkmcnt(0)
        buffer_store_dwordx4 v[32:35], v15, {sr(WS)}, s11 offen sc1
        buffer_store_dwordx4 v[36:39], v15, {sr(WS)}, s10 offen sc1
        """)
        self.stamp(8)
        self.sleep(self.w3)
        A("s_branch L_h_getq\nL_h_getq0:")
        self.sleep(self.w2)
        A(f"""
        L_h_getq:
        """)
        if 'r' in self.x: A(f"v_mov_b32 v15, {L_FL}\ns_branch L_exp")
        A(f"""
        v_lshlrev_b32 v12, 3, v1
        v_add_u32 v14, {L_Q}, v6
        s_lshl_b32 s8, s87, 10
        s_add_u32 s8, s8, {hex(WS_QP)}
        """)
        loads = [f"buffer_load_dwordx2 v[{40+2*k}:{41+2*k}], v12, {sr(WS)}, s8 offen offset:{k*512} sc1" for k in range(2)]
        self.poll(loads, range(40, 44), 45, 4, sleep=self.s2)
        A(f"""
        v_add_f32 v32, v40, v42
        v_add_f32 v33, v41, v43
        v_mov_b32 v15, {L_FL}
        v_cvt_pk_bf16_f32 v32, v32, v33
        ds_write_b32 v14, v32
        s_waitcnt lgkmcnt(0)
        ds_write_b32 v15, v15
        """)
        self.stamp(3)
        A("L_exp_j:\ns_setprio 0")
        for j in range(nl): wlload(j, True)
        for i in range(16): vload(i)
        A("s_mov_b64 s[92:93], 0")
        self.spin(8, 7, 2048)
        A(f"""
        s_lshl_b32 s8, s2, 2
        s_add_u32 s8, s8, {WS_FLG2}
        s_mov_b64 exec, 1
        buffer_store_dword v1, off, {sr(WS)}, s8 sc1
        s_mov_b64 exec, -1
        v_add_u32 v8, {L_KH}, v5
        """)
        for i in range(32): A(f"ds_read_b128 v[{KR+4*i}:{KR+4*i+3}], v8 offset:{i*1024}")
        A("L_qk:")
        order = [op for op in kseq if op[0] in "KV"]
        def iss(op):
            issue(op); order.append(op)
        def waitfor(op):
            A(f"s_waitcnt vmcnt({len(order) - 1 - order.index(op)})")
        A(f"""
        v_lshlrev_b32 v8, 6, v13
        v_lshl_add_u32 v8, v2, 4, v8
        v_add_u32 v8, {L_Q}, v8
        ds_read_b128 v[24:27], v8
        v_lshrrev_b32 v9, 2, v3
        s_waitcnt lgkmcnt(0)
        """)
        for t in range(4):
            A(f"v_cmp_eq_u32 vcc, {t}, v9\ns_nop 1")
            for r in range(4): A(f"v_cndmask_b32 v{32+4*t+r}, 0, v{24+r}, vcc")
        A("s_nop 1")
        for half in range(2):
            for gg in range(4):
                g = half*4 + gg
                waitfor(("K", 4*g+3))
                for t in range(4):
                    i = 4*g + t
                    c = "0" if t == 0 else f"v[{48+4*gg}:{51+4*gg}]"
                    A(f"v_mfma_f32_16x16x32_bf16 v[{48+4*gg}:{51+4*gg}], v[{KR+4*i}:{KR+4*i+3}], v[{32+4*t}:{35+4*t}], {c}")
            A("s_nop 7")
            for j in range(4):
                for gg in range(4):
                    g = half*4 + gg
                    if j == 0: A(f"v_mov_b32_dpp v{24+g}, v{48+4*gg} quad_perm:[0,0,0,0] {DPPF}")
                    else: A(f"v_add_f32_dpp v{24+g}, v{48+4*gg+j}, v{24+g} quad_perm:[{j},{j},{j},{j}] {DPPF}")
            A("s_nop 1")
        self.stamp(4)
        A(f"""
        s_add_u32 s9, s87, {L_SB}
        s_cmp_eq_u32 s3, 0
        s_cselect_b32 s8, {L_SH}, s88
        s_cselect_b32 s9, {L_SH + 8192}, s9
        v_add_u32 v8, s8, v5
        v_add_u32 v9, s9, v5
        s_waitcnt vmcnt(16)
        """)
        for j in range(nl): A(f"ds_read_b128 v[{WOR[j]}:{WOR[j]+3}], {'v8' if j < 8 else 'v9'} offset:{(j%8)*1024}")
        post = []
        ws_ = list(range(nl, 20)); vs_ = list(range(16, 32))
        while ws_ or vs_:
            if ws_: post.append(("W", ws_.pop(0)))
            if vs_: post.append(("V", vs_.pop(0)))
        npre = self.d1; assert npre < len(post)
        for op in post[:npre]: iss(op)
        self.softmax1()
        A("s_mov_b64 vcc, s[92:93]")
        for n, op in enumerate(post[npre:]):
            if self.par:
                lb = self.newlab("Ld")
                A(f"s_cbranch_vccz {lb}\ns_waitcnt vmcnt({self.pat[n % len(self.pat)]-1})\n{lb}:")
            A(f"s_waitcnt vmcnt({self.d2-1})")
            iss(op)
        self.stamp(5)
        self.softmax2()
        def abuild(i):
            base = 32 + 4*(i % 2)
            for r in range(4):
                A(f"v_and_b32_dpp v{base+r}, v{24+i//4}, v{16+r} row_newbcast:{4*(i%4)} {DPPF}")
        abuild(0)
        last = self.d2
        for i in range(32):
            if i + 1 < 32: abuild(i+1)
            else: A("s_nop 1")
            n = len(order) - 1 - order.index(("V", i))
            if n < last: A(f"s_waitcnt vmcnt({n})"); last = n
            r = VR[i]; base = 32 + 4*(i % 2)
            c = "0" if i == 0 else "v[20:23]"
            A(f"v_mfma_f32_16x16x32_bf16 v[20:23], v[{base}:{base+3}], v[{r}:{r+3}], {c}")
            if i == 8:
                self.small_loads()
                for u in range(11): order.append(("S", u))
                last += 11
        self.stamp(2, 3)
        if self.te:
            A("s_cmp_eq_u32 s100, 1\ns_cbranch_scc0 L_not")
            self.tload(0, self.te)
            A("L_not:")
        self.tail1(WOR)
        if 's' in self.x: A("s_branch L_fin")
        A("s_cmp_eq_u32 s100, 1\ns_cbranch_scc1 L_mlp")
        A("s_cmp_eq_u32 s100, 2\ns_cbranch_scc0 L_fin")
        A("s_cmp_lt_u32 s3, 6\ns_cbranch_scc1 L_fin")
        self.reducer()
        self.mlp()
        self.finish()
        self.subs()
        L = self.L
        L.append(f".fill ({self.pad} - (. - {NAME}_kernel))/4, 4, 0xbf800000")
        L += ['.section .rodata,"a"', ".p2align 6", f".amdhsa_kernel {NAME}_kernel",
              "  .amdhsa_next_free_vgpr 256", "  .amdhsa_next_free_sgpr 102", "  .amdhsa_accum_offset 256",
              "  .amdhsa_group_segment_fixed_size 0", "  .amdhsa_kernarg_size 104", "  .amdhsa_user_sgpr_count 2",
              "  .amdhsa_user_sgpr_kernarg_segment_ptr 1", "  .amdhsa_system_sgpr_workgroup_id_x 1", ".end_amdhsa_kernel"]
        return "\n".join(L) + "\n"

    def late_clears(self):
        self.A(f"""
        v_mov_b32 v8, -1
        v_mov_b32 v9, -1
        v_mov_b32 v10, -1
        v_mov_b32 v11, -1
        s_cmp_gt_u32 s3, 3
        s_cbranch_scc1 L_lc_b
        s_mul_i32 s8, s84, 2560
        s_lshl_b32 s9, s3, 10
        s_add_u32 s8, s8, s9
        s_add_u32 s8, s8, {WS_AP - 1024}
        s_cmp_lt_u32 s3, 3
        s_cbranch_scc1 L_lc_st
        s_mov_b32 exec_hi, 0
        s_branch L_lc_st
        L_lc_b:
        s_cmp_eq_u32 s100, 1
        s_cbranch_scc1 L_lc_op
        s_cmp_eq_u32 s100, 2
        s_cbranch_scc0 L_lc_done
        s_cmp_eq_u32 s3, 4
        s_cbranch_scc0 L_lc_done
        s_mov_b64 exec, 0xffff
        s_add_u32 s8, s90, {hex(WS_X1)}
        s_branch L_lc_st
        L_lc_op:
        s_lshl_b32 s8, s3, 10
        s_add_u32 s8, s8, s101
        s_sub_u32 s8, s8, 4096
        L_lc_st:
        buffer_store_dwordx4 v[8:11], v5, {sr(WS)}, s8 offen sc1
        s_mov_b64 exec, -1
        L_lc_done:
        """)
    def tload(self, u0, u1):
        A = self.A
        if u0 == 0:
            A(f"""
            v_lshrrev_b32 v14, 3, v1
            v_mul_u32_u24 v14, 3456, v14
            v_and_b32 v15, 7, v1
            v_lshl_add_u32 v14, v15, 4, v14
            v_mul_u32_u24 v15, 1280, v2
            v_lshl_add_u32 v15, v3, 4, v15
            s_mul_i32 s86, s3, {80*3456}
            s_mul_i32 s87, s3, 10240
            s_add_u32 s87, s87, {L_W1}
            """)
        for u in range(u0, u1):
            if u < 10:
                A(f"s_add_u32 m0, s87, {u*1024}\ns_add_u32 s88, s86, {u*8*3456}")
                A(f"buffer_load_dwordx4 v14, {sr(TA)}, s88 offen {self.w1f} lds")
            else:
                A(f"s_lshl_b32 s88, s3, 11\ns_add_u32 m0, s88, {L_W2 + (u-10)*1024}\ns_mul_i32 s88, s3, 10240\ns_add_u32 s88, s88, {(u-10)*5120}")
                A(f"buffer_load_dwordx4 v15, {sr(TB)}, s88 offen {self.tf} lds")
    def softmax1(self):
        A = self.A
        A(f"s_mov_b32 s8, {hex(SCALE)}")
        for g in range(0, 8, 2):
            A(f"v_cvt_pk_bf16_f32 v8, v{24+g}, v{25+g}")
            self.unpack(24+g, 25+g, 8)
            A(f"v_mul_f32 v{24+g}, s8, v{24+g}\nv_mul_f32 v{25+g}, s8, v{25+g}")
            A(f"v_cvt_pk_bf16_f32 v8, v{24+g}, v{25+g}")
            self.unpack(24+g, 25+g, 8)
        def wred(op, sdst):
            for c in (f"row_ror:4 {DPPF}", f"row_ror:8 {DPPF}", "row_bcast:15 row_mask:0xa bank_mask:0xf", "row_bcast:31 row_mask:0xc bank_mask:0xf"):
                A(f"s_nop 1\n{op}_dpp v8, v8, v8 {c}")
            A(f"s_nop 1\nv_readlane_b32 {sdst}, v8, 63")
        A("v_max3_f32 v8, v24, v25, v26\nv_max3_f32 v8, v8, v27, v28\nv_max3_f32 v8, v8, v29, v30\nv_max_f32 v8, v8, v31")
        wred("v_max_f32", "s9")
        A(f"s_mov_b32 s8, {hex(LOG2E)}\ns_nop 1")
        for g in range(8): A(f"v_subrev_f32 v{24+g}, s9, v{24+g}")
        for g in range(8): A(f"v_mul_f32 v{24+g}, s8, v{24+g}")
        for g in range(8): A(f"v_exp_f32 v{24+g}, v{24+g}")
        A("""
        s_nop 0
        v_add_f32 v8, v24, v25
        v_add_f32 v9, v26, v27
        v_add_f32 v10, v28, v29
        v_add_f32 v11, v30, v31
        v_add_f32 v8, v8, v9
        v_add_f32 v10, v10, v11
        v_add_f32 v8, v8, v10
        """)
        wred("v_add_f32", "s10")
        A(f"""
        s_lshl_b32 s11, s3, 3
        s_add_u32 s11, s11, {L_SM}
        v_mov_b32 v10, s9
        v_mov_b32 v11, s10
        v_mov_b32 v9, s11
        ds_write_b64 v9, v[10:11]
        s_mov_b32 s95, s9
        s_waitcnt lgkmcnt(0)
        """)
        self.bump(12)
    def softmax2(self):
        A = self.A
        self.spin(12, 8, 4096)
        A(f"""
        v_and_b32 v9, 7, v1
        v_lshlrev_b32 v9, 3, v9
        s_mov_b32 s8, {hex(LOG2E)}
        s_mov_b32 s9, s95
        ds_read_b64 v[10:11], v9 offset:{L_SM}
        s_waitcnt lgkmcnt(0)
        v_max_f32_dpp v8, v10, v10 row_ror:4 {DPPF}
        s_nop 1
        v_max_f32_dpp v8, v8, v8 row_ror:2 {DPPF}
        s_nop 1
        v_max_f32_dpp v8, v8, v8 row_ror:1 {DPPF}
        v_sub_f32 v10, v10, v8
        v_sub_f32 v12, s9, v8
        v_mul_f32 v10, s8, v10
        v_mul_f32 v12, s8, v12
        v_exp_f32 v10, v10
        v_exp_f32 v12, v12
        s_nop 0
        v_mul_f32 v10, v10, v11
        s_nop 1
        v_add_f32_dpp v10, v10, v10 quad_perm:[1,0,3,2] {DPPF}
        s_nop 1
        v_add_f32_dpp v10, v10, v10 quad_perm:[2,3,0,1] {DPPF}
        s_nop 1
        v_add_f32_dpp v10, v10, v10 row_half_mirror {DPPF}
        v_rcp_f32 v10, v10
        s_nop 0
        v_mul_f32 v10, v10, v12
        """)
        for g in range(8): A(f"v_mul_f32 v{24+g}, v10, v{24+g}")
        for g in range(8): A(f"v_cvt_pk_bf16_f32 v{24+g}, v{24+g}, v{24+g}")
        A("s_nop 1")

    def tail1(self, WOR):
        A = self.A
        A(f"""
        s_lshl_b32 s8, s3, 9
        s_add_u32 s8, s8, {L_R1}
        v_lshlrev_b32 v8, 5, v3
        v_lshl_add_u32 v8, v2, 4, v8
        v_add_u32 v9, s8, v8
        s_lshl_b32 s9, s3, 6
        s_add_u32 s9, s9, {L_R1}
        v_and_b32 v10, 7, v3
        v_lshlrev_b32 v10, 9, v10
        v_lshl_add_u32 v10, v2, 4, v10
        v_add_u32 v10, s9, v10
        s_mul_i32 s8, s3, 2560
        s_add_u32 s8, s8, {L_R2}
        v_add_u32 v11, s8, v8
        s_mov_b32 exec_hi, 0
        ds_write_b128 v9, v[20:23]
        s_mov_b64 exec, -1
        s_waitcnt lgkmcnt(0)
        s_barrier
        """)
        self.stamp(6); self.stamp(1, 2)
        A("ds_read_b128 v[24:27], v10\ns_waitcnt lgkmcnt(0)")
        for sh in (4, 2, 1):
            for r in range(4): A(f"v_add_f32_dpp v{24+r}, v{24+r}, v{24+r} row_ror:{sh} {DPPF}")
        for r in range(4): A(f"v_cvt_pk_bf16_f32 v{24+r}, v{24+r}, v{24+r}")
        for r in range(4): A(f"v_and_b32 v{32+r}, v24, v{16+r}")
        ACC = 64
        self.stamp(2, 2)
        for g in range(4):
            if g == 0:
                for r in range(2): A(f"v_and_b32 v{36+r}, v25, v{16+r}")
            for cb in range(5):
                r = WOR[g*5+cb]
                c = "0" if g == 0 else f"v[{ACC+4*cb}:{ACC+4*cb+3}]"
                A(f"v_mfma_f32_16x16x32_bf16 v[{ACC+4*cb}:{ACC+4*cb+3}], v[{32+4*g}:{35+4*g}], v[{r}:{r+3}], {c}")
                if g == 0 and cb < 5:
                    for t in range(2):
                        j = 6 + 2*cb + t
                        A(f"v_and_b32 v{32+j}, v{24+j//4}, v{16+j%4}")
        A("s_mov_b32 exec_hi, 0\ns_nop 3")
        for cb in range(5):
            A(f"ds_write_b128 v11, v[{ACC+4*cb}:{ACC+4*cb+3}] offset:{cb*512}")
        A(f"""
        s_mov_b64 exec, -1
        s_lshl_b32 s8, s3, 9
        s_add_u32 s9, s8, {L_R2}
        v_add_u32 v9, s9, v5
        s_mul_i32 s9, s84, 2560
        s_add_u32 s9, s9, s8
        s_add_u32 s9, s9, {hex(WS_AP)}
        s_waitcnt lgkmcnt(0)
        s_barrier
        """)
        self.stamp(3, 2)
        if self.stamps and self.diag == 2: A("s_waitcnt lgkmcnt(0)")
        A("""
        s_cmp_ge_u32 s3, 5
        s_cbranch_scc1 L_apdone
        s_mov_b32 exec_hi, 0
        """)
        for j in range(8): A(f"ds_read_b128 v[{64+4*j}:{67+4*j}], v9 offset:{j*2560}")
        for j in range(0, 8, 2):
            A(f"s_waitcnt lgkmcnt({6-j})")
            for r in (0, 2): self.pk("add", 64+4*j+r, 64+4*j+r, f"v[{68+4*j+r}:{69+4*j+r}]")
            if j == 2:
                for r in (0, 2): self.pk("add", 64+r, 64+r, f"v[{72+r}:{73+r}]")
        for r in (0, 2): self.pk("add", 80+r, 80+r, f"v[{88+r}:{89+r}]")
        for r in (0, 2): self.pk("add", 64+r, 64+r, f"v[{80+r}:{81+r}]")
        for r in range(4): A(f"v_min_u32 v{64+r}, -2, v{64+r}")
        A(f"buffer_store_dwordx4 v[64:67], v5, {sr(WS)}, s9 offen sc1")
        A("s_mov_b64 exec, -1")
        A("L_apdone:")
        self.stamp(7); self.stamp(4, 2)

    def flg(self):
        return f"s_mov_b32 s10, {WS_FLG2}\nbuffer_load_dwordx4 v[204:207], v5, {sr(WS)}, s10 offen sc1"
    def red_small(self):
        return [f"buffer_load_dword v212, v218, {sr(WS)}, s42 offen sc1",
                f"buffer_load_dword v213, v219, {sr(WS)}, s43 offen sc1"]
    def mlp_small(self):
        o = [self.flg()]
        for i in range(5): o.append(f"s_mov_b32 s9, {WS_MOD + 80*512 + i*2048}\nbuffer_load_dword v{192+i}, v7, {sr(WS)}, s9 offen sc1")
        for i in range(5): o.append(f"s_mov_b32 s9, {WS_MOD + 60*512 + i*2048}\nbuffer_load_dword v{197+i}, v7, {sr(WS)}, s9 offen sc1")
        return o
    def small_loads(self):
        A = self.A
        A(f"""
        v_and_b32 v216, 7, v1
        v_and_b32 v217, 1, v2
        v_lshlrev_b32 v217, 2, v217
        v_lshl_add_u32 v218, v216, 3, v217
        v_lshl_add_u32 v219, v216, 6, v217
        s_cmp_eq_u32 s100, 2
        s_cbranch_scc0 L_sm_done
        s_cmp_lt_u32 s3, 6
        s_cbranch_scc1 L_sm_done
        s_lshl_b32 s43, s96, 9
        s_lshl_b32 s9, s4, 6
        s_add_u32 s42, s43, s9
        s_add_u32 s42, s42, {WS_MOD + 40*512}
        s_lshl_b32 s9, s4, 3
        s_add_u32 s43, s43, s9
        s_add_u32 s43, s43, {WS_MOD + 100*512}
        s_lshr_b32 s9, s90, 1
        """)
        for l in self.red_small(): A(l)
        A(f"buffer_load_dword v214, v218, {sr(X)}, s9 offen")
        A("L_sm_done:")
        for l in self.mlp_small(): A(l)
    def pk(self, op, d, a, b, mods=""):
        self.A(f"v_pk_{op}_f32 v[{d}:{d+1}], v[{a}:{a+1}], {b} {mods}")
    def reducer(self):
        A = self.A
        A("s_waitcnt vmcnt(0)")
        self.poll([self.flg()] + self.red_small(), [212, 213, 204, 205, 206, 207], 8, 8, first_loaded=True)
        A(f"""
        v_lshrrev_b32 v8, 1, v2
        v_lshlrev_b32 v8, 4, v8
        v_sub_u32 v14, 16, v8
        v_lshlrev_b32 v200, v14, v212
        v_and_b32 v200, 0xffff0000, v200
        v_lshlrev_b32 v201, v14, v214
        v_and_b32 v201, 0xffff0000, v201
        v_lshrrev_b32 v9, 3, v1
        v_mul_u32_u24 v10, 2560, v9
        v_lshl_add_u32 v10, v216, 4, v10
        v_mul_u32_u24 v11, 20480, v9
        v_lshl_add_u32 v11, v216, 4, v11
        v_lshlrev_b32 v12, 3, v1
        v_mul_u32_u24 v15, 2560, v216
        v_add_u32 v15, v15, v217
        s_mul_i32 s8, s4, {32*2560}
        s_lshl_b32 s9, s96, 7
        s_add_u32 s8, s8, s9
        s_add_u32 s8, s8, {hex(WS_AP)}
        s_add_u32 s9, s8, 20480
        s_add_u32 s10, s8, 40960
        s_add_u32 s11, s8, 61440
        s_add_u32 s88, s90, {hex(WS_X1)}
        s_call_b64 s[12:13], F_red
        v_min_u32 v68, -2, v68
        v_min_u32 v69, -2, v69
        s_mov_b64 exec, 0xff
        buffer_store_dwordx2 v[68:69], v12, {sr(WS)}, s88 offen sc1
        s_mov_b64 exec, -1
        """)
        self.stamp(8)
        A(f"""
        v_lshlrev_b32 v200, v14, v213
        v_and_b32 v200, 0xffff0000, v200
        v_mov_b32 v10, v11
        v_mul_u32_u24 v12, 1280, v1
        s_lshl_b32 s86, s96, 3
        s_add_u32 s86, s86, s4
        s_lshl_b32 s8, s86, 7
        s_add_u32 s8, s8, {hex(WS_OP)}
        s_add_u32 s9, s8, {8*20480}
        s_add_u32 s10, s8, {16*20480}
        s_add_u32 s11, s8, {24*20480}
        s_lshl_b32 s88, s86, 3
        s_lshl_b32 s86, s96, 7
        s_lshl_b32 s87, s4, 3
        s_add_u32 s86, s86, s87
        s_add_u32 s86, s86, {hex(WS_X1)}
        """)
        self.sleep(self.wx)
        self.poll([f"buffer_load_dword v214, v15, {sr(WS)}, s86 offen sc1"], [214, 214], 13, 32, sleep=4)
        A("v_lshlrev_b32 v201, v14, v214\nv_and_b32 v201, 0xffff0000, v201")
        self.sleep(self.wo_)
        A(f"""
        s_call_b64 s[12:13], F_red
        s_mov_b64 exec, 0xff
        buffer_store_dwordx2 v[68:69], v12, {sr(OUT)}, s88 offen
        s_mov_b64 exec, -1
        """)
        self.stamp(9)
        A("s_branch L_fin")
    def f_red(self):
        A = self.A
        A("F_red:")
        loads = [f"buffer_load_dwordx4 v[{64+4*i}:{67+4*i}], v10, {sr(WS)}, s{8+i} offen sc1" for i in range(4)]
        self.poll(loads, range(64, 80), 13, 16, sleep=self.sr)
        for a_, b_ in ((64, 68), (72, 76), (64, 72)):
            for r in (0, 2): self.pk("add", a_+r, a_+r, f"v[{b_+r}:{b_+r+1}]")
        A(f"""
        s_nop 0
        v_permlane32_swap_b32 v64, v65
        v_permlane32_swap_b32 v66, v67
        v_add_f32 v64, v64, v65
        v_add_f32 v66, v66, v67
        s_nop 1
        v_permlane16_swap_b32 v64, v66
        v_add_f32 v64, v64, v66
        s_nop 1
        v_add_f32_dpp v64, v64, v64 row_ror:8 {DPPF}
        v_cvt_pk_bf16_f32 v64, v64, v64
        v_and_b32 v64, 0xffff0000, v64
        v_mul_f32 v64, v64, v200
        v_cvt_pk_bf16_f32 v64, v64, v64
        v_and_b32 v64, 0xffff0000, v64
        v_add_f32 v64, v64, v201
        v_mov_b32 v65, v64
        s_nop 1
        v_permlane32_swap_b32 v64, v65
        v_cvt_pk_bf16_f32 v68, v64, v65
        v_cvt_pk_bf16_f32 v69, v64, v65
        s_nop 1
        v_permlane16_swap_b32 v68, v69
        s_setpc_b64 s[12:13]
        """)

    def mlp(self):
        A = self.A
        A("L_mlp:")
        self.tload(self.te, 12)
        A("s_waitcnt vmcnt(12)")
        self.poll(self.mlp_small(), list(range(192, 202)) + [204, 205, 206, 207], 8, 64, first_loaded=True)
        for i in range(5):
            self.unpack(208+2*i, 209+2*i, 192+i)
            A(f"v_add_f32 v{208+2*i}, 1.0, v{208+2*i}\nv_add_f32 v{209+2*i}, 1.0, v{209+2*i}")
            A(f"v_cvt_pk_bf16_f32 v8, v{208+2*i}, v{209+2*i}")
            self.unpack(208+2*i, 209+2*i, 8)
            self.unpack(218+2*i, 219+2*i, 197+i)
        A(f"""
        v_lshrrev_b32 v8, 2, v3
        v_lshlrev_b32 v10, 10, v2
        v_lshl_add_u32 v10, v8, 7, v10
        v_lshl_add_u32 v10, v13, 3, v10
        s_lshr_b32 s8, s3, 1
        s_mul_i32 s9, s8, 20480
        s_and_b32 s10, s3, 1
        s_lshl_b32 s11, s10, 6
        s_add_u32 s9, s9, s11
        s_add_u32 s9, s9, {L_W1}
        v_add_u32 v10, s9, v10
        v_lshl_add_u32 v11, v2, 2, v8
        v_lshlrev_b32 v11, 8, v11
        v_lshl_add_u32 v11, v13, 3, v11
        s_and_b32 s9, s3, 3
        s_lshl_b32 s9, s9, 6
        s_add_u32 s9, s9, {L_W2}
        v_add_u32 v11, s9, v11
        v_and_b32 v8, 7, v3
        v_lshlrev_b32 v168, 6, v8
        v_lshl_add_u32 v168, v2, 4, v168
        s_mul_i32 s9, s8, 2560
        v_add_u32 v168, s9, v168
        s_lshl_b32 s9, s3, 11
        s_add_u32 s9, s9, {L_G1}
        v_add_u32 v169, s9, v5
        v_lshrrev_b32 v9, 3, v3
        v_lshlrev_b32 v170, 10, v9
        v_lshl_add_u32 v170, v2, 8, v170
        v_lshl_add_u32 v170, v8, 4, v170
        v_add_u32 v170, {L_G1}, v170
        v_lshlrev_b32 v172, 7, v2
        v_lshl_add_u32 v172, v3, 2, v172
        v_lshlrev_b32 v173, 4, v8
        v_lshl_add_u32 v173, v2, 7, v173
        s_mul_i32 s43, s3, 2560
        s_add_u32 s43, s43, {hex(WS_X1)}
        s_lshl_b32 s9, s3, 10
        s_add_u32 s42, s101, s9
        s_mov_b32 s86, 0x00ff00ff
        s_mov_b32 s87, 0x00ff00ff
        s_waitcnt vmcnt(0)
        s_barrier
        """)
        self.stamp(1)
        for k in range(5):
            for t in range(2):
                r = 128 + 8*k + 4*t
                A(f"ds_read_b64_tr_b16 v[{r}:{r+1}], v10 offset:{k*4096 + t*32}")
                A(f"ds_read_b64_tr_b16 v[{r+2}:{r+3}], v10 offset:{k*4096 + t*32 + 512}")
        for m in range(2):
            for j in range(2):
                r = 176 + 8*m + 4*j
                A(f"ds_read_b64_tr_b16 v[{r}:{r+1}], v11 offset:{j*8192 + m*32}")
                A(f"ds_read_b64_tr_b16 v[{r+2}:{r+3}], v11 offset:{j*8192 + 4096 + m*32}")
        loads = [f"buffer_load_dword v{24+i}, v172, {sr(WS)}, s43 offen offset:{i*512} sc1" for i in range(5)]
        self.poll(loads, range(24, 29), 8, 128, sleep=self.sx)
        self.stamp(8); self.stamp(5, 2)
        A("s_call_b64 s[12:13], F_ln")
        self.stamp(6, 2)
        for i in range(5): self.unpack(32+2*i, 33+2*i, 24+i)
        for i in range(5): self.pk("mul", 32+2*i, 32+2*i, f"v[{208+2*i}:{209+2*i}]")
        for i in range(5): A(f"v_cvt_pk_bf16_f32 v{24+i}, v{32+2*i}, v{33+2*i}")
        for i in range(5): self.unpack(32+2*i, 33+2*i, 24+i)
        for i in range(5): self.pk("add", 32+2*i, 32+2*i, f"v[{218+2*i}:{219+2*i}]")
        for i in range(5):
            A(f"v_cvt_pk_bf16_f32 v{24+i}, v{32+2*i}, v{33+2*i}")
            A(f"ds_write_b32 v7, v{24+i} offset:{L_ACT + i*2048}")
        self.stamp(7, 2)
        A("s_waitcnt lgkmcnt(0)\ns_barrier")
        self.stamp(8, 2)
        if self.stamps and self.diag == 2: A("s_waitcnt lgkmcnt(0)")
        for k in range(5): A(f"ds_read_b128 v[{32+4*k}:{35+4*k}], v168 offset:{L_ACT + k*512}")
        for k in range(5):
            A(f"s_waitcnt lgkmcnt({4-k})")
            for t in range(2):
                r = 128 + 8*k + 4*t; a_ = 64 + 4*t
                c = "0" if k == 0 else f"v[{a_}:{a_+3}]"
                A(f"v_mfma_f32_16x16x32_bf16 v[{a_}:{a_+3}], v[{r}:{r+3}], v[{32+4*k}:{35+4*k}], {c}")
        A("s_nop 6\nds_write_b128 v169, v[64:67]\nds_write_b128 v169, v[68:71] offset:1024\ns_waitcnt lgkmcnt(0)\ns_barrier")
        self.stamp(9, 2)
        if self.stamps and self.diag == 2: A("s_waitcnt lgkmcnt(0)")
        A("s_cmp_ge_u32 s3, 4\ns_cbranch_scc1 L_fin")
        for j in range(2):
            for k in range(4): A(f"ds_read_b128 v[{64+16*j+4*k}:{67+16*j+4*k}], v170 offset:{k*4096 + j*2048}")
        for j in range(2):
            b0 = 64 + 16*j
            A(f"s_waitcnt lgkmcnt({4-4*j})")
            for a_, b_ in ((0, 4), (8, 12), (0, 8)):
                for r in (0, 2): self.pk("add", b0+a_+r, b0+a_+r, f"v[{b0+b_+r}:{b0+b_+r+1}]")
            A(f"v_cvt_pk_bf16_f32 v8, v{b0}, v{b0+1}\nv_cvt_pk_bf16_f32 v9, v{b0+2}, v{b0+3}")
            self.unpack(32+4*j, 33+4*j, 8); self.unpack(34+4*j, 35+4*j, 9)
        self.silu(list(range(32, 40)), list(range(40, 48)))
        A(f"""
        v_cvt_pk_bf16_f32 v24, v32, v33
        v_cvt_pk_bf16_f32 v25, v34, v35
        v_cvt_pk_bf16_f32 v28, v36, v37
        v_cvt_pk_bf16_f32 v29, v38, v39
        v_mov_b32_dpp v26, v24 row_ror:8 {DPPF}
        v_mov_b32_dpp v27, v25 row_ror:8 {DPPF}
        v_mov_b32_dpp v30, v28 row_ror:8 {DPPF}
        v_mov_b32_dpp v31, v29 row_ror:8 {DPPF}
        v_mfma_f32_16x16x32_bf16 v[64:67], v[176:179], v[24:27], 0
        v_mfma_f32_16x16x32_bf16 v[68:71], v[184:187], v[24:27], 0
        v_mfma_f32_16x16x32_bf16 v[64:67], v[180:183], v[28:31], v[64:67]
        v_mfma_f32_16x16x32_bf16 v[68:71], v[188:191], v[28:31], v[68:71]
        s_mov_b64 exec, s[86:87]
        s_nop 5
        """)
        for m in range(2):
            for r in range(4): A(f"v_min_u32 v{64+4*m+r}, -2, v{64+4*m+r}")
            A(f"buffer_store_dwordx4 v[{64+4*m}:{67+4*m}], v173, {sr(WS)}, s42 offen offset:{m*512} sc1")
        A("s_mov_b64 exec, -1")
        self.stamp(9); self.stamp(10, 2)

    def finish(self):
        A = self.A
        A("L_fin:")
        A("s_cmp_eq_u32 s15, 0\ns_cbranch_scc1 L_noerr")
        A(f"v_mov_b32 v8, s15\ns_mov_b64 exec, 1\nbuffer_atomic_or v8, off, {sr(DBG)}, 0 offset:4 sc1\ns_mov_b64 exec, -1")
        A("L_noerr:")
        if self.fix: A(f"""
        s_add_u32 s8, s16, {self.fix*100}
        L_fixw:
        s_sleep 4
        s_memrealtime s[10:11]
        s_waitcnt lgkmcnt(0)
        s_sub_u32 s10, s8, s10
        s_cmp_gt_i32 s10, 0
        s_cbranch_scc1 L_fixw
        """)
        if self.stamps:
            self.stamp(10)
            A("s_waitcnt lgkmcnt(0)")
            self.srdo(STS, f"s{WS}", f"s{WS+1}", hex(STAMP_OFF), "0x100000")
            A("s_getreg_b32 s38, hwreg(HW_REG_XCC_ID)\ns_lshl_b32 s39, s100, 8\ns_or_b32 s39, s39, s85")
            A(f"s_mul_i32 s8, s2, {12*8*2}")
            if self.diag == 3:
                A("s_mul_i32 s9, s3, 24\ns_add_u32 s8, s8, s9\ns_mov_b64 exec, 1")
                for k in range(3):
                    A(f"v_mov_b32 v8, s{16+2*k}\nv_mov_b32 v9, s{17+2*k}\nbuffer_store_dwordx2 v[8:9], off, {sr(STS)}, s8 offset:{8*k}\ns_nop 1")
                A("s_endpgm")
            A(f"s_cmp_eq_u32 s3, 0\ns_cbranch_scc1 L_st\ns_cmp_eq_u32 s3, {self.redw}\ns_cbranch_scc0 L_end\ns_add_u32 s8, s8, 96\nL_st:")
            A("s_mov_b64 exec, 1")
            for k in range(12):
                A(f"v_mov_b32 v8, s{16+2*k}\nv_mov_b32 v9, s{17+2*k}\nbuffer_store_dwordx2 v[8:9], off, {sr(STS)}, s8 offset:{8*k}\ns_nop 1")
        A("L_end:\ns_endpgm")

    def init1(self):
        A = self.A
        for i in range(5): self.unpack(32+2*i, 33+2*i, 56+i)
        self.silu(list(range(32, 42)), list(range(44, 54)))
        A(f"v_add_u32 v14, {L_ACT}, v7")
        for i in range(5):
            A(f"v_cvt_pk_bf16_f32 v{56+i}, v{32+2*i}, v{33+2*i}")
            A(f"ds_write_b32 v14, v{56+i} offset:{i*2048}")
        A("s_sub_u32 s8, s91, 20\ns_cmp_lt_u32 s8, 20\ns_cbranch_scc0 L_c_a")
        A("s_call_b64 s[12:13], F_ln")
        for i in range(5): A(f"ds_write_b32 v14, v{24+i} offset:{L_XN - L_ACT + i*2048}")
    def subs(self):
        A = self.A
        self.f_red()
        A("F_ln:")
        for i in range(5): self.unpack(32+2*i, 33+2*i, 24+i)
        A("v_readfirstlane_b32 s8, v32\ns_nop 1")
        NEG = "op_sel_hi:[1,0] neg_lo:[0,1] neg_hi:[0,1]"
        for i in range(5): self.pk("add", 42+2*i, 32+2*i, "s[8:9]", NEG)
        self.pk("add", 52, 42, "v[44:45]"); self.pk("mul", 54, 42, "v[42:43]")
        for i in range(1, 5):
            if i > 1: self.pk("add", 52, 52, f"v[{42+2*i}:{43+2*i}]")
            A(f"v_pk_fma_f32 v[54:55], v[{42+2*i}:{43+2*i}], v[{42+2*i}:{43+2*i}], v[54:55]")
        A("v_add_f32 v52, v52, v53\nv_add_f32 v53, v54, v55\ns_nop 0")
        for c in (f"row_ror:1 {DPPF}", f"row_ror:2 {DPPF}", f"row_ror:4 {DPPF}", f"row_ror:8 {DPPF}",
                  "row_bcast:15 row_mask:0xa bank_mask:0xf", "row_bcast:31 row_mask:0xc bank_mask:0xf"):
            A(f"v_add_f32_dpp v52, v52, v52 {c}\nv_add_f32_dpp v53, v53, v53 {c}\ns_nop 0")
        A(f"""
        v_readlane_b32 s9, v52, 63
        v_readlane_b32 s10, v53, 63
        v_mov_b32 v54, {hex(INV640)}
        s_nop 0
        v_mul_f32 v52, s9, v54
        v_mul_f32 v53, s10, v54
        v_fma_f32 v53, -v52, v52, v53
        v_add_f32 v52, s8, v52
        v_max_f32 v53, 0, v53
        v_cvt_pk_bf16_f32 v54, v52, v53
        v_lshlrev_b32 v52, 16, v54
        v_and_b32 v54, 0xffff0000, v54
        v_add_f32 v54, {hex(EPS)}, v54
        v_cvt_pk_bf16_f32 v54, v54, v54
        v_and_b32 v54, 0xffff0000, v54
        v_sqrt_f32 v54, v54
        """)
        for i in range(5): self.pk("add", 32+2*i, 32+2*i, "v[52:53]", NEG)
        A("v_cvt_pk_bf16_f32 v54, v54, v54\nv_and_b32 v54, 0xffff0000, v54\nv_rcp_f32 v54, v54")
        for i in range(5): A(f"v_cvt_pk_bf16_f32 v{24+i}, v{32+2*i}, v{33+2*i}")
        for i in range(5): self.unpack(32+2*i, 33+2*i, 24+i)
        for i in range(5): self.pk("mul", 32+2*i, 32+2*i, "v[54:55]", "op_sel_hi:[1,0]")
        for i in range(5): A(f"v_cvt_pk_bf16_f32 v{24+i}, v{32+2*i}, v{33+2*i}")
        A("s_setpc_b64 s[12:13]")

if __name__ == "__main__":
    ap = argparse.ArgumentParser()
    ap.add_argument("-o", default="k.s"); ap.add_argument("--stamps", action="store_true")
    ap.add_argument("--depth", type=int, default=4)
    ap.add_argument("--kv", default="nt"); ap.add_argument("--wo", default=""); ap.add_argument("--tile", default="nt")
    ap.add_argument("--d0", type=int, default=2); ap.add_argument("--n0", type=int, default=16); ap.add_argument("--hlate", action="store_true")
    ap.add_argument("--nm", type=int, default=3)
    ap.add_argument("--exp", type=int, default=0)
    ap.add_argument("--diag", type=int, default=0)
    ap.add_argument("--tearly", action="store_true")
    ap.add_argument("--x", default="")
    ap.add_argument("--s1", type=int, default=2); ap.add_argument("--s2", type=int, default=2); ap.add_argument("--probe", action="store_true")
    ap.add_argument("--w2", type=int, default=0)
    ap.add_argument("--te", type=int, default=3); ap.add_argument("--w1", default=""); ap.add_argument("--oprobe", action="store_true")
    ap.add_argument("--ism", type=int, default=18); ap.add_argument("--sys", action="store_true")
    ap.add_argument("--nl", type=int, default=13)
    ap.add_argument("--d1", type=int, default=4)
    ap.add_argument("--wa", type=int, default=0); ap.add_argument("--w3", type=int, default=0)
    ap.add_argument("--sr", type=int, default=0); ap.add_argument("--sx", type=int, default=0); ap.add_argument("--wop", type=int, default=0)
    ap.add_argument("--wx", type=int, default=20)
    ap.add_argument("--nref", type=int, default=100); ap.add_argument("--dl", type=int, default=3)
    ap.add_argument("--par", type=lambda x: int(x, 0), default=0); ap.add_argument("--pat", default="4"); ap.add_argument("--npat", type=int, default=36)
    ap.add_argument("--prio", type=int, default=0)
    ap.add_argument("--mdeep", action="store_true")
    ap.add_argument("--gran", type=int, default=1); ap.add_argument("--rot", type=int, default=0)
    ap.add_argument("--fix", type=int, default=0)
    ap.add_argument("--chk", type=int, default=3)
    ap.add_argument("--nfree", type=int, default=8); ap.add_argument("--nclr", type=int, default=8)
    ap.add_argument("--nopf", action="store_true"); ap.add_argument("--d2", type=int, default=8)
    a = ap.parse_args()
    txt = (G(stamps=a.stamps, depth=a.depth, kvf=a.kv, wof=a.wo, tf=a.tile, codepf=not a.nopf, d2=a.d2, d0=a.d0, n0=a.n0, hlate=a.hlate, nm=a.nm, nfree=a.nfree, nclr=a.nclr, exp=a.exp, chk=a.chk, fix=a.fix, gran=a.gran, rot=a.rot, mdeep=a.mdeep, prio=a.prio, par=a.par, pat=[int(c) for c in a.pat], npat=a.npat, nref=a.nref, dl=a.dl, wx=a.wx, sr=a.sr, sx=a.sx, wo_=a.wop, w1=a.wa, w3=a.w3, d1=a.d1, nl=a.nl, ism=a.ism, te=a.te, w1f=a.w1, oprobe=a.oprobe, w2=a.w2, s1=a.s1, s2=a.s2, probe=a.probe, x=a.x, tlate=not a.tearly, diag=a.diag, pad=22528).gen())
    if a.sys: txt = "\n".join((l + " sc0" if (l.rstrip().endswith("sc1") and "atomic" not in l) else l) for l in txt.split("\n")).replace("sc1 sc0", "sc0 sc1")
    open(a.o, "w").write(txt)
```

```python
import sys, argparse
NAME = "adaLN_cond__sliding_block_cached__dense_activation_silu__decode"

WS_MOD  = 0x00000
WS_FLG  = 61440
WS_FLG2 = 62464
NCLR    = 8
WS_X1   = 0x20000
WS_DUM  = 0x28000
WS_AP   = 0x60000
WS_QP   = 0x100000
WS_OP   = 0x180000
WS_END  = WS_OP + 27*20480
STAMP_OFF = 0x20000000
L_Q   = 0
L_SM  = 256
L_FL  = 384
L_ACT = 1024
L_XN  = 11264
L_TA  = 21504
L_ST  = 62464
L_KH  = L_ST
L_WL  = L_ST + 35840
L_BN  = L_WL + 7*8192
L_END = L_BN + 2048
L_SB  = L_ACT
L_SH  = L_SB + 35840
assert L_SH + 13*1024 <= L_ST
L_W1  = L_TA
L_W2  = L_W1 + 81920
L_R2  = L_W2 + 16384
L_R1  = L_R2 + 20480
L_G1  = L_R2
assert L_R1 + 4096 <= L_END <= 163840
LOG2E = 0x3fb8aa3b
NLOG2E = 0xbfb8aa3b
SCALE = 0x3db504f3
INV640 = 0x3acccccd
EPS = 0x3727c5ac
K, V, WS, WO, TA, TB, X, C, OUT, DBG, T0 = 44, 48, 52, 56, 60, 64, 68, 72, 76, 80, 92
KH = C
STS = 40
sr = lambda r: f"s[{r}:{r+3}]"
DPPF = "row_mask:0xf bank_mask:0xf"

class G:
    def __init__(self, **kw):
        self.L = []; self.lab = 0
        self.stamps = False; self.depth = 4; self.d0 = 2; self.n0 = 16; self.kvf = "nt"; self.wof = "nt"; self.tf = "nt"
        self.limit = 40000; self.codepf = True; self.d2 = 8; self.redw = 7; self.hlate = False; self.chk = 3; self.fixwg = -1; self.fix = 0; self.gran = 1; self.rot = 0; self.mdeep = False; self.prio = 0; self.npat = 36; self.par = 0; self.pat = [4]; self.nref = 100; self.dl = 3; self.wx = 20; self.sr = 0; self.sx = 0; self.wo_ = 0; self.w1 = 0; self.w3 = 0; self.d1 = 4; self.nl = 13; self.hs = 'sc1'; self.ism = 18; self.te = 3; self.w1f = ''; self.oprobe = False; self.w2 = 0; self.s1 = 2; self.s2 = 2; self.probe = False; self.x = ''; self.tlate = True; self.diag = 0; self.pad = 16384; self.nfree = 8; self.nclr = 8; self.exp = 0; self.nm = 6
        self.__dict__.update(kw)
    def A(self, s):
        for x in s.split("\n"):
            x = x.strip()
            if x: self.L.append(("" if x.endswith(":") else "    ") + x)
    def newlab(self, p="L"):
        self.lab += 1; return f"{p}_{self.lab}"
    def stamp(self, k, diag=0):
        if self.stamps and diag == self.diag: self.A(f"s_memrealtime s[{16+2*k}:{17+2*k}]")
    def srd(self, d, lo, hi, size):
        self.A(f"s_mov_b32 s{d}, {lo}\ns_mov_b32 s{d+1}, {hi}\ns_mov_b32 s{d+2}, {size}\ns_mov_b32 s{d+3}, 0x20000")
    def srdo(self, d, lo, hi, off, size):
        self.A(f"s_add_u32 s{d}, {lo}, {off}\ns_addc_u32 s{d+1}, {hi}, 0\ns_mov_b32 s{d+2}, {size}\ns_mov_b32 s{d+3}, 0x20000")
    def unpack(self, lo, hi, src):
        self.A(f"v_lshlrev_b32 v{lo}, 16, v{src}\nv_and_b32 v{hi}, 0xffff0000, v{src}")
    def maxtree(self, dst, regs):
        regs = list(regs); A = self.A
        if len(regs) == 2:
            A(f"v_max_u32 v{dst}, v{regs[0]}, v{regs[1]}"); return
        A(f"v_max3_u32 v{dst}, v{regs[0]}, v{regs[1]}, v{regs[2]}"); regs = regs[3:]
        while len(regs) >= 2:
            A(f"v_max3_u32 v{dst}, v{dst}, v{regs[0]}, v{regs[1]}"); regs = regs[2:]
        if regs: A(f"v_max_u32 v{dst}, v{dst}, v{regs[0]}")
    def poll(self, loads, regs, tmp, code, first_loaded=False, sleep=1):
        A = self.A
        lp = self.newlab("Lpoll"); ck = self.newlab("Lchk"); dn = self.newlab("Lpd")
        A(f"s_mov_b32 s14, {self.limit}")
        if first_loaded: A(f"s_branch {ck}")
        A(f"{lp}:")
        for l in loads: A(l)
        A("s_waitcnt vmcnt(0)")
        A(f"{ck}:")
        self.maxtree(tmp, regs)
        A(f"v_cmp_eq_u32 vcc, -1, v{tmp}")
        A(f"s_cbranch_vccz {dn}")
        A("s_mov_b64 exec, vcc")
        if sleep: A(f"s_sleep {sleep}")
        A("s_sub_u32 s14, s14, 1")
        A(f"s_cbranch_scc0 {lp}")
        A(f"s_or_b32 s15, s15, {code}")
        A(f"{dn}:")
        A("s_mov_b64 exec, -1")
    def sleep(self, n):
        while n > 0:
            self.A(f"s_sleep {min(n, 120)}"); n -= 120
    def spin(self, off, target, code, vt=12, va=15, sleep=1):
        a = self.newlab("Lsp"); b = self.newlab("Lspd")
        self.A(f"""
        s_mov_b32 s14, {self.limit*8}
        {a}:
        ds_read_b32 v{vt}, v{va} offset:{off}
        s_waitcnt lgkmcnt(0)
        v_readfirstlane_b32 s8, v{vt}
        s_nop 0
        s_cmp_ge_u32 s8, {target}
        s_cbranch_scc1 {b}
        s_sleep {sleep}
        s_sub_u32 s14, s14, 1
        s_cbranch_scc0 {a}
        s_or_b32 s15, s15, {code}
        {b}:
        """)
    def bump(self, off, vt=12, va=15):
        self.A(f"v_mov_b32 v{vt}, 1\ns_mov_b64 exec, 1\nds_add_u32 v{va}, v{vt} offset:{off}\ns_mov_b64 exec, -1")
    def silu(self, regs, tmps):
        A = self.A
        for r, t in zip(regs, tmps): A(f"v_mul_f32 v{t}, {hex(NLOG2E)}, v{r}")
        for t in tmps: A(f"v_exp_f32 v{t}, v{t}")
        A("s_nop 0")
        for t in tmps: A(f"v_add_f32 v{t}, 1.0, v{t}")
        for t in tmps: A(f"v_rcp_f32 v{t}, v{t}")
        A("s_nop 0")
        for r, t in zip(regs, tmps): A(f"v_mul_f32 v{r}, v{r}, v{t}")

    def prologue(self):
        A = self.A
        self.L += [f"; @launch grid=(256,1,1) block=(512,1,1) lds={L_END}",
                   '.amdgcn_target "amdgcn-amd-amdhsa--gfx950"', ".text", f".globl {NAME}_kernel", ".p2align 8",
                   f".type {NAME}_kernel,@function", f"{NAME}_kernel:"]
        A("""
        s_cmp_ge_u32 s2, 256
        s_cbranch_scc1 L_end
        s_getpc_b64 s[100:101]
        s_load_dwordx16 s[16:31], s[0:1], 0
        s_load_dwordx8 s[32:39], s[0:1], 64
        s_load_dwordx2 s[40:41], s[0:1], 96
        """)
        if self.stamps or self.fix: A("s_memrealtime s[42:43]")
        A("""
        v_lshrrev_b32 v1, 6, v0
        s_and_b32 s4, s2, 7
        v_readfirstlane_b32 s3, v1
        """)
        if self.codepf:
            A(f"v_mul_u32_u24 v8, {self.pad//512}, v0\nglobal_load_dwordx4 v[24:27], v8, s[100:101] offset:-16")
        A(f"""
        v_and_b32 v1, 63, v0
        v_lshrrev_b32 v2, 4, v1
        v_and_b32 v3, 15, v1
        v_lshlrev_b32 v4, 6, v3
        v_lshl_add_u32 v4, v2, 4, v4
        v_lshlrev_b32 v5, 4, v1
        v_lshlrev_b32 v6, 2, v1
        v_and_b32 v13, 3, v1
        s_lshr_b32 s5, s2, 3
        s_lshl_b32 s6, s4, 2
        s_and_b32 s8, s5, 3
        s_add_u32 s6, s6, s8
        s_lshr_b32 s7, s5, 2
        s_lshl_b32 s8, s7, 5
        s_add_u32 s84, s8, s6
        s_lshl_b32 s14, s84, 20
        s_mul_i32 s9, s3, {self.gran*1024}
        s_add_u32 s14, s14, s9
        s_mul_i32 s89, s2, {self.rot*1024}
        s_and_b32 s89, s89, 0x3ffff
        s_add_u32 s14, s14, 0xC0000
        s_mov_b32 s15, 0
        s_mul_i32 s97, s3, 1280
        s_and_b32 s8, s5, 15
        s_lshr_b32 s8, s8, 1
        s_lshl_b32 s9, s8, 3
        s_add_u32 s9, s9, s4
        s_lshl_b32 s91, s9, 1
        s_and_b32 s10, s5, 1
        s_add_u32 s91, s91, s10
        s_mul_i32 s11, s3, 5120
        s_add_u32 m0, s11, {L_TA}
        v_mov_b32 v15, {L_FL}
        v_mov_b32 v8, 0
        v_mov_b32 v9, 0
        v_mov_b32 v10, 0
        v_mov_b32 v11, 0
        ds_write_b128 v15, v[8:11]
        s_nop 1
        v_mov_b32 v8, -1
        v_mov_b32 v9, -1
        v_mov_b32 v10, -1
        v_mov_b32 v11, -1
        s_cmp_lt_u32 s5, 16
        s_cbranch_scc1 L_p_mod
        s_mov_b32 s85, 1
        v_lshrrev_b32 v12, 3, v1
        v_lshlrev_b32 v12, 13, v12
        v_and_b32 v14, 7, v1
        v_lshl_add_u32 v12, v14, 4, v12
        s_lshl_b32 s99, s4, 3
        s_add_u32 s99, s99, s8
        s_lshl_b32 s9, s99, 7
        s_mul_i32 s10, s10, {320*8192}
        s_add_u32 s9, s9, s10
        s_mov_b32 s11, {8*8192}
        s_waitcnt lgkmcnt(0)
        s_add_u32 s{T0}, s22, s9
        s_addc_u32 s{T0+1}, s23, 0
        s_sub_u32 s{T0+2}, {640*8192}, s9
        s_branch L_p_j
        L_p_mod:
        s_mov_b32 s85, 2
        v_lshrrev_b32 v12, 2, v1
        v_mul_u32_u24 v12, 7680, v12
        v_lshl_add_u32 v12, v13, 4, v12
        s_lshl_b32 s9, s91, 6
        s_mov_b32 s11, {16*7680}
        """)
        if 'f' in self.x: A(f"""
        v_lshrrev_b32 v12, 3, v1
        v_mul_u32_u24 v12, 7680, v12
        v_and_b32 v14, 7, v1
        v_lshl_add_u32 v12, v14, 4, v12
        s_lshr_b32 s9, s91, 1
        s_lshl_b32 s9, s9, 7
        s_mul_i32 s10, s10, {320*7680}
        s_add_u32 s9, s9, s10
        s_mov_b32 s11, {8*7680}
        """)
        A(f"""
        s_mov_b32 s99, 0
        s_waitcnt lgkmcnt(0)
        s_add_u32 s{T0}, s34, s9
        s_addc_u32 s{T0+1}, s35, 0
        s_sub_u32 s{T0+2}, {640*7680}, s9
        s_cmp_lt_u32 s91, 120
        s_cbranch_scc1 L_p_j
        s_mov_b32 s85, 8
        s_mov_b32 s{T0+2}, 0
        L_p_j:
        s_mov_b32 s{T0+3}, 0x20000
        """)
        if 'n' in self.x: A(f"s_mov_b32 s{T0+2}, 0\ns_mov_b32 s85, 1")
        self.srd(WS, "s40", "s41", hex(WS_END))
        self.srd(DBG, "s38", "s39", 256)
        self.srd(X, "s16", "s17", 10240); self.srd(C, "s32", "s33", 10240)
        A(f"""
        s_cmp_eq_u32 s3, 0
        s_cbranch_scc0 L_p_nh
        s_setprio 3
        s_cmp_eq_u32 s85, 8
        s_cbranch_scc0 L_p_nc
        s_sub_u32 s8, s91, 120
        s_lshl_b32 s8, s8, 13
        s_add_u32 s9, s8, 4096
        """)
        for i in range(8):
            A(f"buffer_store_dwordx4 v[8:11], v5, {sr(WS)}, {'s8' if i < 4 else 's9'} offen offset:{(i%4)*1024} sc1")
        A(f"""
        s_waitcnt vmcnt(0)
        v_mov_b32 v14, 1
        s_mov_b64 exec, 1
        buffer_atomic_add v14, off, {sr(DBG)}, 0 sc1
        s_mov_b64 exec, -1
        L_p_nc:
        s_lshl_b32 s87, s6, 3
        s_add_u32 s87, s87, s7
        s_lshl_b32 s8, s87, 10
        s_add_u32 s8, s8, {hex(WS_QP)}
        buffer_store_dwordx4 v[8:11], v5, {sr(WS)}, s8 offen sc1
        L_p_nh:
        s_cmp_eq_u32 s85, 2
        s_cbranch_scc0 L_p_nxc
        """)
        for i in range(5): A(f"buffer_load_dword v{24+i}, v6, {sr(X)}, s97 offen offset:{i*256}")
        for i in range(5): A(f"buffer_load_dword v{56+i}, v6, {sr(C)}, s97 offen offset:{i*256}")
        A("L_p_nxc:\ns_mul_i32 s8, s3, s11\ns_mul_i32 s8, s8, 5")
        for u in range(5):
            A(f"buffer_load_dwordx4 v12, {sr(T0)}, s8 offen {self.tf} lds")
            if u < 4: A("s_add_u32 m0, m0, 1024\ns_add_u32 s8, s8, s11")
        self.srdo(K, "s18", "s19", "s14", 0x40000 - 7*self.gran*1024)
        A("s_waitcnt lgkmcnt(0)\ns_barrier")

    def setup2(self):
        A = self.A
        self.srdo(V, "s20", "s21", "s14", 0x40000 - 7*self.gran*1024)
        A("""
        s_lshl_b32 s8, s6, 7
        s_lshl_b32 s9, s3, 4
        s_add_u32 s8, s8, s9
        s_mul_i32 s8, s8, 1280
        """)
        self.srdo(WO, "s24", "s25", "s8", 20480)
        self.srd(OUT, "s36", "s37", 10240)
        A("s_lshl_b32 s8, s84, 20\ns_add_u32 s8, s8, 0xC0000")
        self.srdo(KH, "s18", "s19", "s8", "0x40000")
        A(f"""
        s_sub_u32 s96, 31, s5
        s_mul_i32 s8, s96, 52
        s_lshr_b32 s8, s8, 8
        s_mul_i32 s9, s8, 5
        s_sub_u32 s9, s96, s9
        s_lshl_b32 s8, s8, 3
        s_add_u32 s8, s8, s4
        s_lshl_b32 s10, s8, 7
        s_add_u32 s{TA}, s28, s10
        s_addc_u32 s{TA+1}, s29, 0
        s_sub_u32 s{TA+2}, {640*3456}, s10
        s_mov_b32 s{TA+3}, 0x20000
        s_mul_i32 s10, s8, {64*1280}
        s_lshl_b32 s11, s9, 8
        s_add_u32 s10, s10, s11
        s_add_u32 s{TB}, s30, s10
        s_addc_u32 s{TB+1}, s31, 0
        s_sub_u32 s{TB+2}, {64*1280}, s11
        s_mov_b32 s{TB+3}, 0x20000
        s_mul_i32 s101, s8, 20480
        s_lshl_b32 s11, s9, 12
        s_add_u32 s101, s101, s11
        s_add_u32 s101, s101, {hex(WS_OP)}
        s_cmp_lt_u32 s8, 27
        s_cselect_b32 s100, 1, 0
        s_sub_u32 s96, s96, 20
        s_cmp_lt_u32 s96, 10
        s_cselect_b32 s100, 2, s100
        s_lshl_b32 s96, s96, 1
        s_and_b32 s8, s3, 1
        s_add_u32 s96, s96, s8
        s_lshl_b32 s11, s96, 7
        s_mul_i32 s90, s4, 2560
        s_add_u32 s90, s90, s11
        """)
        if 't' in self.x: A("s_mov_b32 s100, 0")
        A(f"""
        s_lshl_b32 s88, s3, 13
        s_add_u32 s88, s88, {L_WL - 8192}
        s_lshl_b32 s10, s3, 6
        v_lshlrev_b32 v7, 9, v2
        v_lshl_add_u32 v7, v3, 2, v7
        v_add_u32 v7, s10, v7
        v_mul_u32_u24 v0, 5120, v2
        v_lshl_add_u32 v0, v3, 4, v0
        v_and_b32 v8, 1, v3
        v_lshlrev_b32 v8, 4, v8
        v_mov_b32 v9, 0xffff
        v_lshlrev_b32 v9, v8, v9
        v_lshrrev_b32 v8, 1, v3
        """)
        for r in range(4):
            A(f"v_cmp_eq_u32 vcc, {r}, v8\ns_nop 1\nv_cndmask_b32 v{16+r}, 0, v9, vcc")
        if self.stamps or self.fix: A("s_mov_b32 s16, s42\ns_mov_b32 s17, s43")
        A("s_mov_b32 s98, 2048")

    def gen(self):
        A = self.A; d = self.depth
        KR = 64
        VR = [192 + 4*i for i in range(16)] + [64 + 4*i for i in range(16)]
        WOR = [128 + 4*i for i in range(16)] + [48 + 4*i for i in range(4)]
        gr = self.gran
        assert self.rot % (8*gr) == 0
        def soff(i):
            if i % gr == 0:
                if self.rot: A(f"s_add_u32 s86, s89, {(i//gr)*gr*8192}\ns_and_b32 s86, s86, 0x3ffff")
                else: A(f"s_mov_b32 s86, {(i//gr)*gr*8192}")
        def kload(i):
            soff(i)
            A(f"buffer_load_dwordx4 v[{KR+4*i}:{KR+4*i+3}], v4, {sr(K)}, s86 offen offset:{(i%gr)*1024} {self.kvf}")
        def vload(i):
            soff(i)
            A(f"buffer_load_dwordx4 v[{VR[i]}:{VR[i]+3}], v5, {sr(V)}, s86 offen offset:{(i%gr)*1024} {self.kvf}")
        def woload(j):
            g, cb = divmod(j, 5)
            off = g*1280 + cb*256
            so = "0" if off < 4096 else "s98"
            if off >= 4096: off -= 2048
            A(f"buffer_load_dwordx4 v[{WOR[j]}:{WOR[j]+3}], v0, {sr(WO)}, {so} offen offset:{off} {self.wof}")
        def hload(u):
            A(f"""
            s_add_u32 s8, s3, {7*u - 1}
            s_lshl_b32 s9, s8, 10
            s_add_u32 m0, s9, {L_KH}
            s_and_b32 s10, s9, {(gr-1)*1024}
            s_sub_u32 s9, s9, s10
            s_lshl_b32 s9, s9, 3
            s_add_u32 s9, s9, s89
            s_and_b32 s9, s9, 0x3ffff
            s_add_u32 s9, s9, s10
            """)
            if u == 4: A("s_cmp_ge_u32 s8, 32\ns_cselect_b32 s9, 0x40000, s9")
            A(f"buffer_load_dwordx4 v4, {sr(KH)}, s9 offen {self.kvf} lds")
        def wlload(j, helper=False):
            g, cb = divmod(j, 5); off = g*1280 + cb*256
            if helper: A(f"s_mov_b32 m0, {L_SH + j*1024 - off}\ns_nop 0")
            elif j < 8: A(f"s_add_u32 m0, s88, {j*1024 - off}\ns_nop 0")
            else:
                if j == 8:
                    A(f"""
                    s_mov_b32 s14, {self.limit*8}
                    L_sb:
                    ds_read_b32 v12, v15
                    s_waitcnt lgkmcnt(0)
                    v_readfirstlane_b32 s8, v12
                    s_nop 0
                    s_cmp_lg_u32 s8, 0
                    s_cbranch_scc1 L_sbd
                    s_sleep 2
                    s_sub_u32 s14, s14, 1
                    s_cbranch_scc0 L_sb
                    s_or_b32 s15, s15, 512
                    L_sbd:
                    """)
                A(f"s_mov_b32 s8, {off}\ns_add_u32 m0, s87, {L_SB + (j-8)*1024}\ns_nop 0")
                A(f"buffer_load_dwordx4 v0, {sr(WO)}, s8 offen {self.wof} lds"); return
            A(f"buffer_load_dwordx4 v0, {sr(WO)}, 0 offen offset:{off} {self.wof} lds")
        nl = self.nl
        kseq = []
        base = []
        for i in range(32):
            base.append(("K", i))
            if i % 6 == 5 and i//6 < 5: base.append(("H", i//6))
        for i in range(16): base.append(("V", i))
        lo, hi = 9, len(base) - self.depth
        pos = {lo + (j*(hi - lo))//nl: j for j in range(nl)}
        assert len(pos) == nl
        for n, op in enumerate(base):
            if n in pos: kseq.append(("L", pos[n]))
            kseq.append(op)
        def issue(op): {"K": kload, "V": vload, "W": woload, "H": hload, "L": wlload}[op[0]](op[1])
        d0 = self.d0

        self.prologue()
        nm = self.nm
        assert all(op[0] == "K" for op in kseq[:nm]) and nm <= 10
        A("s_cmp_eq_u32 s3, 0\ns_cbranch_scc1 L_c_j")
        for i in range(nm): kload(i)
        A("L_c_j:")
        self.setup2()
        self.stamp(1, 1)
        A(f"s_cmp_eq_u32 s85, 2\ns_cbranch_scc0 L_c_a\ns_waitcnt vmcnt({5+nm})")
        A("s_cmp_eq_u32 s3, 0\ns_cbranch_scc0 L_c_i1\ns_waitcnt vmcnt(5)\nL_c_i1:")
        self.stamp(2, 1)
        self.init1()
        A("L_c_a:")
        self.stamp(3, 1)
        A("s_cmp_eq_u32 s3, 0\ns_cbranch_scc1 L_helper")
        AF = lambda k, nt: (64 + 4*(k*4+nt)) if k < 8 else (208 + 4*((k-8)*4+nt))
        A(f"""
        s_mul_i32 s87, s3, 5120
        s_sub_u32 s87, s87, 5120
        s_mov_b64 vcc, -1
        v_mov_b32 v14, 1
        """)
        if self.prio == 1: A("s_cmp_ge_u32 s3, 4\ns_cbranch_scc0 L_np\ns_setprio 1\nL_np:")
        if self.prio == 2: A("s_cmp_ge_u32 s3, 3\ns_cbranch_scc0 L_np\ns_setprio 1\ns_cmp_ge_u32 s3, 6\ns_cbranch_scc0 L_np\ns_setprio 2\nL_np:")
        A(f"""
        s_getreg_b32 s8, hwreg(HW_REG_XCC_ID)
        s_and_b32 s8, s8, 7
        s_bitcmp1_b32 {self.par}, s8
        s_cselect_b32 s94, -1, 2
        """)
        if self.mdeep: A("s_cmp_eq_u32 s85, 2\ns_cselect_b32 s94, 0, s94\ns_cselect_b64 vcc, 0, -1")
        A(f"""
        s_waitcnt vmcnt({nm}) lgkmcnt(0)
        s_mov_b64 exec, 1
        ds_add_u32 v15, v14 offset:4
        s_mov_b64 exec, -1
        """)
        self.stamp(4, 1)
        hdone = kseq.index(("H", 4)) + d
        for n, op in enumerate(kseq):
            if n < nm: continue
            if n == self.nclr: self.late_clears()
            if n < self.n0: A(f"s_waitcnt vmcnt({d0-1})")
            else:
                if (n - self.n0) % self.chk == 0 and n <= self.nref:
                    if n > self.n0: A("s_waitcnt lgkmcnt(0)\nv_cmp_gt_u32 vcc, s94, v14")
                    A("ds_read_b32 v14, v15")
                lb = self.newlab("Ld")
                A(f"s_cbranch_vccz {lb}\ns_waitcnt vmcnt({(d0 if n < self.npat else self.pat[n % len(self.pat)])-1})\n{lb}:\ns_waitcnt vmcnt({d-1})")
            if n == hdone: self.bump(8)
            issue(op)
            if n in (16, 32, 48): self.stamp(n//16)
        assert all(op[0] not in "HL" for op in kseq[-d:])
        self.stamp(9); self.stamp(1, 3)
        A("s_cmp_eq_u32 s94, -1\ns_cselect_b64 s[92:93], -1, 0")
        self.spin(0, 2, 1024)
        A("s_branch L_qk")
        A(f"""
        L_helper:
        """)
        if 'p' in self.x or 'r' in self.x: A("s_branch L_noexp")
        if 'e' in self.x: A("v_mov_b32 v11, 1\nds_write_b32 v15, v11")
        if 'e' in self.x or 'p' in self.x or 'r' in self.x: A(f"""
        L_exp:
        s_add_u32 s8, s16, {self.exp*100}
        L_exp_poll:
        s_sleep 4
        s_memrealtime s[10:11]
        s_waitcnt lgkmcnt(0)
        s_sub_u32 s10, s8, s10
        s_cmp_gt_i32 s10, 0
        s_cbranch_scc1 L_exp_poll
        ds_write_b32 v15, v15
        s_branch L_exp_j
        L_noexp:
        """)
        A("s_waitcnt vmcnt(0)")
        A(f"buffer_load_dword v12, off, {sr(DBG)}, 0 sc1" if 'b' not in self.x else "v_mov_b32 v12, 8")
        A(f"""
        s_mov_b32 s14, {self.limit*8}
        L_ht:
        ds_read_b32 v14, v15 offset:4
        s_waitcnt lgkmcnt(0)
        v_readfirstlane_b32 s8, v14
        s_nop 0
        s_cmp_ge_u32 s8, 7
        s_cbranch_scc1 L_htd
        s_sleep 1
        s_sub_u32 s14, s14, 1
        s_cbranch_scc0 L_ht
        s_or_b32 s15, s15, 256
        L_htd:
        """)
        self.stamp(9); self.stamp(5, 1)
        A(f"""
        v_lshrrev_b32 v8, 2, v3
        s_cmp_eq_u32 s85, 2
        s_cbranch_scc1 L_h_mod
        v_lshlrev_b32 v10, 10, v2
        v_lshl_add_u32 v10, v8, 7, v10
        v_lshl_add_u32 v10, v13, 3, v10
        """)
        for k in range(10):
            for nt in range(4):
                r = AF(k, nt)
                A(f"ds_read_b64_tr_b16 v[{r}:{r+1}], v10 offset:{L_TA + k*4096 + nt*32}")
                A(f"ds_read_b64_tr_b16 v[{r+2}:{r+3}], v10 offset:{L_TA + k*4096 + nt*32 + 512}")
        A(f"""
        v_and_b32 v8, 7, v3
        v_lshrrev_b32 v9, 3, v3
        s_branch L_h_cnt
        L_h_mod:
        v_lshlrev_b32 v10, 9, v2
        v_lshl_add_u32 v10, v8, 6, v10
        v_lshl_add_u32 v10, v13, 3, v10
        """)
        def rd(i):
            A(f"ds_read_b128 v[{24+4*i}:{27+4*i}], v4 offset:{L_ACT + i*1024}")
            for par in range(2):
                for nt in range(2):
                    r = 64 + 4*((2*i+par)*2+nt)
                    A(f"ds_read_b64_tr_b16 v[{r}:{r+1}], v10 offset:{L_TA + (2*i+par)*2048 + nt*32}")
                    A(f"ds_read_b64_tr_b16 v[{r+2}:{r+3}], v10 offset:{L_TA + (2*i+par)*2048 + nt*32 + 256}")
        if self.stamps: A("s_waitcnt lgkmcnt(0)")
        rd(0)
        for i in range(10):
            if i < 9:
                rd(i+1); A("s_waitcnt lgkmcnt(9)")
            else: A("s_waitcnt lgkmcnt(0)")
            for par in range(2):
                for nt in range(2):
                    r = 64 + 4*((2*i+par)*2+nt); a_ = 224 + 8*par + 4*nt
                    c = "0" if i == 0 else f"v[{a_}:{a_+3}]"
                    A(f"v_mfma_f32_16x16x32_bf16 v[{a_}:{a_+3}], v[{r}:{r+3}], v[{24+4*i}:{27+4*i}], {c}")
        A(f"""
        v_and_b32 v8, 7, v3
        v_lshrrev_b32 v9, 3, v3
        v_lshlrev_b32 v15, 6, v8
        v_lshl_add_u32 v15, v9, 5, v15
        v_lshl_add_u32 v15, v2, 3, v15
        s_lshl_b32 s9, s91, 9
        s_add_u32 s8, s9, {L_XN - 20*512}
        v_add_u32 v14, s8, v15
        s_nop 1
        """)
        for r in range(4):
            A(f"v_add_f32_dpp v{24+r}, v{232+r}, v{224+r} row_ror:8 row_mask:0xf bank_mask:0x3")
            A(f"v_add_f32_dpp v{24+r}, v{228+r}, v{236+r} row_ror:8 row_mask:0xf bank_mask:0xc")
        A("v_cvt_pk_bf16_f32 v40, v24, v25\nv_cvt_pk_bf16_f32 v41, v26, v27")
        A("s_sub_u32 s8, s91, 20\ns_cmp_lt_u32 s8, 20\ns_cbranch_scc0 L_h_pub")
        A("ds_read_b64 v[42:43], v14")
        for j in range(2): self.unpack(24+2*j, 25+2*j, 40+j)
        for r in range(4): A(f"v_add_f32 v{24+r}, 1.0, v{24+r}")
        for j in range(2): A(f"v_cvt_pk_bf16_f32 v{40+j}, v{24+2*j}, v{25+2*j}")
        for j in range(2): self.unpack(24+2*j, 25+2*j, 40+j)
        A("s_waitcnt lgkmcnt(0)")
        for j in range(2): self.unpack(28+2*j, 29+2*j, 42+j)
        for r in range(4): A(f"v_mul_f32 v{24+r}, v{24+r}, v{28+r}")
        for j in range(2): A(f"v_cvt_pk_bf16_f32 v{40+j}, v{24+2*j}, v{25+2*j}")
        A("L_h_pub:")
        for j in range(2): A(f"v_min_u32 v{40+j}, -2, v{40+j}")
        A(f"v_add_u32 v15, {L_BN}, v15\nv_add_u32 v14, {L_BN}, v5\nds_write_b64 v15, v[40:41]\nds_read_b128 v[40:43], v14")
        A(f"""
        L_h_cnt:
        v_mov_b32 v10, {L_FL}
        v_mov_b32 v11, 1
        s_waitcnt lgkmcnt(0)
        ds_write_b32 v10, v11
        s_mov_b32 s14, {self.limit}
        L_wc:
        s_waitcnt vmcnt(0)
        v_readfirstlane_b32 s8, v12
        s_nop 0
        s_cmp_ge_u32 s8, {NCLR}
        s_cbranch_scc1 L_wcd
        s_sleep 2
        buffer_load_dword v12, off, {sr(DBG)}, 0 sc1
        s_sub_u32 s14, s14, 1
        s_cbranch_scc0 L_wc
        s_or_b32 s15, s15, 1
        L_wcd:
        s_cmp_eq_u32 s85, 2
        s_cbranch_scc0 L_h_np
        s_mov_b32 exec_hi, 0
        buffer_store_dwordx4 v[40:43], v5, {sr(WS)}, s9 offen sc1
        L_h_np:
        s_lshl_b32 s8, s87, 2
        s_add_u32 s8, s8, {WS_FLG}
        s_mov_b64 exec, 1
        """)
        if 'a' not in self.x: A(f"buffer_store_dword v1, off, {sr(WS)}, s8 sc1")
        A("s_mov_b64 exec, -1")
        if 'p' in self.x: A(f"v_mov_b32 v15, {L_FL}\ns_branch L_exp")
        self.stamp(1); self.stamp(6, 1)
        A("s_bitcmp1_b32 s85, 0\ns_cbranch_scc0 L_h_getq0")
        A(f"""
        v_mul_u32_u24 v12, 10240, v9
        v_lshl_add_u32 v12, v8, 6, v12
        v_lshl_add_u32 v12, v2, 4, v12
        v_lshlrev_b32 v14, 2, v8
        v_lshlrev_b32 v15, 8, v8
        v_lshl_add_u32 v15, v9, 6, v15
        v_lshl_add_u32 v15, v2, 4, v15
        v_add_u32 v15, {L_BN}, v15
        s_and_b32 s10, s5, 1
        s_mul_i32 s8, s10, 5120
        s_add_u32 s42, s8, 2560
        s_lshr_b32 s11, s99, 1
        s_lshl_b32 s9, s11, 5
        s_add_u32 s9, s9, {WS_FLG}
        s_lshl_b32 s11, s11, 13
        s_lshl_b32 s10, s10, 9
        s_add_u32 s11, s11, s10
        s_and_b32 s10, s99, 1
        s_lshl_b32 s10, s10, 8
        s_add_u32 s11, s11, s10
        s_add_u32 s11, s11, {hex(WS_QP)}
        """)
        loads = [f"buffer_load_dwordx4 v[{24+4*k}:{27+4*k}], v12, {sr(WS)}, {'s8' if k < 5 else 's42'} offen offset:{(k%5)*512} sc1" for k in range(10)]
        if self.probe:
            A(f"""
            v_lshlrev_b32 v10, 9, v1
            v_add_u32 v10, 508, v10
            v_add_u32 v11, 5120, v10
            v_cmp_lt_u32 vcc, 9, v1
            s_nop 1
            v_cndmask_b32 v10, v10, v11, vcc
            s_mov_b64 exec, 0xfffff
            """)
            self.poll([f"buffer_load_dword v240, v10, {sr(WS)}, s8 offen sc1"], [240, 240], 241, 2, sleep=self.s1)
        if 'i' in self.x:
            for _ in range(3): A("s_sleep 64")
            for l in loads: A(l)
            A("s_waitcnt vmcnt(0)")
        else:
            self.sleep(self.w1)
            self.poll(loads, list(range(24, 64)), 241, 2, sleep=self.s1)
        fl = f"buffer_load_dword v12, v14, {sr(WS)}, s9 offen sc1"
        A(fl)
        self.stamp(2)
        A("v_cmp_lt_u32 vcc, 7, v3\ns_waitcnt lgkmcnt(0)")
        for k in range(10):
            for j in (4*k, 4*k+2):
                self.unpack(240, 241, 24+j); self.unpack(242, 243, 25+j)
                for r in range(4): A(f"v_add_f32_dpp v{244+r}, v{240+r}, v{240+r} row_ror:8 {DPPF}")
                A(f"v_cvt_pk_bf16_f32 v{24+j}, v244, v245\nv_cvt_pk_bf16_f32 v{25+j}, v246, v247")
            if k >= 1:
                kk = k - 1
                for nt in range(4):
                    r = AF(kk, nt); a_ = [8, 20, 248, 252][nt]
                    c = "0" if kk == 0 else f"v[{a_}:{a_+3}]"
                    A(f"v_mfma_f32_16x16x32_bf16 v[{a_}:{a_+3}], v[{r}:{r+3}], v[{24+4*kk}:{27+4*kk}], {c}")
        for nt in range(4):
            r = AF(9, nt); a_ = [8, 20, 248, 252][nt]
            A(f"v_mfma_f32_16x16x32_bf16 v[{a_}:{a_+3}], v[{r}:{r+3}], v[60:63], v[{a_}:{a_+3}]")
        A("s_nop 5")
        for j, (a0, a1) in enumerate(((8, 20), (248, 252))):
            for r in range(4): A(f"v_cndmask_b32 v{24+4*j+r}, v{a0+r}, v{a1+r}, vcc")
            for r in range(4): A(f"v_min_u32 v{24+4*j+r}, -2, v{24+4*j+r}")
        A(f"""
        ds_write_b128 v15, v[24:27]
        ds_write_b128 v15, v[28:31] offset:128
        v_add_u32 v15, {L_BN}, v5
        ds_read_b128 v[32:35], v15
        ds_read_b128 v[36:39], v15 offset:1024
        v_lshlrev_b32 v15, 10, v2
        v_lshl_add_u32 v15, v3, 4, v15
        s_add_u32 s10, s11, 4096
        s_waitcnt vmcnt(0)
        """)
        self.poll([fl], [12, 12], 241, 2, first_loaded=True, sleep=4)
        A(f"""
        s_waitcnt lgkmcnt(0)
        buffer_store_dwordx4 v[32:35], v15, {sr(WS)}, s11 offen sc1
        buffer_store_dwordx4 v[36:39], v15, {sr(WS)}, s10 offen sc1
        """)
        self.stamp(8)
        self.sleep(self.w3)
        A("s_branch L_h_getq\nL_h_getq0:")
        self.sleep(self.w2)
        A(f"""
        L_h_getq:
        """)
        if 'r' in self.x: A(f"v_mov_b32 v15, {L_FL}\ns_branch L_exp")
        A(f"""
        v_lshlrev_b32 v12, 3, v1
        v_add_u32 v14, {L_Q}, v6
        s_lshl_b32 s8, s87, 10
        s_add_u32 s8, s8, {hex(WS_QP)}
        """)
        loads = [f"buffer_load_dwordx2 v[{40+2*k}:{41+2*k}], v12, {sr(WS)}, s8 offen offset:{k*512} sc1" for k in range(2)]
        self.poll(loads, range(40, 44), 45, 4, sleep=self.s2)
        A(f"""
        v_add_f32 v32, v40, v42
        v_add_f32 v33, v41, v43
        v_mov_b32 v15, {L_FL}
        v_cvt_pk_bf16_f32 v32, v32, v33
        ds_write_b32 v14, v32
        s_waitcnt lgkmcnt(0)
        ds_write_b32 v15, v15
        """)
        self.stamp(3)
        A("L_exp_j:\ns_setprio 0")
        for j in range(nl): wlload(j, True)
        for i in range(16): vload(i)
        A("s_mov_b64 s[92:93], 0")
        self.spin(8, 7, 2048)
        A(f"""
        s_lshl_b32 s8, s2, 2
        s_add_u32 s8, s8, {WS_FLG2}
        s_mov_b64 exec, 1
        buffer_store_dword v1, off, {sr(WS)}, s8 sc1
        s_mov_b64 exec, -1
        v_add_u32 v8, {L_KH}, v5
        """)
        for i in range(32): A(f"ds_read_b128 v[{KR+4*i}:{KR+4*i+3}], v8 offset:{i*1024}")
        A("L_qk:")
        order = [op for op in kseq if op[0] in "KV"]
        def iss(op):
            issue(op); order.append(op)
        def waitfor(op):
            A(f"s_waitcnt vmcnt({len(order) - 1 - order.index(op)})")
        A(f"""
        v_lshlrev_b32 v8, 6, v13
        v_lshl_add_u32 v8, v2, 4, v8
        v_add_u32 v8, {L_Q}, v8
        ds_read_b128 v[24:27], v8
        v_lshrrev_b32 v9, 2, v3
        s_waitcnt lgkmcnt(0)
        """)
        for t in range(4):
            A(f"v_cmp_eq_u32 vcc, {t}, v9\ns_nop 1")
            for r in range(4): A(f"v_cndmask_b32 v{32+4*t+r}, 0, v{24+r}, vcc")
        A("s_nop 1")
        for half in range(2):
            for gg in range(4):
                g = half*4 + gg
                waitfor(("K", 4*g+3))
                for t in range(4):
                    i = 4*g + t
                    c = "0" if t == 0 else f"v[{48+4*gg}:{51+4*gg}]"
                    A(f"v_mfma_f32_16x16x32_bf16 v[{48+4*gg}:{51+4*gg}], v[{KR+4*i}:{KR+4*i+3}], v[{32+4*t}:{35+4*t}], {c}")
            A("s_nop 7")
            for j in range(4):
                for gg in range(4):
                    g = half*4 + gg
                    if j == 0: A(f"v_mov_b32_dpp v{24+g}, v{48+4*gg} quad_perm:[0,0,0,0] {DPPF}")
                    else: A(f"v_add_f32_dpp v{24+g}, v{48+4*gg+j}, v{24+g} quad_perm:[{j},{j},{j},{j}] {DPPF}")
            A("s_nop 1")
        self.stamp(4)
        A(f"""
        s_add_u32 s9, s87, {L_SB}
        s_cmp_eq_u32 s3, 0
        s_cselect_b32 s8, {L_SH}, s88
        s_cselect_b32 s9, {L_SH + 8192}, s9
        v_add_u32 v8, s8, v5
        v_add_u32 v9, s9, v5
        s_waitcnt vmcnt(16)
        """)
        for j in range(nl): A(f"ds_read_b128 v[{WOR[j]}:{WOR[j]+3}], {'v8' if j < 8 else 'v9'} offset:{(j%8)*1024}")
        post = []
        ws_ = list(range(nl, 20)); vs_ = list(range(16, 32))
        while ws_ or vs_:
            if ws_: post.append(("W", ws_.pop(0)))
            if vs_: post.append(("V", vs_.pop(0)))
        npre = self.d1; assert npre < len(post)
        for op in post[:npre]: iss(op)
        self.softmax1()
        A("s_mov_b64 vcc, s[92:93]")
        for n, op in enumerate(post[npre:]):
            if self.par:
                lb = self.newlab("Ld")
                A(f"s_cbranch_vccz {lb}\ns_waitcnt vmcnt({self.pat[n % len(self.pat)]-1})\n{lb}:")
            A(f"s_waitcnt vmcnt({self.d2-1})")
            iss(op)
        self.stamp(5)
        self.softmax2()
        def abuild(i):
            base = 32 + 4*(i % 2)
            for r in range(4):
                A(f"v_and_b32_dpp v{base+r}, v{24+i//4}, v{16+r} row_newbcast:{4*(i%4)} {DPPF}")
        abuild(0)
        last = self.d2
        for i in range(32):
            if i + 1 < 32: abuild(i+1)
            else: A("s_nop 1")
            n = len(order) - 1 - order.index(("V", i))
            if n < last: A(f"s_waitcnt vmcnt({n})"); last = n
            r = VR[i]; base = 32 + 4*(i % 2)
            c = "0" if i == 0 else "v[20:23]"
            A(f"v_mfma_f32_16x16x32_bf16 v[20:23], v[{base}:{base+3}], v[{r}:{r+3}], {c}")
            if i == 8:
                self.small_loads()
                for u in range(11): order.append(("S", u))
                last += 11
        self.stamp(2, 3)
        if self.te:
            A("s_cmp_eq_u32 s100, 1\ns_cbranch_scc0 L_not")
            self.tload(0, self.te)
            A("L_not:")
        self.tail1(WOR)
        if 's' in self.x: A("s_branch L_fin")
        A("s_cmp_eq_u32 s100, 1\ns_cbranch_scc1 L_mlp")
        A("s_cmp_eq_u32 s100, 2\ns_cbranch_scc0 L_fin")
        A("s_cmp_lt_u32 s3, 6\ns_cbranch_scc1 L_fin")
        self.reducer()
        self.mlp()
        self.finish()
        self.subs()
        L = self.L
        L.append(f".fill ({self.pad} - (. - {NAME}_kernel))/4, 4, 0xbf800000")
        L += ['.section .rodata,"a"', ".p2align 6", f".amdhsa_kernel {NAME}_kernel",
              "  .amdhsa_next_free_vgpr 256", "  .amdhsa_next_free_sgpr 102", "  .amdhsa_accum_offset 256",
              "  .amdhsa_group_segment_fixed_size 0", "  .amdhsa_kernarg_size 104", "  .amdhsa_user_sgpr_count 2",
              "  .amdhsa_user_sgpr_kernarg_segment_ptr 1", "  .amdhsa_system_sgpr_workgroup_id_x 1", ".end_amdhsa_kernel"]
        return "\n".join(L) + "\n"

    def late_clears(self):
        self.A(f"""
        v_mov_b32 v8, -1
        v_mov_b32 v9, -1
        v_mov_b32 v10, -1
        v_mov_b32 v11, -1
        s_cmp_gt_u32 s3, 3
        s_cbranch_scc1 L_lc_b
        s_mul_i32 s8, s84, 2560
        s_lshl_b32 s9, s3, 10
        s_add_u32 s8, s8, s9
        s_add_u32 s8, s8, {WS_AP - 1024}
        s_cmp_lt_u32 s3, 3
        s_cbranch_scc1 L_lc_st
        s_mov_b32 exec_hi, 0
        s_branch L_lc_st
        L_lc_b:
        s_cmp_eq_u32 s100, 1
        s_cbranch_scc1 L_lc_op
        s_cmp_eq_u32 s100, 2
        s_cbranch_scc0 L_lc_done
        s_cmp_eq_u32 s3, 4
        s_cbranch_scc0 L_lc_done
        s_mov_b64 exec, 0xffff
        s_add_u32 s8, s90, {hex(WS_X1)}
        s_branch L_lc_st
        L_lc_op:
        s_lshl_b32 s8, s3, 10
        s_add_u32 s8, s8, s101
        s_sub_u32 s8, s8, 4096
        L_lc_st:
        buffer_store_dwordx4 v[8:11], v5, {sr(WS)}, s8 offen sc1
        s_mov_b64 exec, -1
        L_lc_done:
        """)
    def tload(self, u0, u1):
        A = self.A
        if u0 == 0:
            A(f"""
            v_lshrrev_b32 v14, 3, v1
            v_mul_u32_u24 v14, 3456, v14
            v_and_b32 v15, 7, v1
            v_lshl_add_u32 v14, v15, 4, v14
            v_mul_u32_u24 v15, 1280, v2
            v_lshl_add_u32 v15, v3, 4, v15
            s_mul_i32 s86, s3, {80*3456}
            s_mul_i32 s87, s3, 10240
            s_add_u32 s87, s87, {L_W1}
            """)
        for u in range(u0, u1):
            if u < 10:
                A(f"s_add_u32 m0, s87, {u*1024}\ns_add_u32 s88, s86, {u*8*3456}")
                A(f"buffer_load_dwordx4 v14, {sr(TA)}, s88 offen {self.w1f} lds")
            else:
                A(f"s_lshl_b32 s88, s3, 11\ns_add_u32 m0, s88, {L_W2 + (u-10)*1024}\ns_mul_i32 s88, s3, 10240\ns_add_u32 s88, s88, {(u-10)*5120}")
                A(f"buffer_load_dwordx4 v15, {sr(TB)}, s88 offen {self.tf} lds")
    def softmax1(self):
        A = self.A
        A(f"s_mov_b32 s8, {hex(SCALE)}")
        for g in range(0, 8, 2):
            A(f"v_cvt_pk_bf16_f32 v8, v{24+g}, v{25+g}")
            self.unpack(24+g, 25+g, 8)
            A(f"v_mul_f32 v{24+g}, s8, v{24+g}\nv_mul_f32 v{25+g}, s8, v{25+g}")
            A(f"v_cvt_pk_bf16_f32 v8, v{24+g}, v{25+g}")
            self.unpack(24+g, 25+g, 8)
        def wred(op, sdst):
            for c in (f"row_ror:4 {DPPF}", f"row_ror:8 {DPPF}", "row_bcast:15 row_mask:0xa bank_mask:0xf", "row_bcast:31 row_mask:0xc bank_mask:0xf"):
                A(f"s_nop 1\n{op}_dpp v8, v8, v8 {c}")
            A(f"s_nop 1\nv_readlane_b32 {sdst}, v8, 63")
        A("v_max3_f32 v8, v24, v25, v26\nv_max3_f32 v8, v8, v27, v28\nv_max3_f32 v8, v8, v29, v30\nv_max_f32 v8, v8, v31")
        wred("v_max_f32", "s9")
        A(f"s_mov_b32 s8, {hex(LOG2E)}\ns_nop 1")
        for g in range(8): A(f"v_subrev_f32 v{24+g}, s9, v{24+g}")
        for g in range(8): A(f"v_mul_f32 v{24+g}, s8, v{24+g}")
        for g in range(8): A(f"v_exp_f32 v{24+g}, v{24+g}")
        A("""
        s_nop 0
        v_add_f32 v8, v24, v25
        v_add_f32 v9, v26, v27
        v_add_f32 v10, v28, v29
        v_add_f32 v11, v30, v31
        v_add_f32 v8, v8, v9
        v_add_f32 v10, v10, v11
        v_add_f32 v8, v8, v10
        """)
        wred("v_add_f32", "s10")
        A(f"""
        s_lshl_b32 s11, s3, 3
        s_add_u32 s11, s11, {L_SM}
        v_mov_b32 v10, s9
        v_mov_b32 v11, s10
        v_mov_b32 v9, s11
        ds_write_b64 v9, v[10:11]
        s_mov_b32 s95, s9
        s_waitcnt lgkmcnt(0)
        """)
        self.bump(12)
    def softmax2(self):
        A = self.A
        self.spin(12, 8, 4096)
        A(f"""
        v_and_b32 v9, 7, v1
        v_lshlrev_b32 v9, 3, v9
        s_mov_b32 s8, {hex(LOG2E)}
        s_mov_b32 s9, s95
        ds_read_b64 v[10:11], v9 offset:{L_SM}
        s_waitcnt lgkmcnt(0)
        v_max_f32_dpp v8, v10, v10 row_ror:4 {DPPF}
        s_nop 1
        v_max_f32_dpp v8, v8, v8 row_ror:2 {DPPF}
        s_nop 1
        v_max_f32_dpp v8, v8, v8 row_ror:1 {DPPF}
        v_sub_f32 v10, v10, v8
        v_sub_f32 v12, s9, v8
        v_mul_f32 v10, s8, v10
        v_mul_f32 v12, s8, v12
        v_exp_f32 v10, v10
        v_exp_f32 v12, v12
        s_nop 0
        v_mul_f32 v10, v10, v11
        s_nop 1
        v_add_f32_dpp v10, v10, v10 quad_perm:[1,0,3,2] {DPPF}
        s_nop 1
        v_add_f32_dpp v10, v10, v10 quad_perm:[2,3,0,1] {DPPF}
        s_nop 1
        v_add_f32_dpp v10, v10, v10 row_half_mirror {DPPF}
        v_rcp_f32 v10, v10
        s_nop 0
        v_mul_f32 v10, v10, v12
        """)
        for g in range(8): A(f"v_mul_f32 v{24+g}, v10, v{24+g}")
        for g in range(8): A(f"v_cvt_pk_bf16_f32 v{24+g}, v{24+g}, v{24+g}")
        A("s_nop 1")

    def tail1(self, WOR):
        A = self.A
        A(f"""
        s_lshl_b32 s8, s3, 9
        s_add_u32 s8, s8, {L_R1}
        v_lshlrev_b32 v8, 5, v3
        v_lshl_add_u32 v8, v2, 4, v8
        v_add_u32 v9, s8, v8
        s_lshl_b32 s9, s3, 6
        s_add_u32 s9, s9, {L_R1}
        v_and_b32 v10, 7, v3
        v_lshlrev_b32 v10, 9, v10
        v_lshl_add_u32 v10, v2, 4, v10
        v_add_u32 v10, s9, v10
        s_mul_i32 s8, s3, 2560
        s_add_u32 s8, s8, {L_R2}
        v_add_u32 v11, s8, v8
        s_mov_b32 exec_hi, 0
        ds_write_b128 v9, v[20:23]
        s_mov_b64 exec, -1
        s_waitcnt lgkmcnt(0)
        s_barrier
        """)
        self.stamp(6); self.stamp(1, 2)
        A("ds_read_b128 v[24:27], v10\ns_waitcnt lgkmcnt(0)")
        for sh in (4, 2, 1):
            for r in range(4): A(f"v_add_f32_dpp v{24+r}, v{24+r}, v{24+r} row_ror:{sh} {DPPF}")
        for r in range(4): A(f"v_cvt_pk_bf16_f32 v{24+r}, v{24+r}, v{24+r}")
        for r in range(4): A(f"v_and_b32 v{32+r}, v24, v{16+r}")
        ACC = 64
        self.stamp(2, 2)
        for g in range(4):
            if g == 0:
                for r in range(2): A(f"v_and_b32 v{36+r}, v25, v{16+r}")
            for cb in range(5):
                r = WOR[g*5+cb]
                c = "0" if g == 0 else f"v[{ACC+4*cb}:{ACC+4*cb+3}]"
                A(f"v_mfma_f32_16x16x32_bf16 v[{ACC+4*cb}:{ACC+4*cb+3}], v[{32+4*g}:{35+4*g}], v[{r}:{r+3}], {c}")
                if g == 0 and cb < 5:
                    for t in range(2):
                        j = 6 + 2*cb + t
                        A(f"v_and_b32 v{32+j}, v{24+j//4}, v{16+j%4}")
        A("s_mov_b32 exec_hi, 0\ns_nop 3")
        for cb in range(5):
            A(f"ds_write_b128 v11, v[{ACC+4*cb}:{ACC+4*cb+3}] offset:{cb*512}")
        A(f"""
        s_mov_b64 exec, -1
        s_lshl_b32 s8, s3, 9
        s_add_u32 s9, s8, {L_R2}
        v_add_u32 v9, s9, v5
        s_mul_i32 s9, s84, 2560
        s_add_u32 s9, s9, s8
        s_add_u32 s9, s9, {hex(WS_AP)}
        s_waitcnt lgkmcnt(0)
        s_barrier
        """)
        self.stamp(3, 2)
        if self.stamps and self.diag == 2: A("s_waitcnt lgkmcnt(0)")
        A("""
        s_cmp_ge_u32 s3, 5
        s_cbranch_scc1 L_apdone
        s_mov_b32 exec_hi, 0
        """)
        for j in range(8): A(f"ds_read_b128 v[{64+4*j}:{67+4*j}], v9 offset:{j*2560}")
        for j in range(0, 8, 2):
            A(f"s_waitcnt lgkmcnt({6-j})")
            for r in (0, 2): self.pk("add", 64+4*j+r, 64+4*j+r, f"v[{68+4*j+r}:{69+4*j+r}]")
            if j == 2:
                for r in (0, 2): self.pk("add", 64+r, 64+r, f"v[{72+r}:{73+r}]")
        for r in (0, 2): self.pk("add", 80+r, 80+r, f"v[{88+r}:{89+r}]")
        for r in (0, 2): self.pk("add", 64+r, 64+r, f"v[{80+r}:{81+r}]")
        for r in range(4): A(f"v_min_u32 v{64+r}, -2, v{64+r}")
        A(f"buffer_store_dwordx4 v[64:67], v5, {sr(WS)}, s9 offen sc1")
        A("s_mov_b64 exec, -1")
        A("L_apdone:")
        self.stamp(7); self.stamp(4, 2)

    def flg(self):
        return f"s_mov_b32 s10, {WS_FLG2}\nbuffer_load_dwordx4 v[204:207], v5, {sr(WS)}, s10 offen sc1"
    def red_small(self):
        return [f"buffer_load_dword v212, v218, {sr(WS)}, s42 offen sc1",
                f"buffer_load_dword v213, v219, {sr(WS)}, s43 offen sc1"]
    def mlp_small(self):
        o = [self.flg()]
        for i in range(5): o.append(f"s_mov_b32 s9, {WS_MOD + 80*512 + i*2048}\nbuffer_load_dword v{192+i}, v7, {sr(WS)}, s9 offen sc1")
        for i in range(5): o.append(f"s_mov_b32 s9, {WS_MOD + 60*512 + i*2048}\nbuffer_load_dword v{197+i}, v7, {sr(WS)}, s9 offen sc1")
        return o
    def small_loads(self):
        A = self.A
        A(f"""
        v_and_b32 v216, 7, v1
        v_and_b32 v217, 1, v2
        v_lshlrev_b32 v217, 2, v217
        v_lshl_add_u32 v218, v216, 3, v217
        v_lshl_add_u32 v219, v216, 6, v217
        s_cmp_eq_u32 s100, 2
        s_cbranch_scc0 L_sm_done
        s_cmp_lt_u32 s3, 6
        s_cbranch_scc1 L_sm_done
        s_lshl_b32 s43, s96, 9
        s_lshl_b32 s9, s4, 6
        s_add_u32 s42, s43, s9
        s_add_u32 s42, s42, {WS_MOD + 40*512}
        s_lshl_b32 s9, s4, 3
        s_add_u32 s43, s43, s9
        s_add_u32 s43, s43, {WS_MOD + 100*512}
        s_lshr_b32 s9, s90, 1
        """)
        for l in self.red_small(): A(l)
        A(f"buffer_load_dword v214, v218, {sr(X)}, s9 offen")
        A("L_sm_done:")
        for l in self.mlp_small(): A(l)
    def pk(self, op, d, a, b, mods=""):
        self.A(f"v_pk_{op}_f32 v[{d}:{d+1}], v[{a}:{a+1}], {b} {mods}")
    def reducer(self):
        A = self.A
        A("s_waitcnt vmcnt(0)")
        self.poll([self.flg()] + self.red_small(), [212, 213, 204, 205, 206, 207], 8, 8, first_loaded=True)
        A(f"""
        v_lshrrev_b32 v8, 1, v2
        v_lshlrev_b32 v8, 4, v8
        v_sub_u32 v14, 16, v8
        v_lshlrev_b32 v200, v14, v212
        v_and_b32 v200, 0xffff0000, v200
        v_lshlrev_b32 v201, v14, v214
        v_and_b32 v201, 0xffff0000, v201
        v_lshrrev_b32 v9, 3, v1
        v_mul_u32_u24 v10, 2560, v9
        v_lshl_add_u32 v10, v216, 4, v10
        v_mul_u32_u24 v11, 20480, v9
        v_lshl_add_u32 v11, v216, 4, v11
        v_lshlrev_b32 v12, 3, v1
        v_mul_u32_u24 v15, 2560, v216
        v_add_u32 v15, v15, v217
        s_mul_i32 s8, s4, {32*2560}
        s_lshl_b32 s9, s96, 7
        s_add_u32 s8, s8, s9
        s_add_u32 s8, s8, {hex(WS_AP)}
        s_add_u32 s9, s8, 20480
        s_add_u32 s10, s8, 40960
        s_add_u32 s11, s8, 61440
        s_add_u32 s88, s90, {hex(WS_X1)}
        s_call_b64 s[12:13], F_red
        v_min_u32 v68, -2, v68
        v_min_u32 v69, -2, v69
        s_mov_b64 exec, 0xff
        buffer_store_dwordx2 v[68:69], v12, {sr(WS)}, s88 offen sc1
        s_mov_b64 exec, -1
        """)
        self.stamp(8)
        A(f"""
        v_lshlrev_b32 v200, v14, v213
        v_and_b32 v200, 0xffff0000, v200
        v_mov_b32 v10, v11
        v_mul_u32_u24 v12, 1280, v1
        s_lshl_b32 s86, s96, 3
        s_add_u32 s86, s86, s4
        s_lshl_b32 s8, s86, 7
        s_add_u32 s8, s8, {hex(WS_OP)}
        s_add_u32 s9, s8, {8*20480}
        s_add_u32 s10, s8, {16*20480}
        s_add_u32 s11, s8, {24*20480}
        s_lshl_b32 s88, s86, 3
        s_lshl_b32 s86, s96, 7
        s_lshl_b32 s87, s4, 3
        s_add_u32 s86, s86, s87
        s_add_u32 s86, s86, {hex(WS_X1)}
        """)
        self.sleep(self.wx)
        self.poll([f"buffer_load_dword v214, v15, {sr(WS)}, s86 offen sc1"], [214, 214], 13, 32, sleep=4)
        A("v_lshlrev_b32 v201, v14, v214\nv_and_b32 v201, 0xffff0000, v201")
        self.sleep(self.wo_)
        A(f"""
        s_call_b64 s[12:13], F_red
        s_mov_b64 exec, 0xff
        buffer_store_dwordx2 v[68:69], v12, {sr(OUT)}, s88 offen
        s_mov_b64 exec, -1
        """)
        self.stamp(9)
        A("s_branch L_fin")
    def f_red(self):
        A = self.A
        A("F_red:")
        loads = [f"buffer_load_dwordx4 v[{64+4*i}:{67+4*i}], v10, {sr(WS)}, s{8+i} offen sc1" for i in range(4)]
        self.poll(loads, range(64, 80), 13, 16, sleep=self.sr)
        for a_, b_ in ((64, 68), (72, 76), (64, 72)):
            for r in (0, 2): self.pk("add", a_+r, a_+r, f"v[{b_+r}:{b_+r+1}]")
        A(f"""
        s_nop 0
        v_permlane32_swap_b32 v64, v65
        v_permlane32_swap_b32 v66, v67
        v_add_f32 v64, v64, v65
        v_add_f32 v66, v66, v67
        s_nop 1
        v_permlane16_swap_b32 v64, v66
        v_add_f32 v64, v64, v66
        s_nop 1
        v_add_f32_dpp v64, v64, v64 row_ror:8 {DPPF}
        v_cvt_pk_bf16_f32 v64, v64, v64
        v_and_b32 v64, 0xffff0000, v64
        v_mul_f32 v64, v64, v200
        v_cvt_pk_bf16_f32 v64, v64, v64
        v_and_b32 v64, 0xffff0000, v64
        v_add_f32 v64, v64, v201
        v_mov_b32 v65, v64
        s_nop 1
        v_permlane32_swap_b32 v64, v65
        v_cvt_pk_bf16_f32 v68, v64, v65
        v_cvt_pk_bf16_f32 v69, v64, v65
        s_nop 1
        v_permlane16_swap_b32 v68, v69
        s_setpc_b64 s[12:13]
        """)

    def mlp(self):
        A = self.A
        A("L_mlp:")
        self.tload(self.te, 12)
        A("s_waitcnt vmcnt(12)")
        self.poll(self.mlp_small(), list(range(192, 202)) + [204, 205, 206, 207], 8, 64, first_loaded=True)
        for i in range(5):
            self.unpack(208+2*i, 209+2*i, 192+i)
            A(f"v_add_f32 v{208+2*i}, 1.0, v{208+2*i}\nv_add_f32 v{209+2*i}, 1.0, v{209+2*i}")
            A(f"v_cvt_pk_bf16_f32 v8, v{208+2*i}, v{209+2*i}")
            self.unpack(208+2*i, 209+2*i, 8)
            self.unpack(218+2*i, 219+2*i, 197+i)
        A(f"""
        v_lshrrev_b32 v8, 2, v3
        v_lshlrev_b32 v10, 10, v2
        v_lshl_add_u32 v10, v8, 7, v10
        v_lshl_add_u32 v10, v13, 3, v10
        s_lshr_b32 s8, s3, 1
        s_mul_i32 s9, s8, 20480
        s_and_b32 s10, s3, 1
        s_lshl_b32 s11, s10, 6
        s_add_u32 s9, s9, s11
        s_add_u32 s9, s9, {L_W1}
        v_add_u32 v10, s9, v10
        v_lshl_add_u32 v11, v2, 2, v8
        v_lshlrev_b32 v11, 8, v11
        v_lshl_add_u32 v11, v13, 3, v11
        s_and_b32 s9, s3, 3
        s_lshl_b32 s9, s9, 6
        s_add_u32 s9, s9, {L_W2}
        v_add_u32 v11, s9, v11
        v_and_b32 v8, 7, v3
        v_lshlrev_b32 v168, 6, v8
        v_lshl_add_u32 v168, v2, 4, v168
        s_mul_i32 s9, s8, 2560
        v_add_u32 v168, s9, v168
        s_lshl_b32 s9, s3, 11
        s_add_u32 s9, s9, {L_G1}
        v_add_u32 v169, s9, v5
        v_lshrrev_b32 v9, 3, v3
        v_lshlrev_b32 v170, 10, v9
        v_lshl_add_u32 v170, v2, 8, v170
        v_lshl_add_u32 v170, v8, 4, v170
        v_add_u32 v170, {L_G1}, v170
        v_lshlrev_b32 v172, 7, v2
        v_lshl_add_u32 v172, v3, 2, v172
        v_lshlrev_b32 v173, 4, v8
        v_lshl_add_u32 v173, v2, 7, v173
        s_mul_i32 s43, s3, 2560
        s_add_u32 s43, s43, {hex(WS_X1)}
        s_lshl_b32 s9, s3, 10
        s_add_u32 s42, s101, s9
        s_mov_b32 s86, 0x00ff00ff
        s_mov_b32 s87, 0x00ff00ff
        s_waitcnt vmcnt(0)
        s_barrier
        """)
        self.stamp(1)
        for k in range(5):
            for t in range(2):
                r = 128 + 8*k + 4*t
                A(f"ds_read_b64_tr_b16 v[{r}:{r+1}], v10 offset:{k*4096 + t*32}")
                A(f"ds_read_b64_tr_b16 v[{r+2}:{r+3}], v10 offset:{k*4096 + t*32 + 512}")
        for m in range(2):
            for j in range(2):
                r = 176 + 8*m + 4*j
                A(f"ds_read_b64_tr_b16 v[{r}:{r+1}], v11 offset:{j*8192 + m*32}")
                A(f"ds_read_b64_tr_b16 v[{r+2}:{r+3}], v11 offset:{j*8192 + 4096 + m*32}")
        loads = [f"buffer_load_dword v{24+i}, v172, {sr(WS)}, s43 offen offset:{i*512} sc1" for i in range(5)]
        self.poll(loads, range(24, 29), 8, 128, sleep=self.sx)
        self.stamp(8); self.stamp(5, 2)
        A("s_call_b64 s[12:13], F_ln")
        self.stamp(6, 2)
        for i in range(5): self.unpack(32+2*i, 33+2*i, 24+i)
        for i in range(5): self.pk("mul", 32+2*i, 32+2*i, f"v[{208+2*i}:{209+2*i}]")
        for i in range(5): A(f"v_cvt_pk_bf16_f32 v{24+i}, v{32+2*i}, v{33+2*i}")
        for i in range(5): self.unpack(32+2*i, 33+2*i, 24+i)
        for i in range(5): self.pk("add", 32+2*i, 32+2*i, f"v[{218+2*i}:{219+2*i}]")
        for i in range(5):
            A(f"v_cvt_pk_bf16_f32 v{24+i}, v{32+2*i}, v{33+2*i}")
            A(f"ds_write_b32 v7, v{24+i} offset:{L_ACT + i*2048}")
        self.stamp(7, 2)
        A("s_waitcnt lgkmcnt(0)\ns_barrier")
        self.stamp(8, 2)
        if self.stamps and self.diag == 2: A("s_waitcnt lgkmcnt(0)")
        for k in range(5): A(f"ds_read_b128 v[{32+4*k}:{35+4*k}], v168 offset:{L_ACT + k*512}")
        for k in range(5):
            A(f"s_waitcnt lgkmcnt({4-k})")
            for t in range(2):
                r = 128 + 8*k + 4*t; a_ = 64 + 4*t
                c = "0" if k == 0 else f"v[{a_}:{a_+3}]"
                A(f"v_mfma_f32_16x16x32_bf16 v[{a_}:{a_+3}], v[{r}:{r+3}], v[{32+4*k}:{35+4*k}], {c}")
        A("s_nop 6\nds_write_b128 v169, v[64:67]\nds_write_b128 v169, v[68:71] offset:1024\ns_waitcnt lgkmcnt(0)\ns_barrier")
        self.stamp(9, 2)
        if self.stamps and self.diag == 2: A("s_waitcnt lgkmcnt(0)")
        A("s_cmp_ge_u32 s3, 4\ns_cbranch_scc1 L_fin")
        for j in range(2):
            for k in range(4): A(f"ds_read_b128 v[{64+16*j+4*k}:{67+16*j+4*k}], v170 offset:{k*4096 + j*2048}")
        for j in range(2):
            b0 = 64 + 16*j
            A(f"s_waitcnt lgkmcnt({4-4*j})")
            for a_, b_ in ((0, 4), (8, 12), (0, 8)):
                for r in (0, 2): self.pk("add", b0+a_+r, b0+a_+r, f"v[{b0+b_+r}:{b0+b_+r+1}]")
            A(f"v_cvt_pk_bf16_f32 v8, v{b0}, v{b0+1}\nv_cvt_pk_bf16_f32 v9, v{b0+2}, v{b0+3}")
            self.unpack(32+4*j, 33+4*j, 8); self.unpack(34+4*j, 35+4*j, 9)
        self.silu(list(range(32, 40)), list(range(40, 48)))
        A(f"""
        v_cvt_pk_bf16_f32 v24, v32, v33
        v_cvt_pk_bf16_f32 v25, v34, v35
        v_cvt_pk_bf16_f32 v28, v36, v37
        v_cvt_pk_bf16_f32 v29, v38, v39
        v_mov_b32_dpp v26, v24 row_ror:8 {DPPF}
        v_mov_b32_dpp v27, v25 row_ror:8 {DPPF}
        v_mov_b32_dpp v30, v28 row_ror:8 {DPPF}
        v_mov_b32_dpp v31, v29 row_ror:8 {DPPF}
        v_mfma_f32_16x16x32_bf16 v[64:67], v[176:179], v[24:27], 0
        v_mfma_f32_16x16x32_bf16 v[68:71], v[184:187], v[24:27], 0
        v_mfma_f32_16x16x32_bf16 v[64:67], v[180:183], v[28:31], v[64:67]
        v_mfma_f32_16x16x32_bf16 v[68:71], v[188:191], v[28:31], v[68:71]
        s_mov_b64 exec, s[86:87]
        s_nop 5
        """)
        for m in range(2):
            for r in range(4): A(f"v_min_u32 v{64+4*m+r}, -2, v{64+4*m+r}")
            A(f"buffer_store_dwordx4 v[{64+4*m}:{67+4*m}], v173, {sr(WS)}, s42 offen offset:{m*512} sc1")
        A("s_mov_b64 exec, -1")
        self.stamp(9); self.stamp(10, 2)

    def finish(self):
        A = self.A
        A("L_fin:")
        A("s_cmp_eq_u32 s15, 0\ns_cbranch_scc1 L_noerr")
        A(f"v_mov_b32 v8, s15\ns_mov_b64 exec, 1\nbuffer_atomic_or v8, off, {sr(DBG)}, 0 offset:4 sc1\ns_mov_b64 exec, -1")
        A("L_noerr:")
        if self.fix and self.fixwg >= 0: A(f"s_cmp_eq_u32 s2, {self.fixwg}\ns_cbranch_scc0 L_end")
        if self.fix: A(f"""
        s_add_u32 s8, s16, {self.fix*100}
        L_fixw:
        s_sleep 4
        s_memrealtime s[10:11]
        s_waitcnt lgkmcnt(0)
        s_sub_u32 s10, s8, s10
        s_cmp_gt_i32 s10, 0
        s_cbranch_scc1 L_fixw
        """)
        if self.stamps:
            self.stamp(10)
            A("s_waitcnt lgkmcnt(0)")
            self.srdo(STS, f"s{WS}", f"s{WS+1}", hex(STAMP_OFF), "0x100000")
            A("s_getreg_b32 s38, hwreg(HW_REG_XCC_ID)\ns_lshl_b32 s39, s100, 8\ns_or_b32 s39, s39, s85")
            A(f"s_mul_i32 s8, s2, {12*8*2}")
            if self.diag == 3:
                A("s_mul_i32 s9, s3, 24\ns_add_u32 s8, s8, s9\ns_mov_b64 exec, 1")
                for k in range(3):
                    A(f"v_mov_b32 v8, s{16+2*k}\nv_mov_b32 v9, s{17+2*k}\nbuffer_store_dwordx2 v[8:9], off, {sr(STS)}, s8 offset:{8*k}\ns_nop 1")
                A("s_endpgm")
            A(f"s_cmp_eq_u32 s3, 0\ns_cbranch_scc1 L_st\ns_cmp_eq_u32 s3, {self.redw}\ns_cbranch_scc0 L_end\ns_add_u32 s8, s8, 96\nL_st:")
            A("s_mov_b64 exec, 1")
            for k in range(12):
                A(f"v_mov_b32 v8, s{16+2*k}\nv_mov_b32 v9, s{17+2*k}\nbuffer_store_dwordx2 v[8:9], off, {sr(STS)}, s8 offset:{8*k}\ns_nop 1")
        A("L_end:\ns_endpgm")

    def init1(self):
        A = self.A
        for i in range(5): self.unpack(32+2*i, 33+2*i, 56+i)
        self.silu(list(range(32, 42)), list(range(44, 54)))
        A(f"v_add_u32 v14, {L_ACT}, v7")
        for i in range(5):
            A(f"v_cvt_pk_bf16_f32 v{56+i}, v{32+2*i}, v{33+2*i}")
            A(f"ds_write_b32 v14, v{56+i} offset:{i*2048}")
        A("s_sub_u32 s8, s91, 20\ns_cmp_lt_u32 s8, 20\ns_cbranch_scc0 L_c_a")
        A("s_call_b64 s[12:13], F_ln")
        for i in range(5): A(f"ds_write_b32 v14, v{24+i} offset:{L_XN - L_ACT + i*2048}")
    def subs(self):
        A = self.A
        self.f_red()
        A("F_ln:")
        for i in range(5): self.unpack(32+2*i, 33+2*i, 24+i)
        A("v_readfirstlane_b32 s8, v32\ns_nop 1")
        NEG = "op_sel_hi:[1,0] neg_lo:[0,1] neg_hi:[0,1]"
        for i in range(5): self.pk("add", 42+2*i, 32+2*i, "s[8:9]", NEG)
        self.pk("add", 52, 42, "v[44:45]"); self.pk("mul", 54, 42, "v[42:43]")
        for i in range(1, 5):
            if i > 1: self.pk("add", 52, 52, f"v[{42+2*i}:{43+2*i}]")
            A(f"v_pk_fma_f32 v[54:55], v[{42+2*i}:{43+2*i}], v[{42+2*i}:{43+2*i}], v[54:55]")
        A("v_add_f32 v52, v52, v53\nv_add_f32 v53, v54, v55\ns_nop 0")
        for c in (f"row_ror:1 {DPPF}", f"row_ror:2 {DPPF}", f"row_ror:4 {DPPF}", f"row_ror:8 {DPPF}",
                  "row_bcast:15 row_mask:0xa bank_mask:0xf", "row_bcast:31 row_mask:0xc bank_mask:0xf"):
            A(f"v_add_f32_dpp v52, v52, v52 {c}\nv_add_f32_dpp v53, v53, v53 {c}\ns_nop 0")
        A(f"""
        v_readlane_b32 s9, v52, 63
        v_readlane_b32 s10, v53, 63
        v_mov_b32 v54, {hex(INV640)}
        s_nop 0
        v_mul_f32 v52, s9, v54
        v_mul_f32 v53, s10, v54
        v_fma_f32 v53, -v52, v52, v53
        v_add_f32 v52, s8, v52
        v_max_f32 v53, 0, v53
        v_cvt_pk_bf16_f32 v54, v52, v53
        v_lshlrev_b32 v52, 16, v54
        v_and_b32 v54, 0xffff0000, v54
        v_add_f32 v54, {hex(EPS)}, v54
        v_cvt_pk_bf16_f32 v54, v54, v54
        v_and_b32 v54, 0xffff0000, v54
        v_sqrt_f32 v54, v54
        """)
        for i in range(5): self.pk("add", 32+2*i, 32+2*i, "v[52:53]", NEG)
        A("v_cvt_pk_bf16_f32 v54, v54, v54\nv_and_b32 v54, 0xffff0000, v54\nv_rcp_f32 v54, v54")
        for i in range(5): A(f"v_cvt_pk_bf16_f32 v{24+i}, v{32+2*i}, v{33+2*i}")
        for i in range(5): self.unpack(32+2*i, 33+2*i, 24+i)
        for i in range(5): self.pk("mul", 32+2*i, 32+2*i, "v[54:55]", "op_sel_hi:[1,0]")
        for i in range(5): A(f"v_cvt_pk_bf16_f32 v{24+i}, v{32+2*i}, v{33+2*i}")
        A("s_setpc_b64 s[12:13]")

if __name__ == "__main__":
    ap = argparse.ArgumentParser()
    ap.add_argument("-o", default="k.s"); ap.add_argument("--stamps", action="store_true")
    ap.add_argument("--depth", type=int, default=4)
    ap.add_argument("--kv", default="nt"); ap.add_argument("--wo", default=""); ap.add_argument("--tile", default="nt")
    ap.add_argument("--d0", type=int, default=2); ap.add_argument("--n0", type=int, default=16); ap.add_argument("--hlate", action="store_true")
    ap.add_argument("--nm", type=int, default=3)
    ap.add_argument("--exp", type=int, default=0)
    ap.add_argument("--diag", type=int, default=0)
    ap.add_argument("--tearly", action="store_true")
    ap.add_argument("--x", default="")
    ap.add_argument("--s1", type=int, default=2); ap.add_argument("--s2", type=int, default=2); ap.add_argument("--probe", action="store_true")
    ap.add_argument("--w2", type=int, default=0)
    ap.add_argument("--te", type=int, default=3); ap.add_argument("--w1", default=""); ap.add_argument("--oprobe", action="store_true")
    ap.add_argument("--ism", type=int, default=18); ap.add_argument("--sys", action="store_true")
    ap.add_argument("--nl", type=int, default=13)
    ap.add_argument("--d1", type=int, default=4)
    ap.add_argument("--wa", type=int, default=0); ap.add_argument("--w3", type=int, default=0)
    ap.add_argument("--sr", type=int, default=0); ap.add_argument("--sx", type=int, default=0); ap.add_argument("--wop", type=int, default=0)
    ap.add_argument("--wx", type=int, default=20)
    ap.add_argument("--nref", type=int, default=100); ap.add_argument("--dl", type=int, default=3)
    ap.add_argument("--par", type=lambda x: int(x, 0), default=0); ap.add_argument("--pat", default="4"); ap.add_argument("--npat", type=int, default=36)
    ap.add_argument("--prio", type=int, default=0)
    ap.add_argument("--mdeep", action="store_true")
    ap.add_argument("--gran", type=int, default=1); ap.add_argument("--rot", type=int, default=0)
    ap.add_argument("--fix", type=int, default=0)
    ap.add_argument("--fixwg", type=int, default=-1)
    ap.add_argument("--chk", type=int, default=3)
    ap.add_argument("--nfree", type=int, default=8); ap.add_argument("--nclr", type=int, default=8)
    ap.add_argument("--nopf", action="store_true"); ap.add_argument("--d2", type=int, default=8)
    a = ap.parse_args()
    txt = (G(stamps=a.stamps, depth=a.depth, kvf=a.kv, wof=a.wo, tf=a.tile, codepf=not a.nopf, d2=a.d2, d0=a.d0, n0=a.n0, hlate=a.hlate, nm=a.nm, nfree=a.nfree, nclr=a.nclr, exp=a.exp, chk=a.chk, fixwg=a.fixwg, fix=a.fix, gran=a.gran, rot=a.rot, mdeep=a.mdeep, prio=a.prio, par=a.par, pat=[int(c) for c in a.pat], npat=a.npat, nref=a.nref, dl=a.dl, wx=a.wx, sr=a.sr, sx=a.sx, wo_=a.wop, w1=a.wa, w3=a.w3, d1=a.d1, nl=a.nl, ism=a.ism, te=a.te, w1f=a.w1, oprobe=a.oprobe, w2=a.w2, s1=a.s1, s2=a.s2, probe=a.probe, x=a.x, tlate=not a.tearly, diag=a.diag, pad=22528).gen())
    if a.sys: txt = "\n".join((l + " sc0" if (l.rstrip().endswith("sc1") and "atomic" not in l) else l) for l in txt.split("\n")).replace("sc1 sc0", "sc0 sc1")
    open(a.o, "w").write(txt)
```

```python
import argparse
NAME = "adaLN_cond__sliding_block_cached__dense_activation_silu__decode"

WS_MOD  = 0x00000
WS_FLG  = 61440
WS_FLG2 = 62464
NCLR    = 8
WS_X1   = 0x20000
WS_O    = 0x30000
WS_AP   = 0x60000
WS_QP   = 0x100000
WS_OP   = 0x180000
WS_END  = WS_OP + 27*20480
STAMP_OFF = 0x20000000
L_Q, L_SM, L_FL = 0, 256, 384
L_ACT, L_XN, L_TA = 1024, 11264, 21504
L_KH  = 62464
L_W1  = L_TA
L_W2  = L_W1 + 81920
L_WO  = L_W2
L_G1  = L_W2 + 32768
L_TB  = L_G1
L_BN  = L_G1 + 16384
L_END = L_BN + 2048
L_R1  = L_XN
assert L_KH + 35*1024 <= L_WO and L_END <= 163840
LOG2E, NLOG2E, SCALE, INV640, EPS = 0x3fb8aa3b, 0xbfb8aa3b, 0x3db504f3, 0x3acccccd, 0x3727c5ac
K, V, WS, WO, TA, TB, X, C, OUT, DBG, T0 = 44, 48, 52, 56, 60, 64, 68, 72, 76, 80, 92
KH = C
STS = 40
sr = lambda r: f"s[{r}:{r+3}]"
DPPF = "row_mask:0xf bank_mask:0xf"
MF = "v_mfma_f32_16x16x32_bf16"
q4 = lambda r: f"v[{r}:{r+3}]"
q2 = lambda r: f"v[{r}:{r+1}]"

class G:
    def __init__(self, a):
        self.L = []; self.lab = 0; self.a = a
    def A(self, s):
        for x in s.split("\n"):
            x = x.strip()
            if x: self.L.append(("" if x.endswith(":") else "    ") + x)
    def newlab(self, p="L"):
        self.lab += 1; return f"{p}_{self.lab}"
    def stamp(self, k, diag=0):
        if self.a.stamps and diag == self.a.diag: self.A(f"s_memrealtime s[{16+2*k}:{17+2*k}]")
    def srd(self, d, lo, hi, size):
        self.A(f"s_mov_b32 s{d}, {lo}\ns_mov_b32 s{d+1}, {hi}\ns_mov_b32 s{d+2}, {size}\ns_mov_b32 s{d+3}, 0x20000")
    def srdo(self, d, lo, hi, off, size):
        self.A(f"s_add_u32 s{d}, {lo}, {off}\ns_addc_u32 s{d+1}, {hi}, 0\ns_mov_b32 s{d+2}, {size}\ns_mov_b32 s{d+3}, 0x20000")
    def unpack(self, lo, hi, src):
        self.A(f"v_lshlrev_b32 v{lo}, 16, v{src}\nv_and_b32 v{hi}, 0xffff0000, v{src}")
    def pk(self, op, d, a, b, mods=""):
        self.A(f"v_pk_{op}_f32 {q2(d)}, {q2(a)}, {b} {mods}")
    def maxtree(self, dst, regs):
        regs = list(regs); A = self.A
        if len(regs) == 2:
            A(f"v_max_u32 v{dst}, v{regs[0]}, v{regs[1]}"); return
        A(f"v_max3_u32 v{dst}, v{regs[0]}, v{regs[1]}, v{regs[2]}"); regs = regs[3:]
        while len(regs) >= 2:
            A(f"v_max3_u32 v{dst}, v{dst}, v{regs[0]}, v{regs[1]}"); regs = regs[2:]
        if regs: A(f"v_max_u32 v{dst}, v{dst}, v{regs[0]}")
    def poll(self, loads, regs, tmp, code, first_loaded=False, sleep=1):
        A = self.A; regs = list(regs)
        lp = self.newlab("Lpoll"); ck = self.newlab("Lchk"); dn = self.newlab("Lpd")
        A(f"s_mov_b32 s14, {self.a.limit}")
        if first_loaded: A(f"s_branch {ck}")
        A(f"{lp}:")
        for l in loads: A(l)
        A("s_waitcnt vmcnt(0)")
        A(f"{ck}:")
        if len(regs) == 1: tmp = regs[0]
        else: self.maxtree(tmp, regs)
        A(f"v_cmp_eq_u32 vcc, -1, v{tmp}\ns_cbranch_vccz {dn}\ns_mov_b64 exec, vcc")
        if sleep: A(f"s_sleep {sleep}")
        A(f"s_sub_u32 s14, s14, 1\ns_cbranch_scc0 {lp}\ns_or_b32 s15, s15, {code}\n{dn}:\ns_mov_b64 exec, -1")
    def sleep(self, n):
        while n > 0:
            self.A(f"s_sleep {min(n, 120)}"); n -= 120
    def spin(self, off, target, code, vt=12, va=15):
        a = self.newlab("Lsp"); b = self.newlab("Lspd")
        self.A(f"""
        s_mov_b32 s14, {self.a.limit*8}
        {a}:
        ds_read_b32 v{vt}, v{va} offset:{off}
        s_waitcnt lgkmcnt(0)
        v_readfirstlane_b32 s8, v{vt}
        s_nop 0
        s_cmp_ge_u32 s8, {target}
        s_cbranch_scc1 {b}
        s_sleep 1
        s_sub_u32 s14, s14, 1
        s_cbranch_scc0 {a}
        s_or_b32 s15, s15, {code}
        {b}:
        """)
    def bump(self, off, vt=12, va=15):
        self.A(f"v_mov_b32 v{vt}, 1\ns_mov_b64 exec, 1\nds_add_u32 v{va}, v{vt} offset:{off}\ns_mov_b64 exec, -1")
    def silu(self, regs, tmps):
        A = self.A
        for r, t in zip(regs, tmps): A(f"v_mul_f32 v{t}, {hex(NLOG2E)}, v{r}")
        for t in tmps: A(f"v_exp_f32 v{t}, v{t}")
        A("s_nop 0")
        for t in tmps: A(f"v_add_f32 v{t}, 1.0, v{t}")
        for t in tmps: A(f"v_rcp_f32 v{t}, v{t}")
        A("s_nop 0")
        for r, t in zip(regs, tmps): A(f"v_mul_f32 v{r}, v{r}, v{t}")
    def store2(self, stores, cond_reg):
        a = self.newlab("Lwt"); b = self.newlab("Lsd")
        self.A(f"s_cbranch_scc0 {a}")
        for s in stores: self.A(s)
        self.A(f"s_branch {b}\n{a}:")
        for s in stores: self.A(s + " sc1")
        self.A(f"{b}:")
    def samexcd(self, reg):
        if self.a.nolocal: self.A("s_cmp_eq_u32 s3, 99")
        else: self.A(f"v_cmp_ne_u32 vcc, s97, v{reg}\ns_cmp_eq_u64 vcc, 0")

    def prologue(self):
        A = self.A; a = self.a
        self.L += [f"; @launch grid=(256,1,1) block=(512,1,1) lds={L_END}",
                   '.amdgcn_target "amdgcn-amd-amdhsa--gfx950"', ".text", f".globl {NAME}_kernel", ".p2align 8",
                   f".type {NAME}_kernel,@function", f"{NAME}_kernel:"]
        A("""
        s_cmp_ge_u32 s2, 256
        s_cbranch_scc1 L_end
        s_getpc_b64 s[100:101]
        s_load_dwordx16 s[16:31], s[0:1], 0
        s_load_dwordx8 s[32:39], s[0:1], 64
        s_load_dwordx2 s[40:41], s[0:1], 96
        """)
        if a.stamps: A("s_memrealtime s[42:43]")
        A(f"""
        v_lshrrev_b32 v1, 6, v0
        s_and_b32 s4, s2, 7
        v_readfirstlane_b32 s3, v1
        v_mul_u32_u24 v8, {a.pad//512}, v0
        global_load_dwordx4 v[24:27], v8, s[100:101] offset:-16
        v_and_b32 v1, 63, v0
        v_lshrrev_b32 v2, 4, v1
        v_and_b32 v3, 15, v1
        v_lshlrev_b32 v4, 6, v3
        v_lshl_add_u32 v4, v2, 4, v4
        v_lshlrev_b32 v5, 4, v1
        v_lshlrev_b32 v6, 2, v1
        v_and_b32 v13, 3, v1
        s_lshr_b32 s5, s2, 3
        s_lshl_b32 s6, s4, 2
        s_and_b32 s8, s5, 3
        s_add_u32 s6, s6, s8
        s_lshr_b32 s7, s5, 2
        s_lshl_b32 s8, s7, 5
        s_add_u32 s84, s8, s6
        s_lshl_b32 s14, s84, 20
        s_lshl_b32 s9, s3, 10
        s_add_u32 s14, s14, s9
        s_add_u32 s14, s14, 0xC0000
        s_mov_b32 s15, 0
        s_mul_i32 s89, s4, {a.rx}
        s_mul_i32 s9, s5, {a.ry}
        s_add_u32 s89, s89, s9
        s_lshl_b32 s89, s89, 13
        s_mul_i32 s97, s3, 1280
        s_and_b32 s8, s5, 15
        s_lshr_b32 s8, s8, 1
        s_lshl_b32 s9, s8, 3
        s_add_u32 s9, s9, s4
        s_lshl_b32 s91, s9, 1
        s_and_b32 s10, s5, 1
        s_add_u32 s91, s91, s10
        s_mul_i32 s11, s3, 5120
        s_add_u32 m0, s11, {L_TA}
        v_mov_b32 v15, {L_FL}
        v_mov_b32 v8, 0
        v_mov_b32 v9, 0
        v_mov_b32 v10, 0
        v_mov_b32 v11, 0
        ds_write_b128 v15, v[8:11]
        s_nop 1
        v_mov_b32 v8, -1
        v_mov_b32 v9, -1
        v_mov_b32 v10, -1
        v_mov_b32 v11, -1
        s_cmp_lt_u32 s5, 16
        s_cbranch_scc1 L_p_mod
        s_mov_b32 s85, 1
        v_lshrrev_b32 v12, 3, v1
        v_lshlrev_b32 v12, 13, v12
        v_and_b32 v14, 7, v1
        v_lshl_add_u32 v12, v14, 4, v12
        s_lshl_b32 s99, s4, 3
        s_add_u32 s99, s99, s8
        s_lshl_b32 s9, s99, 7
        s_mul_i32 s10, s10, {320*8192}
        s_add_u32 s9, s9, s10
        s_mov_b32 s11, {8*8192}
        s_waitcnt lgkmcnt(0)
        s_add_u32 s{T0}, s22, s9
        s_addc_u32 s{T0+1}, s23, 0
        s_sub_u32 s{T0+2}, {640*8192}, s9
        s_branch L_p_j
        L_p_mod:
        s_mov_b32 s85, 2
        v_lshrrev_b32 v12, 2, v1
        v_mul_u32_u24 v12, 7680, v12
        v_lshl_add_u32 v12, v13, 4, v12
        s_lshl_b32 s9, s91, 6
        s_mov_b32 s11, {16*7680}
        s_mov_b32 s99, 0
        s_waitcnt lgkmcnt(0)
        s_add_u32 s{T0}, s34, s9
        s_addc_u32 s{T0+1}, s35, 0
        s_sub_u32 s{T0+2}, {640*7680}, s9
        s_cmp_lt_u32 s91, 120
        s_cbranch_scc1 L_p_j
        s_mov_b32 s85, 8
        s_mov_b32 s{T0+2}, 0
        L_p_j:
        s_mov_b32 s{T0+3}, 0x20000
        """)
        self.srd(WS, "s40", "s41", hex(WS_END)); self.srd(DBG, "s38", "s39", 256)
        self.srd(X, "s16", "s17", 10240); self.srd(C, "s32", "s33", 10240)
        A(f"""
        s_lshl_b32 s87, s6, 3
        s_add_u32 s87, s87, s7
        s_cmp_eq_u32 s3, 0
        s_cbranch_scc0 L_p_nh
        s_setprio 3
        s_cmp_eq_u32 s85, 8
        s_cbranch_scc0 L_p_nc
        s_sub_u32 s8, s91, 120
        s_lshl_b32 s8, s8, 13
        s_add_u32 s9, s8, 4096
        """)
        for i in range(8):
            A(f"buffer_store_dwordx4 v[8:11], v5, {sr(WS)}, {'s8' if i < 4 else 's9'} offen offset:{(i%4)*1024} sc1")
        A(f"""
        s_waitcnt vmcnt(0)
        v_mov_b32 v14, 1
        s_mov_b64 exec, 1
        buffer_atomic_add v14, off, {sr(DBG)}, 0 sc1
        s_mov_b64 exec, -1
        L_p_nc:
        s_lshl_b32 s8, s87, 10
        s_add_u32 s8, s8, {hex(WS_QP)}
        buffer_store_dwordx4 v[8:11], v5, {sr(WS)}, s8 offen sc1
        L_p_nh:
        s_cmp_eq_u32 s85, 2
        s_cbranch_scc0 L_p_nxc
        """)
        for i in range(5): A(f"buffer_load_dword v{24+i}, v6, {sr(X)}, s97 offen offset:{i*256}")
        for i in range(5): A(f"buffer_load_dword v{56+i}, v6, {sr(C)}, s97 offen offset:{i*256}")
        A("L_p_nxc:\ns_mul_i32 s8, s3, s11\ns_mul_i32 s8, s8, 5")
        for u in range(5):
            A(f"buffer_load_dwordx4 v12, {sr(T0)}, s8 offen nt lds")
            if u < 4: A("s_add_u32 m0, m0, 1024\ns_add_u32 s8, s8, s11")
        self.srdo(K, "s18", "s19", "s14", 0x40000 - 7*1024)
        A("s_waitcnt lgkmcnt(0)\ns_barrier")

    def setup2(self):
        A = self.A
        self.srdo(V, "s20", "s21", "s14", 0x40000 - 7*1024)
        A(f"""
        s_sub_i32 s98, s7, 3
        s_max_i32 s9, s98, 0
        s_lshl_b32 s9, s9, 8
        s_mul_i32 s8, s6, {128*1280}
        s_add_u32 s8, s8, s9
        s_add_u32 s{WO}, s24, s8
        s_addc_u32 s{WO+1}, s25, 0
        s_sub_u32 s{WO+2}, {128*1280}, s9
        s_mov_b32 s{WO+3}, 0x20000
        """)
        self.srd(OUT, "s36", "s37", 10240)
        A("s_lshl_b32 s8, s84, 20\ns_add_u32 s8, s8, 0xC0000")
        self.srdo(KH, "s18", "s19", "s8", "0x40000")
        A(f"""
        s_mul_i32 s8, s5, 86
        s_lshr_b32 s8, s8, 8
        s_mul_i32 s9, s8, 3
        s_sub_u32 s93, s5, s9
        s_lshl_b32 s8, s8, 3
        s_add_u32 s8, s8, s4
        s_lshl_b32 s10, s8, 7
        s_add_u32 s{TA}, s28, s10
        s_addc_u32 s{TA+1}, s29, 0
        s_sub_u32 s{TA+2}, {640*3456}, s10
        s_mov_b32 s{TA+3}, 0x20000
        s_mul_i32 s10, s8, {64*1280}
        s_lshl_b32 s11, s93, 9
        s_add_u32 s10, s10, s11
        s_add_u32 s{TB}, s30, s10
        s_addc_u32 s{TB+1}, s31, 0
        s_sub_u32 s{TB+2}, {64*1280}, s11
        s_mov_b32 s{TB+3}, 0x20000
        s_mul_i32 s101, s8, 20480
        s_lshl_b32 s11, s93, 13
        s_add_u32 s101, s101, s11
        s_add_u32 s101, s101, {hex(WS_OP)}
        s_cmp_lt_u32 s8, 27
        s_cselect_b32 s100, 1, 0
        s_sub_u32 s96, s5, 16
        s_cmp_lt_u32 s96, 10
        s_cselect_b32 s100, 2, s100
        s_lshl_b32 s96, s96, 1
        s_and_b32 s8, s3, 1
        s_add_u32 s96, s96, s8
        s_lshl_b32 s11, s96, 7
        s_mul_i32 s90, s4, 2560
        s_add_u32 s90, s90, s11
        s_getreg_b32 s97, hwreg(HW_REG_XCC_ID)
        s_and_b32 s97, s97, 15
        s_lshl_b32 s10, s3, 6
        v_lshlrev_b32 v7, 9, v2
        v_lshl_add_u32 v7, v3, 2, v7
        v_add_u32 v7, s10, v7
        v_mul_u32_u24 v0, 1280, v2
        v_lshl_add_u32 v0, v3, 4, v0
        v_and_b32 v8, 1, v3
        v_lshlrev_b32 v8, 4, v8
        v_mov_b32 v9, 0xffff
        v_lshlrev_b32 v9, v8, v9
        v_lshrrev_b32 v8, 1, v3
        """)
        for r in range(4):
            A(f"v_cmp_eq_u32 vcc, {r}, v8\ns_nop 1\nv_cndmask_b32 v{16+r}, 0, v9, vcc")
        if self.a.stamps: A("s_mov_b32 s16, s42\ns_mov_b32 s17, s43")

    def init1(self):
        A = self.A
        for i in range(5): self.unpack(32+2*i, 33+2*i, 56+i)
        self.silu(list(range(32, 42)), list(range(44, 54)))
        for i in range(5):
            A(f"v_cvt_pk_bf16_f32 v{56+i}, v{32+2*i}, v{33+2*i}")
            A(f"ds_write_b32 v7, v{56+i} offset:{L_ACT + i*2048}")
        A("s_sub_u32 s8, s91, 20\ns_cmp_lt_u32 s8, 20\ns_cbranch_scc0 L_c_a")
        A("s_call_b64 s[12:13], F_ln")
        for i in range(5): A(f"ds_write_b32 v7, v{24+i} offset:{L_XN + i*2048}")

    def helper(self, vload):
        A = self.A; a = self.a
        AF = lambda k, nt: (64 + 4*(k*4+nt)) if k < 8 else (208 + 4*((k-8)*4+nt))
        A(f"L_helper:\ns_waitcnt vmcnt(0)\nbuffer_load_dword v12, off, {sr(DBG)}, 0 sc1")
        self.spin(4, 7, 256, vt=14)
        self.stamp(9)
        A(f"""
        v_lshrrev_b32 v8, 2, v3
        s_cmp_eq_u32 s85, 2
        s_cbranch_scc1 L_h_mod
        v_lshlrev_b32 v10, 10, v2
        v_lshl_add_u32 v10, v8, 7, v10
        v_lshl_add_u32 v10, v13, 3, v10
        """)
        for k in range(10):
            for nt in range(4):
                r = AF(k, nt)
                A(f"ds_read_b64_tr_b16 {q2(r)}, v10 offset:{L_TA + k*4096 + nt*32}")
                A(f"ds_read_b64_tr_b16 {q2(r+2)}, v10 offset:{L_TA + k*4096 + nt*32 + 512}")
        A(f"""
        s_branch L_h_cnt
        L_h_mod:
        v_lshlrev_b32 v10, 9, v2
        v_lshl_add_u32 v10, v8, 6, v10
        v_lshl_add_u32 v10, v13, 3, v10
        """)
        def rd(i):
            A(f"ds_read_b128 {q4(24+4*i)}, v4 offset:{L_ACT + i*1024}")
            for par in range(2):
                for nt in range(2):
                    r = 64 + 4*((2*i+par)*2+nt)
                    A(f"ds_read_b64_tr_b16 {q2(r)}, v10 offset:{L_TA + (2*i+par)*2048 + nt*32}")
                    A(f"ds_read_b64_tr_b16 {q2(r+2)}, v10 offset:{L_TA + (2*i+par)*2048 + nt*32 + 256}")
        if a.stamps: A("s_waitcnt lgkmcnt(0)")
        rd(0)
        for i in range(10):
            if i < 9:
                rd(i+1); A("s_waitcnt lgkmcnt(9)")
            else: A("s_waitcnt lgkmcnt(0)")
            for par in range(2):
                for nt in range(2):
                    r = 64 + 4*((2*i+par)*2+nt); a_ = 224 + 8*par + 4*nt
                    A(f"{MF} {q4(a_)}, {q4(r)}, {q4(24+4*i)}, {'0' if i == 0 else q4(a_)}")
        A(f"""
        v_and_b32 v8, 7, v3
        v_lshrrev_b32 v9, 3, v3
        v_lshlrev_b32 v11, 6, v8
        v_lshl_add_u32 v11, v9, 5, v11
        v_lshl_add_u32 v11, v2, 3, v11
        s_lshl_b32 s9, s91, 9
        s_add_u32 s8, s9, {L_XN - 20*512}
        v_add_u32 v14, s8, v11
        s_nop 1
        """)
        for r in range(4):
            A(f"v_add_f32_dpp v{24+r}, v{232+r}, v{224+r} row_ror:8 row_mask:0xf bank_mask:0x3")
            A(f"v_add_f32_dpp v{24+r}, v{228+r}, v{236+r} row_ror:8 row_mask:0xf bank_mask:0xc")
        A("v_cvt_pk_bf16_f32 v40, v24, v25\nv_cvt_pk_bf16_f32 v41, v26, v27")
        A("s_sub_u32 s8, s91, 20\ns_cmp_lt_u32 s8, 20\ns_cbranch_scc0 L_h_pub")
        A("ds_read_b64 v[42:43], v14")
        for j in range(2): self.unpack(24+2*j, 25+2*j, 40+j)
        for r in range(4): A(f"v_add_f32 v{24+r}, 1.0, v{24+r}")
        for j in range(2): A(f"v_cvt_pk_bf16_f32 v{40+j}, v{24+2*j}, v{25+2*j}")
        for j in range(2): self.unpack(24+2*j, 25+2*j, 40+j)
        A("s_waitcnt lgkmcnt(0)")
        for j in range(2): self.unpack(28+2*j, 29+2*j, 42+j)
        for r in range(4): A(f"v_mul_f32 v{24+r}, v{24+r}, v{28+r}")
        for j in range(2): A(f"v_cvt_pk_bf16_f32 v{40+j}, v{24+2*j}, v{25+2*j}")
        A(f"""
        L_h_pub:
        v_min_u32 v40, -2, v40
        v_min_u32 v41, -2, v41
        v_add_u32 v11, {L_BN}, v11
        v_add_u32 v14, {L_BN}, v5
        ds_write_b64 v11, v[40:41]
        ds_read_b128 v[40:43], v14
        L_h_cnt:
        s_mov_b32 s14, {a.limit}
        L_wc:
        s_waitcnt vmcnt(0)
        v_readfirstlane_b32 s8, v12
        s_nop 0
        s_cmp_ge_u32 s8, {NCLR}
        s_cbranch_scc1 L_wcd
        s_sleep 2
        buffer_load_dword v12, off, {sr(DBG)}, 0 sc1
        s_sub_u32 s14, s14, 1
        s_cbranch_scc0 L_wc
        s_or_b32 s15, s15, 1
        L_wcd:
        s_cmp_eq_u32 s85, 2
        s_cbranch_scc0 L_h_np
        s_mov_b32 exec_hi, 0
        s_waitcnt lgkmcnt(0)
        buffer_store_dwordx4 v[40:43], v5, {sr(WS)}, s9 offen sc1
        s_mov_b64 exec, -1
        L_h_np:
        s_lshl_b32 s8, s87, 2
        s_add_u32 s8, s8, {WS_FLG}
        v_mov_b32 v12, s97
        v_mov_b32 v192, -1
        v_mov_b32 v193, -1
        v_mov_b32 v194, -1
        v_mov_b32 v195, -1
        s_mov_b64 exec, 1
        buffer_store_dword v12, off, {sr(WS)}, s8 sc1
        s_lshl_b32 s8, s87, 8
        s_add_u32 s8, s8, {hex(WS_O)}
        s_mov_b64 exec, 0xffff
        buffer_store_dwordx4 v[192:195], v5, {sr(WS)}, s8 offen sc1
        s_cmp_eq_u32 s100, 2
        s_cbranch_scc0 L_h_nx
        s_lshr_b32 s8, s90, 1
        s_add_u32 s8, s8, {hex(WS_X1)}
        s_mov_b64 exec, 0xff
        buffer_store_dwordx4 v[192:195], v5, {sr(WS)}, s8 offen sc1
        L_h_nx:
        s_mul_i32 s8, s84, 2560
        s_add_u32 s8, s8, {hex(WS_AP)}
        s_mov_b32 exec_lo, -1
        buffer_store_dwordx4 v[192:195], v5, {sr(WS)}, s8 offen offset:2048 sc1
        s_mov_b64 exec, -1
        buffer_store_dwordx4 v[192:195], v5, {sr(WS)}, s8 offen sc1
        buffer_store_dwordx4 v[192:195], v5, {sr(WS)}, s8 offen offset:1024 sc1
        s_cmp_eq_u32 s100, 1
        s_cbranch_scc0 L_h_no
        """)
        for i in range(4): A(f"buffer_store_dwordx4 v[192:195], v5, {sr(WS)}, s101 offen offset:{i*1024} sc1")
        A("s_cmp_eq_u32 s93, 2\ns_cbranch_scc1 L_h_no\ns_add_u32 s8, s101, 4096")
        for i in range(4): A(f"buffer_store_dwordx4 v[192:195], v5, {sr(WS)}, s8 offen offset:{i*1024} sc1")
        A("L_h_no:")
        self.stamp(1)
        A("s_bitcmp1_b32 s85, 0\ns_cbranch_scc0 L_h_getq0")
        A(f"""
        v_and_b32 v8, 7, v3
        v_lshrrev_b32 v9, 3, v3
        v_mul_u32_u24 v12, 10240, v9
        v_lshl_add_u32 v12, v8, 6, v12
        v_lshl_add_u32 v12, v2, 4, v12
        v_lshlrev_b32 v14, 2, v8
        v_lshlrev_b32 v196, 8, v8
        v_lshl_add_u32 v196, v9, 6, v196
        v_lshl_add_u32 v196, v2, 4, v196
        v_add_u32 v196, {L_BN}, v196
        v_add_u32 v197, {L_BN}, v5
        v_lshlrev_b32 v198, 10, v2
        v_lshl_add_u32 v198, v3, 4, v198
        s_and_b32 s10, s5, 1
        s_mul_i32 s8, s10, 5120
        s_add_u32 s42, s8, 2560
        s_lshr_b32 s11, s99, 1
        s_lshl_b32 s9, s11, 5
        s_add_u32 s9, s9, {WS_FLG}
        s_lshl_b32 s11, s11, 13
        s_lshl_b32 s10, s10, 9
        s_add_u32 s11, s11, s10
        s_and_b32 s10, s99, 1
        s_lshl_b32 s10, s10, 8
        s_add_u32 s11, s11, s10
        s_add_u32 s11, s11, {hex(WS_QP)}
        s_add_u32 s10, s11, 4096
        """)
        loads = [f"buffer_load_dwordx4 {q4(24+4*k)}, v12, {sr(WS)}, {'s8' if k < 5 else 's42'} offen offset:{(k%5)*512} sc1" for k in range(10)]
        self.sleep(a.wa)
        self.poll(loads, range(24, 64), 241, 2, sleep=a.s1)
        fl = f"buffer_load_dword v12, v14, {sr(WS)}, s9 offen sc1"
        A(fl)
        self.stamp(2)
        A("v_cmp_lt_u32 vcc, 7, v3\ns_waitcnt lgkmcnt(0)")
        ACC = [8, 20, 248, 252]
        for k in range(11):
            if k < 10:
                for j in (4*k, 4*k+2):
                    self.unpack(240, 241, 24+j); self.unpack(242, 243, 25+j)
                    for r in range(4): A(f"v_add_f32_dpp v{244+r}, v{240+r}, v{240+r} row_ror:8 {DPPF}")
                    A(f"v_cvt_pk_bf16_f32 v{24+j}, v244, v245\nv_cvt_pk_bf16_f32 v{25+j}, v246, v247")
            if k >= 1:
                for nt in range(4):
                    A(f"{MF} {q4(ACC[nt])}, {q4(AF(k-1, nt))}, {q4(24+4*(k-1))}, {'0' if k == 1 else q4(ACC[nt])}")
        A("s_nop 5")
        for j in range(2):
            for r in range(4): A(f"v_cndmask_b32 v{24+4*j+r}, v{ACC[2*j]+r}, v{ACC[2*j+1]+r}, vcc")
            for r in range(4): A(f"v_min_u32 v{24+4*j+r}, -2, v{24+4*j+r}")
        A("""
        ds_write_b128 v196, v[24:27]
        ds_write_b128 v196, v[28:31] offset:128
        ds_read_b128 v[32:35], v197
        ds_read_b128 v[36:39], v197 offset:1024
        s_waitcnt vmcnt(0)
        """)
        self.poll([fl], [12], 241, 2, first_loaded=True, sleep=4)
        self.samexcd(12)
        A("s_waitcnt lgkmcnt(0)")
        self.store2([f"buffer_store_dwordx4 v[32:35], v198, {sr(WS)}, s11 offen", f"buffer_store_dwordx4 v[36:39], v198, {sr(WS)}, s10 offen"], 12)
        self.stamp(8)
        self.sleep(a.w3)
        A("s_branch L_h_getq\nL_h_getq0:")
        self.sleep(a.w2)
        A(f"""
        L_h_getq:
        v_lshlrev_b32 v12, 3, v1
        s_lshl_b32 s8, s87, 10
        s_add_u32 s8, s8, {hex(WS_QP)}
        """)
        loads = [f"buffer_load_dwordx2 {q2(40+2*k)}, v12, {sr(WS)}, s8 offen offset:{k*512} sc1" for k in range(2)]
        self.poll(loads, range(40, 44), 45, 4, sleep=a.s2)
        A(f"""
        v_add_f32 v32, v40, v42
        v_add_f32 v33, v41, v43
        s_lshl_b32 s8, s2, 2
        v_cvt_pk_bf16_f32 v32, v32, v33
        ds_write_b32 v6, v32 offset:{L_Q}
        s_add_u32 s8, s8, {WS_FLG2}
        s_mov_b64 exec, 1
        buffer_store_dword v1, off, {sr(WS)}, s8 sc1
        s_mov_b64 exec, -1
        s_waitcnt lgkmcnt(0)
        ds_write_b32 v15, v15
        """)
        self.stamp(3)
        A(f"""
        s_setprio 0
        s_cmp_lt_i32 s98, 0
        s_cbranch_scc1 L_h_nwo
        s_mov_b32 m0, {L_WO}
        s_mov_b32 s8, 0
        L_h_wo:
        s_waitcnt vmcnt({a.dh-1})
        buffer_load_dwordx4 v0, {sr(WO)}, s8 offen nt lds
        s_add_u32 m0, m0, 1024
        s_add_u32 s8, s8, 5120
        s_cmp_lt_u32 s8, {32*5120}
        s_cbranch_scc1 L_h_wo
        L_h_nwo:
        """)
        if a.pf:
            A("s_cmp_eq_u32 s100, 1\ns_cbranch_scc0 L_h_npf")
            self.w1addr(8, 9, 10)
            A(f"s_mov_b32 m0, {L_W1}\ns_mov_b32 s8, 0")
            self.w1loop("L_h_pf", 8, 9, "s8", L_W1 + a.pf*2048)
            A("L_h_npf:")
        for i in range(16):
            A(f"s_waitcnt vmcnt({a.dh-1})")
            vload(i)
        self.spin(8, 7, 2048)
        A(f"v_add_u32 v8, {L_KH}, v5")
        for i in range(32): A(f"ds_read_b128 {q4(64+4*i)}, v8 offset:{i*1024}")

    def w1addr(self, ve, vo, vt):
        self.A(f"""
        v_lshrrev_b32 v{vo}, 3, v1
        v_mul_u32_u24 v{vo}, 3456, v{vo}
        v_and_b32 v{vt}, 1, v2
        v_lshlrev_b32 v{vt}, 1, v{vt}
        v_and_b32 v{ve}, 7, v1
        v_xor_b32 v{ve}, v{ve}, v{vt}
        v_xor_b32 v{vt}, 4, v{ve}
        v_lshl_add_u32 v{ve}, v{ve}, 4, v{vo}
        v_lshl_add_u32 v{vo}, v{vt}, 4, v{vo}
        v_add_u32 v{vo}, {8*3456 - 1024}, v{vo}
        """)
    def w1loop(self, lab, ve, vo, so, end):
        self.A(f"""
        {lab}:
        buffer_load_dwordx4 v{ve}, {sr(TA)}, {so} offen lds
        buffer_load_dwordx4 v{vo}, {sr(TA)}, {so} offen offset:1024 lds
        s_add_u32 m0, m0, 2048
        s_add_u32 {so}, {so}, {16*3456}
        s_cmp_lt_u32 m0, {end}
        s_cbranch_scc1 {lab}
        """)
    def gen(self):
        A = self.A; a = self.a
        d, d0, nm = a.depth, a.d0, a.nm
        KR = 64
        VR = [192 + 4*i for i in range(16)] + [64 + 4*i for i in range(16)]
        so = lambda i: (f"s_add_u32 s86, s89, {i*8192}\ns_and_b32 s86, s86, 0x3ffff" if (a.rx or a.ry) else f"s_mov_b32 s86, {i*8192}")
        def kload(i): A(f"{so(i)}\nbuffer_load_dwordx4 {q4(KR+4*i)}, v4, {sr(K)}, s86 offen nt")
        def vload(i): A(f"{so(i)}\nbuffer_load_dwordx4 {q4(VR[i])}, v5, {sr(V)}, s86 offen nt")
        def hload(u):
            A(f"s_add_u32 s8, s88, {7*u*1024}\ns_add_u32 m0, s8, {L_KH}\ns_lshl_b32 s8, s8, 3")
            if a.rx or a.ry:
                A("s_add_u32 s9, s8, s89\ns_and_b32 s9, s9, 0x3ffff\ns_cmp_lt_u32 s8, 0x40000\ns_cselect_b32 s8, s9, s8")
            A(f"buffer_load_dwordx4 v4, {sr(KH)}, s8 offen nt lds")
        kseq = []
        for i in range(32):
            kseq.append(("K", i))
            if i % 6 == 5 and i//6 < 5: kseq.append(("H", i//6))
        for i in range(16): kseq.append(("V", i))
        def issue(op): {"K": kload, "V": vload, "H": hload}[op[0]](op[1])

        self.prologue()
        assert all(op[0] == "K" for op in kseq[:nm])
        A("s_cmp_eq_u32 s3, 0\ns_cbranch_scc1 L_c_j")
        for i in range(nm): kload(i)
        A("L_c_j:")
        self.setup2()
        A(f"s_cmp_eq_u32 s85, 2\ns_cbranch_scc0 L_c_a\ns_waitcnt vmcnt({5+nm})")
        A("s_cmp_eq_u32 s3, 0\ns_cbranch_scc0 L_c_i1\ns_waitcnt vmcnt(5)\nL_c_i1:")
        self.init1()
        A("L_c_a:\ns_cmp_eq_u32 s3, 0\ns_cbranch_scc1 L_helper")
        A(f"s_lshl_b32 s88, s3, 10\ns_sub_u32 s88, s88, 1024\ns_mov_b64 vcc, -1\ns_waitcnt vmcnt({nm}) lgkmcnt(0)")
        self.bump(4)
        if a.par: A(f"s_bitcmp1_b32 {a.par}, s97\ns_cselect_b32 s92, -1, 1")
        hdone = kseq.index(("H", 4)) + d
        assert hdone < len(kseq)
        for n, op in enumerate(kseq):
            if n < nm: continue
            if n < a.n0 or d == d0: A(f"s_waitcnt vmcnt({d0-1})")
            else:
                if (n - a.n0) % a.chk == 0:
                    if n > a.n0: A("s_waitcnt lgkmcnt(0)\n" + ("v_cmp_gt_u32 vcc, s92, v14" if a.par else "v_cmp_eq_u32 vcc, 0, v14"))
                    A("ds_read_b32 v14, v15")
                lb = self.newlab("Ld")
                A(f"s_cbranch_vccz {lb}\ns_waitcnt vmcnt({d0-1})\n{lb}:\ns_waitcnt vmcnt({d-1})")
            if n == hdone: self.bump(8)
            issue(op)
            if n in (16, 32, 48): self.stamp(n//16)
        self.spin(0, 1, 1024)
        A("s_branch L_qk")
        self.helper(vload)
        A("L_qk:")
        A(f"""
        v_lshlrev_b32 v8, 6, v13
        v_lshl_add_u32 v8, v2, 4, v8
        ds_read_b128 v[24:27], v8 offset:{L_Q}
        v_lshrrev_b32 v9, 2, v3
        s_waitcnt lgkmcnt(0)
        """)
        for t in range(4):
            A(f"v_cmp_eq_u32 vcc, {t}, v9\ns_nop 1")
            for r in range(4): A(f"v_cndmask_b32 v{32+4*t+r}, 0, v{24+r}, vcc")
        A("s_waitcnt vmcnt(16)\ns_nop 0")
        for half in range(2):
            for gg in range(4):
                for t in range(4):
                    i = 16*half + 4*gg + t
                    A(f"{MF} {q4(48+4*gg)}, {q4(KR+4*i)}, {q4(32+4*t)}, {'0' if t == 0 else q4(48+4*gg)}")
            if half == 0:
                for i in range(16, 16 + a.d1): vload(i)
            A("s_nop 7")
            for j in range(4):
                for gg in range(4):
                    g = half*4 + gg
                    if j == 0: A(f"v_mov_b32_dpp v{24+g}, v{48+4*gg} quad_perm:[0,0,0,0] {DPPF}")
                    else: A(f"v_add_f32_dpp v{24+g}, v{48+4*gg+j}, v{24+g} quad_perm:[{j},{j},{j},{j}] {DPPF}")
            A("s_nop 1")
        self.stamp(4)
        self.softmax1()
        for i in range(16 + a.d1, 32):
            if i == a.ism: self.small_loads()
            ex = 2 if a.ism <= i < a.ism + a.d2 else 0
            if a.par:
                lb = self.newlab("Ld")
                A(f"s_bitcmp1_b32 {a.par}, s97\ns_cbranch_scc0 {lb}\ns_waitcnt vmcnt({d0-1})\n{lb}:")
            A(f"s_waitcnt vmcnt({a.d2-1+ex})")
            vload(i)
        assert 16 + a.d1 <= a.ism < 32 - a.d2
        self.stamp(5)
        self.softmax2()
        def abuild(i):
            for r in range(4):
                A(f"v_and_b32_dpp v{32+4*(i%2)+r}, v{24+i//4}, v{16+r} row_newbcast:{4*(i%4)} {DPPF}")
        abuild(0)
        for i in range(32):
            if i + 1 < 32: abuild(i+1)
            else: A("s_nop 1")
            if 31 - i < a.d2: A(f"s_waitcnt vmcnt({31-i})")
            A(f"{MF} v[20:23], {q4(32+4*(i%2))}, {q4(VR[i])}, {'0' if i == 0 else 'v[20:23]'}")
            if i == 31 - a.d2: self.tail_prep()
        self.tail1()
        self.reducer()
        self.mlp()
        self.finish()
        self.subs()
        L = self.L
        L.append(f".fill ({a.pad} - (. - {NAME}_kernel))/4, 4, 0xbf800000")
        L += ['.section .rodata,"a"', ".p2align 6", f".amdhsa_kernel {NAME}_kernel",
              "  .amdhsa_next_free_vgpr 256", "  .amdhsa_next_free_sgpr 102", "  .amdhsa_accum_offset 256",
              "  .amdhsa_group_segment_fixed_size 0", "  .amdhsa_kernarg_size 104", "  .amdhsa_user_sgpr_count 2",
              "  .amdhsa_user_sgpr_kernarg_segment_ptr 1", "  .amdhsa_system_sgpr_workgroup_id_x 1", ".end_amdhsa_kernel"]
        return "\n".join(L) + "\n"

    def softmax1(self):
        A = self.A
        A(f"s_mov_b32 s8, {hex(SCALE)}")
        for g in range(0, 8, 2):
            A(f"v_cvt_pk_bf16_f32 v8, v{24+g}, v{25+g}")
            self.unpack(24+g, 25+g, 8)
            A(f"v_mul_f32 v{24+g}, s8, v{24+g}\nv_mul_f32 v{25+g}, s8, v{25+g}")
            A(f"v_cvt_pk_bf16_f32 v8, v{24+g}, v{25+g}")
            self.unpack(24+g, 25+g, 8)
        def wred(op, sdst):
            for c in (f"row_ror:4 {DPPF}", f"row_ror:8 {DPPF}", "row_bcast:15 row_mask:0xa bank_mask:0xf", "row_bcast:31 row_mask:0xc bank_mask:0xf"):
                A(f"s_nop 1\n{op}_dpp v8, v8, v8 {c}")
            A(f"s_nop 1\nv_readlane_b32 {sdst}, v8, 63")
        A("v_max3_f32 v8, v24, v25, v26\nv_max3_f32 v8, v8, v27, v28\nv_max3_f32 v8, v8, v29, v30\nv_max_f32 v8, v8, v31")
        wred("v_max_f32", "s95")
        A(f"s_mov_b32 s8, {hex(LOG2E)}\ns_nop 1")
        for g in range(8): A(f"v_subrev_f32 v{24+g}, s95, v{24+g}")
        for g in range(8): A(f"v_mul_f32 v{24+g}, s8, v{24+g}")
        for g in range(8): A(f"v_exp_f32 v{24+g}, v{24+g}")
        A("""
        s_nop 0
        v_add_f32 v8, v24, v25
        v_add_f32 v9, v26, v27
        v_add_f32 v10, v28, v29
        v_add_f32 v11, v30, v31
        v_add_f32 v8, v8, v9
        v_add_f32 v10, v10, v11
        v_add_f32 v8, v8, v10
        """)
        wred("v_add_f32", "s10")
        A(f"""
        s_lshl_b32 s11, s3, 3
        v_mov_b32 v10, s95
        v_mov_b32 v9, s11
        v_mov_b32 v11, s10
        ds_write_b64 v9, v[10:11] offset:{L_SM}
        s_waitcnt lgkmcnt(0)
        """)
        self.bump(12)
    def softmax2(self):
        A = self.A
        self.spin(12, 8, 4096)
        A(f"""
        v_and_b32 v9, 7, v1
        v_lshlrev_b32 v9, 3, v9
        s_mov_b32 s8, {hex(LOG2E)}
        ds_read_b64 v[10:11], v9 offset:{L_SM}
        s_waitcnt lgkmcnt(0)
        v_max_f32_dpp v8, v10, v10 row_ror:4 {DPPF}
        s_nop 1
        v_max_f32_dpp v8, v8, v8 row_ror:2 {DPPF}
        s_nop 1
        v_max_f32_dpp v8, v8, v8 row_ror:1 {DPPF}
        v_sub_f32 v10, v10, v8
        v_sub_f32 v12, s95, v8
        v_mul_f32 v10, s8, v10
        v_mul_f32 v12, s8, v12
        v_exp_f32 v10, v10
        v_exp_f32 v12, v12
        s_nop 0
        v_mul_f32 v10, v10, v11
        s_nop 1
        v_add_f32_dpp v10, v10, v10 quad_perm:[1,0,3,2] {DPPF}
        s_nop 1
        v_add_f32_dpp v10, v10, v10 quad_perm:[2,3,0,1] {DPPF}
        s_nop 1
        v_add_f32_dpp v10, v10, v10 row_half_mirror {DPPF}
        v_rcp_f32 v10, v10
        s_nop 0
        v_mul_f32 v10, v10, v12
        """)
        for g in range(8): A(f"v_mul_f32 v{24+g}, v10, v{24+g}")
        for g in range(8): A(f"v_cvt_pk_bf16_f32 v{24+g}, v{24+g}, v{24+g}")
        A("s_nop 1")

    def flg(self): return f"s_mov_b32 s10, {WS_FLG2}\nbuffer_load_dwordx4 v[128:131], v5, {sr(WS)}, s10 offen sc1"
    def mlp_small(self):
        o = []
        for i in range(5): o.append(f"s_mov_b32 s9, {WS_MOD + 80*512 + i*2048}\nbuffer_load_dword v{133+i}, v7, {sr(WS)}, s9 offen sc1")
        for i in range(5): o.append(f"s_mov_b32 s9, {WS_MOD + 60*512 + i*2048}\nbuffer_load_dword v{138+i}, v7, {sr(WS)}, s9 offen sc1")
        return o
    def red_small(self):
        return [f"buffer_load_dword v143, v148, {sr(WS)}, s42 offen sc1", f"buffer_load_dword v144, v149, {sr(WS)}, s43 offen sc1"]
    def small_loads(self):
        A = self.A
        A(f"""
        v_and_b32 v146, 7, v1
        v_and_b32 v147, 1, v2
        v_lshlrev_b32 v147, 2, v147
        v_lshl_add_u32 v148, v146, 3, v147
        v_lshl_add_u32 v149, v146, 6, v147
        v_lshlrev_b32 v8, 2, v146
        s_lshl_b32 s9, s6, 5
        s_add_u32 s9, s9, {WS_FLG}
        buffer_load_dword v132, v8, {sr(WS)}, s9 offen sc1
        """)
        A(self.flg())

    def oloads(self): return [f"buffer_load_dwordx4 {q4(200+4*k)}, v42, {sr(WS)}, s89 offen offset:{k*64} sc1" for k in range(4)]
    def tail_prep(self):
        A = self.A
        A(f"""
        s_lshl_b32 s8, s3, 9
        v_lshlrev_b32 v40, 5, v3
        v_lshl_add_u32 v40, v2, 4, v40
        v_add_u32 v40, s8, v40
        v_lshlrev_b32 v41, 3, v1
        v_lshlrev_b32 v42, 8, v146
        v_lshl_add_u32 v42, v2, 4, v42
        s_lshl_b32 s8, s3, 8
        s_add_u32 s8, s8, {L_TB}
        v_add_u32 v43, s8, v41
        v_lshlrev_b32 v44, 4, v2
        v_add_u32 v44, s8, v44
        v_lshrrev_b32 v45, 3, v1
        v_mul_u32_u24 v45, {32*2560}, v45
        v_lshl_add_u32 v45, v146, 4, v45
        s_lshl_b32 s8, s3, 10
        s_add_u32 s8, s8, {L_TB + 2048}
        v_lshrrev_b32 v8, 3, v3
        v_lshlrev_b32 v48, 7, v146
        v_lshl_add_u32 v48, v8, 6, v48
        v_lshl_add_u32 v48, v2, 4, v48
        v_add_u32 v48, s8, v48
        v_add_u32 v49, s8, v5
        v_cmp_eq_u32 s[44:45], s7, v146
        s_lshl_b32 s88, s87, 8
        s_add_u32 s88, s88, {hex(WS_O)}
        s_lshl_b32 s89, s6, 11
        s_add_u32 s89, s89, {hex(WS_O)}
        s_mul_i32 s94, s6, 2560
        s_lshl_b32 s8, s98, 9
        s_add_u32 s94, s94, s8
        s_lshl_b32 s8, s3, 7
        s_add_u32 s94, s94, s8
        s_add_u32 s94, s94, {hex(WS_AP)}
        s_cmp_lt_i32 s98, 0
        s_cbranch_scc1 L_tp_done
        s_cmp_ge_u32 s3, 4
        s_cbranch_scc1 L_tp_done
        v_lshrrev_b32 v8, 2, v3
        v_lshl_add_u32 v8, v2, 3, v8
        v_lshlrev_b32 v8, 8, v8
        v_lshl_add_u32 v8, v13, 3, v8
        s_lshl_b32 s8, s3, 6
        s_add_u32 s8, s8, {L_WO}
        v_add_u32 v8, s8, v8
        """)
        for m in range(2):
            for k in range(4):
                r = 152 + 16*m + 4*k
                A(f"ds_read_b64_tr_b16 {q2(r)}, v8 offset:{k*8192 + m*32}")
                A(f"ds_read_b64_tr_b16 {q2(r+2)}, v8 offset:{k*8192 + m*32 + 1024}")
        self.poll([self.flg()], range(128, 132), 8, 8, first_loaded=True)
        for l in self.oloads(): A(l)
        A("L_tp_done:")

    def tail1(self):
        A = self.A; a = self.a
        A(f"""
        s_mov_b32 exec_hi, 0
        s_nop 6
        ds_write_b128 v40, v[20:23] offset:{L_R1}
        s_mov_b64 exec, -1
        s_waitcnt lgkmcnt(0)
        s_barrier
        """)
        self.stamp(6)
        A("""
        s_cmp_eq_u32 s3, 0
        s_cbranch_scc1 L_osum
        s_cmp_ge_u32 s3, 4
        s_cbranch_scc1 L_apdone
        s_cmp_lt_i32 s98, 0
        s_cbranch_scc1 L_apdone
        L_osum:
        s_mov_b32 exec_hi, 0
        """)
        if a.stamps: A("s_waitcnt lgkmcnt(0)")
        for j in range(8): A(f"ds_read_b128 {q4(64+4*j)}, v5 offset:{L_R1 + j*512}")
        for j in range(0, 8, 2):
            A(f"s_waitcnt lgkmcnt({6-j})")
            for r in (0, 2): self.pk("add", 64+4*j+r, 64+4*j+r, q2(68+4*j+r))
            if j == 2:
                for r in (0, 2): self.pk("add", 64+r, 64+r, q2(72+r))
        for r in (0, 2): self.pk("add", 80+r, 80+r, q2(88+r))
        for r in (0, 2): self.pk("add", 64+r, 64+r, q2(80+r))
        A("v_cvt_pk_bf16_f32 v46, v64, v65\nv_cvt_pk_bf16_f32 v47, v66, v67\nv_min_u32 v46, -2, v46\nv_min_u32 v47, -2, v47")
        A("s_cmp_eq_u32 s3, 0\ns_cbranch_scc0 L_opub")
        self.samexcd(132)
        self.store2([f"buffer_store_dwordx2 v[46:47], v41, {sr(WS)}, s88 offen"], 132)
        self.stamp(5)
        A("s_cmp_lt_i32 s98, 0\ns_cbranch_scc1 L_apd0\nL_opub:\nds_write_b64 v43, v[46:47]\ns_mov_b64 exec, s[44:45]")
        for k in range(4): A(f"ds_read_b128 {q4(200+4*k)}, v44 offset:{k*64}")
        A("s_mov_b64 exec, -1\ns_waitcnt lgkmcnt(0)")
        self.poll(self.oloads(), range(200, 216), 8, 512, first_loaded=True, sleep=a.so)
        for k in range(4):
            for m in range(2):
                A(f"{MF} {q4(80+4*m)}, {q4(152+16*m+4*k)}, {q4(200+4*k)}, {'0' if k == 0 else q4(80+4*m)}")
        A("v_cmp_lt_u32 vcc, 7, v3\ns_nop 6")
        for r in range(4): A(f"v_cndmask_b32 v{80+r}, v{80+r}, v{84+r}, vcc")
        A("ds_write_b128 v48, v[80:83]\nds_read_b128 v[84:87], v49\ns_waitcnt lgkmcnt(0)")
        for r in range(4): A(f"v_min_u32 v{84+r}, -2, v{84+r}")
        A(f"buffer_store_dwordx4 v[84:87], v45, {sr(WS)}, s94 offen sc1")
        A("L_apd0:\ns_mov_b64 exec, -1")
        A("L_apdone:")
        self.stamp(7)
        if a.notail: A("s_branch L_fin")
        A("s_cmp_eq_u32 s100, 1\ns_cbranch_scc1 L_mlp\ns_cmp_eq_u32 s100, 2\ns_cbranch_scc0 L_fin\ns_cmp_lt_u32 s3, 6\ns_cbranch_scc1 L_fin")

    def reducer(self):
        A = self.A; a = self.a
        A(f"""
        s_lshl_b32 s43, s96, 9
        s_lshl_b32 s9, s4, 6
        s_add_u32 s42, s43, s9
        s_add_u32 s42, s42, {WS_MOD + 40*512}
        s_lshl_b32 s9, s4, 3
        s_add_u32 s43, s43, s9
        s_add_u32 s43, s43, {WS_MOD + 100*512}
        s_lshr_b32 s9, s90, 1
        buffer_load_dword v145, v148, {sr(X)}, s9 offen
        """)
        for l in self.red_small(): A(l)
        A("s_waitcnt vmcnt(0)")
        self.poll([self.flg()] + self.red_small(), [143, 144, 128, 129, 130, 131], 8, 8, first_loaded=True)
        A(f"""
        v_lshrrev_b32 v8, 1, v2
        v_lshlrev_b32 v8, 4, v8
        v_sub_u32 v14, 16, v8
        v_lshlrev_b32 v200, v14, v143
        v_and_b32 v200, 0xffff0000, v200
        v_lshlrev_b32 v201, v14, v145
        v_and_b32 v201, 0xffff0000, v201
        v_lshrrev_b32 v9, 3, v1
        v_mul_u32_u24 v10, 2560, v9
        v_lshl_add_u32 v10, v146, 4, v10
        v_mul_u32_u24 v11, 20480, v9
        v_lshl_add_u32 v11, v146, 4, v11
        v_mul_u32_u24 v15, 1280, v146
        v_add_u32 v15, v15, v147
        s_mul_i32 s8, s4, {32*2560}
        s_lshl_b32 s9, s96, 7
        s_add_u32 s8, s8, s9
        s_add_u32 s8, s8, {hex(WS_AP)}
        s_add_u32 s9, s8, 20480
        s_add_u32 s10, s8, 40960
        s_add_u32 s11, s8, 61440
        s_lshr_b32 s88, s90, 1
        s_add_u32 s88, s88, {hex(WS_X1)}
        s_call_b64 s[12:13], F_red
        v_min_u32 v68, -2, v68
        v_min_u32 v69, -2, v69
        s_mov_b64 exec, 0xff
        buffer_store_dwordx2 v[68:69], v41, {sr(WS)}, s88 offen sc1
        s_mov_b64 exec, -1
        """)
        self.stamp(8)
        A(f"""
        v_lshlrev_b32 v200, v14, v144
        v_and_b32 v200, 0xffff0000, v200
        v_mov_b32 v10, v11
        v_mul_u32_u24 v12, 1280, v1
        s_lshl_b32 s86, s96, 3
        s_add_u32 s86, s86, s4
        s_lshl_b32 s8, s86, 7
        s_add_u32 s8, s8, {hex(WS_OP)}
        s_add_u32 s9, s8, {8*20480}
        s_add_u32 s10, s8, {16*20480}
        s_add_u32 s11, s8, {24*20480}
        s_lshl_b32 s88, s86, 3
        s_add_u32 s86, s88, {hex(WS_X1)}
        """)
        self.sleep(a.wx)
        self.poll([f"buffer_load_dword v145, v15, {sr(WS)}, s86 offen sc1"], [145], 13, 32, sleep=4)
        A("v_lshlrev_b32 v201, v14, v145\nv_and_b32 v201, 0xffff0000, v201")
        self.sleep(a.wop)
        A(f"""
        s_call_b64 s[12:13], F_red
        s_mov_b64 exec, 0xff
        buffer_store_dwordx2 v[68:69], v12, {sr(OUT)}, s88 offen
        s_mov_b64 exec, -1
        """)
        self.stamp(9)
        A("s_branch L_fin")

    def mlp(self):
        A = self.A; a = self.a
        W1F, W2F, AC, GR = 64, 104, 136, 152
        np_ = (40 - a.pf)//8; assert (40 - a.pf) % 8 == 0 and a.pf <= 20
        A("L_mlp:")
        self.w1addr(15, 14, 12)
        A(f"""
        s_mul_i32 s86, s3, {np_*16*3456}
        s_add_u32 s86, s86, {a.pf*16*3456}
        s_mul_i32 s87, s3, {np_*2048}
        s_add_u32 m0, s87, {L_W1 + a.pf*2048}
        s_add_u32 s87, s87, {L_W1 + a.pf*2048 + np_*2048}
        s_barrier
        """)
        for l in self.mlp_small(): A(l)
        self.w1loop("L_t1", 15, 14, "s86", "s87")
        A(f"""
        v_lshlrev_b32 v12, 1, v2
        v_xor_b32 v12, v12, v3
        v_mul_u32_u24 v14, 1280, v2
        v_lshl_add_u32 v15, v12, 4, v14
        v_xor_b32 v12, 8, v12
        v_lshl_add_u32 v14, v12, 4, v14
        v_add_u32 v14, {5120 - 1024}, v14
        s_lshl_b32 s87, s3, 11
        s_add_u32 m0, s87, {L_W2}
        s_mul_i32 s86, s3, {8*1280}
        buffer_load_dwordx4 v15, {sr(TB)}, s86 offen nt lds
        buffer_load_dwordx4 v14, {sr(TB)}, s86 offen offset:1024 nt lds
        s_cmp_eq_u32 s93, 2
        s_cbranch_scc1 L_mlp_nt
        s_add_u32 m0, m0, 16384
        s_add_u32 s86, s86, 256
        buffer_load_dwordx4 v15, {sr(TB)}, s86 offen nt lds
        buffer_load_dwordx4 v14, {sr(TB)}, s86 offen offset:1024 nt lds
        L_mlp_nt:
        s_waitcnt vmcnt({2*np_+2})
        """)
        self.poll([self.flg()] + self.mlp_small(), list(range(133, 143)) + [128, 129, 130, 131], 8, 64, first_loaded=True)
        for i in range(5):
            self.unpack(208+2*i, 209+2*i, 133+i)
            A(f"v_add_f32 v{208+2*i}, 1.0, v{208+2*i}\nv_add_f32 v{209+2*i}, 1.0, v{209+2*i}")
            A(f"v_cvt_pk_bf16_f32 v8, v{208+2*i}, v{209+2*i}")
            self.unpack(208+2*i, 209+2*i, 8)
            self.unpack(218+2*i, 219+2*i, 138+i)
        A(f"""
        v_lshrrev_b32 v8, 2, v3
        v_lshlrev_b32 v10, 10, v2
        v_lshl_add_u32 v10, v8, 7, v10
        v_lshl_add_u32 v10, v13, 3, v10
        s_lshr_b32 s8, s3, 1
        s_mul_i32 s9, s8, 20480
        s_add_u32 s9, s9, {L_W1}
        v_add_u32 v10, s9, v10
        v_and_b32 v9, 1, v2
        v_lshrrev_b32 v12, 3, v3
        v_lshl_add_u32 v12, v9, 1, v12
        s_and_b32 s10, s3, 1
        s_lshl_b32 s10, s10, 1
        v_xor_b32 v12, s10, v12
        v_xor_b32 v184, 1, v12
        v_lshl_add_u32 v184, v184, 5, v10
        v_lshl_add_u32 v10, v12, 5, v10
        v_lshl_add_u32 v11, v2, 2, v8
        v_lshlrev_b32 v11, 8, v11
        v_lshl_add_u32 v11, v13, 3, v11
        v_add_u32 v11, {L_W2}, v11
        v_lshl_add_u32 v12, v9, 2, v8
        s_and_b32 s9, s3, 3
        s_lshl_b32 s9, s9, 1
        v_xor_b32 v12, s9, v12
        v_xor_b32 v185, 1, v12
        v_lshl_add_u32 v185, v185, 5, v11
        v_lshl_add_u32 v11, v12, 5, v11
        v_lshlrev_b32 v186, 6, v146
        v_lshl_add_u32 v186, v2, 4, v186
        s_mul_i32 s9, s8, 2560
        v_add_u32 v186, s9, v186
        s_lshl_b32 s9, s3, 11
        s_add_u32 s9, s9, {L_G1}
        v_add_u32 v187, s9, v5
        v_lshrrev_b32 v9, 3, v3
        v_lshlrev_b32 v188, 10, v9
        v_lshl_add_u32 v188, v2, 8, v188
        v_lshl_add_u32 v188, v146, 4, v188
        v_add_u32 v188, {L_G1}, v188
        v_lshlrev_b32 v190, 4, v146
        v_lshl_add_u32 v190, v2, 7, v190
        s_mul_i32 s43, s3, 1280
        s_add_u32 s43, s43, {hex(WS_X1)}
        s_lshl_b32 s9, s3, 10
        s_add_u32 s42, s101, s9
        s_mov_b32 s86, 0x00ff00ff
        s_mov_b32 s87, 0x00ff00ff
        s_add_u32 s88, s42, 4096
        s_waitcnt vmcnt(0)
        s_barrier
        """)
        self.stamp(1)
        loads = [f"buffer_load_dword v{24+i}, v6, {sr(WS)}, s43 offen offset:{i*256} sc1" for i in range(5)]
        for l in loads: A(l)
        for k in range(5):
            for t in range(2):
                r = W1F + 8*k + 4*t
                A(f"ds_read_b64_tr_b16 {q2(r)}, {'v184' if t else 'v10'} offset:{k*4096}")
                A(f"ds_read_b64_tr_b16 {q2(r+2)}, {'v184' if t else 'v10'} offset:{k*4096 + 512}")
        A("s_cmp_ge_u32 s3, 4\ns_cbranch_scc1 L_now2")
        for m in range(4):
            for j in range(2):
                r = W2F + 8*m + 4*j
                A(f"ds_read_b64_tr_b16 {q2(r)}, {'v185' if m % 2 else 'v11'} offset:{(m//2)*16384 + j*8192}")
                A(f"ds_read_b64_tr_b16 {q2(r+2)}, {'v185' if m % 2 else 'v11'} offset:{(m//2)*16384 + j*8192 + 4096}")
        A("L_now2:\ns_waitcnt vmcnt(0)")
        self.poll(loads, range(24, 29), 8, 128, first_loaded=True, sleep=a.sx)
        self.stamp(8)
        if a.fast:
            self.ln_body(True)
            for i in range(5): A(f"v_pk_fma_f32 {q2(32+2*i)}, {q2(32+2*i)}, {q2(208+2*i)}, {q2(218+2*i)}")
        else:
            A("s_call_b64 s[12:13], F_ln")
            for i in range(5): self.unpack(32+2*i, 33+2*i, 24+i)
            for i in range(5): self.pk("mul", 32+2*i, 32+2*i, q2(208+2*i))
            for i in range(5): A(f"v_cvt_pk_bf16_f32 v{24+i}, v{32+2*i}, v{33+2*i}")
            for i in range(5): self.unpack(32+2*i, 33+2*i, 24+i)
            for i in range(5): self.pk("add", 32+2*i, 32+2*i, q2(218+2*i))
        for i in range(5):
            A(f"v_cvt_pk_bf16_f32 v{24+i}, v{32+2*i}, v{33+2*i}")
            A(f"ds_write_b32 v7, v{24+i} offset:{L_ACT + i*2048}")
        A("s_waitcnt lgkmcnt(0)\ns_barrier")
        for k in range(5): A(f"ds_read_b128 {q4(32+4*k)}, v186 offset:{L_ACT + k*512}")
        for k in range(5):
            A(f"s_waitcnt lgkmcnt({4-k})")
            for t in range(2):
                A(f"{MF} {q4(AC+4*t)}, {q4(W1F+8*k+4*t)}, {q4(32+4*k)}, {'0' if k == 0 else q4(AC+4*t)}")
        A(f"s_nop 6\nds_write_b128 v187, {q4(AC)}\nds_write_b128 v187, {q4(AC+4)} offset:1024\ns_waitcnt lgkmcnt(0)\ns_barrier")
        A("s_cmp_ge_u32 s3, 4\ns_cbranch_scc1 L_fin")
        for j in range(2):
            for k in range(4): A(f"ds_read_b128 {q4(GR+16*j+4*k)}, v188 offset:{k*4096 + j*2048}")
        for j in range(2):
            b0 = GR + 16*j
            A(f"s_waitcnt lgkmcnt({4-4*j})")
            for a_, b_ in ((0, 4), (8, 12), (0, 8)):
                for r in (0, 2): self.pk("add", b0+a_+r, b0+a_+r, q2(b0+b_+r))
            A(f"v_cvt_pk_bf16_f32 v8, v{b0}, v{b0+1}\nv_cvt_pk_bf16_f32 v9, v{b0+2}, v{b0+3}")
            self.unpack(32+4*j, 33+4*j, 8); self.unpack(34+4*j, 35+4*j, 9)
        self.silu(list(range(32, 40)), list(range(40, 48)))
        A(f"""
        v_cvt_pk_bf16_f32 v24, v32, v33
        v_cvt_pk_bf16_f32 v25, v34, v35
        v_cvt_pk_bf16_f32 v28, v36, v37
        v_cvt_pk_bf16_f32 v29, v38, v39
        v_mov_b32_dpp v26, v24 row_ror:8 {DPPF}
        v_mov_b32_dpp v27, v25 row_ror:8 {DPPF}
        v_mov_b32_dpp v30, v28 row_ror:8 {DPPF}
        v_mov_b32_dpp v31, v29 row_ror:8 {DPPF}
        """)
        for hf in range(2):
            for j in range(2):
                for m in (2*hf, 2*hf+1):
                    A(f"{MF} {q4(AC+4*m)}, {q4(W2F+8*m+4*j)}, {q4(24+4*j)}, {'0' if j == 0 else q4(AC+4*m)}")
        A("s_mov_b64 exec, s[86:87]\ns_cmp_eq_u32 s93, 2\ns_nop 0")
        for m in range(4):
            if m == 2: A("s_cbranch_scc1 L_opd")
            for r in range(4): A(f"v_min_u32 v{AC+4*m+r}, -2, v{AC+4*m+r}")
            A(f"buffer_store_dwordx4 {q4(AC+4*m)}, v190, {sr(WS)}, {'s42' if m < 2 else 's88'} offen offset:{(m%2)*512} sc1")
        A("L_opd:")
        A("s_mov_b64 exec, -1")
        self.stamp(9)

    def finish(self):
        A = self.A
        A("L_fin:\ns_cmp_eq_u32 s15, 0\ns_cbranch_scc1 L_noerr")
        A(f"v_mov_b32 v8, s15\ns_mov_b64 exec, 1\nbuffer_atomic_or v8, off, {sr(DBG)}, 0 offset:4 sc1\ns_mov_b64 exec, -1\nL_noerr:")
        if self.a.stamps:
            self.stamp(10)
            A("s_waitcnt lgkmcnt(0)")
            self.srdo(STS, f"s{WS}", f"s{WS+1}", hex(STAMP_OFF), "0x100000")
            A("s_mov_b32 s38, s97\ns_lshl_b32 s39, s100, 8\ns_or_b32 s39, s39, s85")
            A(f"s_mul_i32 s8, s2, {12*8*2}")
            A("s_cmp_eq_u32 s3, 0\ns_cbranch_scc1 L_st\ns_cmp_eq_u32 s3, 7\ns_cbranch_scc0 L_end\ns_add_u32 s8, s8, 96\nL_st:\ns_mov_b64 exec, 1")
            for k in range(12):
                A(f"v_mov_b32 v8, s{16+2*k}\nv_mov_b32 v9, s{17+2*k}\nbuffer_store_dwordx2 v[8:9], off, {sr(STS)}, s8 offset:{8*k}\ns_nop 1")
        A("L_end:\ns_endpgm")

    def subs(self):
        A = self.A
        A("F_red:")
        loads = [f"buffer_load_dwordx4 {q4(64+4*i)}, v10, {sr(WS)}, s{8+i} offen sc1" for i in range(4)]
        self.poll(loads, range(64, 80), 13, 16, sleep=self.a.sr)
        for a_, b_ in ((64, 68), (72, 76), (64, 72)):
            for r in (0, 2): self.pk("add", a_+r, a_+r, q2(b_+r))
        A(f"""
        s_nop 0
        v_permlane32_swap_b32 v64, v65
        v_permlane32_swap_b32 v66, v67
        v_add_f32 v64, v64, v65
        v_add_f32 v66, v66, v67
        s_nop 1
        v_permlane16_swap_b32 v64, v66
        v_add_f32 v64, v64, v66
        s_nop 1
        v_add_f32_dpp v64, v64, v64 row_ror:8 {DPPF}
        v_cvt_pk_bf16_f32 v64, v64, v64
        v_and_b32 v64, 0xffff0000, v64
        v_mul_f32 v64, v64, v200
        v_cvt_pk_bf16_f32 v64, v64, v64
        v_and_b32 v64, 0xffff0000, v64
        v_add_f32 v64, v64, v201
        v_mov_b32 v65, v64
        s_nop 1
        v_permlane32_swap_b32 v64, v65
        v_cvt_pk_bf16_f32 v68, v64, v65
        v_cvt_pk_bf16_f32 v69, v64, v65
        s_nop 1
        v_permlane16_swap_b32 v68, v69
        s_setpc_b64 s[12:13]
        """)
        A("F_ln:")
        self.ln_body(False)
        A("s_setpc_b64 s[12:13]")
    def ln_body(self, fast):
        A = self.A
        for i in range(5): self.unpack(32+2*i, 33+2*i, 24+i)
        A("v_readfirstlane_b32 s8, v32\ns_nop 1")
        NEG = "op_sel_hi:[1,0] neg_lo:[0,1] neg_hi:[0,1]"
        for i in range(5): self.pk("add", 42+2*i, 32+2*i, "s[8:9]", NEG)
        self.pk("add", 52, 42, "v[44:45]"); self.pk("mul", 54, 42, "v[42:43]")
        for i in range(1, 5):
            if i > 1: self.pk("add", 52, 52, q2(42+2*i))
            A(f"v_pk_fma_f32 v[54:55], {q2(42+2*i)}, {q2(42+2*i)}, v[54:55]")
        A("v_add_f32 v52, v52, v53\nv_add_f32 v53, v54, v55\ns_nop 0")
        for c in (f"row_ror:1 {DPPF}", f"row_ror:2 {DPPF}", f"row_ror:4 {DPPF}", f"row_ror:8 {DPPF}",
                  "row_bcast:15 row_mask:0xa bank_mask:0xf", "row_bcast:31 row_mask:0xc bank_mask:0xf"):
            A(f"v_add_f32_dpp v52, v52, v52 {c}\nv_add_f32_dpp v53, v53, v53 {c}\ns_nop 0")
        A(f"""
        v_readlane_b32 s9, v52, 63
        v_readlane_b32 s10, v53, 63
        v_mov_b32 v54, {hex(INV640)}
        s_nop 0
        v_mul_f32 v52, s9, v54
        v_mul_f32 v53, s10, v54
        v_fma_f32 v53, -v52, v52, v53
        v_add_f32 v52, s8, v52
        v_max_f32 v53, 0, v53
        v_cvt_pk_bf16_f32 v54, v52, v53
        v_lshlrev_b32 v52, 16, v54
        v_and_b32 v54, 0xffff0000, v54
        v_add_f32 v54, {hex(EPS)}, v54
        v_cvt_pk_bf16_f32 v54, v54, v54
        v_and_b32 v54, 0xffff0000, v54
        v_sqrt_f32 v54, v54
        """)
        for i in range(5): self.pk("add", 32+2*i, 32+2*i, "v[52:53]", NEG)
        A("v_cvt_pk_bf16_f32 v54, v54, v54\nv_and_b32 v54, 0xffff0000, v54\nv_rcp_f32 v54, v54")
        if fast: A("s_nop 0")
        else:
            for i in range(5): A(f"v_cvt_pk_bf16_f32 v{24+i}, v{32+2*i}, v{33+2*i}")
            for i in range(5): self.unpack(32+2*i, 33+2*i, 24+i)
        for i in range(5): self.pk("mul", 32+2*i, 32+2*i, "v[54:55]", "op_sel_hi:[1,0]")
        if not fast:
            for i in range(5): A(f"v_cvt_pk_bf16_f32 v{24+i}, v{32+2*i}, v{33+2*i}")

if __name__ == "__main__":
    ap = argparse.ArgumentParser()
    ap.add_argument("-o", default="k.s"); ap.add_argument("--stamps", action="store_true")
    ap.add_argument("--fast", action="store_true"); ap.add_argument("--nolocal", action="store_true"); ap.add_argument("--notail", action="store_true")
    for n, v in dict(dh=8, pf=0, rx=0, ry=0, par=0, diag=0, limit=40000, pad=20480, depth=4, d0=3, nm=3, n0=16, chk=3, d1=2, d2=6, ism=20, wa=110, w2=200, w3=40,
                     s1=8, s2=8, sr=1, sx=1, so=1, wx=20, wop=20).items():
        ap.add_argument("--" + n, type=int, default=v)
    a = ap.parse_args()
    open(a.o, "w").write(G(a).gen())
```

```python
import argparse
NAME = "adaLN_cond__sliding_block_cached__dense_activation_silu__decode"

WS_MOD  = 0x00000
WS_FLG  = 61440
WS_FLG2 = 62464
NCLR    = 8
WS_X1   = 0x40000
WS_O    = 0x30000
WS_AP   = 0x60000
WS_QP   = 0x100000
WS_OP   = 0x180000
WS_END  = WS_OP + 27*20480
STAMP_OFF = 0x20000000
L_Q, L_SM, L_FL = 0, 256, 384
L_ACT, L_XN, L_TA = 1024, 11264, 21504
L_KH  = 62464
L_W1  = L_TA
L_W2  = L_W1 + 81920
L_WO  = L_W2
L_G1  = L_W2 + 32768
L_TB  = L_G1
L_BN  = L_G1 + 16384
L_END = L_BN + 2048
L_R1  = L_XN
assert L_KH + 35*1024 <= L_WO and L_END <= 163840
LOG2E, NLOG2E, SCALE, INV640, EPS = 0x3fb8aa3b, 0xbfb8aa3b, 0x3db504f3, 0x3acccccd, 0x3727c5ac
K, V, WS, WO, TA, TB, X, C, OUT, DBG, T0 = 44, 48, 52, 56, 60, 64, 68, 72, 76, 80, 92
KH = C
STS = 40
sr = lambda r: f"s[{r}:{r+3}]"
DPPF = "row_mask:0xf bank_mask:0xf"
MF = "v_mfma_f32_16x16x32_bf16"
q4 = lambda r: f"v[{r}:{r+3}]"
q2 = lambda r: f"v[{r}:{r+1}]"

class G:
    def __init__(self, a):
        self.L = []; self.lab = 0; self.a = a
    def A(self, s):
        for x in s.split("\n"):
            x = x.strip()
            if x: self.L.append(("" if x.endswith(":") else "    ") + x)
    def newlab(self, p="L"):
        self.lab += 1; return f"{p}_{self.lab}"
    def stamp(self, k, diag=0):
        if self.a.stamps and diag == self.a.diag: self.A(f"s_memrealtime s[{16+2*k}:{17+2*k}]")
    def srd(self, d, lo, hi, size):
        self.A(f"s_mov_b32 s{d}, {lo}\ns_mov_b32 s{d+1}, {hi}\ns_mov_b32 s{d+2}, {size}\ns_mov_b32 s{d+3}, 0x20000")
    def srdo(self, d, lo, hi, off, size):
        self.A(f"s_add_u32 s{d}, {lo}, {off}\ns_addc_u32 s{d+1}, {hi}, 0\ns_mov_b32 s{d+2}, {size}\ns_mov_b32 s{d+3}, 0x20000")
    def unpack(self, lo, hi, src):
        self.A(f"v_lshlrev_b32 v{lo}, 16, v{src}\nv_and_b32 v{hi}, 0xffff0000, v{src}")
    def pk(self, op, d, a, b, mods=""):
        self.A(f"v_pk_{op}_f32 {q2(d)}, {q2(a)}, {b} {mods}")
    def maxtree(self, dst, regs):
        regs = list(regs); A = self.A
        if len(regs) == 2:
            A(f"v_max_u32 v{dst}, v{regs[0]}, v{regs[1]}"); return
        A(f"v_max3_u32 v{dst}, v{regs[0]}, v{regs[1]}, v{regs[2]}"); regs = regs[3:]
        while len(regs) >= 2:
            A(f"v_max3_u32 v{dst}, v{dst}, v{regs[0]}, v{regs[1]}"); regs = regs[2:]
        if regs: A(f"v_max_u32 v{dst}, v{dst}, v{regs[0]}")
    def poll(self, loads, regs, tmp, code, first_loaded=False, sleep=1):
        A = self.A; regs = list(regs)
        lp = self.newlab("Lpoll"); ck = self.newlab("Lchk"); dn = self.newlab("Lpd")
        A(f"s_mov_b32 s14, {self.a.limit}")
        if first_loaded: A(f"s_branch {ck}")
        A(f"{lp}:")
        for l in loads: A(l)
        A("s_waitcnt vmcnt(0)")
        A(f"{ck}:")
        if len(regs) == 1: tmp = regs[0]
        else: self.maxtree(tmp, regs)
        A(f"v_cmp_eq_u32 vcc, -1, v{tmp}\ns_cbranch_vccz {dn}\ns_mov_b64 exec, vcc")
        if sleep: A(f"s_sleep {sleep}")
        A(f"s_sub_u32 s14, s14, 1\ns_cbranch_scc0 {lp}\ns_or_b32 s15, s15, {code}\n{dn}:\ns_mov_b64 exec, -1")
    def sleep(self, n):
        while n > 0:
            self.A(f"s_sleep {min(n, 120)}"); n -= 120
    def spin(self, off, target, code, vt=12, va=15):
        a = self.newlab("Lsp"); b = self.newlab("Lspd")
        self.A(f"""
        s_mov_b32 s14, {self.a.limit*8}
        {a}:
        ds_read_b32 v{vt}, v{va} offset:{off}
        s_waitcnt lgkmcnt(0)
        v_readfirstlane_b32 s8, v{vt}
        s_nop 0
        s_cmp_ge_u32 s8, {target}
        s_cbranch_scc1 {b}
        s_sleep 1
        s_sub_u32 s14, s14, 1
        s_cbranch_scc0 {a}
        s_or_b32 s15, s15, {code}
        {b}:
        """)
    def bump(self, off, vt=12, va=15):
        self.A(f"v_mov_b32 v{vt}, 1\ns_mov_b64 exec, 1\nds_add_u32 v{va}, v{vt} offset:{off}\ns_mov_b64 exec, -1")
    def silu(self, regs, tmps):
        A = self.A
        for r, t in zip(regs, tmps): A(f"v_mul_f32 v{t}, {hex(NLOG2E)}, v{r}")
        for t in tmps: A(f"v_exp_f32 v{t}, v{t}")
        A("s_nop 0")
        for t in tmps: A(f"v_add_f32 v{t}, 1.0, v{t}")
        for t in tmps: A(f"v_rcp_f32 v{t}, v{t}")
        A("s_nop 0")
        for r, t in zip(regs, tmps): A(f"v_mul_f32 v{r}, v{r}, v{t}")
    def store2(self, stores, cond_reg):
        a = self.newlab("Lwt"); b = self.newlab("Lsd")
        self.A(f"s_cbranch_scc0 {a}")
        for s in stores: self.A(s)
        self.A(f"s_branch {b}\n{a}:")
        for s in stores: self.A(s + " sc1")
        self.A(f"{b}:")
    def samexcd(self, reg):
        if self.a.nolocal: self.A("s_cmp_eq_u32 s3, 99")
        else: self.A(f"v_cmp_ne_u32 vcc, s97, v{reg}\ns_cmp_eq_u64 vcc, 0")

    def prologue(self):
        A = self.A; a = self.a
        self.L += [f"; @launch grid=(256,1,1) block=(512,1,1) lds={L_END}",
                   '.amdgcn_target "amdgcn-amd-amdhsa--gfx950"', ".text", f".globl {NAME}_kernel", ".p2align 8",
                   f".type {NAME}_kernel,@function", f"{NAME}_kernel:"]
        A("""
        s_cmp_ge_u32 s2, 256
        s_cbranch_scc1 L_end
        s_getpc_b64 s[100:101]
        s_load_dwordx16 s[16:31], s[0:1], 0
        s_load_dwordx8 s[32:39], s[0:1], 64
        s_load_dwordx2 s[40:41], s[0:1], 96
        """)
        if a.stamps: A("s_memrealtime s[42:43]")
        A(f"""
        v_lshrrev_b32 v1, 6, v0
        s_and_b32 s4, s2, 7
        v_readfirstlane_b32 s3, v1
        v_mul_u32_u24 v8, {a.pad//512}, v0
        global_load_dwordx4 v[24:27], v8, s[100:101] offset:-16
        v_and_b32 v1, 63, v0
        v_lshrrev_b32 v2, 4, v1
        v_and_b32 v3, 15, v1
        v_lshlrev_b32 v4, 6, v3
        v_lshl_add_u32 v4, v2, 4, v4
        v_lshlrev_b32 v5, 4, v1
        v_lshlrev_b32 v6, 2, v1
        v_and_b32 v13, 3, v1
        s_lshr_b32 s5, s2, 3
        s_lshl_b32 s6, s4, 2
        s_and_b32 s8, s5, 3
        s_add_u32 s6, s6, s8
        s_lshr_b32 s7, s5, 2
        s_lshl_b32 s8, s7, 5
        s_add_u32 s84, s8, s6
        s_lshl_b32 s14, s84, 20
        s_lshl_b32 s9, s3, 10
        s_add_u32 s14, s14, s9
        s_add_u32 s14, s14, 0xC0000
        s_mov_b32 s15, 0
        s_mul_i32 s89, s4, {a.rx}
        s_mul_i32 s9, s5, {a.ry}
        s_add_u32 s89, s89, s9
        s_lshl_b32 s89, s89, 13
        s_mul_i32 s97, s3, 1280
        s_and_b32 s8, s5, 15
        s_lshr_b32 s8, s8, 1
        s_lshl_b32 s9, s8, 3
        s_add_u32 s9, s9, s4
        s_lshl_b32 s91, s9, 1
        s_and_b32 s10, s5, 1
        s_add_u32 s91, s91, s10
        s_mul_i32 s11, s3, 5120
        s_add_u32 m0, s11, {L_TA}
        v_mov_b32 v15, {L_FL}
        v_mov_b32 v8, 0
        v_mov_b32 v9, 0
        v_mov_b32 v10, 0
        v_mov_b32 v11, 0
        ds_write_b128 v15, v[8:11]
        s_nop 1
        v_mov_b32 v8, -1
        v_mov_b32 v9, -1
        v_mov_b32 v10, -1
        v_mov_b32 v11, -1
        s_cmp_lt_u32 s5, 16
        s_cbranch_scc1 L_p_mod
        s_mov_b32 s85, 1
        v_lshrrev_b32 v12, 3, v1
        v_lshlrev_b32 v12, 13, v12
        v_and_b32 v14, 7, v1
        v_lshl_add_u32 v12, v14, 4, v12
        s_lshl_b32 s99, s4, 3
        s_add_u32 s99, s99, s8
        s_lshl_b32 s9, s99, 7
        s_mul_i32 s10, s10, {320*8192}
        s_add_u32 s9, s9, s10
        s_mov_b32 s11, {8*8192}
        s_waitcnt lgkmcnt(0)
        s_add_u32 s{T0}, s22, s9
        s_addc_u32 s{T0+1}, s23, 0
        s_sub_u32 s{T0+2}, {640*8192}, s9
        s_branch L_p_j
        L_p_mod:
        s_mov_b32 s85, 2
        v_lshrrev_b32 v12, 2, v1
        v_mul_u32_u24 v12, 7680, v12
        v_lshl_add_u32 v12, v13, 4, v12
        s_lshl_b32 s9, s91, 6
        s_mov_b32 s11, {16*7680}
        s_mov_b32 s99, 0
        s_waitcnt lgkmcnt(0)
        s_add_u32 s{T0}, s34, s9
        s_addc_u32 s{T0+1}, s35, 0
        s_sub_u32 s{T0+2}, {640*7680}, s9
        s_cmp_lt_u32 s91, 120
        s_cbranch_scc1 L_p_j
        s_mov_b32 s85, 8
        s_mov_b32 s{T0+2}, 0
        L_p_j:
        s_mov_b32 s{T0+3}, 0x20000
        """)
        self.srd(WS, "s40", "s41", hex(WS_END)); self.srd(DBG, "s38", "s39", 256)
        self.srd(X, "s16", "s17", 10240); self.srd(C, "s32", "s33", 10240)
        A(f"""
        s_lshl_b32 s87, s6, 3
        s_add_u32 s87, s87, s7
        s_cmp_eq_u32 s3, 0
        s_cbranch_scc0 L_p_nh
        s_setprio 3
        s_cmp_eq_u32 s85, 8
        s_cbranch_scc0 L_p_nc
        s_sub_u32 s8, s91, 120
        s_lshl_b32 s8, s8, 13
        s_add_u32 s9, s8, 4096
        """)
        for i in range(8):
            A(f"buffer_store_dwordx4 v[8:11], v5, {sr(WS)}, {'s8' if i < 4 else 's9'} offen offset:{(i%4)*1024} sc1")
        A(f"""
        s_waitcnt vmcnt(0)
        v_mov_b32 v14, 1
        s_mov_b64 exec, 1
        buffer_atomic_add v14, off, {sr(DBG)}, 0 sc1
        s_mov_b64 exec, -1
        L_p_nc:
        s_lshl_b32 s8, s87, 10
        s_add_u32 s8, s8, {hex(WS_QP)}
        buffer_store_dwordx4 v[8:11], v5, {sr(WS)}, s8 offen sc1
        L_p_nh:
        s_cmp_eq_u32 s85, 2
        s_cbranch_scc0 L_p_nxc
        """)
        for i in range(5): A(f"buffer_load_dword v{24+i}, v6, {sr(X)}, s97 offen offset:{i*256}")
        for i in range(5): A(f"buffer_load_dword v{56+i}, v6, {sr(C)}, s97 offen offset:{i*256}")
        A("L_p_nxc:\ns_mul_i32 s8, s3, s11\ns_mul_i32 s8, s8, 5")
        for u in range(5):
            A(f"buffer_load_dwordx4 v12, {sr(T0)}, s8 offen nt lds")
            if u < 4: A("s_add_u32 m0, m0, 1024\ns_add_u32 s8, s8, s11")
        self.srdo(K, "s18", "s19", "s14", 0x40000 - 7*1024)
        A("s_waitcnt lgkmcnt(0)\ns_barrier")

    def setup2(self):
        A = self.A
        self.srdo(V, "s20", "s21", "s14", 0x40000 - 7*1024)
        A(f"""
        s_sub_i32 s98, s5, 12
        """)
        if self.a.remap: A("""
        s_and_b32 s8, s98, 3
        s_lshl_b32 s8, s8, 1
        s_lshr_b32 s9, s98, 2
        s_add_u32 s8, s8, s9
        s_cmp_lt_u32 s98, 8
        s_cselect_b32 s98, s8, s98
        """)
        A(f"""
        s_max_i32 s9, s98, 0
        s_lshl_b32 s9, s9, 6
        s_mul_i32 s8, s4, {512*1280}
        s_add_u32 s8, s8, s9
        s_add_u32 s{WO}, s24, s8
        s_addc_u32 s{WO+1}, s25, 0
        s_sub_u32 s{WO+2}, {512*1280}, s9
        s_mov_b32 s{WO+3}, 0x20000
        """)
        self.srd(OUT, "s36", "s37", 10240)
        A("s_lshl_b32 s8, s84, 20\ns_add_u32 s8, s8, 0xC0000")
        self.srdo(KH, "s18", "s19", "s8", "0x40000")
        A(f"""
        s_mul_i32 s8, s5, 86
        s_lshr_b32 s8, s8, 8
        s_mul_i32 s9, s8, 3
        s_sub_u32 s93, s5, s9
        s_lshl_b32 s8, s8, 3
        s_add_u32 s8, s8, s4
        s_lshl_b32 s10, s8, 7
        s_add_u32 s{TA}, s28, s10
        s_addc_u32 s{TA+1}, s29, 0
        s_sub_u32 s{TA+2}, {640*3456}, s10
        s_mov_b32 s{TA+3}, 0x20000
        s_mul_i32 s10, s8, {64*1280}
        s_lshl_b32 s11, s93, 9
        s_add_u32 s10, s10, s11
        s_add_u32 s{TB}, s30, s10
        s_addc_u32 s{TB+1}, s31, 0
        s_sub_u32 s{TB+2}, {64*1280}, s11
        s_mov_b32 s{TB+3}, 0x20000
        s_mul_i32 s101, s8, 20480
        s_lshl_b32 s11, s93, 13
        s_add_u32 s101, s101, s11
        s_add_u32 s101, s101, {hex(WS_OP)}
        s_cmp_lt_u32 s8, 27
        s_cselect_b32 s100, 1, 0
        s_cmp_ge_i32 s98, 0
        s_cselect_b32 s100, 2, s100
        s_mul_i32 s90, s4, 10240
        s_add_u32 s90, s90, {hex(WS_X1)}
        s_lshl_b32 s96, s98, 3
        s_add_u32 s96, s96, s4
        s_getreg_b32 s97, hwreg(HW_REG_XCC_ID)
        s_and_b32 s97, s97, 15
        s_lshl_b32 s10, s3, 6
        v_lshlrev_b32 v7, 9, v2
        v_lshl_add_u32 v7, v3, 2, v7
        v_add_u32 v7, s10, v7
        v_lshrrev_b32 v0, 2, v1
        v_mul_u32_u24 v0, 1280, v0
        v_lshl_add_u32 v0, v13, 4, v0
        v_and_b32 v8, 1, v3
        v_lshlrev_b32 v8, 4, v8
        v_mov_b32 v9, 0xffff
        v_lshlrev_b32 v9, v8, v9
        v_lshrrev_b32 v8, 1, v3
        """)
        for r in range(4):
            A(f"v_cmp_eq_u32 vcc, {r}, v8\ns_nop 1\nv_cndmask_b32 v{16+r}, 0, v9, vcc")
        if self.a.stamps: A("s_mov_b32 s16, s42\ns_mov_b32 s17, s43")

    def init1(self):
        A = self.A
        for i in range(5): self.unpack(32+2*i, 33+2*i, 56+i)
        self.silu(list(range(32, 42)), list(range(44, 54)))
        for i in range(5):
            A(f"v_cvt_pk_bf16_f32 v{56+i}, v{32+2*i}, v{33+2*i}")
            A(f"ds_write_b32 v7, v{56+i} offset:{L_ACT + i*2048}")
        A("s_sub_u32 s8, s91, 20\ns_cmp_lt_u32 s8, 20\ns_cbranch_scc0 L_c_a")
        self.ln_body(False)
        for i in range(5): A(f"ds_write_b32 v7, v{24+i} offset:{L_XN + i*2048}")

    def helper(self, vload):
        A = self.A; a = self.a
        AF = lambda k, nt: (64 + 4*(k*4+nt)) if k < 8 else (208 + 4*((k-8)*4+nt))
        A(f"L_helper:\ns_waitcnt vmcnt(0)\nbuffer_load_dword v12, off, {sr(DBG)}, 0 sc1")
        self.spin(4, 7, 256, vt=14)
        self.stamp(9)
        A(f"""
        v_lshrrev_b32 v8, 2, v3
        s_cmp_eq_u32 s85, 2
        s_cbranch_scc1 L_h_mod
        v_lshlrev_b32 v10, 10, v2
        v_lshl_add_u32 v10, v8, 7, v10
        v_lshl_add_u32 v10, v13, 3, v10
        """)
        for k in range(10):
            for nt in range(4):
                r = AF(k, nt)
                A(f"ds_read_b64_tr_b16 {q2(r)}, v10 offset:{L_TA + k*4096 + nt*32}")
                A(f"ds_read_b64_tr_b16 {q2(r+2)}, v10 offset:{L_TA + k*4096 + nt*32 + 512}")
        A(f"""
        s_branch L_h_cnt
        L_h_mod:
        v_lshlrev_b32 v10, 9, v2
        v_lshl_add_u32 v10, v8, 6, v10
        v_lshl_add_u32 v10, v13, 3, v10
        """)
        def rd(i):
            A(f"ds_read_b128 {q4(24+4*i)}, v4 offset:{L_ACT + i*1024}")
            for par in range(2):
                for nt in range(2):
                    r = 64 + 4*((2*i+par)*2+nt)
                    A(f"ds_read_b64_tr_b16 {q2(r)}, v10 offset:{L_TA + (2*i+par)*2048 + nt*32}")
                    A(f"ds_read_b64_tr_b16 {q2(r+2)}, v10 offset:{L_TA + (2*i+par)*2048 + nt*32 + 256}")
        if a.stamps: A("s_waitcnt lgkmcnt(0)")
        rd(0)
        for i in range(10):
            if i < 9:
                rd(i+1); A("s_waitcnt lgkmcnt(9)")
            else: A("s_waitcnt lgkmcnt(0)")
            for par in range(2):
                for nt in range(2):
                    r = 64 + 4*((2*i+par)*2+nt); a_ = 224 + 8*par + 4*nt
                    A(f"{MF} {q4(a_)}, {q4(r)}, {q4(24+4*i)}, {'0' if i == 0 else q4(a_)}")
        A(f"""
        v_and_b32 v8, 7, v3
        v_lshrrev_b32 v9, 3, v3
        v_lshlrev_b32 v11, 6, v8
        v_lshl_add_u32 v11, v9, 5, v11
        v_lshl_add_u32 v11, v2, 3, v11
        s_lshl_b32 s9, s91, 9
        s_add_u32 s8, s9, {L_XN - 20*512}
        v_add_u32 v14, s8, v11
        s_nop 1
        """)
        for r in range(4):
            A(f"v_add_f32_dpp v{24+r}, v{232+r}, v{224+r} row_ror:8 row_mask:0xf bank_mask:0x3")
            A(f"v_add_f32_dpp v{24+r}, v{228+r}, v{236+r} row_ror:8 row_mask:0xf bank_mask:0xc")
        A("v_cvt_pk_bf16_f32 v40, v24, v25\nv_cvt_pk_bf16_f32 v41, v26, v27")
        A("s_sub_u32 s8, s91, 20\ns_cmp_lt_u32 s8, 20\ns_cbranch_scc0 L_h_pub")
        A("ds_read_b64 v[42:43], v14")
        for j in range(2): self.unpack(24+2*j, 25+2*j, 40+j)
        for r in range(4): A(f"v_add_f32 v{24+r}, 1.0, v{24+r}")
        for j in range(2): A(f"v_cvt_pk_bf16_f32 v{40+j}, v{24+2*j}, v{25+2*j}")
        for j in range(2): self.unpack(24+2*j, 25+2*j, 40+j)
        A("s_waitcnt lgkmcnt(0)")
        for j in range(2): self.unpack(28+2*j, 29+2*j, 42+j)
        for r in range(4): A(f"v_mul_f32 v{24+r}, v{24+r}, v{28+r}")
        for j in range(2): A(f"v_cvt_pk_bf16_f32 v{40+j}, v{24+2*j}, v{25+2*j}")
        A(f"""
        L_h_pub:
        v_min_u32 v40, -2, v40
        v_min_u32 v41, -2, v41
        v_add_u32 v11, {L_BN}, v11
        v_add_u32 v14, {L_BN}, v5
        ds_write_b64 v11, v[40:41]
        ds_read_b128 v[40:43], v14
        L_h_cnt:
        s_mov_b32 s14, {a.limit}
        L_wc:
        s_waitcnt vmcnt(0)
        v_readfirstlane_b32 s8, v12
        s_nop 0
        s_cmp_ge_u32 s8, {NCLR}
        s_cbranch_scc1 L_wcd
        s_sleep 2
        buffer_load_dword v12, off, {sr(DBG)}, 0 sc1
        s_sub_u32 s14, s14, 1
        s_cbranch_scc0 L_wc
        s_or_b32 s15, s15, 1
        L_wcd:
        s_cmp_eq_u32 s85, 2
        s_cbranch_scc0 L_h_np
        s_mov_b32 exec_hi, 0
        s_waitcnt lgkmcnt(0)
        buffer_store_dwordx4 v[40:43], v5, {sr(WS)}, s9 offen sc1
        s_mov_b64 exec, -1
        L_h_np:
        s_lshl_b32 s8, s87, 2
        s_add_u32 s8, s8, {WS_FLG}
        v_mov_b32 v12, s97
        v_mov_b32 v192, -1
        v_mov_b32 v193, -1
        v_mov_b32 v194, -1
        v_mov_b32 v195, -1
        s_mov_b64 exec, 1
        buffer_store_dword v12, off, {sr(WS)}, s8 sc1
        s_lshl_b32 s8, s87, 8
        s_add_u32 s8, s8, {hex(WS_O)}
        s_mov_b64 exec, 0xffff
        buffer_store_dwordx4 v[192:195], v5, {sr(WS)}, s8 offen sc1
        s_cmp_eq_u32 s100, 2
        s_cbranch_scc0 L_h_nx
        s_lshl_b32 s8, s98, 9
        s_add_u32 s8, s8, s90
        s_mov_b32 exec_lo, -1
        buffer_store_dwordx4 v[192:195], v5, {sr(WS)}, s8 offen sc1
        s_lshl_b32 s8, s96, 10
        s_add_u32 s8, s8, {hex(WS_AP)}
        s_mov_b64 exec, -1
        buffer_store_dwordx4 v[192:195], v5, {sr(WS)}, s8 offen sc1
        L_h_nx:
        s_mov_b64 exec, -1
        s_cmp_eq_u32 s100, 1
        s_cbranch_scc0 L_h_no
        """)
        for i in range(4): A(f"buffer_store_dwordx4 v[192:195], v5, {sr(WS)}, s101 offen offset:{i*1024} sc1")
        A("s_cmp_eq_u32 s93, 2\ns_cbranch_scc1 L_h_no\ns_add_u32 s8, s101, 4096")
        for i in range(4): A(f"buffer_store_dwordx4 v[192:195], v5, {sr(WS)}, s8 offen offset:{i*1024} sc1")
        A("L_h_no:")
        self.stamp(1)
        A(f"""
        s_cmp_lt_i32 s98, 0
        s_cbranch_scc1 L_h_nwo
        s_mov_b32 m0, {L_WO}
        s_mov_b32 s8, 0
        L_h_wo:
        s_waitcnt vmcnt({a.dw-1})
        buffer_load_dwordx4 v0, {sr(WO)}, s8 offen {a.wof} lds
        s_add_u32 m0, m0, 1024
        s_add_u32 s8, s8, 20480
        s_cmp_lt_u32 s8, {32*20480}
        s_cbranch_scc1 L_h_wo
        L_h_nwo:
        """)
        A("s_bitcmp1_b32 s85, 0\ns_cbranch_scc0 L_h_getq0")
        A(f"""
        v_and_b32 v8, 7, v3
        v_lshrrev_b32 v9, 3, v3
        v_mul_u32_u24 v12, 10240, v9
        v_lshl_add_u32 v12, v8, 6, v12
        v_lshl_add_u32 v12, v2, 4, v12
        v_lshlrev_b32 v14, 2, v8
        v_lshlrev_b32 v196, 8, v8
        v_lshl_add_u32 v196, v9, 6, v196
        v_lshl_add_u32 v196, v2, 4, v196
        v_add_u32 v196, {L_BN}, v196
        v_add_u32 v197, {L_BN}, v5
        v_lshlrev_b32 v198, 10, v2
        v_lshl_add_u32 v198, v3, 4, v198
        s_and_b32 s10, s5, 1
        s_mul_i32 s8, s10, 5120
        s_add_u32 s42, s8, 2560
        s_lshr_b32 s11, s99, 1
        s_lshl_b32 s9, s11, 5
        s_add_u32 s9, s9, {WS_FLG}
        s_lshl_b32 s11, s11, 13
        s_lshl_b32 s10, s10, 9
        s_add_u32 s11, s11, s10
        s_and_b32 s10, s99, 1
        s_lshl_b32 s10, s10, 8
        s_add_u32 s11, s11, s10
        s_add_u32 s11, s11, {hex(WS_QP)}
        s_add_u32 s10, s11, 4096
        """)
        loads = [f"buffer_load_dwordx4 {q4(24+4*k)}, v12, {sr(WS)}, {'s8' if k < 5 else 's42'} offen offset:{(k%5)*512} sc1" for k in range(10)]
        self.sleep(a.wa - a.lead)
        if a.mode: A("v_mov_b32 v240, 1\nds_write_b32 v15, v240")
        self.sleep(a.lead)
        self.poll(loads, range(24, 64), 241, 2, sleep=a.s1)
        fl = f"buffer_load_dword v12, v14, {sr(WS)}, s9 offen sc1"
        A(fl)
        A(f"""
        s_lshl_b32 s43, s2, 2
        s_add_u32 s43, s43, {WS_FLG2}
        s_mov_b64 exec, 1
        buffer_store_dword v1, off, {sr(WS)}, s43 sc1
        s_mov_b64 exec, -1
        """)
        self.stamp(2)
        A("v_cmp_lt_u32 vcc, 7, v3\ns_waitcnt lgkmcnt(0)")
        ACC = [8, 20, 248, 252]
        for k in range(11):
            if k < 10:
                for j in (4*k, 4*k+2):
                    self.unpack(240, 241, 24+j); self.unpack(242, 243, 25+j)
                    for r in range(4): A(f"v_add_f32_dpp v{244+r}, v{240+r}, v{240+r} row_ror:8 {DPPF}")
                    A(f"v_cvt_pk_bf16_f32 v{24+j}, v244, v245\nv_cvt_pk_bf16_f32 v{25+j}, v246, v247")
            if k >= 1:
                for nt in range(4):
                    A(f"{MF} {q4(ACC[nt])}, {q4(AF(k-1, nt))}, {q4(24+4*(k-1))}, {'0' if k == 1 else q4(ACC[nt])}")
        A("s_nop 5")
        for j in range(2):
            for r in range(4): A(f"v_cndmask_b32 v{24+4*j+r}, v{ACC[2*j]+r}, v{ACC[2*j+1]+r}, vcc")
            for r in range(4): A(f"v_min_u32 v{24+4*j+r}, -2, v{24+4*j+r}")
        A("""
        ds_write_b128 v196, v[24:27]
        ds_write_b128 v196, v[28:31] offset:128
        ds_read_b128 v[32:35], v197
        ds_read_b128 v[36:39], v197 offset:1024
        s_waitcnt vmcnt(0)
        """)
        self.poll([fl], [12], 241, 2, first_loaded=True, sleep=4)
        self.samexcd(12)
        A("s_waitcnt lgkmcnt(0)")
        self.store2([f"buffer_store_dwordx4 v[32:35], v198, {sr(WS)}, s11 offen", f"buffer_store_dwordx4 v[36:39], v198, {sr(WS)}, s10 offen"], 12)
        self.stamp(8)
        self.sleep(a.w3)
        A("s_branch L_h_getq\nL_h_getq0:")
        A("s_waitcnt vmcnt(0) lgkmcnt(0)")
        A(f"""
        s_lshl_b32 s43, s2, 2
        s_add_u32 s43, s43, {WS_FLG2}
        s_mov_b64 exec, 1
        buffer_store_dword v1, off, {sr(WS)}, s43 sc1
        s_mov_b64 exec, -1
        """)
        A("s_cmp_lt_i32 s98, 0\ns_cbranch_scc0 L_h_getq")
        for i in range(16):
            A(f"s_waitcnt vmcnt({a.dm-1})")
            vload(i)
        self.sleep(a.w2 - a.lead)
        if a.mode: A("v_mov_b32 v240, 1\nds_write_b32 v15, v240")
        self.sleep(a.lead)
        A(f"""
        L_h_getq:
        v_lshlrev_b32 v12, 3, v1
        s_lshl_b32 s8, s87, 10
        s_add_u32 s8, s8, {hex(WS_QP)}
        """)
        loads = [f"buffer_load_dwordx2 {q2(40+2*k)}, v12, {sr(WS)}, s8 offen offset:{k*512} sc1" for k in range(2)]
        self.poll(loads, range(40, 44), 45, 4, sleep=a.s2)
        A(f"""
        v_add_f32 v32, v40, v42
        v_add_f32 v33, v41, v43
        v_cvt_pk_bf16_f32 v32, v32, v33
        ds_write_b32 v6, v32 offset:{L_Q}
        s_waitcnt lgkmcnt(0)
        ds_write_b32 v15, v15
        """)
        self.stamp(3)
        A(f"""
        s_setprio 0
        s_cmp_lt_i32 s98, 0
        s_cbranch_scc1 L_h_nv
        """)
        for i in range(16):
            A(f"s_waitcnt vmcnt({a.dh-1})")
            vload(i)
        A("L_h_nv:\ns_mov_b64 s[44:45], 0")
        self.spin(8, 7, 2048)
        A(f"v_add_u32 v8, {L_KH}, v5")
        for i in range(32): A(f"ds_read_b128 {q4(64+4*i)}, v8 offset:{i*1024}")

    def w1addr(self, ve, vo, vt):
        self.A(f"""
        v_lshrrev_b32 v{vo}, 3, v1
        v_mul_u32_u24 v{vo}, 3456, v{vo}
        v_and_b32 v{vt}, 1, v2
        v_lshlrev_b32 v{vt}, 1, v{vt}
        v_and_b32 v{ve}, 7, v1
        v_xor_b32 v{ve}, v{ve}, v{vt}
        v_xor_b32 v{vt}, 4, v{ve}
        v_lshl_add_u32 v{ve}, v{ve}, 4, v{vo}
        v_lshl_add_u32 v{vo}, v{vt}, 4, v{vo}
        v_add_u32 v{vo}, {8*3456 - 1024}, v{vo}
        """)
    def w1loop(self, lab, ve, vo, so, end, thr=0):
        self.A(f"""
        {lab}:
        {f"s_waitcnt vmcnt({thr})" if thr else ""}
        buffer_load_dwordx4 v{ve}, {sr(TA)}, {so} offen lds
        buffer_load_dwordx4 v{vo}, {sr(TA)}, {so} offen offset:1024 lds
        s_add_u32 m0, m0, 2048
        s_add_u32 {so}, {so}, {16*3456}
        s_cmp_lt_u32 m0, {end}
        s_cbranch_scc1 {lab}
        """)
    def gen(self):
        A = self.A; a = self.a
        d, d0, nm = a.depth, a.d0, a.nm
        KR = 64
        VR = [192 + 4*i for i in range(16)] + [64 + 4*i for i in range(16)]
        so = lambda i: (f"s_add_u32 s86, s89, {i*8192}\ns_and_b32 s86, s86, 0x3ffff" if (a.rx or a.ry) else f"s_mov_b32 s86, {i*8192}")
        def kload(i): A(f"{so(i)}\nbuffer_load_dwordx4 {q4(KR+4*i)}, v4, {sr(K)}, s86 offen nt")
        def vload(i): A(f"{so(i)}\nbuffer_load_dwordx4 {q4(VR[i])}, v5, {sr(V)}, s86 offen nt")
        def hload(u):
            A(f"s_add_u32 s8, s88, {7*u*1024}\ns_add_u32 m0, s8, {L_KH}\ns_lshl_b32 s8, s8, 3")
            if a.rx or a.ry:
                A("s_add_u32 s9, s8, s89\ns_and_b32 s9, s9, 0x3ffff\ns_cmp_lt_u32 s8, 0x40000\ns_cselect_b32 s8, s9, s8")
            A(f"buffer_load_dwordx4 v4, {sr(KH)}, s8 offen nt lds")
        kseq = []
        for i in range(32):
            kseq.append(("K", i))
            if i % 6 == 5 and i//6 < 5: kseq.append(("H", i//6))
        for i in range(16): kseq.append(("V", i))
        def issue(op): {"K": kload, "V": vload, "H": hload}[op[0]](op[1])

        self.prologue()
        assert all(op[0] == "K" for op in kseq[:nm])
        A("s_cmp_eq_u32 s3, 0\ns_cbranch_scc1 L_c_j")
        for i in range(nm): kload(i)
        A("L_c_j:")
        self.setup2()
        A(f"s_cmp_eq_u32 s85, 2\ns_cbranch_scc0 L_c_a\ns_waitcnt vmcnt({5+nm})")
        A("s_cmp_eq_u32 s3, 0\ns_cbranch_scc0 L_c_i1\ns_waitcnt vmcnt(5)\nL_c_i1:")
        self.init1()
        A("L_c_a:\ns_cmp_eq_u32 s3, 0\ns_cbranch_scc1 L_helper")
        A(f"s_lshl_b32 s88, s3, 10\ns_sub_u32 s88, s88, 1024\ns_mov_b64 vcc, {0 if a.mode else -1}\ns_waitcnt vmcnt({nm}) lgkmcnt(0)")
        self.bump(4)
        if a.rows: A(f"s_bitcmp1_b32 {a.rows}, s5\ns_cselect_b64 vcc, 0, -1")
        if a.par: A(f"s_bitcmp1_b32 {a.par}, s97\ns_cselect_b32 s92, -1, 1")
        hdone = kseq.index(("H", 4)) + d
        assert hdone < len(kseq)
        for n, op in enumerate(kseq):
            if n < nm: continue
            if n < a.n0 or d == d0: A(f"s_waitcnt vmcnt({d0-1})")
            else:
                if (n - a.n0) % a.chk == 0 and n <= a.nref and not a.rows:
                    if n > a.n0: A("s_waitcnt lgkmcnt(0)\n" + ("v_cmp_eq_u32 vcc, 1, v14" if a.mode else "v_cmp_gt_u32 vcc, 2, v14"))
                    A("ds_read_b32 v14, v15")
                lb = self.newlab("Ld")
                A(f"s_cbranch_vccz {lb}\ns_waitcnt vmcnt({d0-1})\n{lb}:\ns_waitcnt vmcnt({(a.de if n < a.ne else d)-1})")
            if n == hdone: self.bump(8)
            issue(op)
            if n in (16, 32, 48): self.stamp(n//16)
        A("s_mov_b64 s[44:45], vcc")
        self.spin(0, 2, 1024)
        A("s_branch L_qk")
        self.helper(vload)
        A("L_qk:")
        A(f"""
        v_lshlrev_b32 v8, 6, v13
        v_lshl_add_u32 v8, v2, 4, v8
        ds_read_b128 v[24:27], v8 offset:{L_Q}
        v_lshrrev_b32 v9, 2, v3
        s_waitcnt lgkmcnt(0)
        """)
        for t in range(4):
            A(f"v_cmp_eq_u32 vcc, {t}, v9\ns_nop 1")
            for r in range(4): A(f"v_cndmask_b32 v{32+4*t+r}, 0, v{24+r}, vcc")
        A("s_waitcnt vmcnt(16)\ns_nop 0")
        for half in range(2):
            for gg in range(4):
                for t in range(4):
                    i = 16*half + 4*gg + t
                    A(f"{MF} {q4(48+4*gg)}, {q4(KR+4*i)}, {q4(32+4*t)}, {'0' if t == 0 else q4(48+4*gg)}")
            if half == 0:
                for i in range(16, 16 + a.d1): vload(i)
            A("s_nop 7")
            for j in range(4):
                for gg in range(4):
                    g = half*4 + gg
                    if j == 0: A(f"v_mov_b32_dpp v{24+g}, v{48+4*gg} quad_perm:[0,0,0,0] {DPPF}")
                    else: A(f"v_add_f32_dpp v{24+g}, v{48+4*gg+j}, v{24+g} quad_perm:[{j},{j},{j},{j}] {DPPF}")
            A("s_nop 1")
        self.stamp(4)
        self.softmax1()
        for i in range(16 + a.d1, 32):
            if i == a.ism: self.small_loads()
            ex = 2 if a.ism <= i < a.ism + a.d2 else 0
            if a.nref < 100 and a.dl < a.d2:
                lb = self.newlab("Ld")
                A(f"s_cmp_eq_u32 s44, 0\ns_cbranch_scc1 {lb}\ns_waitcnt vmcnt({a.dl-1+ex})\n{lb}:")
            A(f"s_waitcnt vmcnt({a.d2-1+ex})")
            vload(i)
        assert 16 + a.d1 <= a.ism < 32 - a.d2
        self.stamp(5)
        self.softmax2()
        def abuild(i):
            for r in range(4):
                A(f"v_and_b32_dpp v{32+4*(i%2)+r}, v{24+i//4}, v{16+r} row_newbcast:{4*(i%4)} {DPPF}")
        abuild(0)
        for i in range(32):
            if i + 1 < 32: abuild(i+1)
            else: A("s_nop 1")
            if 31 - i < a.d2: A(f"s_waitcnt vmcnt({31-i})")
            A(f"{MF} v[20:23], {q4(32+4*(i%2))}, {q4(VR[i])}, {'0' if i == 0 else 'v[20:23]'}")
            if i == 31 - a.d2: self.tail_prep()
        self.tail1()
        self.reducer()
        self.mlp()
        self.finish()
        self.subs()
        L = self.L
        L.append(f".fill ({a.pad} - (. - {NAME}_kernel))/4, 4, 0xbf800000")
        L += ['.section .rodata,"a"', ".p2align 6", f".amdhsa_kernel {NAME}_kernel",
              "  .amdhsa_next_free_vgpr 256", "  .amdhsa_next_free_sgpr 102", "  .amdhsa_accum_offset 256",
              "  .amdhsa_group_segment_fixed_size 0", "  .amdhsa_kernarg_size 104", "  .amdhsa_user_sgpr_count 2",
              "  .amdhsa_user_sgpr_kernarg_segment_ptr 1", "  .amdhsa_system_sgpr_workgroup_id_x 1", ".end_amdhsa_kernel"]
        return "\n".join(L) + "\n"

    def softmax1(self):
        A = self.A
        A(f"s_mov_b32 s8, {hex(SCALE)}")
        for g in range(0, 8, 2):
            A(f"v_cvt_pk_bf16_f32 v8, v{24+g}, v{25+g}")
            self.unpack(24+g, 25+g, 8)
            A(f"v_mul_f32 v{24+g}, s8, v{24+g}\nv_mul_f32 v{25+g}, s8, v{25+g}")
            A(f"v_cvt_pk_bf16_f32 v8, v{24+g}, v{25+g}")
            self.unpack(24+g, 25+g, 8)
        def wred(op, sdst):
            for c in (f"row_ror:4 {DPPF}", f"row_ror:8 {DPPF}", "row_bcast:15 row_mask:0xa bank_mask:0xf", "row_bcast:31 row_mask:0xc bank_mask:0xf"):
                A(f"s_nop 1\n{op}_dpp v8, v8, v8 {c}")
            A(f"s_nop 1\nv_readlane_b32 {sdst}, v8, 63")
        A("v_max3_f32 v8, v24, v25, v26\nv_max3_f32 v8, v8, v27, v28\nv_max3_f32 v8, v8, v29, v30\nv_max_f32 v8, v8, v31")
        wred("v_max_f32", "s95")
        A(f"s_mov_b32 s8, {hex(LOG2E)}\ns_nop 1")
        for g in range(8): A(f"v_subrev_f32 v{24+g}, s95, v{24+g}")
        for g in range(8): A(f"v_mul_f32 v{24+g}, s8, v{24+g}")
        for g in range(8): A(f"v_exp_f32 v{24+g}, v{24+g}")
        A("""
        s_nop 0
        v_add_f32 v8, v24, v25
        v_add_f32 v9, v26, v27
        v_add_f32 v10, v28, v29
        v_add_f32 v11, v30, v31
        v_add_f32 v8, v8, v9
        v_add_f32 v10, v10, v11
        v_add_f32 v8, v8, v10
        """)
        wred("v_add_f32", "s10")
        A(f"""
        s_lshl_b32 s11, s3, 3
        v_mov_b32 v10, s95
        v_mov_b32 v9, s11
        v_mov_b32 v11, s10
        ds_write_b64 v9, v[10:11] offset:{L_SM}
        s_waitcnt lgkmcnt(0)
        """)
        self.bump(12)
    def softmax2(self):
        A = self.A
        self.spin(12, 8, 4096)
        A(f"""
        v_and_b32 v9, 7, v1
        v_lshlrev_b32 v9, 3, v9
        s_mov_b32 s8, {hex(LOG2E)}
        ds_read_b64 v[10:11], v9 offset:{L_SM}
        s_waitcnt lgkmcnt(0)
        v_max_f32_dpp v8, v10, v10 row_ror:4 {DPPF}
        s_nop 1
        v_max_f32_dpp v8, v8, v8 row_ror:2 {DPPF}
        s_nop 1
        v_max_f32_dpp v8, v8, v8 row_ror:1 {DPPF}
        v_sub_f32 v10, v10, v8
        v_sub_f32 v12, s95, v8
        v_mul_f32 v10, s8, v10
        v_mul_f32 v12, s8, v12
        v_exp_f32 v10, v10
        v_exp_f32 v12, v12
        s_nop 0
        v_mul_f32 v10, v10, v11
        s_nop 1
        v_add_f32_dpp v10, v10, v10 quad_perm:[1,0,3,2] {DPPF}
        s_nop 1
        v_add_f32_dpp v10, v10, v10 quad_perm:[2,3,0,1] {DPPF}
        s_nop 1
        v_add_f32_dpp v10, v10, v10 row_half_mirror {DPPF}
        v_rcp_f32 v10, v10
        s_nop 0
        v_mul_f32 v10, v10, v12
        """)
        for g in range(8): A(f"v_mul_f32 v{24+g}, v10, v{24+g}")
        for g in range(8): A(f"v_cvt_pk_bf16_f32 v{24+g}, v{24+g}, v{24+g}")
        A("s_nop 1")

    def flg(self): return f"s_mov_b32 s10, {WS_FLG2}\nbuffer_load_dwordx4 v[128:131], v5, {sr(WS)}, s10 offen sc1"
    def mlp_small(self):
        o = []
        for i in range(5): o.append(f"s_mov_b32 s9, {WS_MOD + 80*512 + i*2048}\nbuffer_load_dword v{133+i}, v7, {sr(WS)}, s9 offen sc1")
        for i in range(5): o.append(f"s_mov_b32 s9, {WS_MOD + 60*512 + i*2048}\nbuffer_load_dword v{138+i}, v7, {sr(WS)}, s9 offen sc1")
        return o
    def red_small(self):
        return [f"buffer_load_dword v143, v148, {sr(WS)}, s42 offen sc1", f"buffer_load_dword v144, v149, {sr(WS)}, s43 offen sc1"]
    def small_loads(self):
        A = self.A
        A(f"""
        v_and_b32 v146, 7, v1
        v_and_b32 v147, 1, v2
        v_lshlrev_b32 v147, 2, v147
        v_lshl_add_u32 v148, v146, 3, v147
        v_lshl_add_u32 v149, v146, 6, v147
        v_and_b32 v8, 0x7c, v6
        s_lshl_b32 s9, s4, 7
        s_add_u32 s9, s9, {WS_FLG}
        buffer_load_dword v132, v8, {sr(WS)}, s9 offen sc1
        """)
        A(self.flg())

    def oloads(self): return [f"buffer_load_dwordx4 {q4(200+4*k)}, v42, {sr(WS)}, s89 offen offset:{k*64} sc1" for k in range(2)]
    def tail_prep(self):
        A = self.A
        A(f"""
        s_lshl_b32 s8, s3, 9
        v_lshlrev_b32 v40, 5, v3
        v_lshl_add_u32 v40, v2, 4, v40
        v_add_u32 v40, s8, v40
        v_lshlrev_b32 v41, 3, v1
        s_lshl_b32 s88, s87, 8
        s_add_u32 s88, s88, {hex(WS_O)}
        v_lshlrev_b32 v42, 8, v146
        v_lshl_add_u32 v42, v2, 4, v42
        v_lshrrev_b32 v9, 3, v1
        v_lshlrev_b32 v45, 10, v9
        v_lshl_add_u32 v45, v146, 4, v45
        s_cmp_lt_i32 s98, 0
        s_cbranch_scc1 L_tp_done
        s_lshl_b32 s8, s3, 10
        s_add_u32 s8, s8, {L_TB}
        v_lshrrev_b32 v8, 3, v3
        v_lshlrev_b32 v48, 7, v146
        v_lshl_add_u32 v48, v8, 6, v48
        v_lshl_add_u32 v48, v2, 4, v48
        v_add_u32 v48, s8, v48
        v_add_u32 v49, {L_TB}, v5
        s_lshl_b32 s89, s4, 13
        s_lshr_b32 s8, s3, 1
        s_lshl_b32 s8, s8, 11
        s_add_u32 s89, s89, s8
        s_and_b32 s8, s3, 1
        s_lshl_b32 s8, s8, 7
        s_add_u32 s89, s89, s8
        s_add_u32 s89, s89, {hex(WS_O)}
        s_lshl_b32 s94, s96, 10
        s_add_u32 s94, s94, {hex(WS_AP)}
        s_lshl_b32 s92, s98, 13
        s_lshl_b32 s8, s3, 7
        s_add_u32 s92, s92, s8
        s_add_u32 s92, s92, {hex(WS_AP)}
        s_lshl_b32 s43, s98, 9
        s_lshl_b32 s9, s3, 6
        s_add_u32 s42, s43, s9
        s_add_u32 s91, s42, s90
        s_add_u32 s42, s42, {WS_MOD + 40*512}
        s_lshl_b32 s9, s4, 3
        s_add_u32 s43, s43, s9
        s_add_u32 s99, s43, s90
        s_add_u32 s43, s43, {WS_MOD + 100*512}
        s_mul_i32 s9, s3, 1280
        s_lshl_b32 s10, s98, 6
        s_add_u32 s9, s9, s10
        buffer_load_dword v145, v148, {sr(X)}, s9 offen
        v_lshrrev_b32 v8, 1, v2
        v_lshlrev_b32 v8, 4, v8
        v_sub_u32 v14, 16, v8
        v_lshrrev_b32 v8, 2, v3
        v_lshl_add_u32 v8, v2, 3, v8
        v_lshlrev_b32 v8, 6, v8
        v_lshl_add_u32 v8, v13, 3, v8
        s_lshl_b32 s8, s3, 12
        s_add_u32 s8, s8, {L_WO}
        v_add_u32 v8, s8, v8
        """)
        for l in self.red_small(): A(l)
        for k in range(2):
            for m in range(2):
                r = 152 + 8*k + 4*m
                A(f"ds_read_b64_tr_b16 {q2(r)}, v8 offset:{k*2048 + m*32}")
                A(f"ds_read_b64_tr_b16 {q2(r+2)}, v8 offset:{k*2048 + m*32 + 256}")
        self.poll([self.flg()], range(128, 132), 8, 8, first_loaded=True)
        for l in self.oloads(): A(l)
        A("L_tp_done:")

    def sum8(self, addr, base, step):
        A = self.A
        if self.a.stamps: A("s_waitcnt lgkmcnt(0)")
        for j in range(8): A(f"ds_read_b128 {q4(64+4*j)}, {addr} offset:{base + j*step}")
        for j in range(0, 8, 2):
            A(f"s_waitcnt lgkmcnt({6-j})")
            for r in (0, 2): self.pk("add", 64+4*j+r, 64+4*j+r, q2(68+4*j+r))
            if j == 2:
                for r in (0, 2): self.pk("add", 64+r, 64+r, q2(72+r))
        for r in (0, 2): self.pk("add", 80+r, 80+r, q2(88+r))
        for r in (0, 2): self.pk("add", 64+r, 64+r, q2(80+r))
    def red_fin(self):
        self.A(f"""
        v_permlane32_swap_b32 v64, v65
        v_permlane32_swap_b32 v66, v67
        v_add_f32 v64, v64, v65
        v_add_f32 v66, v66, v67
        s_nop 1
        v_permlane16_swap_b32 v64, v66
        v_add_f32 v64, v64, v66
        s_nop 1
        v_add_f32_dpp v64, v64, v64 row_ror:8 {DPPF}
        v_cvt_pk_bf16_f32 v64, 0, v64
        v_mul_f32 v64, v64, v208
        v_cvt_pk_bf16_f32 v64, 0, v64
        v_add_f32 v64, v64, v209
        v_mov_b32 v65, v64
        s_nop 1
        v_permlane32_swap_b32 v64, v65
        v_cvt_pk_bf16_f32 v68, v64, v65
        v_cvt_pk_bf16_f32 v69, v64, v65
        s_nop 1
        v_permlane16_swap_b32 v68, v69
        """)

    def tail1(self):
        A = self.A; a = self.a
        A(f"""
        s_mov_b32 exec_hi, 0
        s_nop 6
        ds_write_b128 v40, v[20:23] offset:{L_R1}
        s_mov_b64 exec, -1
        """)
        self.samexcd(132)
        A("s_cselect_b32 s95, 1, 0")
        if a.pf:
            A("s_cmp_eq_u32 s100, 1\ns_cbranch_scc0 L_h_npf\ns_cmp_eq_u32 s3, 0\ns_cbranch_scc0 L_h_npf")
            self.w1addr(8, 9, 10)
            A(f"s_mov_b32 m0, {L_W1}\ns_mov_b32 s8, 0")
            self.w1loop("L_h_pf", 8, 9, "s8", L_W1 + a.pf*2048, a.dp)
            A("L_h_npf:")
        A("s_waitcnt lgkmcnt(0)\ns_barrier")
        self.stamp(6)
        A("s_cmp_eq_u32 s3, 0\ns_cbranch_scc0 L_opub\ns_mov_b32 exec_hi, 0")
        self.sum8("v5", L_R1, 512)
        A("v_cvt_pk_bf16_f32 v46, v64, v65\nv_cvt_pk_bf16_f32 v47, v66, v67\nv_min_u32 v46, -2, v46\nv_min_u32 v47, -2, v47\ns_cmp_eq_u32 s95, 1")
        self.store2([f"buffer_store_dwordx2 v[46:47], v41, {sr(WS)}, s88 offen"], 132)
        A("s_mov_b64 exec, -1\nL_opub:")
        self.stamp(5)
        if a.notail: A("s_branch L_fin")
        A("s_cmp_eq_u32 s100, 1\ns_cbranch_scc1 L_mlp\ns_cmp_eq_u32 s100, 2\ns_cbranch_scc0 L_fin")

    def reducer(self):
        A = self.A; a = self.a
        self.poll(self.red_small(), [143, 144], 8, 8, first_loaded=True)
        A("""
        v_lshlrev_b32 v208, v14, v143
        v_and_b32 v208, 0xffff0000, v208
        v_lshlrev_b32 v209, v14, v145
        v_and_b32 v209, 0xffff0000, v209
        """)
        self.poll(self.oloads(), range(200, 208), 8, 512, first_loaded=True, sleep=a.so)
        for k in range(2):
            for m in range(2):
                A(f"{MF} {q4(96+4*m)}, {q4(152+8*k+4*m)}, {q4(200+4*k)}, {'0' if k == 0 else q4(96+4*m)}")
        A("v_cmp_lt_u32 vcc, 7, v3\ns_nop 6")
        for r in range(4): A(f"v_cndmask_b32 v{96+r}, v{96+r}, v{100+r}, vcc")
        A("ds_write_b128 v48, v[96:99]\ns_waitcnt lgkmcnt(0)\ns_barrier\ns_cmp_eq_u32 s3, 0\ns_cbranch_scc0 L_apdone")
        self.sum8("v49", 0, 1024)
        for r in range(4): A(f"v_min_u32 v{96+r}, -2, v{64+r}")
        A(f"buffer_store_dwordx4 v[96:99], v5, {sr(WS)}, s94 offen sc1\nL_apdone:")
        self.stamp(7)
        self.sleep(a.wap)
        self.poll([f"buffer_load_dwordx4 v[64:67], v45, {sr(WS)}, s92 offen sc1"], range(64, 68), 8, 16, sleep=a.sr)
        self.red_fin()
        A("v_min_u32 v68, -2, v68\nv_min_u32 v69, -2, v69\ns_mov_b64 exec, 0xff\ns_cmp_eq_u32 s95, 1")
        self.store2([f"buffer_store_dwordx2 v[68:69], v41, {sr(WS)}, s91 offen"], 132)
        A("s_mov_b64 exec, -1")
        self.stamp(8)
        A(f"""
        s_cmp_eq_u32 s3, 7
        s_cbranch_scc0 L_fin
        v_lshlrev_b32 v208, v14, v144
        v_and_b32 v208, 0xffff0000, v208
        v_mul_u32_u24 v10, 20480, v9
        v_lshl_add_u32 v10, v146, 4, v10
        v_mul_u32_u24 v12, 1280, v1
        s_lshl_b32 s8, s96, 7
        s_add_u32 s8, s8, {hex(WS_OP)}
        s_add_u32 s9, s8, {8*20480}
        s_add_u32 s10, s8, {16*20480}
        s_add_u32 s11, s8, {24*20480}
        s_lshl_b32 s88, s96, 3
        """)
        self.poll([f"buffer_load_dword v145, v149, {sr(WS)}, s99 offen sc1"], [145], 13, 32, sleep=2)
        A("v_lshlrev_b32 v209, v14, v145\nv_and_b32 v209, 0xffff0000, v209")
        self.sleep(a.wop)
        loads = [f"buffer_load_dwordx4 {q4(64+4*i)}, v10, {sr(WS)}, s{8+i} offen sc1" for i in range(4)]
        self.poll(loads, range(64, 80), 13, 16, sleep=a.sr)
        for a_, b_ in ((64, 68), (72, 76), (64, 72)):
            for r in (0, 2): self.pk("add", a_+r, a_+r, q2(b_+r))
        A("s_nop 0")
        self.red_fin()
        A(f"""
        s_mov_b64 exec, 0xff
        buffer_store_dwordx2 v[68:69], v12, {sr(OUT)}, s88 offen
        s_mov_b64 exec, -1
        """)
        self.stamp(9)
        A("s_branch L_fin")

    def mlp(self):
        A = self.A; a = self.a
        W1F, W2F, AC, GR = 64, 104, 136, 152
        np_ = (40 - a.pf)//8; assert (40 - a.pf) % 8 == 0 and a.pf <= 32
        A("L_mlp:")
        self.w1addr(15, 14, 12)
        A(f"""
        s_mul_i32 s86, s3, {np_*16*3456}
        s_add_u32 s86, s86, {a.pf*16*3456}
        s_mul_i32 s87, s3, {np_*2048}
        s_add_u32 m0, s87, {L_W1 + a.pf*2048}
        s_add_u32 s87, s87, {L_W1 + a.pf*2048 + np_*2048}
        s_barrier
        """)
        for l in self.mlp_small(): A(l)
        self.w1loop("L_t1", 15, 14, "s86", "s87")
        A(f"""
        v_lshlrev_b32 v12, 1, v2
        v_xor_b32 v12, v12, v3
        v_mul_u32_u24 v14, 1280, v2
        v_lshl_add_u32 v15, v12, 4, v14
        v_xor_b32 v12, 8, v12
        v_lshl_add_u32 v14, v12, 4, v14
        v_add_u32 v14, {5120 - 1024}, v14
        s_lshl_b32 s87, s3, 11
        s_add_u32 m0, s87, {L_W2}
        s_mul_i32 s86, s3, {8*1280}
        buffer_load_dwordx4 v15, {sr(TB)}, s86 offen nt lds
        buffer_load_dwordx4 v14, {sr(TB)}, s86 offen offset:1024 nt lds
        s_cmp_eq_u32 s93, 2
        s_cbranch_scc1 L_mlp_nt
        s_add_u32 m0, m0, 16384
        s_add_u32 s86, s86, 256
        buffer_load_dwordx4 v15, {sr(TB)}, s86 offen nt lds
        buffer_load_dwordx4 v14, {sr(TB)}, s86 offen offset:1024 nt lds
        L_mlp_nt:
        s_waitcnt vmcnt({2*np_+2})
        """)
        self.poll([self.flg()] + self.mlp_small(), list(range(133, 143)) + [128, 129, 130, 131], 8, 64, first_loaded=True)
        for i in range(5):
            self.unpack(208+2*i, 209+2*i, 133+i)
            A(f"v_add_f32 v{208+2*i}, 1.0, v{208+2*i}\nv_add_f32 v{209+2*i}, 1.0, v{209+2*i}")
            A(f"v_cvt_pk_bf16_f32 v8, v{208+2*i}, v{209+2*i}")
            self.unpack(208+2*i, 209+2*i, 8)
            self.unpack(218+2*i, 219+2*i, 138+i)
        A(f"""
        v_lshrrev_b32 v8, 2, v3
        v_lshlrev_b32 v10, 10, v2
        v_lshl_add_u32 v10, v8, 7, v10
        v_lshl_add_u32 v10, v13, 3, v10
        s_lshr_b32 s8, s3, 1
        s_mul_i32 s9, s8, 20480
        s_add_u32 s9, s9, {L_W1}
        v_add_u32 v10, s9, v10
        v_and_b32 v9, 1, v2
        v_lshrrev_b32 v12, 3, v3
        v_lshl_add_u32 v12, v9, 1, v12
        s_and_b32 s10, s3, 1
        s_lshl_b32 s10, s10, 1
        v_xor_b32 v12, s10, v12
        v_xor_b32 v184, 1, v12
        v_lshl_add_u32 v184, v184, 5, v10
        v_lshl_add_u32 v10, v12, 5, v10
        v_lshl_add_u32 v11, v2, 2, v8
        v_lshlrev_b32 v11, 8, v11
        v_lshl_add_u32 v11, v13, 3, v11
        v_add_u32 v11, {L_W2}, v11
        v_lshl_add_u32 v12, v9, 2, v8
        s_and_b32 s9, s3, 3
        s_lshl_b32 s9, s9, 1
        v_xor_b32 v12, s9, v12
        v_xor_b32 v185, 1, v12
        v_lshl_add_u32 v185, v185, 5, v11
        v_lshl_add_u32 v11, v12, 5, v11
        v_lshlrev_b32 v186, 6, v146
        v_lshl_add_u32 v186, v2, 4, v186
        s_mul_i32 s9, s8, 2560
        v_add_u32 v186, s9, v186
        s_lshl_b32 s9, s3, 11
        s_add_u32 s9, s9, {L_G1}
        v_add_u32 v187, s9, v5
        v_lshrrev_b32 v9, 3, v3
        v_lshlrev_b32 v188, 10, v9
        v_lshl_add_u32 v188, v2, 8, v188
        v_lshl_add_u32 v188, v146, 4, v188
        v_add_u32 v188, {L_G1}, v188
        v_lshlrev_b32 v190, 4, v146
        v_lshl_add_u32 v190, v2, 7, v190
        s_add_u32 s43, s90, 4096
        s_add_u32 s89, s90, 8192
        s_lshl_b32 s9, s3, 10
        s_add_u32 s42, s101, s9
        s_mov_b32 s86, 0x00ff00ff
        s_mov_b32 s87, 0x00ff00ff
        s_add_u32 s88, s42, 4096
        s_waitcnt vmcnt(0)
        s_barrier
        """)
        self.stamp(1)
        loads = [f"buffer_load_dword v{24+i}, v7, {sr(WS)}, {['s90','s43','s89'][i//2]} offen offset:{(i%2)*2048} sc1" for i in range(5)]
        for l in loads: A(l)
        for k in range(5):
            for t in range(2):
                r = W1F + 8*k + 4*t
                A(f"ds_read_b64_tr_b16 {q2(r)}, {'v184' if t else 'v10'} offset:{k*4096}")
                A(f"ds_read_b64_tr_b16 {q2(r+2)}, {'v184' if t else 'v10'} offset:{k*4096 + 512}")
        A("s_cmp_ge_u32 s3, 4\ns_cbranch_scc1 L_now2")
        for m in range(4):
            for j in range(2):
                r = W2F + 8*m + 4*j
                A(f"ds_read_b64_tr_b16 {q2(r)}, {'v185' if m % 2 else 'v11'} offset:{(m//2)*16384 + j*8192}")
                A(f"ds_read_b64_tr_b16 {q2(r+2)}, {'v185' if m % 2 else 'v11'} offset:{(m//2)*16384 + j*8192 + 4096}")
        A("L_now2:\ns_waitcnt vmcnt(0)")
        self.poll(loads, range(24, 29), 8, 128, first_loaded=True, sleep=a.sx)
        self.stamp(8)
        if a.fast:
            self.ln_body(True)
            for i in range(5): A(f"v_pk_fma_f32 {q2(32+2*i)}, {q2(32+2*i)}, {q2(208+2*i)}, {q2(218+2*i)}")
        else:
            self.ln_body(False, pack=False)
            self.rnd(range(32, 42))
            for i in range(5): self.pk("mul", 32+2*i, 32+2*i, q2(208+2*i))
            self.rnd(range(32, 42))
            for i in range(5): self.pk("add", 32+2*i, 32+2*i, q2(218+2*i))
        for i in range(5):
            A(f"v_cvt_pk_bf16_f32 v{24+i}, v{32+2*i}, v{33+2*i}")
            A(f"ds_write_b32 v7, v{24+i} offset:{L_ACT + i*2048}")
        A("s_waitcnt lgkmcnt(0)\ns_barrier")
        for k in range(5): A(f"ds_read_b128 {q4(32+4*k)}, v186 offset:{L_ACT + k*512}")
        for k in range(5):
            A(f"s_waitcnt lgkmcnt({4-k})")
            for t in range(2):
                A(f"{MF} {q4(AC+4*t)}, {q4(W1F+8*k+4*t)}, {q4(32+4*k)}, {'0' if k == 0 else q4(AC+4*t)}")
        A(f"s_nop 6\nds_write_b128 v187, {q4(AC)}\nds_write_b128 v187, {q4(AC+4)} offset:1024\ns_waitcnt lgkmcnt(0)\ns_barrier")
        A("s_cmp_ge_u32 s3, 4\ns_cbranch_scc1 L_fin")
        for j in range(2):
            for k in range(4): A(f"ds_read_b128 {q4(GR+16*j+4*k)}, v188 offset:{k*4096 + j*2048}")
        for j in range(2):
            b0 = GR + 16*j
            A(f"s_waitcnt lgkmcnt({4-4*j})")
            for a_, b_ in ((0, 4), (8, 12), (0, 8)):
                for r in (0, 2): self.pk("add", b0+a_+r, b0+a_+r, q2(b0+b_+r))
            for r in range(4): A(f"v_cvt_pk_bf16_f32 v{32+4*j+r}, 0, v{b0+r}")
        A(f"s_mov_b32 s8, {hex(NLOG2E)}")
        for r in range(0, 8, 2): self.pk("mul", 40+r, 32+r, "s[8:9]", "op_sel_hi:[1,0]")
        for r in range(8): A(f"v_exp_f32 v{40+r}, v{40+r}")
        for r in range(0, 8, 2): self.pk("add", 40+r, 40+r, "1.0", "op_sel_hi:[1,0]")
        for r in range(8): A(f"v_rcp_f32 v{40+r}, v{40+r}")
        for r in range(0, 8, 2): self.pk("mul", 32+r, 32+r, q2(40+r))
        A(f"""
        v_cvt_pk_bf16_f32 v24, v32, v33
        v_cvt_pk_bf16_f32 v25, v34, v35
        v_cvt_pk_bf16_f32 v28, v36, v37
        v_cvt_pk_bf16_f32 v29, v38, v39
        v_mov_b32_dpp v26, v24 row_ror:8 {DPPF}
        v_mov_b32_dpp v27, v25 row_ror:8 {DPPF}
        v_mov_b32_dpp v30, v28 row_ror:8 {DPPF}
        v_mov_b32_dpp v31, v29 row_ror:8 {DPPF}
        """)
        for hf in range(2):
            for j in range(2):
                for m in (2*hf, 2*hf+1):
                    A(f"{MF} {q4(AC+4*m)}, {q4(W2F+8*m+4*j)}, {q4(24+4*j)}, {'0' if j == 0 else q4(AC+4*m)}")
        A("s_mov_b64 exec, s[86:87]\ns_cmp_eq_u32 s93, 2\ns_nop 0")
        for m in range(4):
            if m == 2: A("s_cbranch_scc1 L_opd")
            for r in range(4): A(f"v_min_u32 v{AC+4*m+r}, -2, v{AC+4*m+r}")
            A(f"buffer_store_dwordx4 {q4(AC+4*m)}, v190, {sr(WS)}, {'s42' if m < 2 else 's88'} offen offset:{(m%2)*512} sc1")
        A("L_opd:")
        A("s_mov_b64 exec, -1")
        self.stamp(9)

    def finish(self):
        A = self.A
        A("L_fin:\ns_cmp_eq_u32 s15, 0\ns_cbranch_scc1 L_noerr")
        A(f"v_mov_b32 v8, s15\ns_mov_b64 exec, 1\nbuffer_atomic_or v8, off, {sr(DBG)}, 0 offset:4 sc1\ns_mov_b64 exec, -1\nL_noerr:")
        if self.a.stamps:
            self.stamp(10)
            A("s_waitcnt lgkmcnt(0)")
            self.srdo(STS, f"s{WS}", f"s{WS+1}", hex(STAMP_OFF), "0x100000")
            A("s_mov_b32 s38, s97\ns_lshl_b32 s39, s100, 8\ns_or_b32 s39, s39, s85")
            A(f"s_mul_i32 s8, s2, {12*8*2}")
            A("s_cmp_eq_u32 s3, 0\ns_cbranch_scc1 L_st\ns_cmp_eq_u32 s3, 7\ns_cbranch_scc0 L_end\ns_add_u32 s8, s8, 96\nL_st:\ns_mov_b64 exec, 1")
            for k in range(12):
                A(f"v_mov_b32 v8, s{16+2*k}\nv_mov_b32 v9, s{17+2*k}\nbuffer_store_dwordx2 v[8:9], off, {sr(STS)}, s8 offset:{8*k}\ns_nop 1")
        A("L_end:\ns_endpgm")

    def subs(self):
        A = self.A
        pass
    def rnd(self, regs):
        for r in regs: self.A(f"v_cvt_pk_bf16_f32 v{r}, 0, v{r}")
    def ln_body(self, fast, pack=True):
        A = self.A
        for i in range(5):
            self.unpack(32+2*i, 33+2*i, 24+i)
            if i == 0: A("v_readfirstlane_b32 s8, v32")
        NEG = "op_sel_hi:[1,0] neg_lo:[0,1] neg_hi:[0,1]"
        for i in range(5): self.pk("add", 42+2*i, 32+2*i, "s[8:9]", NEG)
        self.pk("add", 52, 42, "v[44:45]"); self.pk("mul", 54, 42, "v[42:43]")
        for i in range(1, 5):
            if i > 1: self.pk("add", 52, 52, q2(42+2*i))
            A(f"v_pk_fma_f32 v[54:55], {q2(42+2*i)}, {q2(42+2*i)}, v[54:55]")
        A("v_add_f32 v52, v52, v53\nv_add_f32 v53, v54, v55\ns_nop 0")
        for c in (f"row_ror:1 {DPPF}", f"row_ror:2 {DPPF}", f"row_ror:4 {DPPF}", f"row_ror:8 {DPPF}",
                  "row_bcast:15 row_mask:0xa bank_mask:0xf", "row_bcast:31 row_mask:0xc bank_mask:0xf"):
            A(f"v_add_f32_dpp v52, v52, v52 {c}\nv_add_f32_dpp v53, v53, v53 {c}\ns_nop 0")
        A(f"""
        v_readlane_b32 s9, v52, 63
        v_readlane_b32 s10, v53, 63
        v_mov_b32 v54, {hex(INV640)}
        s_nop 0
        v_mul_f32 v52, s9, v54
        v_mul_f32 v53, s10, v54
        v_fma_f32 v53, -v52, v52, v53
        v_add_f32 v52, s8, v52
        v_max_f32 v53, 0, v53
        v_cvt_pk_bf16_f32 v52, 0, v52
        v_cvt_pk_bf16_f32 v54, 0, v53
        v_add_f32 v54, {hex(EPS)}, v54
        v_cvt_pk_bf16_f32 v54, 0, v54
        v_sqrt_f32 v54, v54
        """)
        for i in range(5): self.pk("add", 32+2*i, 32+2*i, "v[52:53]", NEG)
        A("v_cvt_pk_bf16_f32 v54, 0, v54\nv_rcp_f32 v54, v54")
        if fast: A("s_nop 0")
        else: self.rnd(range(32, 42))
        for i in range(5): self.pk("mul", 32+2*i, 32+2*i, "v[54:55]", "op_sel_hi:[1,0]")
        if not fast and pack:
            for i in range(5): A(f"v_cvt_pk_bf16_f32 v{24+i}, v{32+2*i}, v{33+2*i}")

if __name__ == "__main__":
    ap = argparse.ArgumentParser()
    ap.add_argument("-o", default="k.s"); ap.add_argument("--stamps", action="store_true")
    ap.add_argument("--fast", action="store_true"); ap.add_argument("--nolocal", action="store_true"); ap.add_argument("--notail", action="store_true")
    for n, v in dict(dp=0, rows=0, remap=1, dw=10, dm=4, nref=100, dl=4, wap=16, mode=0, lead=0, de=6, ne=0, dh=12, pf=8, rx=0, ry=0, par=0, diag=0, limit=40000, pad=19456, depth=3, d0=3, nm=3, n0=16, chk=3, d1=2, d2=6, ism=20, wa=0, w2=0, w3=0,
                     s1=8, s2=8, sr=0, sx=0, so=0, wx=20, wop=0).items():
        ap.add_argument("--" + n, type=int, default=v)
    ap.add_argument("--wof", default="")
    a = ap.parse_args()
    open(a.o, "w").write(G(a).gen())
```

```python
import argparse
NAME = "adaLN_cond__sliding_block_cached__dense_activation_silu__decode"

WS_MOD  = 0x00000
WS_FLG  = 61440
WS_FLB  = 62464
WS_QF   = 63488
NCLR    = 8
WS_X1   = 0x40000
WS_O    = 0x30000
WS_AP   = 0x60000
WS_QP   = 0x100000
WS_OP   = 0x180000
WS_END  = WS_OP + 27*20480
STAMP_OFF = 0x20000000
L_Q, L_SM, L_FL = 0, 256, 384
L_ACT, L_XN, L_TA = 1024, 11264, 21504
L_KH  = 62464
L_W1  = L_TA
L_W2  = L_W1 + 81920
L_WO  = L_W2
L_G1  = L_W2 + 32768
L_TB  = L_G1
L_BN  = L_G1 + 16384
L_END = L_BN + 2048
L_R1  = L_XN
assert L_KH + 35*1024 <= L_WO and L_END <= 163840
LOG2E, NLOG2E, SCALE, INV640, EPS = 0x3fb8aa3b, 0xbfb8aa3b, 0x3db504f3, 0x3acccccd, 0x3727c5ac
K, V, WS, WO, TA, TB, X, C, OUT, DBG, T0 = 44, 48, 52, 56, 60, 64, 68, 72, 76, 80, 92
KH = C
STS = 40
sr = lambda r: f"s[{r}:{r+3}]"
DPPF = "row_mask:0xf bank_mask:0xf"
MF = "v_mfma_f32_16x16x32_bf16"
q4 = lambda r: f"v[{r}:{r+3}]"
q2 = lambda r: f"v[{r}:{r+1}]"

class G:
    def __init__(self, a):
        self.L = []; self.lab = 0; self.a = a
    def A(self, s):
        for x in s.split("\n"):
            x = x.strip()
            if x: self.L.append(("" if x.endswith(":") else "    ") + x)
    def newlab(self, p="L"):
        self.lab += 1; return f"{p}_{self.lab}"
    def stamp(self, k, diag=0):
        if self.a.stamps and diag == self.a.diag: self.A(f"s_memrealtime s[{16+2*k}:{17+2*k}]")
    def srd(self, d, lo, hi, size):
        self.A(f"s_mov_b32 s{d}, {lo}\ns_mov_b32 s{d+1}, {hi}\ns_mov_b32 s{d+2}, {size}\ns_mov_b32 s{d+3}, 0x20000")
    def srdo(self, d, lo, hi, off, size):
        self.A(f"s_add_u32 s{d}, {lo}, {off}\ns_addc_u32 s{d+1}, {hi}, 0\ns_mov_b32 s{d+2}, {size}\ns_mov_b32 s{d+3}, 0x20000")
    def unpack(self, lo, hi, src):
        self.A(f"v_lshlrev_b32 v{lo}, 16, v{src}\nv_and_b32 v{hi}, 0xffff0000, v{src}")
    def pk(self, op, d, a, b, mods=""):
        self.A(f"v_pk_{op}_f32 {q2(d)}, {q2(a)}, {b} {mods}")
    def maxtree(self, dst, regs):
        regs = list(regs); A = self.A
        if len(regs) == 2:
            A(f"v_max_u32 v{dst}, v{regs[0]}, v{regs[1]}"); return
        A(f"v_max3_u32 v{dst}, v{regs[0]}, v{regs[1]}, v{regs[2]}"); regs = regs[3:]
        while len(regs) >= 2:
            A(f"v_max3_u32 v{dst}, v{dst}, v{regs[0]}, v{regs[1]}"); regs = regs[2:]
        if regs: A(f"v_max_u32 v{dst}, v{dst}, v{regs[0]}")
    def poll(self, loads, regs, tmp, code, first_loaded=False, sleep=1):
        A = self.A; regs = list(regs)
        lp = self.newlab("Lpoll"); ck = self.newlab("Lchk"); dn = self.newlab("Lpd")
        A(f"s_mov_b32 s14, {0 if 'e' in self.a.x else self.a.limit}")
        if first_loaded: A(f"s_branch {ck}")
        A(f"{lp}:")
        for l in loads: A(l)
        A("s_waitcnt vmcnt(0)")
        A(f"{ck}:")
        if len(regs) == 1: tmp = regs[0]
        else: self.maxtree(tmp, regs)
        A(f"v_cmp_eq_u32 vcc, -1, v{tmp}\ns_cbranch_vccz {dn}\ns_mov_b64 exec, vcc")
        if sleep: A(f"s_sleep {sleep}")
        A(f"s_sub_u32 s14, s14, 1\ns_cbranch_scc0 {lp}\ns_or_b32 s15, s15, {code}\n{dn}:\ns_mov_b64 exec, -1")
    def sleep(self, n):
        while n > 0:
            self.A(f"s_sleep {min(n, 120)}"); n -= 120
    def spin(self, off, target, code, vt=12, va=15):
        a = self.newlab("Lsp"); b = self.newlab("Lspd")
        self.A(f"""
        s_mov_b32 s14, {self.a.limit*8}
        {a}:
        ds_read_b32 v{vt}, v{va} offset:{off}
        s_waitcnt lgkmcnt(0)
        v_readfirstlane_b32 s8, v{vt}
        s_nop 0
        s_cmp_ge_u32 s8, {target}
        s_cbranch_scc1 {b}
        s_sleep 1
        s_sub_u32 s14, s14, 1
        s_cbranch_scc0 {a}
        s_or_b32 s15, s15, {code}
        {b}:
        """)
    def bump(self, off, vt=12, va=15):
        self.A(f"v_mov_b32 v{vt}, 1\ns_mov_b64 exec, 1\nds_add_u32 v{va}, v{vt} offset:{off}\ns_mov_b64 exec, -1")
    def silu(self, regs, tmps):
        A = self.A
        for r, t in zip(regs, tmps): A(f"v_mul_f32 v{t}, {hex(NLOG2E)}, v{r}")
        for t in tmps: A(f"v_exp_f32 v{t}, v{t}")
        A("s_nop 0")
        for t in tmps: A(f"v_add_f32 v{t}, 1.0, v{t}")
        for t in tmps: A(f"v_rcp_f32 v{t}, v{t}")
        A("s_nop 0")
        for r, t in zip(regs, tmps): A(f"v_mul_f32 v{r}, v{r}, v{t}")
    def store2(self, stores, cond_reg):
        a = self.newlab("Lwt"); b = self.newlab("Lsd")
        self.A(f"s_cbranch_scc0 {a}")
        for s in stores: self.A(s)
        self.A(f"s_branch {b}\n{a}:")
        for s in stores: self.A(s + " sc1")
        self.A(f"{b}:")
    def samexcd(self, reg):
        if self.a.nolocal: self.A("s_cmp_eq_u32 s3, 99")
        else: self.A(f"v_cmp_ne_u32 vcc, s97, v{reg}\ns_cmp_eq_u64 vcc, 0")

    def prologue(self):
        A = self.A; a = self.a
        ek = -(-(WS_FLG + (256 << a.fs)) // 8192)
        self.L += [f"; @launch grid=(256,1,1) block=(512,1,1) lds={L_END}",
                   '.amdgcn_target "amdgcn-amd-amdhsa--gfx950"', ".text", f".globl {NAME}_kernel", ".p2align 8",
                   f".type {NAME}_kernel,@function", f"{NAME}_kernel:"]
        A("""
        s_cmp_ge_u32 s2, 256
        s_cbranch_scc1 L_end
        s_load_dwordx16 s[16:31], s[0:1], 0
        s_load_dwordx8 s[32:39], s[0:1], 64
        s_load_dwordx2 s[40:41], s[0:1], 96
        """)
        if a.stamps: A("s_memrealtime s[42:43]")
        A(f"""
        v_lshrrev_b32 v1, 6, v0
        s_and_b32 s4, s2, 7
        v_readfirstlane_b32 s3, v1
        """)
        if a.cpf == 0: A(f"v_mul_u32_u24 v8, {a.pad//512}, v0\nglobal_load_dwordx4 v[24:27], v8, s[100:101] offset:-16")
        if a.cpf == 1: A(f"""
        s_bfe_u32 s8, s2, 0x30003
        s_mul_i32 s8, s8, {a.pad//8}
        v_lshlrev_b32 v8, 7, v0
        v_add_u32 v8, s8, v8
        v_cmp_gt_u32 vcc, {a.pad//1024}, v0
        s_and_saveexec_b64 s[10:11], vcc
        s_cbranch_execz L_npf
        global_load_dword v24, v8, s[100:101] offset:-16
        L_npf:
        s_mov_b64 exec, -1
        """)
        A(f"""
        v_and_b32 v1, 63, v0
        v_lshrrev_b32 v2, 4, v1
        v_and_b32 v3, 15, v1
        v_lshlrev_b32 v4, 6, v3
        v_lshl_add_u32 v4, v2, 4, v4
        v_lshlrev_b32 v5, 4, v1
        v_lshlrev_b32 v6, 2, v1
        v_and_b32 v13, 3, v1
        s_lshr_b32 s5, s2, 3
        s_lshl_b32 s6, s4, 2
        s_and_b32 s8, s5, 3
        s_add_u32 s6, s6, s8
        s_lshr_b32 s7, s5, 2
        """)
        hm = a.hm
        A(f"""
        s_mul_i32 s84, s8, {hm[1]}
        s_mul_i32 s9, s4, {hm[0]}
        s_add_u32 s84, s84, s9
        s_lshl_b32 s8, s7, 5
        s_add_u32 s84, s84, s8
        s_lshl_b32 s14, s84, 20
        """)
        if a.w7: A(f"""
        s_lshl_b32 s9, s3, 10
        s_sub_u32 s9, s9, 1024
        s_cmp_eq_u32 s3, 0
        s_cselect_b32 s9, {224*1024}, s9
        s_cselect_b32 s13, 1, 7
        """)
        else: A("s_lshl_b32 s9, s3, 10\ns_mov_b32 s13, 8")
        A(f"""
        s_sub_u32 s12, 0x40000, s9
        s_add_u32 s14, s14, s9
        s_add_u32 s14, s14, 0xC0000
        s_mov_b32 s15, 0
        s_mul_i32 s97, s3, 1280
        s_and_b32 s8, s5, 15
        s_lshr_b32 s8, s8, 1
        s_lshl_b32 s9, s8, 3
        s_add_u32 s9, s9, s4
        s_lshl_b32 s91, s9, 1
        s_and_b32 s10, s5, 1
        s_add_u32 s91, s91, s10
        s_mul_i32 s11, s3, 5120
        s_add_u32 m0, s11, {L_TA}
        v_mov_b32 v15, {L_FL}
        v_mov_b32 v8, 0
        v_mov_b32 v9, 0
        v_mov_b32 v10, 0
        v_mov_b32 v11, 0
        ds_write_b128 v15, v[8:11]
        s_nop 1
        v_mov_b32 v8, -1
        v_mov_b32 v9, -1
        v_mov_b32 v10, -1
        v_mov_b32 v11, -1
        s_cmp_lt_u32 s5, 16
        s_cbranch_scc1 L_p_mod
        s_mov_b32 s85, 1
        v_lshrrev_b32 v12, 3, v1
        v_lshlrev_b32 v12, 13, v12
        v_and_b32 v14, 7, v1
        v_lshl_add_u32 v12, v14, 4, v12
        s_lshl_b32 s99, s4, 3
        s_add_u32 s99, s99, s8
        s_lshr_b32 s9, s8, 1
        s_mul_i32 s9, s9, {hm[1]*256}
        s_mul_i32 s11, s4, {hm[0]*256}
        s_add_u32 s9, s9, s11
        s_and_b32 s11, s8, 1
        s_lshl_b32 s11, s11, 7
        s_add_u32 s9, s9, s11
        s_mul_i32 s10, s10, {320*8192}
        s_add_u32 s9, s9, s10
        s_mov_b32 s11, {8*8192}
        s_waitcnt lgkmcnt(0)
        s_add_u32 s{T0}, s22, s9
        s_addc_u32 s{T0+1}, s23, 0
        s_sub_u32 s{T0+2}, {640*8192}, s9
        s_branch L_p_j
        L_p_mod:
        s_mov_b32 s85, 2
        v_lshrrev_b32 v12, 2, v1
        v_mul_u32_u24 v12, 7680, v12
        v_lshl_add_u32 v12, v13, 4, v12
        s_lshl_b32 s9, s91, 6
        s_mov_b32 s11, {16*7680}
        s_mov_b32 s99, 0
        s_waitcnt lgkmcnt(0)
        s_add_u32 s{T0}, s34, s9
        s_addc_u32 s{T0+1}, s35, 0
        s_sub_u32 s{T0+2}, {640*7680}, s9
        s_cmp_lt_u32 s91, 120
        s_cbranch_scc1 L_p_j
        s_mov_b32 s85, 8
        s_mov_b32 s{T0+2}, 0
        L_p_j:
        s_mov_b32 s{T0+3}, 0x20000
        """)
        if 'n' in a.x: A(f"s_mov_b32 s{T0+2}, 0")
        self.srd(WS, "s40", "s41", hex(WS_END)); self.srd(DBG, "s38", "s39", 256)
        self.srd(X, "s16", "s17", 10240); self.srd(C, "s32", "s33", 10240)
        A(f"""
        s_lshl_b32 s87, s6, 3
        s_add_u32 s87, s87, s7
        s_cmp_eq_u32 s3, 0
        s_cbranch_scc0 L_p_nh
        s_setprio 3
        s_cmp_eq_u32 s85, 8
        s_cbranch_scc0 L_p_nc
        s_sub_u32 s8, s91, 120
        s_mul_i32 s8, s8, {ek*1024}
        """)
        for i in range(ek):
            if i and i % 4 == 0: A("s_add_u32 s8, s8, 4096")
            A(f"buffer_store_dwordx4 v[8:11], v5, {sr(WS)}, s8 offen offset:{(i%4)*1024} sc1")
        A(f"""
        s_waitcnt vmcnt(0)
        v_mov_b32 v14, 1
        s_mov_b64 exec, 1
        buffer_atomic_add v14, off, {sr(DBG)}, 0 sc1
        s_mov_b64 exec, -1
        s_sub_u32 s8, s91, 120
        s_mul_i32 s8, s8, 20480
        s_add_u32 s8, s8, {hex(WS_AP)}
        s_add_u32 s9, s8, 20480
        L_p_c2:
        buffer_store_dwordx4 v[8:11], v5, {sr(WS)}, s8 offen sc1
        s_add_u32 s8, s8, 1024
        s_cmp_lt_u32 s8, s9
        s_cbranch_scc1 L_p_c2
        L_p_nc:
        L_p_nh:
        s_cmp_eq_u32 s85, 2
        s_cbranch_scc0 L_p_nxc
        """)
        A("s_sub_u32 s8, s91, 20\ns_cmp_lt_u32 s8, 20\ns_cbranch_scc0 L_p_nx")
        for i in range(5): A(f"buffer_load_dword v{24+i}, v6, {sr(X)}, s97 offen offset:{i*256}")
        A("L_p_nx:")
        for i in range(5): A(f"buffer_load_dword v{56+i}, v6, {sr(C)}, s97 offen offset:{i*256}")
        A("L_p_nxc:\ns_mul_i32 s8, s3, s11\ns_mul_i32 s8, s8, 5")
        for u in range(5):
            A(f"buffer_load_dwordx4 v12, {sr(T0)}, s8 offen nt lds")
            if u < 4: A("s_add_u32 m0, m0, 1024\ns_add_u32 s8, s8, s11")
        self.srdo(K, "s18", "s19", "s14", "s12")
        A("s_waitcnt lgkmcnt(0)\ns_barrier")

    def setup2(self):
        A = self.A
        self.srdo(V, "s20", "s21", "s14", "s12")
        A(f"""
        s_sub_i32 s98, s5, 12
        """)
        if self.a.remap: A("""
        s_and_b32 s8, s98, 3
        s_lshl_b32 s8, s8, 1
        s_lshr_b32 s9, s98, 2
        s_add_u32 s8, s8, s9
        s_cmp_lt_u32 s98, 8
        s_cselect_b32 s98, s8, s98
        """)
        A(f"""
        s_max_i32 s9, s98, 0
        s_lshl_b32 s9, s9, 6
        s_mul_i32 s8, s4, {self.a.hm[0]*128*1280}
        s_add_u32 s8, s8, s9
        s_add_u32 s{WO}, s24, s8
        s_addc_u32 s{WO+1}, s25, 0
        s_sub_u32 s{WO+2}, {4096*1280}, s8
        s_mov_b32 s{WO+3}, 0x20000
        """)
        if 'o' in self.a.x: A(f"s_mov_b32 s{WO+2}, 0")
        self.srd(OUT, "s36", "s37", 10240)
        A("s_lshl_b32 s8, s84, 20\ns_add_u32 s8, s8, 0xC0000")
        self.srdo(KH, "s18", "s19", "s8", "0x40000")
        A(f"""
        s_mul_i32 s8, s5, 86
        s_lshr_b32 s8, s8, 8
        s_mul_i32 s9, s8, 3
        s_sub_u32 s93, s5, s9
        s_lshl_b32 s8, s8, 3
        s_add_u32 s8, s8, s4
        s_lshl_b32 s10, s8, 7
        s_add_u32 s{TA}, s28, s10
        s_addc_u32 s{TA+1}, s29, 0
        s_sub_u32 s{TA+2}, {640*3456}, s10
        s_mov_b32 s{TA+3}, 0x20000
        s_mul_i32 s10, s8, {64*1280}
        s_lshl_b32 s11, s93, 9
        s_add_u32 s10, s10, s11
        s_add_u32 s{TB}, s30, s10
        s_addc_u32 s{TB+1}, s31, 0
        s_sub_u32 s{TB+2}, {64*1280}, s11
        s_mov_b32 s{TB+3}, 0x20000
        s_mul_i32 s101, s8, 20480
        s_lshl_b32 s11, s93, 13
        s_add_u32 s101, s101, s11
        s_add_u32 s101, s101, {hex(WS_OP)}
        s_cmp_lt_u32 s8, 27
        s_cselect_b32 s100, 1, 0
        s_cmp_ge_i32 s98, 0
        s_cselect_b32 s100, 2, s100
        s_mul_i32 s90, s4, 10240
        s_add_u32 s90, s90, {hex(WS_X1)}
        s_lshl_b32 s96, s98, 3
        s_add_u32 s96, s96, s4
        s_getreg_b32 s97, hwreg(HW_REG_XCC_ID)
        s_and_b32 s97, s97, 15
        s_lshl_b32 s10, s3, 6
        v_lshlrev_b32 v7, 9, v2
        v_lshl_add_u32 v7, v3, 2, v7
        v_add_u32 v7, s10, v7
        v_lshrrev_b32 v0, 2, v1
        v_mul_u32_u24 v0, 1280, v0
        v_lshl_add_u32 v0, v13, 4, v0
        v_and_b32 v8, 1, v3
        v_lshlrev_b32 v8, 4, v8
        v_mov_b32 v9, 0xffff
        v_lshlrev_b32 v9, v8, v9
        v_lshrrev_b32 v8, 1, v3
        """)
        for r in range(4):
            A(f"v_cmp_eq_u32 vcc, {r}, v8\ns_nop 1\nv_cndmask_b32 v{16+r}, 0, v9, vcc")
        if self.a.stamps: A("s_mov_b32 s16, s42\ns_mov_b32 s17, s43")

    def init1(self):
        A = self.A
        for i in range(5): self.unpack(32+2*i, 33+2*i, 56+i)
        self.silu(list(range(32, 42)), list(range(44, 54)))
        for i in range(5):
            A(f"v_cvt_pk_bf16_f32 v{56+i}, v{32+2*i}, v{33+2*i}")
            A(f"ds_write_b32 v7, v{56+i} offset:{L_ACT + i*2048}")
        A("s_sub_u32 s8, s91, 20\ns_cmp_lt_u32 s8, 20\ns_cbranch_scc0 L_c_a")
        self.ln_body(False)
        for i in range(5): A(f"ds_write_b32 v7, v{24+i} offset:{L_XN + i*2048}")

    def clears1(self, fl, tag):
        self.A(f"""
        s_lshl_b32 s8, s87, 8
        s_add_u32 s8, s8, {hex(WS_O)}
        s_mov_b64 exec, 0xffff
        buffer_store_dwordx4 v[48:51], v5, {sr(WS)}, s8 offen {fl}
        s_cmp_eq_u32 s100, 2
        s_cbranch_scc0 L_h_nx{tag}
        s_lshl_b32 s8, s98, 9
        s_add_u32 s8, s8, s90
        s_mov_b32 exec_lo, -1
        buffer_store_dwordx4 v[48:51], v5, {sr(WS)}, s8 offen {fl}
        L_h_nx{tag}:
        s_lshl_b32 s8, s87, 2
        s_add_u32 s8, s8, {WS_FLB}
        s_mov_b64 exec, 1
        s_waitcnt vmcnt(0)
        buffer_store_dword v46, off, {sr(WS)}, s8 {fl}
        s_mov_b64 exec, -1
        """)
    def clears2(self):
        A = self.A
        A("v_mov_b32 v192, -1\nv_mov_b32 v193, -1\nv_mov_b32 v194, -1\nv_mov_b32 v195, -1\ns_cmp_eq_u32 s100, 1\ns_cbranch_scc0 L_h_no")
        for i in range(4): A(f"buffer_store_dwordx4 v[192:195], v5, {sr(WS)}, s101 offen offset:{i*1024} sc1")
        A("s_cmp_eq_u32 s93, 2\ns_cbranch_scc1 L_h_no\ns_add_u32 s8, s101, 4096")
        for i in range(4): A(f"buffer_store_dwordx4 v[192:195], v5, {sr(WS)}, s8 offen offset:{i*1024} sc1")
        A("L_h_no:")

    def helper(self, vload):
        A = self.A; a = self.a
        AF = lambda k, nt: (64 + 4*(k*4+nt)) if k < 8 else (208 + 4*((k-8)*4+nt))
        A("L_helper:")
        A(f"""
        s_waitcnt vmcnt(0)
        s_cmp_eq_u32 s85, 8
        s_cbranch_scc0 L_h_nb
        v_mov_b32 v14, 1
        s_mov_b64 exec, 1
        buffer_atomic_add v14, off, {sr(DBG)}, 0 offset:128 sc1
        s_mov_b64 exec, -1
        L_h_nb:
        """)
        cld = f"buffer_load_dword v12, off, {sr(DBG)}, 0 sc1"
        if a.cl == 0: A(cld)
        self.spin(4, 7, 256, vt=14)
        if a.cl == 1: A(cld)
        if a.cl == 2: A(f"s_cmp_eq_u32 s85, 2\ns_cbranch_scc0 L_h_c2\n{cld}\nL_h_c2:")
        self.stamp(9)
        A(f"""
        v_lshrrev_b32 v8, 2, v3
        s_cmp_eq_u32 s85, 2
        s_cbranch_scc1 L_h_mod
        v_lshlrev_b32 v10, 10, v2
        v_lshl_add_u32 v10, v8, 7, v10
        v_lshl_add_u32 v10, v13, 3, v10
        """)
        for k in range(10):
            for nt in range(4):
                r = AF(k, nt)
                A(f"ds_read_b64_tr_b16 {q2(r)}, v10 offset:{L_TA + k*4096 + nt*32}")
                A(f"ds_read_b64_tr_b16 {q2(r+2)}, v10 offset:{L_TA + k*4096 + nt*32 + 512}")
        if a.cl == 2: A(f"s_waitcnt lgkmcnt(0)\n{cld}")
        A(f"""
        s_branch L_h_cnt
        L_h_mod:
        v_lshlrev_b32 v10, 9, v2
        v_lshl_add_u32 v10, v8, 6, v10
        v_lshl_add_u32 v10, v13, 3, v10
        """)
        def rd(i):
            A(f"ds_read_b128 {q4(24+4*i)}, v4 offset:{L_ACT + i*1024}")
            for par in range(2):
                for nt in range(2):
                    r = 64 + 4*((2*i+par)*2+nt)
                    A(f"ds_read_b64_tr_b16 {q2(r)}, v10 offset:{L_TA + (2*i+par)*2048 + nt*32}")
                    A(f"ds_read_b64_tr_b16 {q2(r+2)}, v10 offset:{L_TA + (2*i+par)*2048 + nt*32 + 256}")
        if a.stamps: A("s_waitcnt lgkmcnt(0)")
        rd(0)
        for i in range(10):
            if i < 9:
                rd(i+1); A("s_waitcnt lgkmcnt(9)")
            else: A("s_waitcnt lgkmcnt(0)")
            for par in range(2):
                for nt in range(2):
                    r = 64 + 4*((2*i+par)*2+nt); a_ = 224 + 8*par + 4*nt
                    A(f"{MF} {q4(a_)}, {q4(r)}, {q4(24+4*i)}, {'0' if i == 0 else q4(a_)}")
        A(f"""
        v_and_b32 v8, 7, v3
        v_lshrrev_b32 v9, 3, v3
        v_lshlrev_b32 v11, 6, v8
        v_lshl_add_u32 v11, v9, 5, v11
        v_lshl_add_u32 v11, v2, 3, v11
        s_lshl_b32 s9, s91, 9
        s_add_u32 s8, s9, {L_XN - 20*512}
        v_add_u32 v14, s8, v11
        s_nop 1
        """)
        for r in range(4):
            A(f"v_add_f32_dpp v{24+r}, v{232+r}, v{224+r} row_ror:8 row_mask:0xf bank_mask:0x3")
            A(f"v_add_f32_dpp v{24+r}, v{228+r}, v{236+r} row_ror:8 row_mask:0xf bank_mask:0xc")
        A("v_cvt_pk_bf16_f32 v40, v24, v25\nv_cvt_pk_bf16_f32 v41, v26, v27")
        A("s_sub_u32 s8, s91, 20\ns_cmp_lt_u32 s8, 20\ns_cbranch_scc0 L_h_pub")
        A("ds_read_b64 v[42:43], v14")
        for j in range(2): self.unpack(24+2*j, 25+2*j, 40+j)
        for r in range(4): A(f"v_add_f32 v{24+r}, 1.0, v{24+r}")
        for j in range(2): A(f"v_cvt_pk_bf16_f32 v{40+j}, v{24+2*j}, v{25+2*j}")
        for j in range(2): self.unpack(24+2*j, 25+2*j, 40+j)
        A("s_waitcnt lgkmcnt(0)")
        for j in range(2): self.unpack(28+2*j, 29+2*j, 42+j)
        for r in range(4): A(f"v_mul_f32 v{24+r}, v{24+r}, v{28+r}")
        for j in range(2): A(f"v_cvt_pk_bf16_f32 v{40+j}, v{24+2*j}, v{25+2*j}")
        A(f"""
        L_h_pub:
        v_min_u32 v40, -2, v40
        v_min_u32 v41, -2, v41
        v_add_u32 v11, {L_BN}, v11
        v_add_u32 v14, {L_BN}, v5
        ds_write_b64 v11, v[40:41]
        ds_read_b128 v[40:43], v14
        L_h_cnt:
        s_mov_b32 s14, {a.limit}
        L_wc:
        s_waitcnt vmcnt(0)
        v_readfirstlane_b32 s8, v12
        s_nop 0
        s_cmp_ge_u32 s8, {NCLR}
        s_cbranch_scc1 L_wcd
        s_sleep {a.sc}
        buffer_load_dword v12, off, {sr(DBG)}, 0 sc1
        s_sub_u32 s14, s14, 1
        s_cbranch_scc0 L_wc
        s_or_b32 s15, s15, 1
        L_wcd:
        s_cmp_eq_u32 s85, 2
        s_cbranch_scc0 L_h_np
        s_mov_b32 exec_hi, 0
        s_waitcnt lgkmcnt(0)
        buffer_store_dwordx4 v[40:43], v5, {sr(WS)}, s9 offen sc1
        s_mov_b64 exec, -1
        L_h_np:
        s_lshl_b32 s8, s87, {a.fs}
        s_add_u32 s8, s8, {self.fbase()}
        v_mov_b32 v12, s97
        s_mov_b64 exec, 1
        buffer_store_dword v12, off, {sr(WS)}, s8 sc1
        s_mov_b64 exec, -1
        """)
        if a.oc == 0: self.clears2()
        self.stamp(1)
        A(f"""
        s_cmp_lt_i32 s98, 0
        s_cbranch_scc1 L_h_nwo
        s_mov_b32 m0, {L_WO}
        s_mov_b32 s8, 0
        L_h_wo:
        s_waitcnt vmcnt({a.dw-1})
        buffer_load_dwordx4 v0, {sr(WO)}, s8 offen {a.wof} lds
        s_add_u32 m0, m0, 1024
        s_sub_u32 s9, m0, {L_WO}
        s_and_b32 s10, s9, 0x1fff
        s_cselect_b32 s10, 0, {(a.hm[1]-1)*128*1280}
        s_add_u32 s8, s8, s10
        s_add_u32 s8, s8, 20480
        s_cmp_lt_u32 s9, 32768
        s_cbranch_scc1 L_h_wo
        L_h_nwo:
        """)
        A(f"v_and_b32 v14, 0x7c, v6\ns_lshl_b32 s43, s4, 7\ns_add_u32 s43, s43, {WS_FLG}")
        ids = lambda r: f"buffer_load_dword v{r}, v14, {sr(WS)}, s43 offen sc1"
        A("s_bitcmp1_b32 s85, 0\ns_cbranch_scc0 L_h_getq0")
        A(f"""
        v_and_b32 v8, 7, v3
        v_lshrrev_b32 v9, 3, v3
        v_mul_u32_u24 v12, 10240, v9
        v_lshl_add_u32 v12, v8, 6, v12
        v_lshl_add_u32 v12, v2, 4, v12
        v_lshlrev_b32 v196, 8, v8
        v_lshl_add_u32 v196, v9, 6, v196
        v_lshl_add_u32 v196, v2, 4, v196
        v_add_u32 v196, {L_BN}, v196
        v_add_u32 v197, {L_BN}, v5
        v_lshlrev_b32 v198, 10, v2
        v_lshl_add_u32 v198, v3, 4, v198
        s_and_b32 s10, s5, 1
        s_mul_i32 s8, s10, 5120
        s_add_u32 s42, s8, 2560
        s_lshr_b32 s11, s99, 1
        s_and_b32 s9, s5, 15
        s_lshl_b32 s9, s9, 2
        s_add_u32 s9, s9, s43
        s_add_u32 s9, s9, {WS_QF - WS_FLG}
        s_lshl_b32 s11, s11, 13
        s_lshl_b32 s10, s10, 9
        s_add_u32 s11, s11, s10
        s_and_b32 s10, s99, 1
        s_lshl_b32 s10, s10, 8
        s_add_u32 s11, s11, s10
        s_add_u32 s11, s11, {hex(WS_QP)}
        s_add_u32 s10, s11, 4096
        """)
        loads = [f"buffer_load_dwordx4 {q4(24+4*k)}, v12, {sr(WS)}, {'s8' if k < 5 else 's42'} offen offset:{(k%5)*512} sc1" for k in range(10)]
        self.sleep(a.wa - a.lead)
        if a.mode: A("v_mov_b32 v240, 1\nds_write_b32 v15, v240")
        self.sleep(a.lead)
        self.poll(loads, range(24, 64), 241, 2, sleep=a.s1)
        A(ids(12))
        self.stamp(2)
        A("v_cmp_lt_u32 vcc, 7, v3\ns_waitcnt lgkmcnt(0)")
        ACC = [8, 20, 248, 252]
        for k in range(11):
            if k < 10:
                for j in (4*k, 4*k+2):
                    self.unpack(240, 241, 24+j); self.unpack(242, 243, 25+j)
                    for r in range(4): A(f"v_add_f32_dpp v{244+r}, v{240+r}, v{240+r} row_ror:8 {DPPF}")
                    A(f"v_cvt_pk_bf16_f32 v{24+j}, v244, v245\nv_cvt_pk_bf16_f32 v{25+j}, v246, v247")
            if k >= 1:
                for nt in range(4):
                    A(f"{MF} {q4(ACC[nt])}, {q4(AF(k-1, nt))}, {q4(24+4*(k-1))}, {'0' if k == 1 else q4(ACC[nt])}")
        A("s_nop 5")
        for j in range(2):
            for r in range(4): A(f"v_cndmask_b32 v{24+4*j+r}, v{ACC[2*j]+r}, v{ACC[2*j+1]+r}, vcc")
        A("""
        ds_write_b128 v196, v[24:27]
        ds_write_b128 v196, v[28:31] offset:128
        ds_read_b128 v[32:35], v197
        ds_read_b128 v[36:39], v197 offset:1024
        s_waitcnt vmcnt(0)
        """)
        self.samexcd(12)
        A("s_waitcnt lgkmcnt(0)")
        self.store2([f"buffer_store_dwordx4 v[32:35], v198, {sr(WS)}, s11 offen", f"buffer_store_dwordx4 v[36:39], v198, {sr(WS)}, s10 offen",
                     f"s_mov_b64 exec, 1\ns_waitcnt vmcnt(0)\nbuffer_store_dword v1, off, {sr(WS)}, s9"], 12)
        A("s_mov_b64 exec, -1")
        self.stamp(8)
        self.sleep(a.w3)
        A("s_branch L_h_getq\nL_h_getq0:")
        A("s_waitcnt vmcnt(0) lgkmcnt(0)")
        A("s_cmp_lt_i32 s98, 0\ns_cbranch_scc0 L_h_getq")
        for i in range(16):
            A(f"s_waitcnt vmcnt({a.dm-1})")
            vload(i)
        self.sleep(a.w2 - a.lead)
        if a.mode: A("v_mov_b32 v240, 1\nds_write_b32 v15, v240")
        self.sleep(a.lead)
        A(f"""
        L_h_getq:
        v_lshlrev_b32 v12, 2, v13
        s_and_b32 s9, s5, 3
        s_lshl_b32 s9, s9, 4
        s_add_u32 s9, s9, s43
        s_add_u32 s9, s9, {WS_QF - WS_FLG}
        {ids(45)}
        """)
        self.poll([f"buffer_load_dword v44, v12, {sr(WS)}, s9 offen sc1"], [44], 45, 4, sleep=a.s2)
        A(f"""
        v_lshlrev_b32 v12, 3, v1
        s_lshl_b32 s8, s87, 10
        s_add_u32 s8, s8, {hex(WS_QP)}
        buffer_load_dwordx2 v[40:41], v12, {sr(WS)}, s8 offen sc1
        buffer_load_dwordx2 v[42:43], v12, {sr(WS)}, s8 offen offset:512 sc1
        v_mov_b32 v46, s97
        v_mov_b32 v48, -1
        v_mov_b32 v49, -1
        v_mov_b32 v50, -1
        v_mov_b32 v51, -1
        """)
        self.samexcd(45)
        A("s_cbranch_scc0 L_h_cw")
        self.clears1("", "a")
        A("s_branch L_h_cd\nL_h_cw:")
        self.clears1("sc1", "b")
        A("L_h_cd:")
        A(f"""
        v_add_f32 v32, v40, v42
        v_add_f32 v33, v41, v43
        v_cvt_pk_bf16_f32 v32, v32, v33
        ds_write_b32 v6, v32 offset:{L_Q}
        s_waitcnt lgkmcnt(0)
        ds_write_b32 v15, v15
        """)
        self.stamp(3)
        A(f"""
        s_setprio 0
        s_cmp_lt_i32 s98, 0
        s_cbranch_scc1 L_h_nv
        """)
        for i in range(16):
            A(f"s_waitcnt vmcnt({a.dh-1})")
            vload(i)
        A("L_h_nv:\ns_mov_b64 s[44:45], 0")
        self.spin(8, 7, 2048)
        A(f"v_add_u32 v8, {L_KH}, v5")
        for i in range(32): A(f"ds_read_b128 {q4(64+4*i)}, v8 offset:{i*1024}")

    def w1addr(self, ve, vo, vt):
        self.A(f"""
        v_lshrrev_b32 v{vo}, 3, v1
        v_mul_u32_u24 v{vo}, 3456, v{vo}
        v_and_b32 v{vt}, 1, v2
        v_lshlrev_b32 v{vt}, 1, v{vt}
        v_and_b32 v{ve}, 7, v1
        v_xor_b32 v{ve}, v{ve}, v{vt}
        v_xor_b32 v{vt}, 4, v{ve}
        v_lshl_add_u32 v{ve}, v{ve}, 4, v{vo}
        v_lshl_add_u32 v{vo}, v{vt}, 4, v{vo}
        v_add_u32 v{vo}, {8*3456 - 1024}, v{vo}
        """)
    def w1loop(self, lab, ve, vo, so, end, thr=0):
        self.A(f"""
        {lab}:
        {f"s_waitcnt vmcnt({thr})" if thr else ""}
        buffer_load_dwordx4 v{ve}, {sr(TA)}, {so} offen lds
        buffer_load_dwordx4 v{vo}, {sr(TA)}, {so} offen offset:1024 lds
        s_add_u32 m0, m0, 2048
        s_add_u32 {so}, {so}, {16*3456}
        s_cmp_lt_u32 m0, {end}
        s_cbranch_scc1 {lab}
        """)
    def gen(self):
        A = self.A; a = self.a
        d, d0, nm = a.depth, a.d0, a.nm
        KR = 64
        VR = [192 + 4*i for i in range(16)] + [64 + 4*i for i in range(16)]
        so = lambda i: f"s_mul_i32 s86, s13, {i*1024}"
        def kload(i): A(f"{so(i)}\nbuffer_load_dwordx4 {q4(KR+4*i)}, v4, {sr(K)}, s86 offen nt")
        def vload(i): A(f"{so(i)}\nbuffer_load_dwordx4 {q4(VR[i])}, v5, {sr(V)}, s86 offen nt")
        def hload(u):
            A(f"s_add_u32 s8, s88, {7*u*1024}\ns_add_u32 m0, s8, {L_KH}\n" + (f"s_add_u32 s8, s8, {224*1024}" if a.w7 else "s_lshl_b32 s8, s8, 3"))
            A(f"buffer_load_dwordx4 v4, {sr(KH)}, s8 offen nt lds")
        kseq = []
        for i in range(32):
            kseq.append(("K", i))
            if not a.hpos and i % 6 == 5 and i//6 < 5: kseq.append(("H", i//6))
            if a.hpos and i == a.hpos: kseq += [("H", u) for u in range(5)]
        for i in range(16): kseq.append(("V", i))
        def issue(op): {"K": kload, "V": vload, "H": hload}[op[0]](op[1])

        self.prologue()
        assert all(op[0] == "K" for op in kseq[:nm])
        A("s_cmp_eq_u32 s3, 0\ns_cbranch_scc1 L_c_j")
        for i in range(nm): kload(i)
        A("L_c_j:")
        self.setup2()
        A(f"s_cmp_eq_u32 s85, 2\ns_cbranch_scc0 L_c_a\ns_waitcnt vmcnt({5+nm})")
        A("s_cmp_eq_u32 s3, 0\ns_cbranch_scc0 L_c_i1\ns_waitcnt vmcnt(5)\nL_c_i1:")
        self.init1()
        A("L_c_a:\ns_cmp_eq_u32 s3, 0\ns_cbranch_scc1 L_helper")
        A(f"s_lshl_b32 s88, s3, 10\ns_sub_u32 s88, s88, 1024\ns_mov_b64 vcc, {0 if a.mode else -1}\ns_waitcnt vmcnt({nm}) lgkmcnt(0)")
        self.bump(4)
        if a.rows: A(f"s_bitcmp1_b32 {a.rows}, s5\ns_cselect_b64 vcc, 0, -1")
        if a.par: A(f"s_bitcmp1_b32 {a.par}, s97\ns_cselect_b32 s92, -1, 1")
        hdone = kseq.index(("H", 4)) + d
        assert hdone < len(kseq)
        for n, op in enumerate(kseq):
            if n < nm: continue
            if n >= len(kseq) - a.nfree: pass
            elif n < a.n0 or d == d0: A(f"s_waitcnt vmcnt({d0-1})")
            else:
                if (n - a.n0) % a.chk == 0 and n <= a.nref and not a.rows:
                    if n > a.n0: A("s_waitcnt lgkmcnt(0)\n" + ("v_cmp_eq_u32 vcc, 1, v14" if a.mode else "v_cmp_gt_u32 vcc, 2, v14"))
                    A("ds_read_b32 v14, v15")
                lb = self.newlab("Ld")
                A(f"s_cbranch_vccz {lb}\ns_waitcnt vmcnt({d0-1})\n{lb}:\ns_waitcnt vmcnt({(a.de if n < a.ne else d)-1})")
            if n == hdone: self.bump(8)
            issue(op)
            if n in (16, 32, 48): self.stamp(n//16)
        A("s_mov_b64 s[44:45], vcc")
        self.spin(0, 2, 1024)
        A("s_branch L_qk")
        self.helper(vload)
        A("L_qk:")
        A(f"""
        v_lshlrev_b32 v8, 6, v13
        v_lshl_add_u32 v8, v2, 4, v8
        ds_read_b128 v[24:27], v8 offset:{L_Q}
        v_lshrrev_b32 v9, 2, v3
        s_waitcnt lgkmcnt(0)
        """)
        for t in range(4):
            A(f"v_cmp_eq_u32 vcc, {t}, v9\ns_nop 1")
            for r in range(4): A(f"v_cndmask_b32 v{32+4*t+r}, 0, v{24+r}, vcc")
        A("s_waitcnt vmcnt(16)\ns_nop 0")
        for half in range(2):
            for gg in range(4):
                for t in range(4):
                    i = 16*half + 4*gg + t
                    A(f"{MF} {q4(48+4*gg)}, {q4(KR+4*i)}, {q4(32+4*t)}, {'0' if t == 0 else q4(48+4*gg)}")
            if half == 0:
                for i in range(16, 16 + a.d1): vload(i)
            A("s_nop 7")
            for j in range(4):
                for gg in range(4):
                    g = half*4 + gg
                    if j == 0: A(f"v_mov_b32_dpp v{24+g}, v{48+4*gg} quad_perm:[0,0,0,0] {DPPF}")
                    else: A(f"v_add_f32_dpp v{24+g}, v{48+4*gg+j}, v{24+g} quad_perm:[{j},{j},{j},{j}] {DPPF}")
            A("s_nop 1")
        self.stamp(4)
        self.softmax1()
        for i in range(16 + a.d1, 32):
            if i == a.ism: self.small_loads()
            ex = 2 if a.ism <= i < a.ism + a.d2 else 0
            if a.nref < 100 and a.dl < a.d2:
                lb = self.newlab("Ld")
                A(f"s_cmp_eq_u32 s44, 0\ns_cbranch_scc1 {lb}\ns_waitcnt vmcnt({a.dl-1+ex})\n{lb}:")
            A(f"s_waitcnt vmcnt({a.d2-1+ex})")
            vload(i)
        assert 16 + a.d1 <= a.ism < 32 - a.d2
        self.stamp(5)
        self.softmax2()
        def abuild(i):
            for r in range(4):
                A(f"v_and_b32_dpp v{32+4*(i%2)+r}, v{24+i//4}, v{16+r} row_newbcast:{4*(i%4)} {DPPF}")
        abuild(0)
        for i in range(32):
            if i + 1 < 32: abuild(i+1)
            else: A("s_nop 1")
            if 31 - i < a.d2: A(f"s_waitcnt vmcnt({31-i})")
            A(f"{MF} v[20:23], {q4(32+4*(i%2))}, {q4(VR[i])}, {'0' if i == 0 else 'v[20:23]'}")
            if i == 31 - a.d2: self.tail_prep()
        self.tail1()
        self.reducer()
        self.mlp()
        self.finish()
        self.subs()
        L = self.L
        L += ['.section .rodata,"a"', ".p2align 6", f".amdhsa_kernel {NAME}_kernel",
              "  .amdhsa_next_free_vgpr 256", "  .amdhsa_next_free_sgpr 102", "  .amdhsa_accum_offset 256",
              "  .amdhsa_group_segment_fixed_size 0", "  .amdhsa_kernarg_size 104", "  .amdhsa_user_sgpr_count 2",
              "  .amdhsa_user_sgpr_kernarg_segment_ptr 1", "  .amdhsa_system_sgpr_workgroup_id_x 1", ".end_amdhsa_kernel"]
        return "\n".join(L) + "\n"

    def softmax1(self):
        A = self.A
        A(f"s_mov_b32 s8, {hex(SCALE)}")
        for g in range(0, 8, 2):
            A(f"v_cvt_pk_bf16_f32 v8, v{24+g}, v{25+g}")
            self.unpack(24+g, 25+g, 8)
            A(f"v_mul_f32 v{24+g}, s8, v{24+g}\nv_mul_f32 v{25+g}, s8, v{25+g}")
            A(f"v_cvt_pk_bf16_f32 v8, v{24+g}, v{25+g}")
            self.unpack(24+g, 25+g, 8)
        def wred(op, sdst):
            for c in (f"row_ror:4 {DPPF}", f"row_ror:8 {DPPF}", "row_bcast:15 row_mask:0xa bank_mask:0xf", "row_bcast:31 row_mask:0xc bank_mask:0xf"):
                A(f"s_nop 1\n{op}_dpp v8, v8, v8 {c}")
            A(f"s_nop 1\nv_readlane_b32 {sdst}, v8, 63")
        A("v_max3_f32 v8, v24, v25, v26\nv_max3_f32 v8, v8, v27, v28\nv_max3_f32 v8, v8, v29, v30\nv_max_f32 v8, v8, v31")
        wred("v_max_f32", "s95")
        A(f"s_mov_b32 s8, {hex(LOG2E)}\ns_nop 1")
        for g in range(8): A(f"v_subrev_f32 v{24+g}, s95, v{24+g}")
        for g in range(8): A(f"v_mul_f32 v{24+g}, s8, v{24+g}")
        for g in range(8): A(f"v_exp_f32 v{24+g}, v{24+g}")
        A("""
        s_nop 0
        v_add_f32 v8, v24, v25
        v_add_f32 v9, v26, v27
        v_add_f32 v10, v28, v29
        v_add_f32 v11, v30, v31
        v_add_f32 v8, v8, v9
        v_add_f32 v10, v10, v11
        v_add_f32 v8, v8, v10
        """)
        wred("v_add_f32", "s10")
        A(f"""
        s_lshl_b32 s11, s3, 3
        v_mov_b32 v10, s95
        v_mov_b32 v9, s11
        v_mov_b32 v11, s10
        ds_write_b64 v9, v[10:11] offset:{L_SM}
        s_waitcnt lgkmcnt(0)
        """)
        self.bump(12)
    def softmax2(self):
        A = self.A
        self.spin(12, 8, 4096)
        A(f"""
        v_and_b32 v9, 7, v1
        v_lshlrev_b32 v9, 3, v9
        s_mov_b32 s8, {hex(LOG2E)}
        ds_read_b64 v[10:11], v9 offset:{L_SM}
        s_waitcnt lgkmcnt(0)
        v_max_f32_dpp v8, v10, v10 row_ror:4 {DPPF}
        s_nop 1
        v_max_f32_dpp v8, v8, v8 row_ror:2 {DPPF}
        s_nop 1
        v_max_f32_dpp v8, v8, v8 row_ror:1 {DPPF}
        v_sub_f32 v10, v10, v8
        v_sub_f32 v12, s95, v8
        v_mul_f32 v10, s8, v10
        v_mul_f32 v12, s8, v12
        v_exp_f32 v10, v10
        v_exp_f32 v12, v12
        s_nop 0
        v_mul_f32 v10, v10, v11
        s_nop 1
        v_add_f32_dpp v10, v10, v10 quad_perm:[1,0,3,2] {DPPF}
        s_nop 1
        v_add_f32_dpp v10, v10, v10 quad_perm:[2,3,0,1] {DPPF}
        s_nop 1
        v_add_f32_dpp v10, v10, v10 row_half_mirror {DPPF}
        v_rcp_f32 v10, v10
        s_nop 0
        v_mul_f32 v10, v10, v12
        """)
        for g in range(8): A(f"v_mul_f32 v{24+g}, v10, v{24+g}")
        for g in range(8): A(f"v_cvt_pk_bf16_f32 v{24+g}, v{24+g}, v{24+g}")
        A("s_nop 1")

    def flg(self): return f"s_lshl_b32 s10, s4, {self.a.fs+5}\ns_add_u32 s10, s10, {WS_FLB}\nbuffer_load_dword v132, v129, {sr(WS)}, s10 offen sc1"
    def cntb(self): return f"buffer_load_dword v128, off, {sr(DBG)}, 0 offset:128 sc1"
    def fbase(self): return WS_FLG
    def chk_b(self):
        a_, b_ = self.newlab("Lb"), self.newlab("Lbd")
        self.A(f"""
        s_mov_b32 s14, {self.a.limit}
        {a_}:
        v_readfirstlane_b32 s8, v128
        s_nop 0
        s_cmp_ge_u32 s8, {NCLR}
        s_cbranch_scc1 {b_}
        {self.cntb()}
        s_waitcnt vmcnt(0)
        s_sub_u32 s14, s14, 1
        s_cbranch_scc0 {a_}
        s_or_b32 s15, s15, 8
        {b_}:
        """)
    def mlp_small(self):
        o = []
        for i in range(5): o.append(f"s_mov_b32 s9, {WS_MOD + 80*512 + i*2048}\nbuffer_load_dword v{133+i}, v7, {sr(WS)}, s9 offen sc1")
        for i in range(5): o.append(f"s_mov_b32 s9, {WS_MOD + 60*512 + i*2048}\nbuffer_load_dword v{138+i}, v7, {sr(WS)}, s9 offen sc1")
        return o
    def red_small(self):
        return [f"buffer_load_dword v143, v148, {sr(WS)}, s42 offen sc1", f"buffer_load_dword v144, v149, {sr(WS)}, s43 offen sc1"]
    def small_loads(self):
        A = self.A
        A(f"""
        v_and_b32 v146, 7, v1
        v_and_b32 v147, 1, v2
        v_lshlrev_b32 v147, 2, v147
        v_lshl_add_u32 v148, v146, 3, v147
        v_lshl_add_u32 v149, v146, 6, v147
        v_and_b32 v129, 31, v1
        v_lshlrev_b32 v129, {self.a.fs}, v129
        """)
        A(self.flg()); A(self.cntb())

    def oloads(self): return [f"buffer_load_dwordx4 {q4(200+4*k)}, v42, {sr(WS)}, s89 offen offset:{k*64} sc1" for k in range(2)]
    def tail_prep(self):
        A = self.A
        A(f"""
        s_lshl_b32 s8, s3, 9
        v_lshlrev_b32 v40, 5, v3
        v_lshl_add_u32 v40, v2, 4, v40
        v_add_u32 v40, s8, v40
        v_lshlrev_b32 v41, 3, v1
        s_lshl_b32 s88, s87, 8
        s_add_u32 s88, s88, {hex(WS_O)}
        v_lshlrev_b32 v42, 8, v146
        v_lshl_add_u32 v42, v2, 4, v42
        v_lshrrev_b32 v9, 3, v1
        v_lshlrev_b32 v45, 10, v9
        v_lshl_add_u32 v45, v146, 4, v45
        s_cmp_lt_i32 s98, 0
        s_cbranch_scc1 L_tp_done
        s_lshl_b32 s8, s3, 10
        s_add_u32 s8, s8, {L_TB}
        v_lshrrev_b32 v8, 3, v3
        v_lshlrev_b32 v48, 7, v146
        v_lshl_add_u32 v48, v8, 6, v48
        v_lshl_add_u32 v48, v2, 4, v48
        v_add_u32 v48, s8, v48
        v_add_u32 v49, {L_TB}, v5
        s_lshl_b32 s89, s4, 13
        s_lshr_b32 s8, s3, 1
        s_lshl_b32 s8, s8, 11
        s_add_u32 s89, s89, s8
        s_and_b32 s8, s3, 1
        s_lshl_b32 s8, s8, 7
        s_add_u32 s89, s89, s8
        s_add_u32 s89, s89, {hex(WS_O)}
        s_lshl_b32 s94, s96, 10
        s_add_u32 s94, s94, {hex(WS_AP)}
        s_lshl_b32 s92, s98, 13
        s_lshl_b32 s8, s3, 7
        s_add_u32 s92, s92, s8
        s_add_u32 s92, s92, {hex(WS_AP)}
        s_lshl_b32 s43, s98, 9
        s_lshl_b32 s9, s3, 6
        s_add_u32 s42, s43, s9
        s_add_u32 s91, s42, s90
        s_add_u32 s42, s42, {WS_MOD + 40*512}
        s_lshl_b32 s9, s4, 3
        s_add_u32 s43, s43, s9
        s_add_u32 s99, s43, s90
        s_add_u32 s43, s43, {WS_MOD + 100*512}
        s_mul_i32 s9, s3, 1280
        s_lshl_b32 s10, s98, 6
        s_add_u32 s9, s9, s10
        buffer_load_dword v145, v148, {sr(X)}, s9 offen
        v_lshrrev_b32 v8, 1, v2
        v_lshlrev_b32 v8, 4, v8
        v_sub_u32 v14, 16, v8
        v_lshrrev_b32 v8, 2, v3
        v_lshl_add_u32 v8, v2, 3, v8
        v_lshlrev_b32 v8, 6, v8
        v_lshl_add_u32 v8, v13, 3, v8
        s_lshl_b32 s8, s3, 12
        s_add_u32 s8, s8, {L_WO}
        v_add_u32 v8, s8, v8
        """)
        for l in self.red_small(): A(l)
        for k in range(2):
            for m in range(2):
                r = 152 + 8*k + 4*m
                A(f"ds_read_b64_tr_b16 {q2(r)}, v8 offset:{k*2048 + m*32}")
                A(f"ds_read_b64_tr_b16 {q2(r+2)}, v8 offset:{k*2048 + m*32 + 256}")
        self.poll([self.flg()], [132], 8, 8, first_loaded=True)
        self.chk_b()
        for l in self.oloads(): A(l)
        A("L_tp_done:")

    def sum8(self, addr, base, step):
        A = self.A
        if self.a.stamps: A("s_waitcnt lgkmcnt(0)")
        for j in range(8): A(f"ds_read_b128 {q4(64+4*j)}, {addr} offset:{base + j*step}")
        for j in range(0, 8, 2):
            A(f"s_waitcnt lgkmcnt({6-j})")
            for r in (0, 2): self.pk("add", 64+4*j+r, 64+4*j+r, q2(68+4*j+r))
            if j == 2:
                for r in (0, 2): self.pk("add", 64+r, 64+r, q2(72+r))
        for r in (0, 2): self.pk("add", 80+r, 80+r, q2(88+r))
        for r in (0, 2): self.pk("add", 64+r, 64+r, q2(80+r))
    def red_fin(self):
        self.A(f"""
        v_permlane32_swap_b32 v64, v65
        v_permlane32_swap_b32 v66, v67
        v_add_f32 v64, v64, v65
        v_add_f32 v66, v66, v67
        s_nop 1
        v_permlane16_swap_b32 v64, v66
        v_add_f32 v64, v64, v66
        s_nop 1
        v_add_f32_dpp v64, v64, v64 row_ror:8 {DPPF}
        v_cvt_pk_bf16_f32 v64, 0, v64
        v_mul_f32 v64, v64, v208
        v_cvt_pk_bf16_f32 v64, 0, v64
        v_add_f32 v64, v64, v209
        v_mov_b32 v65, v64
        s_nop 1
        v_permlane32_swap_b32 v64, v65
        v_cvt_pk_bf16_f32 v68, v64, v65
        v_cvt_pk_bf16_f32 v69, v64, v65
        s_nop 1
        v_permlane16_swap_b32 v68, v69
        """)

    def tail1(self):
        A = self.A; a = self.a
        A(f"""
        s_mov_b32 exec_hi, 0
        s_nop 6
        ds_write_b128 v40, v[20:23] offset:{L_R1}
        s_mov_b64 exec, -1
        """)
        self.samexcd(132)
        A("s_cselect_b32 s95, 1, 0")
        if a.oc == 1:
            A("s_cmp_eq_u32 s3, 0\ns_cbranch_scc0 L_h_no2")
            self.clears2()
            A("s_waitcnt vmcnt(0)\nL_h_no2:")
        if a.pf:
            A("s_cmp_eq_u32 s100, 1\ns_cbranch_scc0 L_h_npf\ns_cmp_eq_u32 s3, 0\ns_cbranch_scc0 L_h_npf")
            self.w1addr(8, 9, 10)
            A(f"s_mov_b32 m0, {L_W1}\ns_mov_b32 s8, 0")
            self.w1loop("L_h_pf", 8, 9, "s8", L_W1 + a.pf*2048, a.dp)
            A("L_h_npf:")
        A("s_waitcnt lgkmcnt(0)\ns_barrier")
        self.stamp(6)
        A("s_cmp_eq_u32 s3, 0\ns_cbranch_scc0 L_opub\ns_mov_b32 exec_hi, 0")
        self.sum8("v5", L_R1, 512)
        A("v_cvt_pk_bf16_f32 v46, v64, v65\nv_cvt_pk_bf16_f32 v47, v66, v67\nv_min_u32 v46, -2, v46\nv_min_u32 v47, -2, v47\ns_cmp_eq_u32 s95, 1")
        self.store2([f"buffer_store_dwordx2 v[46:47], v41, {sr(WS)}, s88 offen"], 132)
        A("s_mov_b64 exec, -1\nL_opub:")
        self.stamp(5)
        if a.notail: A("s_branch L_fin")
        A("s_cmp_eq_u32 s100, 1\ns_cbranch_scc1 L_mlp\ns_cmp_eq_u32 s100, 2\ns_cbranch_scc0 L_fin")

    def reducer(self):
        A = self.A; a = self.a
        self.poll(self.red_small(), [143, 144], 8, 8, first_loaded=True)
        A("""
        v_lshlrev_b32 v208, v14, v143
        v_and_b32 v208, 0xffff0000, v208
        v_lshlrev_b32 v209, v14, v145
        v_and_b32 v209, 0xffff0000, v209
        """)
        self.poll(self.oloads(), range(200, 208), 8, 512, first_loaded=True, sleep=a.so)
        for k in range(2):
            for m in range(2):
                A(f"{MF} {q4(96+4*m)}, {q4(152+8*k+4*m)}, {q4(200+4*k)}, {'0' if k == 0 else q4(96+4*m)}")
        A("v_cmp_lt_u32 vcc, 7, v3\ns_nop 6")
        for r in range(4): A(f"v_cndmask_b32 v{96+r}, v{96+r}, v{100+r}, vcc")
        A("ds_write_b128 v48, v[96:99]\ns_waitcnt lgkmcnt(0)\ns_barrier\ns_cmp_eq_u32 s3, 0\ns_cbranch_scc0 L_apdone")
        self.sum8("v49", 0, 1024)
        for r in range(4): A(f"v_min_u32 v{96+r}, -2, v{64+r}")
        A(f"buffer_store_dwordx4 v[96:99], v5, {sr(WS)}, s94 offen sc1\nL_apdone:")
        self.stamp(7)
        self.sleep(a.wap)
        self.poll([f"buffer_load_dwordx4 v[64:67], v45, {sr(WS)}, s92 offen sc1"], range(64, 68), 8, 16, sleep=a.sr)
        self.red_fin()
        A("v_min_u32 v68, -2, v68\nv_min_u32 v69, -2, v69\ns_mov_b64 exec, 0xff\ns_cmp_eq_u32 s95, 1")
        self.store2([f"buffer_store_dwordx2 v[68:69], v41, {sr(WS)}, s91 offen"], 132)
        A("s_mov_b64 exec, -1")
        self.stamp(8)
        A(f"""
        s_cmp_eq_u32 s3, 7
        s_cbranch_scc0 L_fin
        v_lshlrev_b32 v208, v14, v144
        v_and_b32 v208, 0xffff0000, v208
        v_mul_u32_u24 v10, 20480, v9
        v_lshl_add_u32 v10, v146, 4, v10
        v_mul_u32_u24 v12, 1280, v1
        s_lshl_b32 s8, s96, 7
        s_add_u32 s8, s8, {hex(WS_OP)}
        s_add_u32 s9, s8, {8*20480}
        s_add_u32 s10, s8, {16*20480}
        s_add_u32 s11, s8, {24*20480}
        s_lshl_b32 s88, s96, 3
        """)
        self.poll([f"buffer_load_dword v145, v149, {sr(WS)}, s99 offen sc1"], [145], 13, 32, sleep=2)
        A("v_lshlrev_b32 v209, v14, v145\nv_and_b32 v209, 0xffff0000, v209")
        self.sleep(a.wop)
        loads = [f"buffer_load_dwordx4 {q4(64+4*i)}, v10, {sr(WS)}, s{8+i} offen sc1" for i in range(4)]
        self.poll(loads, range(64, 80), 13, 16, sleep=a.sr)
        for a_, b_ in ((64, 68), (72, 76), (64, 72)):
            for r in (0, 2): self.pk("add", a_+r, a_+r, q2(b_+r))
        A("s_nop 0")
        self.red_fin()
        A(f"""
        s_mov_b64 exec, 0xff
        buffer_store_dwordx2 v[68:69], v12, {sr(OUT)}, s88 offen
        s_mov_b64 exec, -1
        """)
        self.stamp(9)
        A("s_branch L_fin")

    def mlp(self):
        A = self.A; a = self.a
        W1F, W2F, AC, GR = 64, 104, 136, 152
        np_ = (40 - a.pf)//8; assert (40 - a.pf) % 8 == 0 and a.pf <= 32
        A("L_mlp:")
        self.w1addr(15, 14, 12)
        A(f"""
        s_mul_i32 s86, s3, {np_*16*3456}
        s_add_u32 s86, s86, {a.pf*16*3456}
        s_mul_i32 s87, s3, {np_*2048}
        s_add_u32 m0, s87, {L_W1 + a.pf*2048}
        s_add_u32 s87, s87, {L_W1 + a.pf*2048 + np_*2048}
        s_barrier
        """)
        if a.oc == 2:
            A("s_cmp_eq_u32 s3, 0\ns_cbranch_scc0 L_h_no2")
            self.clears2()
            A("L_h_no2:")
        for l in self.mlp_small(): A(l)
        self.w1loop("L_t1", 15, 14, "s86", "s87")
        A(f"""
        v_lshlrev_b32 v12, 1, v2
        v_xor_b32 v12, v12, v3
        v_mul_u32_u24 v14, 1280, v2
        v_lshl_add_u32 v15, v12, 4, v14
        v_xor_b32 v12, 8, v12
        v_lshl_add_u32 v14, v12, 4, v14
        v_add_u32 v14, {5120 - 1024}, v14
        s_lshl_b32 s87, s3, 11
        s_add_u32 m0, s87, {L_W2}
        s_mul_i32 s86, s3, {8*1280}
        buffer_load_dwordx4 v15, {sr(TB)}, s86 offen nt lds
        buffer_load_dwordx4 v14, {sr(TB)}, s86 offen offset:1024 nt lds
        s_cmp_eq_u32 s93, 2
        s_cbranch_scc1 L_mlp_nt
        s_add_u32 m0, m0, 16384
        s_add_u32 s86, s86, 256
        buffer_load_dwordx4 v15, {sr(TB)}, s86 offen nt lds
        buffer_load_dwordx4 v14, {sr(TB)}, s86 offen offset:1024 nt lds
        L_mlp_nt:
        s_waitcnt vmcnt({2*np_+2})
        """)
        self.poll([self.flg()] + self.mlp_small(), list(range(132, 143)), 8, 64, first_loaded=True)
        for i in range(5):
            self.unpack(208+2*i, 209+2*i, 133+i)
            A(f"v_add_f32 v{208+2*i}, 1.0, v{208+2*i}\nv_add_f32 v{209+2*i}, 1.0, v{209+2*i}")
            A(f"v_cvt_pk_bf16_f32 v8, v{208+2*i}, v{209+2*i}")
            self.unpack(208+2*i, 209+2*i, 8)
            self.unpack(218+2*i, 219+2*i, 138+i)
        A(f"""
        v_lshrrev_b32 v8, 2, v3
        v_lshlrev_b32 v10, 10, v2
        v_lshl_add_u32 v10, v8, 7, v10
        v_lshl_add_u32 v10, v13, 3, v10
        s_lshr_b32 s8, s3, 1
        s_mul_i32 s9, s8, 20480
        s_add_u32 s9, s9, {L_W1}
        v_add_u32 v10, s9, v10
        v_and_b32 v9, 1, v2
        v_lshrrev_b32 v12, 3, v3
        v_lshl_add_u32 v12, v9, 1, v12
        s_and_b32 s10, s3, 1
        s_lshl_b32 s10, s10, 1
        v_xor_b32 v12, s10, v12
        v_xor_b32 v184, 1, v12
        v_lshl_add_u32 v184, v184, 5, v10
        v_lshl_add_u32 v10, v12, 5, v10
        v_lshl_add_u32 v11, v2, 2, v8
        v_lshlrev_b32 v11, 8, v11
        v_lshl_add_u32 v11, v13, 3, v11
        v_add_u32 v11, {L_W2}, v11
        v_lshl_add_u32 v12, v9, 2, v8
        s_and_b32 s9, s3, 3
        s_lshl_b32 s9, s9, 1
        v_xor_b32 v12, s9, v12
        v_xor_b32 v185, 1, v12
        v_lshl_add_u32 v185, v185, 5, v11
        v_lshl_add_u32 v11, v12, 5, v11
        v_lshlrev_b32 v186, 6, v146
        v_lshl_add_u32 v186, v2, 4, v186
        s_mul_i32 s9, s8, 2560
        v_add_u32 v186, s9, v186
        s_lshl_b32 s9, s3, 11
        s_add_u32 s9, s9, {L_G1}
        v_add_u32 v187, s9, v5
        v_lshrrev_b32 v9, 3, v3
        v_lshlrev_b32 v188, 10, v9
        v_lshl_add_u32 v188, v2, 8, v188
        v_lshl_add_u32 v188, v146, 4, v188
        v_add_u32 v188, {L_G1}, v188
        v_lshlrev_b32 v190, 4, v146
        v_lshl_add_u32 v190, v2, 7, v190
        s_add_u32 s43, s90, 4096
        s_add_u32 s89, s90, 8192
        s_lshl_b32 s9, s3, 10
        s_add_u32 s42, s101, s9
        s_mov_b32 s86, 0x00ff00ff
        s_mov_b32 s87, 0x00ff00ff
        s_add_u32 s88, s42, 4096
        s_waitcnt vmcnt(0)
        s_barrier
        """)
        self.stamp(1)
        loads = [f"buffer_load_dword v{24+i}, v7, {sr(WS)}, {['s90','s43','s89'][i//2]} offen offset:{(i%2)*2048} sc1" for i in range(5)]
        for l in loads: A(l)
        for k in range(5):
            for t in range(2):
                r = W1F + 8*k + 4*t
                A(f"ds_read_b64_tr_b16 {q2(r)}, {'v184' if t else 'v10'} offset:{k*4096}")
                A(f"ds_read_b64_tr_b16 {q2(r+2)}, {'v184' if t else 'v10'} offset:{k*4096 + 512}")
        A("s_cmp_ge_u32 s3, 4\ns_cbranch_scc1 L_now2")
        for m in range(4):
            for j in range(2):
                r = W2F + 8*m + 4*j
                A(f"ds_read_b64_tr_b16 {q2(r)}, {'v185' if m % 2 else 'v11'} offset:{(m//2)*16384 + j*8192}")
                A(f"ds_read_b64_tr_b16 {q2(r+2)}, {'v185' if m % 2 else 'v11'} offset:{(m//2)*16384 + j*8192 + 4096}")
        A("L_now2:\ns_waitcnt vmcnt(0)")
        self.poll(loads, range(24, 29), 8, 128, first_loaded=True, sleep=a.sx)
        self.stamp(8)
        if a.fast:
            self.ln_body(True)
            for i in range(5): A(f"v_pk_fma_f32 {q2(32+2*i)}, {q2(32+2*i)}, {q2(208+2*i)}, {q2(218+2*i)}")
        else:
            self.ln_body(False, pack=False)
            self.rnd(range(32, 42))
            for i in range(5): self.pk("mul", 32+2*i, 32+2*i, q2(208+2*i))
            self.rnd(range(32, 42))
            for i in range(5): self.pk("add", 32+2*i, 32+2*i, q2(218+2*i))
        for i in range(5):
            A(f"v_cvt_pk_bf16_f32 v{24+i}, v{32+2*i}, v{33+2*i}")
            A(f"ds_write_b32 v7, v{24+i} offset:{L_ACT + i*2048}")
        A("s_waitcnt lgkmcnt(0)\ns_barrier")
        for k in range(5): A(f"ds_read_b128 {q4(32+4*k)}, v186 offset:{L_ACT + k*512}")
        for k in range(5):
            A(f"s_waitcnt lgkmcnt({4-k})")
            for t in range(2):
                A(f"{MF} {q4(AC+4*t)}, {q4(W1F+8*k+4*t)}, {q4(32+4*k)}, {'0' if k == 0 else q4(AC+4*t)}")
        A(f"s_nop 6\nds_write_b128 v187, {q4(AC)}\nds_write_b128 v187, {q4(AC+4)} offset:1024\ns_waitcnt lgkmcnt(0)\ns_barrier")
        A("s_cmp_ge_u32 s3, 4\ns_cbranch_scc1 L_fin")
        for j in range(2):
            for k in range(4): A(f"ds_read_b128 {q4(GR+16*j+4*k)}, v188 offset:{k*4096 + j*2048}")
        for j in range(2):
            b0 = GR + 16*j
            A(f"s_waitcnt lgkmcnt({4-4*j})")
            for a_, b_ in ((0, 4), (8, 12), (0, 8)):
                for r in (0, 2): self.pk("add", b0+a_+r, b0+a_+r, q2(b0+b_+r))
            for r in range(4): A(f"v_cvt_pk_bf16_f32 v{32+4*j+r}, 0, v{b0+r}")
        A(f"s_mov_b32 s8, {hex(NLOG2E)}")
        for r in range(0, 8, 2): self.pk("mul", 40+r, 32+r, "s[8:9]", "op_sel_hi:[1,0]")
        for r in range(8): A(f"v_exp_f32 v{40+r}, v{40+r}")
        for r in range(0, 8, 2): self.pk("add", 40+r, 40+r, "1.0", "op_sel_hi:[1,0]")
        for r in range(8): A(f"v_rcp_f32 v{40+r}, v{40+r}")
        for r in range(0, 8, 2): self.pk("mul", 32+r, 32+r, q2(40+r))
        A(f"""
        v_cvt_pk_bf16_f32 v24, v32, v33
        v_cvt_pk_bf16_f32 v25, v34, v35
        v_cvt_pk_bf16_f32 v28, v36, v37
        v_cvt_pk_bf16_f32 v29, v38, v39
        v_mov_b32_dpp v26, v24 row_ror:8 {DPPF}
        v_mov_b32_dpp v27, v25 row_ror:8 {DPPF}
        v_mov_b32_dpp v30, v28 row_ror:8 {DPPF}
        v_mov_b32_dpp v31, v29 row_ror:8 {DPPF}
        """)
        for hf in range(2):
            for j in range(2):
                for m in (2*hf, 2*hf+1):
                    A(f"{MF} {q4(AC+4*m)}, {q4(W2F+8*m+4*j)}, {q4(24+4*j)}, {'0' if j == 0 else q4(AC+4*m)}")
        A("s_mov_b64 exec, s[86:87]\ns_cmp_eq_u32 s93, 2\ns_nop 0")
        for m in range(4):
            if m == 2: A("s_cbranch_scc1 L_opd")
            for r in range(4): A(f"v_min_u32 v{AC+4*m+r}, -2, v{AC+4*m+r}")
            A(f"buffer_store_dwordx4 {q4(AC+4*m)}, v190, {sr(WS)}, {'s42' if m < 2 else 's88'} offen offset:{(m%2)*512} sc1")
        A("L_opd:")
        A("s_mov_b64 exec, -1")
        self.stamp(9)

    def finish(self):
        A = self.A
        A("L_fin:\ns_cmp_eq_u32 s15, 0\ns_cbranch_scc1 L_noerr")
        A(f"v_mov_b32 v8, s15\ns_mov_b64 exec, 1\nbuffer_atomic_or v8, off, {sr(DBG)}, 0 offset:4 sc1\ns_mov_b64 exec, -1\nL_noerr:")
        if self.a.stamps:
            self.stamp(10)
            A("s_waitcnt lgkmcnt(0)")
            self.srdo(STS, f"s{WS}", f"s{WS+1}", hex(STAMP_OFF), "0x100000")
            A("s_mov_b32 s38, s97\ns_lshl_b32 s39, s100, 8\ns_or_b32 s39, s39, s85")
            A(f"s_mul_i32 s8, s2, {12*8*2}")
            A("s_cmp_eq_u32 s3, 0\ns_cbranch_scc1 L_st\ns_cmp_eq_u32 s3, 7\ns_cbranch_scc0 L_end\ns_add_u32 s8, s8, 96\nL_st:\ns_mov_b64 exec, 1")
            for k in range(12):
                A(f"v_mov_b32 v8, s{16+2*k}\nv_mov_b32 v9, s{17+2*k}\nbuffer_store_dwordx2 v[8:9], off, {sr(STS)}, s8 offset:{8*k}\ns_nop 1")
        A("L_end:\ns_endpgm")

    def subs(self):
        A = self.A
        pass
    def rnd(self, regs):
        for r in regs: self.A(f"v_cvt_pk_bf16_f32 v{r}, 0, v{r}")
    def ln_body(self, fast, pack=True):
        A = self.A
        for i in range(5):
            self.unpack(32+2*i, 33+2*i, 24+i)
            if i == 0: A("v_readfirstlane_b32 s8, v32")
        NEG = "op_sel_hi:[1,0] neg_lo:[0,1] neg_hi:[0,1]"
        for i in range(5): self.pk("add", 42+2*i, 32+2*i, "s[8:9]", NEG)
        self.pk("add", 52, 42, "v[44:45]"); self.pk("mul", 54, 42, "v[42:43]")
        for i in range(1, 5):
            if i > 1: self.pk("add", 52, 52, q2(42+2*i))
            A(f"v_pk_fma_f32 v[54:55], {q2(42+2*i)}, {q2(42+2*i)}, v[54:55]")
        A("v_add_f32 v52, v52, v53\nv_add_f32 v53, v54, v55\ns_nop 0")
        for c in (f"row_ror:1 {DPPF}", f"row_ror:2 {DPPF}", f"row_ror:4 {DPPF}", f"row_ror:8 {DPPF}",
                  "row_bcast:15 row_mask:0xa bank_mask:0xf", "row_bcast:31 row_mask:0xc bank_mask:0xf"):
            A(f"v_add_f32_dpp v52, v52, v52 {c}\nv_add_f32_dpp v53, v53, v53 {c}\ns_nop 0")
        A(f"""
        v_readlane_b32 s9, v52, 63
        v_readlane_b32 s10, v53, 63
        v_mov_b32 v54, {hex(INV640)}
        s_nop 0
        v_mul_f32 v52, s9, v54
        v_mul_f32 v53, s10, v54
        v_fma_f32 v53, -v52, v52, v53
        v_add_f32 v52, s8, v52
        v_max_f32 v53, 0, v53
        v_cvt_pk_bf16_f32 v52, 0, v52
        v_cvt_pk_bf16_f32 v54, 0, v53
        v_add_f32 v54, {hex(EPS)}, v54
        v_cvt_pk_bf16_f32 v54, 0, v54
        v_sqrt_f32 v54, v54
        """)
        for i in range(5): self.pk("add", 32+2*i, 32+2*i, "v[52:53]", NEG)
        A("v_cvt_pk_bf16_f32 v54, 0, v54\nv_rcp_f32 v54, v54")
        if fast: A("s_nop 0")
        else: self.rnd(range(32, 42))
        for i in range(5): self.pk("mul", 32+2*i, 32+2*i, "v[54:55]", "op_sel_hi:[1,0]")
        if not fast and pack:
            for i in range(5): A(f"v_cvt_pk_bf16_f32 v{24+i}, v{32+2*i}, v{33+2*i}")

if __name__ == "__main__":
    ap = argparse.ArgumentParser()
    ap.add_argument("-o", default="k.s"); ap.add_argument("--stamps", action="store_true")
    ap.add_argument("--fast", action="store_true"); ap.add_argument("--nolocal", action="store_true"); ap.add_argument("--notail", action="store_true")
    for n, v in dict(dp=0, cpf=2, oc=0, cl=0, sc=2, nfree=3, fs=2, w7=1, hpos=0, rows=0, remap=1, dw=10, dm=4, nref=100, dl=4, wap=16, mode=0, lead=0, de=6, ne=0, dh=12, pf=8, rx=0, ry=0, par=0, diag=0, limit=40000, pad=20480, depth=4, d0=3, nm=3, n0=16, chk=3, d1=4, d2=8, ism=21, wa=0, w2=0, w3=0,
                     s1=8, s2=2, sr=0, sx=0, so=0, wx=20, wop=0).items():
        ap.add_argument("--" + n, type=int, default=v)
    ap.add_argument("--wof", default="")
    ap.add_argument("--x", default=""); ap.add_argument("--cf", default="sc1")
    ap.add_argument("--hm", default="4,1")
    a = ap.parse_args(); a.hm = [int(v) for v in a.hm.split(",")]
    txt = G(a).gen()
    if 's' in a.x: txt = "\n".join(l for l in txt.split("\n") if not ("buffer_store" in l and "s[52:55]" in l))
    drop = lambda pred: "\n".join(l for l in txt.split("\n") if not pred(l))
    if 'e' in a.x: txt = drop(lambda l: "buffer_atomic_or" in l)
    if 'O' in a.x: txt = drop(lambda l: "buffer_store_dwordx2 v[46:47]" in l)
    if 'L' in a.x: txt = drop(lambda l: "buffer_load_dwordx4 v[128:131]" in l)
    if 'M' in a.x: txt = drop(lambda l: "buffer_load_dword v132" in l)
    if 'f' in a.x: txt = drop(lambda l: "buffer_store_dword v12, off" in l)
    if 'F' in a.x: txt = drop(lambda l: "buffer_store_dword v1, off" in l)
    if 'g' in a.x: txt = drop(lambda l: "buffer_store_dwordx4 v[192:195]" in l)
    if 'i' in a.x: txt = drop(lambda l: "buffer_store_dwordx4 v[8:11]" in l)
    if 'p' in a.x: txt = drop(lambda l: "buffer_store_dwordx4 v[40:43]" in l)
    if 'q' in a.x: txt = drop(lambda l: "buffer_store_dwordx4 v[32:35]" in l or "buffer_store_dwordx4 v[36:39]" in l)
    if 'l' in a.x: txt = "\n".join(l for l in txt.split("\n") if not ("buffer_load" in l and "s[52:55]" in l))
    open(a.o, "w").write(txt)
```

```python
import argparse
NAME = "adaLN_cond__sliding_block_cached__dense_activation_silu__decode"

WS_MOD  = 0x00000
WS_FLG  = 61440
WS_FLB  = 62464
WS_QF   = 63488
NCLR    = 8
WS_X1   = 0x40000
WS_O    = 0x30000
WS_AP   = 0x60000
WS_QP   = 0x100000
WS_OP   = 0x180000
WS_END  = WS_OP + 27*20480
STAMP_OFF = 0x20000000
L_Q, L_SM, L_FL = 0, 256, 384
L_ACT, L_XN, L_TA = 1024, 11264, 21504
L_KH  = 62464
L_W1  = L_TA
L_W2  = L_W1 + 81920
L_WO  = L_W2
L_G1  = L_W2 + 32768
L_TB  = L_G1
L_BN  = L_G1 + 16384
L_END = L_BN + 2048
L_R1  = L_XN
assert L_KH + 35*1024 <= L_WO and L_END <= 163840
LOG2E, NLOG2E, SCALE, INV640, EPS = 0x3fb8aa3b, 0xbfb8aa3b, 0x3db504f3, 0x3acccccd, 0x3727c5ac
K, V, WS, WO, TA, TB, X, C, OUT, DBG, T0 = 44, 48, 52, 56, 60, 64, 68, 72, 76, 80, 92
KH = C
STS = 40
sr = lambda r: f"s[{r}:{r+3}]"
DPPF = "row_mask:0xf bank_mask:0xf"
MF = "v_mfma_f32_16x16x32_bf16"
q4 = lambda r: f"v[{r}:{r+3}]"
q2 = lambda r: f"v[{r}:{r+1}]"

class G:
    def __init__(self, a):
        self.L = []; self.lab = 0; self.a = a
    def A(self, s):
        for x in s.split("\n"):
            x = x.strip()
            if x: self.L.append(("" if x.endswith(":") else "    ") + x)
    def newlab(self, p="L"):
        self.lab += 1; return f"{p}_{self.lab}"
    def stamp(self, k, diag=0):
        if self.a.stamps and diag == self.a.diag: self.A(f"s_memrealtime s[{16+2*k}:{17+2*k}]")
    def srd(self, d, lo, hi, size):
        self.A(f"s_mov_b32 s{d}, {lo}\ns_mov_b32 s{d+1}, {hi}\ns_mov_b32 s{d+2}, {size}\ns_mov_b32 s{d+3}, 0x20000")
    def srdo(self, d, lo, hi, off, size):
        self.A(f"s_add_u32 s{d}, {lo}, {off}\ns_addc_u32 s{d+1}, {hi}, 0\ns_mov_b32 s{d+2}, {size}\ns_mov_b32 s{d+3}, 0x20000")
    def unpack(self, lo, hi, src):
        self.A(f"v_lshlrev_b32 v{lo}, 16, v{src}\nv_and_b32 v{hi}, 0xffff0000, v{src}")
    def pk(self, op, d, a, b, mods=""):
        self.A(f"v_pk_{op}_f32 {q2(d)}, {q2(a)}, {b} {mods}")
    def maxtree(self, dst, regs):
        regs = list(regs); A = self.A
        if len(regs) == 2:
            A(f"v_max_u32 v{dst}, v{regs[0]}, v{regs[1]}"); return
        A(f"v_max3_u32 v{dst}, v{regs[0]}, v{regs[1]}, v{regs[2]}"); regs = regs[3:]
        while len(regs) >= 2:
            A(f"v_max3_u32 v{dst}, v{dst}, v{regs[0]}, v{regs[1]}"); regs = regs[2:]
        if regs: A(f"v_max_u32 v{dst}, v{dst}, v{regs[0]}")
    def poll(self, loads, regs, tmp, code, first_loaded=False, sleep=1):
        A = self.A; regs = list(regs)
        lp = self.newlab("Lpoll"); ck = self.newlab("Lchk"); dn = self.newlab("Lpd")
        A(f"s_mov_b32 s14, {0 if 'e' in self.a.x else self.a.limit}")
        if first_loaded: A(f"s_branch {ck}")
        A(f"{lp}:")
        for l in loads: A(l)
        A("s_waitcnt vmcnt(0)")
        A(f"{ck}:")
        if len(regs) == 1: tmp = regs[0]
        else: self.maxtree(tmp, regs)
        A(f"v_cmp_eq_u32 vcc, -1, v{tmp}\ns_cbranch_vccz {dn}\ns_mov_b64 exec, vcc")
        if sleep: A(f"s_sleep {sleep}")
        A(f"s_sub_u32 s14, s14, 1\ns_cbranch_scc0 {lp}\ns_or_b32 s15, s15, {code}\n{dn}:\ns_mov_b64 exec, -1")
    def sleep(self, n):
        while n > 0:
            self.A(f"s_sleep {min(n, 120)}"); n -= 120
    def spin(self, off, target, code, vt=12, va=15):
        a = self.newlab("Lsp"); b = self.newlab("Lspd")
        self.A(f"""
        s_mov_b32 s14, {self.a.limit*8}
        {a}:
        ds_read_b32 v{vt}, v{va} offset:{off}
        s_waitcnt lgkmcnt(0)
        v_readfirstlane_b32 s8, v{vt}
        s_nop 0
        s_cmp_ge_u32 s8, {target}
        s_cbranch_scc1 {b}
        s_sleep 1
        s_sub_u32 s14, s14, 1
        s_cbranch_scc0 {a}
        s_or_b32 s15, s15, {code}
        {b}:
        """)
    def bump(self, off, vt=12, va=15):
        self.A(f"v_mov_b32 v{vt}, 1\ns_mov_b64 exec, 1\nds_add_u32 v{va}, v{vt} offset:{off}\ns_mov_b64 exec, -1")
    def silu(self, regs, tmps):
        A = self.A
        for r, t in zip(regs, tmps): A(f"v_mul_f32 v{t}, {hex(NLOG2E)}, v{r}")
        for t in tmps: A(f"v_exp_f32 v{t}, v{t}")
        A("s_nop 0")
        for t in tmps: A(f"v_add_f32 v{t}, 1.0, v{t}")
        for t in tmps: A(f"v_rcp_f32 v{t}, v{t}")
        A("s_nop 0")
        for r, t in zip(regs, tmps): A(f"v_mul_f32 v{r}, v{r}, v{t}")
    def store2(self, stores, cond_reg):
        a = self.newlab("Lwt"); b = self.newlab("Lsd")
        self.A(f"s_cbranch_scc0 {a}")
        for s in stores: self.A(s)
        self.A(f"s_branch {b}\n{a}:")
        for s in stores: self.A(s + " sc1")
        self.A(f"{b}:")
    def samexcd(self, reg):
        if self.a.nolocal: self.A("s_cmp_eq_u32 s3, 99")
        else: self.A(f"v_cmp_ne_u32 vcc, s97, v{reg}\ns_cmp_eq_u64 vcc, 0")

    def prologue(self):
        A = self.A; a = self.a
        ek = -(-(WS_FLG + (256 << a.fs)) // 8192)
        self.L += [f"; @launch grid=(256,1,1) block=(512,1,1) lds={L_END}",
                   '.amdgcn_target "amdgcn-amd-amdhsa--gfx950"', ".text", f".globl {NAME}_kernel", ".p2align 8",
                   f".type {NAME}_kernel,@function", f"{NAME}_kernel:"]
        A("""
        s_cmp_ge_u32 s2, 256
        s_cbranch_scc1 L_end
        s_getpc_b64 s[100:101]
        s_load_dwordx16 s[16:31], s[0:1], 0
        s_load_dwordx8 s[32:39], s[0:1], 64
        s_load_dwordx2 s[40:41], s[0:1], 96
        """)
        if a.stamps: A("s_memrealtime s[42:43]")
        A(f"""
        v_lshrrev_b32 v1, 6, v0
        s_and_b32 s4, s2, 7
        v_readfirstlane_b32 s3, v1
        v_mul_u32_u24 v8, {a.pad//512}, v0
        global_load_dwordx4 v[24:27], v8, s[100:101] offset:-16
        v_and_b32 v1, 63, v0
        v_lshrrev_b32 v2, 4, v1
        v_and_b32 v3, 15, v1
        v_lshlrev_b32 v4, 6, v3
        v_lshl_add_u32 v4, v2, 4, v4
        v_lshlrev_b32 v5, 4, v1
        v_lshlrev_b32 v6, 2, v1
        v_and_b32 v13, 3, v1
        s_lshr_b32 s5, s2, 3
        s_lshl_b32 s6, s4, 2
        s_and_b32 s8, s5, 3
        s_add_u32 s6, s6, s8
        s_lshr_b32 s7, s5, 2
        """)
        hm = a.hm
        A(f"""
        s_mul_i32 s84, s8, {hm[1]}
        s_mul_i32 s9, s4, {hm[0]}
        s_add_u32 s84, s84, s9
        s_lshl_b32 s8, s7, 5
        s_add_u32 s84, s84, s8
        s_lshl_b32 s14, s84, 20
        """)
        if a.w7: A(f"""
        s_lshl_b32 s9, s3, 10
        s_sub_u32 s9, s9, 1024
        s_cmp_eq_u32 s3, 0
        s_cselect_b32 s9, {224*1024}, s9
        s_cselect_b32 s13, 1, 7
        """)
        else: A("s_lshl_b32 s9, s3, 10\ns_mov_b32 s13, 8")
        A(f"""
        s_sub_u32 s12, 0x40000, s9
        s_add_u32 s14, s14, s9
        s_add_u32 s14, s14, 0xC0000
        s_mov_b32 s15, 0
        s_mul_i32 s97, s3, 1280
        s_and_b32 s8, s5, 15
        s_lshr_b32 s8, s8, 1
        s_lshl_b32 s9, s8, 3
        s_add_u32 s9, s9, s4
        s_lshl_b32 s91, s9, 1
        s_and_b32 s10, s5, 1
        s_add_u32 s91, s91, s10
        s_mul_i32 s11, s3, 5120
        s_add_u32 m0, s11, {L_TA}
        v_mov_b32 v15, {L_FL}
        v_mov_b32 v8, 0
        v_mov_b32 v9, 0
        v_mov_b32 v10, 0
        v_mov_b32 v11, 0
        ds_write_b128 v15, v[8:11]
        s_nop 1
        v_mov_b32 v8, -1
        v_mov_b32 v9, -1
        v_mov_b32 v10, -1
        v_mov_b32 v11, -1
        s_cmp_lt_u32 s5, 16
        s_cbranch_scc1 L_p_mod
        s_mov_b32 s85, 1
        v_lshrrev_b32 v12, 3, v1
        v_lshlrev_b32 v12, 13, v12
        v_and_b32 v14, 7, v1
        v_lshl_add_u32 v12, v14, 4, v12
        s_lshl_b32 s99, s4, 3
        s_add_u32 s99, s99, s8
        s_lshr_b32 s9, s8, 1
        s_mul_i32 s9, s9, {hm[1]*256}
        s_mul_i32 s11, s4, {hm[0]*256}
        s_add_u32 s9, s9, s11
        s_and_b32 s11, s8, 1
        s_lshl_b32 s11, s11, 7
        s_add_u32 s9, s9, s11
        s_mul_i32 s10, s10, {320*8192}
        s_add_u32 s9, s9, s10
        s_mov_b32 s11, {8*8192}
        s_waitcnt lgkmcnt(0)
        s_add_u32 s{T0}, s22, s9
        s_addc_u32 s{T0+1}, s23, 0
        s_sub_u32 s{T0+2}, {640*8192}, s9
        s_branch L_p_j
        L_p_mod:
        s_mov_b32 s85, 2
        v_lshrrev_b32 v12, 2, v1
        v_mul_u32_u24 v12, 7680, v12
        v_lshl_add_u32 v12, v13, 4, v12
        s_lshl_b32 s9, s91, 6
        s_mov_b32 s11, {16*7680}
        s_mov_b32 s99, 0
        s_waitcnt lgkmcnt(0)
        s_add_u32 s{T0}, s34, s9
        s_addc_u32 s{T0+1}, s35, 0
        s_sub_u32 s{T0+2}, {640*7680}, s9
        s_cmp_lt_u32 s91, 120
        s_cbranch_scc1 L_p_j
        s_mov_b32 s85, 8
        s_mov_b32 s{T0+2}, 0
        L_p_j:
        s_mov_b32 s{T0+3}, 0x20000
        """)
        if 'n' in a.x: A(f"s_mov_b32 s{T0+2}, 0")
        self.srd(WS, "s40", "s41", hex(WS_END)); self.srd(DBG, "s38", "s39", 256)
        self.srd(X, "s16", "s17", 10240); self.srd(C, "s32", "s33", 10240)
        A(f"""
        s_lshl_b32 s87, s6, 3
        s_add_u32 s87, s87, s7
        s_cmp_eq_u32 s3, 0
        s_cbranch_scc0 L_p_nh
        s_setprio 3
        s_cmp_eq_u32 s85, 8
        s_cbranch_scc0 L_p_nc
        s_sub_u32 s8, s91, 120
        s_mul_i32 s8, s8, {ek*1024}
        """)
        for i in range(ek):
            if i and i % 4 == 0: A("s_add_u32 s8, s8, 4096")
            A(f"buffer_store_dwordx4 v[8:11], v5, {sr(WS)}, s8 offen offset:{(i%4)*1024} sc1")
        A(f"""
        s_waitcnt vmcnt(0)
        v_mov_b32 v14, 1
        s_mov_b64 exec, 1
        buffer_atomic_add v14, off, {sr(DBG)}, 0 sc1
        s_mov_b64 exec, -1
        s_sub_u32 s8, s91, 120
        s_mul_i32 s8, s8, 20480
        s_add_u32 s8, s8, {hex(WS_AP)}
        s_add_u32 s9, s8, 20480
        L_p_c2:
        buffer_store_dwordx4 v[8:11], v5, {sr(WS)}, s8 offen sc1
        s_add_u32 s8, s8, 1024
        s_cmp_lt_u32 s8, s9
        s_cbranch_scc1 L_p_c2
        L_p_nc:
        L_p_nh:
        s_cmp_eq_u32 s85, 2
        s_cbranch_scc0 L_p_nxc
        """)
        for i in range(5): A(f"buffer_load_dword v{24+i}, v6, {sr(X)}, s97 offen offset:{i*256}")
        for i in range(5): A(f"buffer_load_dword v{56+i}, v6, {sr(C)}, s97 offen offset:{i*256}")
        A("L_p_nxc:\ns_mul_i32 s8, s3, s11\ns_mul_i32 s8, s8, 5")
        for u in range(5):
            A(f"buffer_load_dwordx4 v12, {sr(T0)}, s8 offen nt lds")
            if u < 4: A("s_add_u32 m0, m0, 1024\ns_add_u32 s8, s8, s11")
        self.srdo(K, "s18", "s19", "s14", "s12")
        A("s_waitcnt lgkmcnt(0)\ns_barrier")

    def setup2(self):
        A = self.A
        self.srdo(V, "s20", "s21", "s14", "s12")
        A(f"""
        s_sub_i32 s98, s5, 12
        """)
        if self.a.remap: A("""
        s_and_b32 s8, s98, 3
        s_lshl_b32 s8, s8, 1
        s_lshr_b32 s9, s98, 2
        s_add_u32 s8, s8, s9
        s_cmp_lt_u32 s98, 8
        s_cselect_b32 s98, s8, s98
        """)
        A(f"""
        s_max_i32 s9, s98, 0
        s_lshl_b32 s9, s9, 6
        s_mul_i32 s8, s4, {self.a.hm[0]*128*1280}
        s_add_u32 s8, s8, s9
        s_add_u32 s{WO}, s24, s8
        s_addc_u32 s{WO+1}, s25, 0
        s_sub_u32 s{WO+2}, {4096*1280}, s8
        s_mov_b32 s{WO+3}, 0x20000
        """)
        if 'o' in self.a.x: A(f"s_mov_b32 s{WO+2}, 0")
        self.srd(OUT, "s36", "s37", 10240)
        A("s_lshl_b32 s8, s84, 20\ns_add_u32 s8, s8, 0xC0000")
        self.srdo(KH, "s18", "s19", "s8", "0x40000")
        A(f"""
        s_mul_i32 s8, s5, 86
        s_lshr_b32 s8, s8, 8
        s_mul_i32 s9, s8, 3
        s_sub_u32 s93, s5, s9
        s_lshl_b32 s8, s8, 3
        s_add_u32 s8, s8, s4
        s_lshl_b32 s10, s8, 7
        s_add_u32 s{TA}, s28, s10
        s_addc_u32 s{TA+1}, s29, 0
        s_sub_u32 s{TA+2}, {640*3456}, s10
        s_mov_b32 s{TA+3}, 0x20000
        s_mul_i32 s10, s8, {64*1280}
        s_lshl_b32 s11, s93, 9
        s_add_u32 s10, s10, s11
        s_add_u32 s{TB}, s30, s10
        s_addc_u32 s{TB+1}, s31, 0
        s_sub_u32 s{TB+2}, {64*1280}, s11
        s_mov_b32 s{TB+3}, 0x20000
        s_mul_i32 s101, s8, 20480
        s_lshl_b32 s11, s93, 13
        s_add_u32 s101, s101, s11
        s_add_u32 s101, s101, {hex(WS_OP)}
        s_cmp_lt_u32 s8, 27
        s_cselect_b32 s100, 1, 0
        s_cmp_ge_i32 s98, 0
        s_cselect_b32 s100, 2, s100
        s_mul_i32 s90, s4, 10240
        s_add_u32 s90, s90, {hex(WS_X1)}
        s_lshl_b32 s96, s98, 3
        s_add_u32 s96, s96, s4
        s_getreg_b32 s97, hwreg(HW_REG_XCC_ID)
        s_and_b32 s97, s97, 15
        s_lshl_b32 s10, s3, 6
        v_lshlrev_b32 v7, 9, v2
        v_lshl_add_u32 v7, v3, 2, v7
        v_add_u32 v7, s10, v7
        v_lshrrev_b32 v0, 2, v1
        v_mul_u32_u24 v0, 1280, v0
        v_lshl_add_u32 v0, v13, 4, v0
        v_and_b32 v8, 1, v3
        v_lshlrev_b32 v8, 4, v8
        v_mov_b32 v9, 0xffff
        v_lshlrev_b32 v9, v8, v9
        v_lshrrev_b32 v8, 1, v3
        """)
        for r in range(4):
            A(f"v_cmp_eq_u32 vcc, {r}, v8\ns_nop 1\nv_cndmask_b32 v{16+r}, 0, v9, vcc")
        if self.a.stamps: A("s_mov_b32 s16, s42\ns_mov_b32 s17, s43")

    def init1(self):
        A = self.A
        for i in range(5): self.unpack(32+2*i, 33+2*i, 56+i)
        self.silu(list(range(32, 42)), list(range(44, 54)))
        for i in range(5):
            A(f"v_cvt_pk_bf16_f32 v{56+i}, v{32+2*i}, v{33+2*i}")
            A(f"ds_write_b32 v7, v{56+i} offset:{L_ACT + i*2048}")
        A("s_sub_u32 s8, s91, 20\ns_cmp_lt_u32 s8, 20\ns_cbranch_scc0 L_c_a")
        self.ln_body(False)
        for i in range(5): A(f"ds_write_b32 v7, v{24+i} offset:{L_XN + i*2048}")

    def clears1(self, fl, tag):
        self.A(f"""
        s_lshl_b32 s8, s87, 8
        s_add_u32 s8, s8, {hex(WS_O)}
        s_mov_b64 exec, 0xffff
        buffer_store_dwordx4 v[48:51], v5, {sr(WS)}, s8 offen {fl}
        s_cmp_eq_u32 s100, 2
        s_cbranch_scc0 L_h_nx{tag}
        s_lshl_b32 s8, s98, 9
        s_add_u32 s8, s8, s90
        s_mov_b32 exec_lo, -1
        buffer_store_dwordx4 v[48:51], v5, {sr(WS)}, s8 offen {fl}
        L_h_nx{tag}:
        s_lshl_b32 s8, s87, 2
        s_add_u32 s8, s8, {WS_FLB}
        s_mov_b64 exec, 1
        s_waitcnt vmcnt(0)
        buffer_store_dword v46, off, {sr(WS)}, s8 {fl}
        s_mov_b64 exec, -1
        """)
    def clears2(self):
        A = self.A
        A("v_mov_b32 v192, -1\nv_mov_b32 v193, -1\nv_mov_b32 v194, -1\nv_mov_b32 v195, -1\ns_cmp_eq_u32 s100, 1\ns_cbranch_scc0 L_h_no")
        for i in range(4): A(f"buffer_store_dwordx4 v[192:195], v5, {sr(WS)}, s101 offen offset:{i*1024} sc1")
        A("s_cmp_eq_u32 s93, 2\ns_cbranch_scc1 L_h_no\ns_add_u32 s8, s101, 4096")
        for i in range(4): A(f"buffer_store_dwordx4 v[192:195], v5, {sr(WS)}, s8 offen offset:{i*1024} sc1")
        A("L_h_no:")

    def helper(self, vload):
        A = self.A; a = self.a
        AF = lambda k, nt: (64 + 4*(k*4+nt)) if k < 8 else (208 + 4*((k-8)*4+nt))
        A("L_helper:")
        A(f"""
        s_waitcnt vmcnt(0)
        s_cmp_eq_u32 s85, 8
        s_cbranch_scc0 L_h_nb
        v_mov_b32 v14, 1
        s_mov_b64 exec, 1
        buffer_atomic_add v14, off, {sr(DBG)}, 0 offset:128 sc1
        s_mov_b64 exec, -1
        L_h_nb:
        """)
        cld = f"buffer_load_dword v12, off, {sr(DBG)}, 0 sc1"
        if a.cl == 0: A(cld)
        self.spin(4, 7, 256, vt=14)
        if a.cl == 1: A(cld)
        if a.cl == 2: A(f"s_cmp_eq_u32 s85, 2\ns_cbranch_scc0 L_h_c2\n{cld}\nL_h_c2:")
        self.stamp(9)
        A(f"""
        v_lshrrev_b32 v8, 2, v3
        s_cmp_eq_u32 s85, 2
        s_cbranch_scc1 L_h_mod
        v_lshlrev_b32 v10, 10, v2
        v_lshl_add_u32 v10, v8, 7, v10
        v_lshl_add_u32 v10, v13, 3, v10
        """)
        for k in range(10):
            for nt in range(4):
                r = AF(k, nt)
                A(f"ds_read_b64_tr_b16 {q2(r)}, v10 offset:{L_TA + k*4096 + nt*32}")
                A(f"ds_read_b64_tr_b16 {q2(r+2)}, v10 offset:{L_TA + k*4096 + nt*32 + 512}")
        if a.cl == 2: A(f"s_waitcnt lgkmcnt(0)\n{cld}")
        A(f"""
        s_branch L_h_cnt
        L_h_mod:
        v_lshlrev_b32 v10, 9, v2
        v_lshl_add_u32 v10, v8, 6, v10
        v_lshl_add_u32 v10, v13, 3, v10
        """)
        def rd(i):
            A(f"ds_read_b128 {q4(24+4*i)}, v4 offset:{L_ACT + i*1024}")
            for par in range(2):
                for nt in range(2):
                    r = 64 + 4*((2*i+par)*2+nt)
                    A(f"ds_read_b64_tr_b16 {q2(r)}, v10 offset:{L_TA + (2*i+par)*2048 + nt*32}")
                    A(f"ds_read_b64_tr_b16 {q2(r+2)}, v10 offset:{L_TA + (2*i+par)*2048 + nt*32 + 256}")
        if a.stamps: A("s_waitcnt lgkmcnt(0)")
        rd(0)
        for i in range(10):
            if i < 9:
                rd(i+1); A("s_waitcnt lgkmcnt(9)")
            else: A("s_waitcnt lgkmcnt(0)")
            for par in range(2):
                for nt in range(2):
                    r = 64 + 4*((2*i+par)*2+nt); a_ = 224 + 8*par + 4*nt
                    A(f"{MF} {q4(a_)}, {q4(r)}, {q4(24+4*i)}, {'0' if i == 0 else q4(a_)}")
        A(f"""
        v_and_b32 v8, 7, v3
        v_lshrrev_b32 v9, 3, v3
        v_lshlrev_b32 v11, 6, v8
        v_lshl_add_u32 v11, v9, 5, v11
        v_lshl_add_u32 v11, v2, 3, v11
        s_lshl_b32 s9, s91, 9
        s_add_u32 s8, s9, {L_XN - 20*512}
        v_add_u32 v14, s8, v11
        s_nop 1
        """)
        for r in range(4):
            A(f"v_add_f32_dpp v{24+r}, v{232+r}, v{224+r} row_ror:8 row_mask:0xf bank_mask:0x3")
            A(f"v_add_f32_dpp v{24+r}, v{228+r}, v{236+r} row_ror:8 row_mask:0xf bank_mask:0xc")
        A("v_cvt_pk_bf16_f32 v40, v24, v25\nv_cvt_pk_bf16_f32 v41, v26, v27")
        A("s_sub_u32 s8, s91, 20\ns_cmp_lt_u32 s8, 20\ns_cbranch_scc0 L_h_pub")
        A("ds_read_b64 v[42:43], v14")
        for j in range(2): self.unpack(24+2*j, 25+2*j, 40+j)
        for r in range(4): A(f"v_add_f32 v{24+r}, 1.0, v{24+r}")
        for j in range(2): A(f"v_cvt_pk_bf16_f32 v{40+j}, v{24+2*j}, v{25+2*j}")
        for j in range(2): self.unpack(24+2*j, 25+2*j, 40+j)
        A("s_waitcnt lgkmcnt(0)")
        for j in range(2): self.unpack(28+2*j, 29+2*j, 42+j)
        for r in range(4): A(f"v_mul_f32 v{24+r}, v{24+r}, v{28+r}")
        for j in range(2): A(f"v_cvt_pk_bf16_f32 v{40+j}, v{24+2*j}, v{25+2*j}")
        A(f"""
        L_h_pub:
        v_min_u32 v40, -2, v40
        v_min_u32 v41, -2, v41
        v_add_u32 v11, {L_BN}, v11
        v_add_u32 v14, {L_BN}, v5
        ds_write_b64 v11, v[40:41]
        ds_read_b128 v[40:43], v14
        L_h_cnt:
        s_mov_b32 s14, {a.limit}
        L_wc:
        s_waitcnt vmcnt(0)
        v_readfirstlane_b32 s8, v12
        s_nop 0
        s_cmp_ge_u32 s8, {NCLR}
        s_cbranch_scc1 L_wcd
        s_sleep {a.sc}
        buffer_load_dword v12, off, {sr(DBG)}, 0 sc1
        s_sub_u32 s14, s14, 1
        s_cbranch_scc0 L_wc
        s_or_b32 s15, s15, 1
        L_wcd:
        s_cmp_eq_u32 s85, 2
        s_cbranch_scc0 L_h_np
        s_mov_b32 exec_hi, 0
        s_waitcnt lgkmcnt(0)
        buffer_store_dwordx4 v[40:43], v5, {sr(WS)}, s9 offen sc1
        s_mov_b64 exec, -1
        L_h_np:
        s_lshl_b32 s8, s87, {a.fs}
        s_add_u32 s8, s8, {self.fbase()}
        v_mov_b32 v12, s97
        s_mov_b64 exec, 1
        buffer_store_dword v12, off, {sr(WS)}, s8 sc1
        s_mov_b64 exec, -1
        """)
        if a.oc == 0: self.clears2()
        self.stamp(1)
        A(f"""
        s_cmp_lt_i32 s98, 0
        s_cbranch_scc1 L_h_nwo
        s_mov_b32 m0, {L_WO}
        s_mov_b32 s8, 0
        L_h_wo:
        s_waitcnt vmcnt({a.dw-1})
        buffer_load_dwordx4 v0, {sr(WO)}, s8 offen {a.wof} lds
        s_add_u32 m0, m0, 1024
        s_sub_u32 s9, m0, {L_WO}
        s_and_b32 s10, s9, 0x1fff
        s_cselect_b32 s10, 0, {(a.hm[1]-1)*128*1280}
        s_add_u32 s8, s8, s10
        s_add_u32 s8, s8, 20480
        s_cmp_lt_u32 s9, 32768
        s_cbranch_scc1 L_h_wo
        L_h_nwo:
        """)
        A(f"v_and_b32 v14, 0x7c, v6\ns_lshl_b32 s43, s4, 7\ns_add_u32 s43, s43, {WS_FLG}")
        ids = lambda r: f"buffer_load_dword v{r}, v14, {sr(WS)}, s43 offen sc1"
        A("s_bitcmp1_b32 s85, 0\ns_cbranch_scc0 L_h_getq0")
        A(f"""
        v_and_b32 v8, 7, v3
        v_lshrrev_b32 v9, 3, v3
        v_mul_u32_u24 v12, 10240, v9
        v_lshl_add_u32 v12, v8, 6, v12
        v_lshl_add_u32 v12, v2, 4, v12
        v_lshlrev_b32 v196, 8, v8
        v_lshl_add_u32 v196, v9, 6, v196
        v_lshl_add_u32 v196, v2, 4, v196
        v_add_u32 v196, {L_BN}, v196
        v_add_u32 v197, {L_BN}, v5
        v_lshlrev_b32 v198, 10, v2
        v_lshl_add_u32 v198, v3, 4, v198
        s_and_b32 s10, s5, 1
        s_mul_i32 s8, s10, 5120
        s_add_u32 s42, s8, 2560
        s_lshr_b32 s11, s99, 1
        s_and_b32 s9, s5, 15
        s_lshl_b32 s9, s9, 2
        s_add_u32 s9, s9, s43
        s_add_u32 s9, s9, {WS_QF - WS_FLG}
        s_lshl_b32 s11, s11, 13
        s_lshl_b32 s10, s10, 9
        s_add_u32 s11, s11, s10
        s_and_b32 s10, s99, 1
        s_lshl_b32 s10, s10, 8
        s_add_u32 s11, s11, s10
        s_add_u32 s11, s11, {hex(WS_QP)}
        s_add_u32 s10, s11, 4096
        """)
        loads = [f"buffer_load_dwordx4 {q4(24+4*k)}, v12, {sr(WS)}, {'s8' if k < 5 else 's42'} offen offset:{(k%5)*512} sc1" for k in range(10)]
        self.sleep(a.wa - a.lead)
        if a.mode: A("v_mov_b32 v240, 1\nds_write_b32 v15, v240")
        self.sleep(a.lead)
        self.poll(loads, range(24, 64), 241, 2, sleep=a.s1)
        A(ids(12))
        self.stamp(2)
        A("v_cmp_lt_u32 vcc, 7, v3\ns_waitcnt lgkmcnt(0)")
        ACC = [8, 20, 248, 252]
        for k in range(11):
            if k < 10:
                for j in (4*k, 4*k+2):
                    self.unpack(240, 241, 24+j); self.unpack(242, 243, 25+j)
                    for r in range(4): A(f"v_add_f32_dpp v{244+r}, v{240+r}, v{240+r} row_ror:8 {DPPF}")
                    A(f"v_cvt_pk_bf16_f32 v{24+j}, v244, v245\nv_cvt_pk_bf16_f32 v{25+j}, v246, v247")
            if k >= 1:
                for nt in range(4):
                    A(f"{MF} {q4(ACC[nt])}, {q4(AF(k-1, nt))}, {q4(24+4*(k-1))}, {'0' if k == 1 else q4(ACC[nt])}")
        A("s_nop 5")
        for j in range(2):
            for r in range(4): A(f"v_cndmask_b32 v{24+4*j+r}, v{ACC[2*j]+r}, v{ACC[2*j+1]+r}, vcc")
        A("""
        ds_write_b128 v196, v[24:27]
        ds_write_b128 v196, v[28:31] offset:128
        ds_read_b128 v[32:35], v197
        ds_read_b128 v[36:39], v197 offset:1024
        s_waitcnt vmcnt(0)
        """)
        self.samexcd(12)
        A("s_waitcnt lgkmcnt(0)")
        self.store2([f"buffer_store_dwordx4 v[32:35], v198, {sr(WS)}, s11 offen", f"buffer_store_dwordx4 v[36:39], v198, {sr(WS)}, s10 offen",
                     f"s_mov_b64 exec, 1\ns_waitcnt vmcnt(0)\nbuffer_store_dword v1, off, {sr(WS)}, s9"], 12)
        A("s_mov_b64 exec, -1")
        self.stamp(8)
        self.sleep(a.w3)
        A("s_branch L_h_getq\nL_h_getq0:")
        A("s_waitcnt vmcnt(0) lgkmcnt(0)")
        A("s_cmp_lt_i32 s98, 0\ns_cbranch_scc0 L_h_getq")
        for i in range(16):
            A(f"s_waitcnt vmcnt({a.dm-1})")
            vload(i)
        self.sleep(a.w2 - a.lead)
        if a.mode: A("v_mov_b32 v240, 1\nds_write_b32 v15, v240")
        self.sleep(a.lead)
        A(f"""
        L_h_getq:
        v_lshlrev_b32 v12, 2, v13
        s_and_b32 s9, s5, 3
        s_lshl_b32 s9, s9, 4
        s_add_u32 s9, s9, s43
        s_add_u32 s9, s9, {WS_QF - WS_FLG}
        {ids(45)}
        """)
        self.poll([f"buffer_load_dword v44, v12, {sr(WS)}, s9 offen sc1"], [44], 45, 4, sleep=a.s2)
        A(f"""
        v_lshlrev_b32 v12, 3, v1
        s_lshl_b32 s8, s87, 10
        s_add_u32 s8, s8, {hex(WS_QP)}
        buffer_load_dwordx2 v[40:41], v12, {sr(WS)}, s8 offen sc1
        buffer_load_dwordx2 v[42:43], v12, {sr(WS)}, s8 offen offset:512 sc1
        v_mov_b32 v46, s97
        v_mov_b32 v48, -1
        v_mov_b32 v49, -1
        v_mov_b32 v50, -1
        v_mov_b32 v51, -1
        """)
        self.samexcd(45)
        A("s_cbranch_scc0 L_h_cw")
        self.clears1("", "a")
        A("s_branch L_h_cd\nL_h_cw:")
        self.clears1("sc1", "b")
        A("L_h_cd:")
        A(f"""
        v_add_f32 v32, v40, v42
        v_add_f32 v33, v41, v43
        v_cvt_pk_bf16_f32 v32, v32, v33
        ds_write_b32 v6, v32 offset:{L_Q}
        s_waitcnt lgkmcnt(0)
        ds_write_b32 v15, v15
        """)
        self.stamp(3)
        A(f"""
        s_setprio 0
        s_cmp_lt_i32 s98, 0
        s_cbranch_scc1 L_h_nv
        """)
        for i in range(16):
            A(f"s_waitcnt vmcnt({a.dh-1})")
            vload(i)
        A("L_h_nv:\ns_mov_b64 s[44:45], 0")
        self.spin(8, 7, 2048)
        A(f"v_add_u32 v8, {L_KH}, v5")
        for i in range(32): A(f"ds_read_b128 {q4(64+4*i)}, v8 offset:{i*1024}")

    def w1addr(self, ve, vo, vt):
        self.A(f"""
        v_lshrrev_b32 v{vo}, 3, v1
        v_mul_u32_u24 v{vo}, 3456, v{vo}
        v_and_b32 v{vt}, 1, v2
        v_lshlrev_b32 v{vt}, 1, v{vt}
        v_and_b32 v{ve}, 7, v1
        v_xor_b32 v{ve}, v{ve}, v{vt}
        v_xor_b32 v{vt}, 4, v{ve}
        v_lshl_add_u32 v{ve}, v{ve}, 4, v{vo}
        v_lshl_add_u32 v{vo}, v{vt}, 4, v{vo}
        v_add_u32 v{vo}, {8*3456 - 1024}, v{vo}
        """)
    def w1loop(self, lab, ve, vo, so, end, thr=0):
        self.A(f"""
        {lab}:
        {f"s_waitcnt vmcnt({thr})" if thr else ""}
        buffer_load_dwordx4 v{ve}, {sr(TA)}, {so} offen lds
        buffer_load_dwordx4 v{vo}, {sr(TA)}, {so} offen offset:1024 lds
        s_add_u32 m0, m0, 2048
        s_add_u32 {so}, {so}, {16*3456}
        s_cmp_lt_u32 m0, {end}
        s_cbranch_scc1 {lab}
        """)
    def gen(self):
        A = self.A; a = self.a
        d, d0, nm = a.depth, a.d0, a.nm
        KR = 64
        VR = [192 + 4*i for i in range(16)] + [64 + 4*i for i in range(16)]
        so = lambda i: f"s_mul_i32 s86, s13, {i*1024}"
        def kload(i): A(f"{so(i)}\nbuffer_load_dwordx4 {q4(KR+4*i)}, v4, {sr(K)}, s86 offen nt")
        def vload(i): A(f"{so(i)}\nbuffer_load_dwordx4 {q4(VR[i])}, v5, {sr(V)}, s86 offen nt")
        def hload(u):
            A(f"s_add_u32 s8, s88, {7*u*1024}\ns_add_u32 m0, s8, {L_KH}\n" + (f"s_add_u32 s8, s8, {224*1024}" if a.w7 else "s_lshl_b32 s8, s8, 3"))
            A(f"buffer_load_dwordx4 v4, {sr(KH)}, s8 offen nt lds")
        kseq = []
        for i in range(32):
            kseq.append(("K", i))
            if not a.hpos and i % 6 == 5 and i//6 < 5: kseq.append(("H", i//6))
            if a.hpos and i == a.hpos: kseq += [("H", u) for u in range(5)]
        for i in range(16): kseq.append(("V", i))
        def issue(op): {"K": kload, "V": vload, "H": hload}[op[0]](op[1])

        self.prologue()
        assert all(op[0] == "K" for op in kseq[:nm])
        A("s_cmp_eq_u32 s3, 0\ns_cbranch_scc1 L_c_j")
        for i in range(nm): kload(i)
        A("L_c_j:")
        self.setup2()
        A(f"s_cmp_eq_u32 s85, 2\ns_cbranch_scc0 L_c_a\ns_waitcnt vmcnt({5+nm})")
        A("s_cmp_eq_u32 s3, 0\ns_cbranch_scc0 L_c_i1\ns_waitcnt vmcnt(5)\nL_c_i1:")
        self.init1()
        A("L_c_a:\ns_cmp_eq_u32 s3, 0\ns_cbranch_scc1 L_helper")
        A(f"s_lshl_b32 s88, s3, 10\ns_sub_u32 s88, s88, 1024\ns_mov_b64 vcc, {0 if a.mode else -1}\ns_waitcnt vmcnt({nm}) lgkmcnt(0)")
        self.bump(4)
        if a.rows: A(f"s_bitcmp1_b32 {a.rows}, s5\ns_cselect_b64 vcc, 0, -1")
        if a.par: A(f"s_bitcmp1_b32 {a.par}, s97\ns_cselect_b32 s92, -1, 1")
        hdone = kseq.index(("H", 4)) + d
        assert hdone < len(kseq)
        for n, op in enumerate(kseq):
            if n < nm: continue
            if n >= len(kseq) - a.nfree: pass
            elif n < a.n0 or d == d0: A(f"s_waitcnt vmcnt({d0-1})")
            else:
                if (n - a.n0) % a.chk == 0 and n <= a.nref and not a.rows:
                    if n > a.n0: A("s_waitcnt lgkmcnt(0)\n" + ("v_cmp_eq_u32 vcc, 1, v14" if a.mode else "v_cmp_gt_u32 vcc, 2, v14"))
                    A("ds_read_b32 v14, v15")
                lb = self.newlab("Ld")
                A(f"s_cbranch_vccz {lb}\ns_waitcnt vmcnt({d0-1})\n{lb}:\ns_waitcnt vmcnt({(a.de if n < a.ne else d)-1})")
            if n == hdone: self.bump(8)
            issue(op)
            if n in (16, 32, 48): self.stamp(n//16)
        A("s_mov_b64 s[44:45], vcc")
        self.spin(0, 2, 1024)
        A("s_branch L_qk")
        self.helper(vload)
        A("L_qk:")
        A(f"""
        v_lshlrev_b32 v8, 6, v13
        v_lshl_add_u32 v8, v2, 4, v8
        ds_read_b128 v[24:27], v8 offset:{L_Q}
        v_lshrrev_b32 v9, 2, v3
        s_waitcnt lgkmcnt(0)
        """)
        for t in range(4):
            A(f"v_cmp_eq_u32 vcc, {t}, v9\ns_nop 1")
            for r in range(4): A(f"v_cndmask_b32 v{32+4*t+r}, 0, v{24+r}, vcc")
        A("s_waitcnt vmcnt(16)\ns_nop 0")
        for half in range(2):
            for gg in range(4):
                for t in range(4):
                    i = 16*half + 4*gg + t
                    A(f"{MF} {q4(48+4*gg)}, {q4(KR+4*i)}, {q4(32+4*t)}, {'0' if t == 0 else q4(48+4*gg)}")
            if half == 0:
                for i in range(16, 16 + a.d1): vload(i)
            A("s_nop 7")
            for j in range(4):
                for gg in range(4):
                    g = half*4 + gg
                    if j == 0: A(f"v_mov_b32_dpp v{24+g}, v{48+4*gg} quad_perm:[0,0,0,0] {DPPF}")
                    else: A(f"v_add_f32_dpp v{24+g}, v{48+4*gg+j}, v{24+g} quad_perm:[{j},{j},{j},{j}] {DPPF}")
            A("s_nop 1")
        self.stamp(4)
        self.softmax1()
        for i in range(16 + a.d1, 32):
            if i == a.ism: self.small_loads()
            ex = 2 if a.ism <= i < a.ism + a.d2 else 0
            if a.nref < 100 and a.dl < a.d2:
                lb = self.newlab("Ld")
                A(f"s_cmp_eq_u32 s44, 0\ns_cbranch_scc1 {lb}\ns_waitcnt vmcnt({a.dl-1+ex})\n{lb}:")
            A(f"s_waitcnt vmcnt({a.d2-1+ex})")
            vload(i)
        assert 16 + a.d1 <= a.ism < 32 - a.d2
        self.stamp(5)
        self.softmax2()
        def abuild(i):
            for r in range(4):
                A(f"v_and_b32_dpp v{32+4*(i%2)+r}, v{24+i//4}, v{16+r} row_newbcast:{4*(i%4)} {DPPF}")
        abuild(0)
        for i in range(32):
            if i + 1 < 32: abuild(i+1)
            else: A("s_nop 1")
            if 31 - i < a.d2: A(f"s_waitcnt vmcnt({31-i})")
            A(f"{MF} v[20:23], {q4(32+4*(i%2))}, {q4(VR[i])}, {'0' if i == 0 else 'v[20:23]'}")
            if i == 31 - a.d2: self.tail_prep()
        self.tail1()
        self.reducer()
        self.mlp()
        self.finish()
        self.subs()
        L = self.L
        L.append(f".fill ({a.pad} - (. - {NAME}_kernel))/4, 4, 0xbf800000")
        L += ['.section .rodata,"a"', ".p2align 6", f".amdhsa_kernel {NAME}_kernel",
              "  .amdhsa_next_free_vgpr 256", "  .amdhsa_next_free_sgpr 102", "  .amdhsa_accum_offset 256",
              "  .amdhsa_group_segment_fixed_size 0", "  .amdhsa_kernarg_size 104", "  .amdhsa_user_sgpr_count 2",
              "  .amdhsa_user_sgpr_kernarg_segment_ptr 1", "  .amdhsa_system_sgpr_workgroup_id_x 1", ".end_amdhsa_kernel"]
        return "\n".join(L) + "\n"

    def softmax1(self):
        A = self.A
        A(f"s_mov_b32 s8, {hex(SCALE)}")
        for g in range(0, 8, 2):
            A(f"v_cvt_pk_bf16_f32 v8, v{24+g}, v{25+g}")
            self.unpack(24+g, 25+g, 8)
            A(f"v_mul_f32 v{24+g}, s8, v{24+g}\nv_mul_f32 v{25+g}, s8, v{25+g}")
            A(f"v_cvt_pk_bf16_f32 v8, v{24+g}, v{25+g}")
            self.unpack(24+g, 25+g, 8)
        def wred(op, sdst):
            for c in (f"row_ror:4 {DPPF}", f"row_ror:8 {DPPF}", "row_bcast:15 row_mask:0xa bank_mask:0xf", "row_bcast:31 row_mask:0xc bank_mask:0xf"):
                A(f"s_nop 1\n{op}_dpp v8, v8, v8 {c}")
            A(f"s_nop 1\nv_readlane_b32 {sdst}, v8, 63")
        A("v_max3_f32 v8, v24, v25, v26\nv_max3_f32 v8, v8, v27, v28\nv_max3_f32 v8, v8, v29, v30\nv_max_f32 v8, v8, v31")
        wred("v_max_f32", "s95")
        A(f"s_mov_b32 s8, {hex(LOG2E)}\ns_nop 1")
        for g in range(8): A(f"v_subrev_f32 v{24+g}, s95, v{24+g}")
        for g in range(8): A(f"v_mul_f32 v{24+g}, s8, v{24+g}")
        for g in range(8): A(f"v_exp_f32 v{24+g}, v{24+g}")
        A("""
        s_nop 0
        v_add_f32 v8, v24, v25
        v_add_f32 v9, v26, v27
        v_add_f32 v10, v28, v29
        v_add_f32 v11, v30, v31
        v_add_f32 v8, v8, v9
        v_add_f32 v10, v10, v11
        v_add_f32 v8, v8, v10
        """)
        wred("v_add_f32", "s10")
        A(f"""
        s_lshl_b32 s11, s3, 3
        v_mov_b32 v10, s95
        v_mov_b32 v9, s11
        v_mov_b32 v11, s10
        ds_write_b64 v9, v[10:11] offset:{L_SM}
        s_waitcnt lgkmcnt(0)
        """)
        self.bump(12)
    def softmax2(self):
        A = self.A
        self.spin(12, 8, 4096)
        A(f"""
        v_and_b32 v9, 7, v1
        v_lshlrev_b32 v9, 3, v9
        s_mov_b32 s8, {hex(LOG2E)}
        ds_read_b64 v[10:11], v9 offset:{L_SM}
        s_waitcnt lgkmcnt(0)
        v_max_f32_dpp v8, v10, v10 row_ror:4 {DPPF}
        s_nop 1
        v_max_f32_dpp v8, v8, v8 row_ror:2 {DPPF}
        s_nop 1
        v_max_f32_dpp v8, v8, v8 row_ror:1 {DPPF}
        v_sub_f32 v10, v10, v8
        v_sub_f32 v12, s95, v8
        v_mul_f32 v10, s8, v10
        v_mul_f32 v12, s8, v12
        v_exp_f32 v10, v10
        v_exp_f32 v12, v12
        s_nop 0
        v_mul_f32 v10, v10, v11
        s_nop 1
        v_add_f32_dpp v10, v10, v10 quad_perm:[1,0,3,2] {DPPF}
        s_nop 1
        v_add_f32_dpp v10, v10, v10 quad_perm:[2,3,0,1] {DPPF}
        s_nop 1
        v_add_f32_dpp v10, v10, v10 row_half_mirror {DPPF}
        v_rcp_f32 v10, v10
        s_nop 0
        v_mul_f32 v10, v10, v12
        """)
        for g in range(8): A(f"v_mul_f32 v{24+g}, v10, v{24+g}")
        for g in range(8): A(f"v_cvt_pk_bf16_f32 v{24+g}, v{24+g}, v{24+g}")
        A("s_nop 1")

    def flg(self): return f"s_lshl_b32 s10, s4, {self.a.fs+5}\ns_add_u32 s10, s10, {WS_FLB}\nbuffer_load_dword v132, v129, {sr(WS)}, s10 offen sc1"
    def cntb(self): return f"buffer_load_dword v128, off, {sr(DBG)}, 0 offset:128 sc1"
    def fbase(self): return WS_FLG
    def chk_b(self):
        a_, b_ = self.newlab("Lb"), self.newlab("Lbd")
        self.A(f"""
        s_mov_b32 s14, {self.a.limit}
        {a_}:
        v_readfirstlane_b32 s8, v128
        s_nop 0
        s_cmp_ge_u32 s8, {NCLR}
        s_cbranch_scc1 {b_}
        {self.cntb()}
        s_waitcnt vmcnt(0)
        s_sub_u32 s14, s14, 1
        s_cbranch_scc0 {a_}
        s_or_b32 s15, s15, 8
        {b_}:
        """)
    def mlp_small(self):
        o = []
        for i in range(5): o.append(f"s_mov_b32 s9, {WS_MOD + 80*512 + i*2048}\nbuffer_load_dword v{133+i}, v7, {sr(WS)}, s9 offen sc1")
        for i in range(5): o.append(f"s_mov_b32 s9, {WS_MOD + 60*512 + i*2048}\nbuffer_load_dword v{138+i}, v7, {sr(WS)}, s9 offen sc1")
        return o
    def red_small(self):
        return [f"buffer_load_dword v143, v148, {sr(WS)}, s42 offen sc1", f"buffer_load_dword v144, v149, {sr(WS)}, s43 offen sc1"]
    def small_loads(self):
        A = self.A
        A(f"""
        v_and_b32 v146, 7, v1
        v_and_b32 v147, 1, v2
        v_lshlrev_b32 v147, 2, v147
        v_lshl_add_u32 v148, v146, 3, v147
        v_lshl_add_u32 v149, v146, 6, v147
        v_and_b32 v129, 31, v1
        v_lshlrev_b32 v129, {self.a.fs}, v129
        """)
        A(self.flg()); A(self.cntb())

    def oloads(self): return [f"buffer_load_dwordx4 {q4(200+4*k)}, v42, {sr(WS)}, s89 offen offset:{k*64} sc1" for k in range(2)]
    def tail_prep(self):
        A = self.A
        A(f"""
        s_lshl_b32 s8, s3, 9
        v_lshlrev_b32 v40, 5, v3
        v_lshl_add_u32 v40, v2, 4, v40
        v_add_u32 v40, s8, v40
        v_lshlrev_b32 v41, 3, v1
        s_lshl_b32 s88, s87, 8
        s_add_u32 s88, s88, {hex(WS_O)}
        v_lshlrev_b32 v42, 8, v146
        v_lshl_add_u32 v42, v2, 4, v42
        v_lshrrev_b32 v9, 3, v1
        v_lshlrev_b32 v45, 10, v9
        v_lshl_add_u32 v45, v146, 4, v45
        s_cmp_lt_i32 s98, 0
        s_cbranch_scc1 L_tp_done
        s_lshl_b32 s8, s3, 10
        s_add_u32 s8, s8, {L_TB}
        v_lshrrev_b32 v8, 3, v3
        v_lshlrev_b32 v48, 7, v146
        v_lshl_add_u32 v48, v8, 6, v48
        v_lshl_add_u32 v48, v2, 4, v48
        v_add_u32 v48, s8, v48
        v_add_u32 v49, {L_TB}, v5
        s_lshl_b32 s89, s4, 13
        s_lshr_b32 s8, s3, 1
        s_lshl_b32 s8, s8, 11
        s_add_u32 s89, s89, s8
        s_and_b32 s8, s3, 1
        s_lshl_b32 s8, s8, 7
        s_add_u32 s89, s89, s8
        s_add_u32 s89, s89, {hex(WS_O)}
        s_lshl_b32 s94, s96, 10
        s_add_u32 s94, s94, {hex(WS_AP)}
        s_lshl_b32 s92, s98, 13
        s_lshl_b32 s8, s3, 7
        s_add_u32 s92, s92, s8
        s_add_u32 s92, s92, {hex(WS_AP)}
        s_lshl_b32 s43, s98, 9
        s_lshl_b32 s9, s3, 6
        s_add_u32 s42, s43, s9
        s_add_u32 s91, s42, s90
        s_add_u32 s42, s42, {WS_MOD + 40*512}
        s_lshl_b32 s9, s4, 3
        s_add_u32 s43, s43, s9
        s_add_u32 s99, s43, s90
        s_add_u32 s43, s43, {WS_MOD + 100*512}
        s_mul_i32 s9, s3, 1280
        s_lshl_b32 s10, s98, 6
        s_add_u32 s9, s9, s10
        buffer_load_dword v145, v148, {sr(X)}, s9 offen
        v_lshrrev_b32 v8, 1, v2
        v_lshlrev_b32 v8, 4, v8
        v_sub_u32 v14, 16, v8
        v_lshrrev_b32 v8, 2, v3
        v_lshl_add_u32 v8, v2, 3, v8
        v_lshlrev_b32 v8, 6, v8
        v_lshl_add_u32 v8, v13, 3, v8
        s_lshl_b32 s8, s3, 12
        s_add_u32 s8, s8, {L_WO}
        v_add_u32 v8, s8, v8
        """)
        for l in self.red_small(): A(l)
        for k in range(2):
            for m in range(2):
                r = 152 + 8*k + 4*m
                A(f"ds_read_b64_tr_b16 {q2(r)}, v8 offset:{k*2048 + m*32}")
                A(f"ds_read_b64_tr_b16 {q2(r+2)}, v8 offset:{k*2048 + m*32 + 256}")
        self.poll([self.flg()], [132], 8, 8, first_loaded=True)
        self.chk_b()
        for l in self.oloads(): A(l)
        A("L_tp_done:")

    def sum8(self, addr, base, step):
        A = self.A
        if self.a.stamps: A("s_waitcnt lgkmcnt(0)")
        for j in range(8): A(f"ds_read_b128 {q4(64+4*j)}, {addr} offset:{base + j*step}")
        for j in range(0, 8, 2):
            A(f"s_waitcnt lgkmcnt({6-j})")
            for r in (0, 2): self.pk("add", 64+4*j+r, 64+4*j+r, q2(68+4*j+r))
            if j == 2:
                for r in (0, 2): self.pk("add", 64+r, 64+r, q2(72+r))
        for r in (0, 2): self.pk("add", 80+r, 80+r, q2(88+r))
        for r in (0, 2): self.pk("add", 64+r, 64+r, q2(80+r))
    def red_fin(self):
        self.A(f"""
        v_permlane32_swap_b32 v64, v65
        v_permlane32_swap_b32 v66, v67
        v_add_f32 v64, v64, v65
        v_add_f32 v66, v66, v67
        s_nop 1
        v_permlane16_swap_b32 v64, v66
        v_add_f32 v64, v64, v66
        s_nop 1
        v_add_f32_dpp v64, v64, v64 row_ror:8 {DPPF}
        v_cvt_pk_bf16_f32 v64, 0, v64
        v_mul_f32 v64, v64, v208
        v_cvt_pk_bf16_f32 v64, 0, v64
        v_add_f32 v64, v64, v209
        v_mov_b32 v65, v64
        s_nop 1
        v_permlane32_swap_b32 v64, v65
        v_cvt_pk_bf16_f32 v68, v64, v65
        v_cvt_pk_bf16_f32 v69, v64, v65
        s_nop 1
        v_permlane16_swap_b32 v68, v69
        """)

    def tail1(self):
        A = self.A; a = self.a
        A(f"""
        s_mov_b32 exec_hi, 0
        s_nop 6
        ds_write_b128 v40, v[20:23] offset:{L_R1}
        s_mov_b64 exec, -1
        """)
        self.samexcd(132)
        A("s_cselect_b32 s95, 1, 0")
        if a.oc == 1:
            A("s_cmp_eq_u32 s3, 0\ns_cbranch_scc0 L_h_no2")
            self.clears2()
            A("s_waitcnt vmcnt(0)\nL_h_no2:")
        if a.pf:
            A("s_cmp_eq_u32 s100, 1\ns_cbranch_scc0 L_h_npf\ns_cmp_eq_u32 s3, 0\ns_cbranch_scc0 L_h_npf")
            self.w1addr(8, 9, 10)
            A(f"s_mov_b32 m0, {L_W1}\ns_mov_b32 s8, 0")
            self.w1loop("L_h_pf", 8, 9, "s8", L_W1 + a.pf*2048, a.dp)
            A("L_h_npf:")
        A("s_waitcnt lgkmcnt(0)\ns_barrier")
        self.stamp(6)
        A("s_cmp_eq_u32 s3, 0\ns_cbranch_scc0 L_opub\ns_mov_b32 exec_hi, 0")
        self.sum8("v5", L_R1, 512)
        A("v_cvt_pk_bf16_f32 v46, v64, v65\nv_cvt_pk_bf16_f32 v47, v66, v67\nv_min_u32 v46, -2, v46\nv_min_u32 v47, -2, v47\ns_cmp_eq_u32 s95, 1")
        self.store2([f"buffer_store_dwordx2 v[46:47], v41, {sr(WS)}, s88 offen"], 132)
        A("s_mov_b64 exec, -1\nL_opub:")
        self.stamp(5)
        if a.notail: A("s_branch L_fin")
        A("s_cmp_eq_u32 s100, 1\ns_cbranch_scc1 L_mlp\ns_cmp_eq_u32 s100, 2\ns_cbranch_scc0 L_fin")

    def reducer(self):
        A = self.A; a = self.a
        self.poll(self.red_small(), [143, 144], 8, 8, first_loaded=True)
        A("""
        v_lshlrev_b32 v208, v14, v143
        v_and_b32 v208, 0xffff0000, v208
        v_lshlrev_b32 v209, v14, v145
        v_and_b32 v209, 0xffff0000, v209
        """)
        self.poll(self.oloads(), range(200, 208), 8, 512, first_loaded=True, sleep=a.so)
        for k in range(2):
            for m in range(2):
                A(f"{MF} {q4(96+4*m)}, {q4(152+8*k+4*m)}, {q4(200+4*k)}, {'0' if k == 0 else q4(96+4*m)}")
        A("v_cmp_lt_u32 vcc, 7, v3\ns_nop 6")
        for r in range(4): A(f"v_cndmask_b32 v{96+r}, v{96+r}, v{100+r}, vcc")
        A("ds_write_b128 v48, v[96:99]\ns_waitcnt lgkmcnt(0)\ns_barrier\ns_cmp_eq_u32 s3, 0\ns_cbranch_scc0 L_apdone")
        self.sum8("v49", 0, 1024)
        for r in range(4): A(f"v_min_u32 v{96+r}, -2, v{64+r}")
        A(f"buffer_store_dwordx4 v[96:99], v5, {sr(WS)}, s94 offen sc1\nL_apdone:")
        self.stamp(7)
        self.sleep(a.wap)
        self.poll([f"buffer_load_dwordx4 v[64:67], v45, {sr(WS)}, s92 offen sc1"], range(64, 68), 8, 16, sleep=a.sr)
        self.red_fin()
        A("v_min_u32 v68, -2, v68\nv_min_u32 v69, -2, v69\ns_mov_b64 exec, 0xff\ns_cmp_eq_u32 s95, 1")
        self.store2([f"buffer_store_dwordx2 v[68:69], v41, {sr(WS)}, s91 offen"], 132)
        A("s_mov_b64 exec, -1")
        self.stamp(8)
        A(f"""
        s_cmp_eq_u32 s3, 7
        s_cbranch_scc0 L_fin
        v_lshlrev_b32 v208, v14, v144
        v_and_b32 v208, 0xffff0000, v208
        v_mul_u32_u24 v10, 20480, v9
        v_lshl_add_u32 v10, v146, 4, v10
        v_mul_u32_u24 v12, 1280, v1
        s_lshl_b32 s8, s96, 7
        s_add_u32 s8, s8, {hex(WS_OP)}
        s_add_u32 s9, s8, {8*20480}
        s_add_u32 s10, s8, {16*20480}
        s_add_u32 s11, s8, {24*20480}
        s_lshl_b32 s88, s96, 3
        """)
        self.poll([f"buffer_load_dword v145, v149, {sr(WS)}, s99 offen sc1"], [145], 13, 32, sleep=2)
        A("v_lshlrev_b32 v209, v14, v145\nv_and_b32 v209, 0xffff0000, v209")
        self.sleep(a.wop)
        loads = [f"buffer_load_dwordx4 {q4(64+4*i)}, v10, {sr(WS)}, s{8+i} offen sc1" for i in range(4)]
        self.poll(loads, range(64, 80), 13, 16, sleep=a.sr)
        for a_, b_ in ((64, 68), (72, 76), (64, 72)):
            for r in (0, 2): self.pk("add", a_+r, a_+r, q2(b_+r))
        A("s_nop 0")
        self.red_fin()
        A(f"""
        s_mov_b64 exec, 0xff
        buffer_store_dwordx2 v[68:69], v12, {sr(OUT)}, s88 offen
        s_mov_b64 exec, -1
        """)
        self.stamp(9)
        A("s_branch L_fin")

    def mlp(self):
        A = self.A; a = self.a
        W1F, W2F, AC, GR = 64, 104, 136, 152
        np_ = (40 - a.pf)//8; assert (40 - a.pf) % 8 == 0 and a.pf <= 32
        A("L_mlp:")
        self.w1addr(15, 14, 12)
        A(f"""
        s_mul_i32 s86, s3, {np_*16*3456}
        s_add_u32 s86, s86, {a.pf*16*3456}
        s_mul_i32 s87, s3, {np_*2048}
        s_add_u32 m0, s87, {L_W1 + a.pf*2048}
        s_add_u32 s87, s87, {L_W1 + a.pf*2048 + np_*2048}
        s_barrier
        """)
        if a.oc == 2:
            A("s_cmp_eq_u32 s3, 0\ns_cbranch_scc0 L_h_no2")
            self.clears2()
            A("L_h_no2:")
        for l in self.mlp_small(): A(l)
        self.w1loop("L_t1", 15, 14, "s86", "s87")
        A(f"""
        v_lshlrev_b32 v12, 1, v2
        v_xor_b32 v12, v12, v3
        v_mul_u32_u24 v14, 1280, v2
        v_lshl_add_u32 v15, v12, 4, v14
        v_xor_b32 v12, 8, v12
        v_lshl_add_u32 v14, v12, 4, v14
        v_add_u32 v14, {5120 - 1024}, v14
        s_lshl_b32 s87, s3, 11
        s_add_u32 m0, s87, {L_W2}
        s_mul_i32 s86, s3, {8*1280}
        buffer_load_dwordx4 v15, {sr(TB)}, s86 offen nt lds
        buffer_load_dwordx4 v14, {sr(TB)}, s86 offen offset:1024 nt lds
        s_cmp_eq_u32 s93, 2
        s_cbranch_scc1 L_mlp_nt
        s_add_u32 m0, m0, 16384
        s_add_u32 s86, s86, 256
        buffer_load_dwordx4 v15, {sr(TB)}, s86 offen nt lds
        buffer_load_dwordx4 v14, {sr(TB)}, s86 offen offset:1024 nt lds
        L_mlp_nt:
        s_waitcnt vmcnt({2*np_+2})
        """)
        self.poll([self.flg()] + self.mlp_small(), list(range(132, 143)), 8, 64, first_loaded=True)
        for i in range(5):
            self.unpack(208+2*i, 209+2*i, 133+i)
            A(f"v_add_f32 v{208+2*i}, 1.0, v{208+2*i}\nv_add_f32 v{209+2*i}, 1.0, v{209+2*i}")
            A(f"v_cvt_pk_bf16_f32 v8, v{208+2*i}, v{209+2*i}")
            self.unpack(208+2*i, 209+2*i, 8)
            self.unpack(218+2*i, 219+2*i, 138+i)
        A(f"""
        v_lshrrev_b32 v8, 2, v3
        v_lshlrev_b32 v10, 10, v2
        v_lshl_add_u32 v10, v8, 7, v10
        v_lshl_add_u32 v10, v13, 3, v10
        s_lshr_b32 s8, s3, 1
        s_mul_i32 s9, s8, 20480
        s_add_u32 s9, s9, {L_W1}
        v_add_u32 v10, s9, v10
        v_and_b32 v9, 1, v2
        v_lshrrev_b32 v12, 3, v3
        v_lshl_add_u32 v12, v9, 1, v12
        s_and_b32 s10, s3, 1
        s_lshl_b32 s10, s10, 1
        v_xor_b32 v12, s10, v12
        v_xor_b32 v184, 1, v12
        v_lshl_add_u32 v184, v184, 5, v10
        v_lshl_add_u32 v10, v12, 5, v10
        v_lshl_add_u32 v11, v2, 2, v8
        v_lshlrev_b32 v11, 8, v11
        v_lshl_add_u32 v11, v13, 3, v11
        v_add_u32 v11, {L_W2}, v11
        v_lshl_add_u32 v12, v9, 2, v8
        s_and_b32 s9, s3, 3
        s_lshl_b32 s9, s9, 1
        v_xor_b32 v12, s9, v12
        v_xor_b32 v185, 1, v12
        v_lshl_add_u32 v185, v185, 5, v11
        v_lshl_add_u32 v11, v12, 5, v11
        v_lshlrev_b32 v186, 6, v146
        v_lshl_add_u32 v186, v2, 4, v186
        s_mul_i32 s9, s8, 2560
        v_add_u32 v186, s9, v186
        s_lshl_b32 s9, s3, 11
        s_add_u32 s9, s9, {L_G1}
        v_add_u32 v187, s9, v5
        v_lshrrev_b32 v9, 3, v3
        v_lshlrev_b32 v188, 10, v9
        v_lshl_add_u32 v188, v2, 8, v188
        v_lshl_add_u32 v188, v146, 4, v188
        v_add_u32 v188, {L_G1}, v188
        v_lshlrev_b32 v190, 4, v146
        v_lshl_add_u32 v190, v2, 7, v190
        s_add_u32 s43, s90, 4096
        s_add_u32 s89, s90, 8192
        s_lshl_b32 s9, s3, 10
        s_add_u32 s42, s101, s9
        s_mov_b32 s86, 0x00ff00ff
        s_mov_b32 s87, 0x00ff00ff
        s_add_u32 s88, s42, 4096
        s_waitcnt vmcnt(0)
        s_barrier
        """)
        self.stamp(1)
        loads = [f"buffer_load_dword v{24+i}, v7, {sr(WS)}, {['s90','s43','s89'][i//2]} offen offset:{(i%2)*2048} sc1" for i in range(5)]
        for l in loads: A(l)
        for k in range(5):
            for t in range(2):
                r = W1F + 8*k + 4*t
                A(f"ds_read_b64_tr_b16 {q2(r)}, {'v184' if t else 'v10'} offset:{k*4096}")
                A(f"ds_read_b64_tr_b16 {q2(r+2)}, {'v184' if t else 'v10'} offset:{k*4096 + 512}")
        A("s_cmp_ge_u32 s3, 4\ns_cbranch_scc1 L_now2")
        for m in range(4):
            for j in range(2):
                r = W2F + 8*m + 4*j
                A(f"ds_read_b64_tr_b16 {q2(r)}, {'v185' if m % 2 else 'v11'} offset:{(m//2)*16384 + j*8192}")
                A(f"ds_read_b64_tr_b16 {q2(r+2)}, {'v185' if m % 2 else 'v11'} offset:{(m//2)*16384 + j*8192 + 4096}")
        A("L_now2:\ns_waitcnt vmcnt(0)")
        self.poll(loads, range(24, 29), 8, 128, first_loaded=True, sleep=a.sx)
        self.stamp(8)
        if a.fast:
            self.ln_body(True)
            for i in range(5): A(f"v_pk_fma_f32 {q2(32+2*i)}, {q2(32+2*i)}, {q2(208+2*i)}, {q2(218+2*i)}")
        else:
            self.ln_body(False, pack=False)
            self.rnd(range(32, 42))
            for i in range(5): self.pk("mul", 32+2*i, 32+2*i, q2(208+2*i))
            self.rnd(range(32, 42))
            for i in range(5): self.pk("add", 32+2*i, 32+2*i, q2(218+2*i))
        for i in range(5):
            A(f"v_cvt_pk_bf16_f32 v{24+i}, v{32+2*i}, v{33+2*i}")
            A(f"ds_write_b32 v7, v{24+i} offset:{L_ACT + i*2048}")
        A("s_waitcnt lgkmcnt(0)\ns_barrier")
        for k in range(5): A(f"ds_read_b128 {q4(32+4*k)}, v186 offset:{L_ACT + k*512}")
        for k in range(5):
            A(f"s_waitcnt lgkmcnt({4-k})")
            for t in range(2):
                A(f"{MF} {q4(AC+4*t)}, {q4(W1F+8*k+4*t)}, {q4(32+4*k)}, {'0' if k == 0 else q4(AC+4*t)}")
        A(f"s_nop 6\nds_write_b128 v187, {q4(AC)}\nds_write_b128 v187, {q4(AC+4)} offset:1024\ns_waitcnt lgkmcnt(0)\ns_barrier")
        A("s_cmp_ge_u32 s3, 4\ns_cbranch_scc1 L_fin")
        for j in range(2):
            for k in range(4): A(f"ds_read_b128 {q4(GR+16*j+4*k)}, v188 offset:{k*4096 + j*2048}")
        for j in range(2):
            b0 = GR + 16*j
            A(f"s_waitcnt lgkmcnt({4-4*j})")
            for a_, b_ in ((0, 4), (8, 12), (0, 8)):
                for r in (0, 2): self.pk("add", b0+a_+r, b0+a_+r, q2(b0+b_+r))
            for r in range(4): A(f"v_cvt_pk_bf16_f32 v{32+4*j+r}, 0, v{b0+r}")
        A(f"s_mov_b32 s8, {hex(NLOG2E)}")
        for r in range(0, 8, 2): self.pk("mul", 40+r, 32+r, "s[8:9]", "op_sel_hi:[1,0]")
        for r in range(8): A(f"v_exp_f32 v{40+r}, v{40+r}")
        for r in range(0, 8, 2): self.pk("add", 40+r, 40+r, "1.0", "op_sel_hi:[1,0]")
        for r in range(8): A(f"v_rcp_f32 v{40+r}, v{40+r}")
        for r in range(0, 8, 2): self.pk("mul", 32+r, 32+r, q2(40+r))
        A(f"""
        v_cvt_pk_bf16_f32 v24, v32, v33
        v_cvt_pk_bf16_f32 v25, v34, v35
        v_cvt_pk_bf16_f32 v28, v36, v37
        v_cvt_pk_bf16_f32 v29, v38, v39
        v_mov_b32_dpp v26, v24 row_ror:8 {DPPF}
        v_mov_b32_dpp v27, v25 row_ror:8 {DPPF}
        v_mov_b32_dpp v30, v28 row_ror:8 {DPPF}
        v_mov_b32_dpp v31, v29 row_ror:8 {DPPF}
        """)
        for hf in range(2):
            for j in range(2):
                for m in (2*hf, 2*hf+1):
                    A(f"{MF} {q4(AC+4*m)}, {q4(W2F+8*m+4*j)}, {q4(24+4*j)}, {'0' if j == 0 else q4(AC+4*m)}")
        A("s_mov_b64 exec, s[86:87]\ns_cmp_eq_u32 s93, 2\ns_nop 0")
        for m in range(4):
            if m == 2: A("s_cbranch_scc1 L_opd")
            for r in range(4): A(f"v_min_u32 v{AC+4*m+r}, -2, v{AC+4*m+r}")
            A(f"buffer_store_dwordx4 {q4(AC+4*m)}, v190, {sr(WS)}, {'s42' if m < 2 else 's88'} offen offset:{(m%2)*512} sc1")
        A("L_opd:")
        A("s_mov_b64 exec, -1")
        self.stamp(9)

    def finish(self):
        A = self.A
        A("L_fin:\ns_cmp_eq_u32 s15, 0\ns_cbranch_scc1 L_noerr")
        A(f"v_mov_b32 v8, s15\ns_mov_b64 exec, 1\nbuffer_atomic_or v8, off, {sr(DBG)}, 0 offset:4 sc1\ns_mov_b64 exec, -1\nL_noerr:")
        if self.a.stamps:
            self.stamp(10)
            A("s_waitcnt lgkmcnt(0)")
            self.srdo(STS, f"s{WS}", f"s{WS+1}", hex(STAMP_OFF), "0x100000")
            A("s_mov_b32 s38, s97\ns_lshl_b32 s39, s100, 8\ns_or_b32 s39, s39, s85")
            A(f"s_mul_i32 s8, s2, {12*8*2}")
            A("s_cmp_eq_u32 s3, 0\ns_cbranch_scc1 L_st\ns_cmp_eq_u32 s3, 7\ns_cbranch_scc0 L_end\ns_add_u32 s8, s8, 96\nL_st:\ns_mov_b64 exec, 1")
            for k in range(12):
                A(f"v_mov_b32 v8, s{16+2*k}\nv_mov_b32 v9, s{17+2*k}\nbuffer_store_dwordx2 v[8:9], off, {sr(STS)}, s8 offset:{8*k}\ns_nop 1")
        A("L_end:\ns_endpgm")

    def subs(self):
        A = self.A
        pass
    def rnd(self, regs):
        for r in regs: self.A(f"v_cvt_pk_bf16_f32 v{r}, 0, v{r}")
    def ln_body(self, fast, pack=True):
        A = self.A
        for i in range(5):
            self.unpack(32+2*i, 33+2*i, 24+i)
            if i == 0: A("v_readfirstlane_b32 s8, v32")
        NEG = "op_sel_hi:[1,0] neg_lo:[0,1] neg_hi:[0,1]"
        for i in range(5): self.pk("add", 42+2*i, 32+2*i, "s[8:9]", NEG)
        self.pk("add", 52, 42, "v[44:45]"); self.pk("mul", 54, 42, "v[42:43]")
        for i in range(1, 5):
            if i > 1: self.pk("add", 52, 52, q2(42+2*i))
            A(f"v_pk_fma_f32 v[54:55], {q2(42+2*i)}, {q2(42+2*i)}, v[54:55]")
        A("v_add_f32 v52, v52, v53\nv_add_f32 v53, v54, v55\ns_nop 0")
        for c in (f"row_ror:1 {DPPF}", f"row_ror:2 {DPPF}", f"row_ror:4 {DPPF}", f"row_ror:8 {DPPF}",
                  "row_bcast:15 row_mask:0xa bank_mask:0xf", "row_bcast:31 row_mask:0xc bank_mask:0xf"):
            A(f"v_add_f32_dpp v52, v52, v52 {c}\nv_add_f32_dpp v53, v53, v53 {c}\ns_nop 0")
        A(f"""
        v_readlane_b32 s9, v52, 63
        v_readlane_b32 s10, v53, 63
        v_mov_b32 v54, {hex(INV640)}
        s_nop 0
        v_mul_f32 v52, s9, v54
        v_mul_f32 v53, s10, v54
        v_fma_f32 v53, -v52, v52, v53
        v_add_f32 v52, s8, v52
        v_max_f32 v53, 0, v53
        v_cvt_pk_bf16_f32 v52, 0, v52
        v_cvt_pk_bf16_f32 v54, 0, v53
        v_add_f32 v54, {hex(EPS)}, v54
        v_cvt_pk_bf16_f32 v54, 0, v54
        v_sqrt_f32 v54, v54
        """)
        for i in range(5): self.pk("add", 32+2*i, 32+2*i, "v[52:53]", NEG)
        A("v_cvt_pk_bf16_f32 v54, 0, v54\nv_rcp_f32 v54, v54")
        if fast: A("s_nop 0")
        else: self.rnd(range(32, 42))
        for i in range(5): self.pk("mul", 32+2*i, 32+2*i, "v[54:55]", "op_sel_hi:[1,0]")
        if not fast and pack:
            for i in range(5): A(f"v_cvt_pk_bf16_f32 v{24+i}, v{32+2*i}, v{33+2*i}")

if __name__ == "__main__":
    ap = argparse.ArgumentParser()
    ap.add_argument("-o", default="k.s"); ap.add_argument("--stamps", action="store_true")
    ap.add_argument("--fast", action="store_true"); ap.add_argument("--nolocal", action="store_true"); ap.add_argument("--notail", action="store_true")
    for n, v in dict(dp=0, oc=0, cl=0, sc=2, nfree=3, fs=2, w7=1, hpos=0, rows=0, remap=1, dw=10, dm=4, nref=100, dl=4, wap=16, mode=0, lead=0, de=6, ne=0, dh=12, pf=8, rx=0, ry=0, par=0, diag=0, limit=40000, pad=20480, depth=4, d0=3, nm=3, n0=16, chk=3, d1=4, d2=8, ism=21, wa=0, w2=0, w3=0,
                     s1=8, s2=2, sr=0, sx=0, so=0, wx=20, wop=0).items():
        ap.add_argument("--" + n, type=int, default=v)
    ap.add_argument("--wof", default="")
    ap.add_argument("--x", default=""); ap.add_argument("--cf", default="sc1")
    ap.add_argument("--hm", default="4,1")
    a = ap.parse_args(); a.hm = [int(v) for v in a.hm.split(",")]
    txt = G(a).gen()
    if 's' in a.x: txt = "\n".join(l for l in txt.split("\n") if not ("buffer_store" in l and "s[52:55]" in l))
    drop = lambda pred: "\n".join(l for l in txt.split("\n") if not pred(l))
    if 'e' in a.x: txt = drop(lambda l: "buffer_atomic_or" in l)
    if 'O' in a.x: txt = drop(lambda l: "buffer_store_dwordx2 v[46:47]" in l)
    if 'L' in a.x: txt = drop(lambda l: "buffer_load_dwordx4 v[128:131]" in l)
    if 'M' in a.x: txt = drop(lambda l: "buffer_load_dword v132" in l)
    if 'f' in a.x: txt = drop(lambda l: "buffer_store_dword v12, off" in l)
    if 'F' in a.x: txt = drop(lambda l: "buffer_store_dword v1, off" in l)
    if 'g' in a.x: txt = drop(lambda l: "buffer_store_dwordx4 v[192:195]" in l)
    if 'i' in a.x: txt = drop(lambda l: "buffer_store_dwordx4 v[8:11]" in l)
    if 'p' in a.x: txt = drop(lambda l: "buffer_store_dwordx4 v[40:43]" in l)
    if 'q' in a.x: txt = drop(lambda l: "buffer_store_dwordx4 v[32:35]" in l or "buffer_store_dwordx4 v[36:39]" in l)
    if 'l' in a.x: txt = "\n".join(l for l in txt.split("\n") if not ("buffer_load" in l and "s[52:55]" in l))
    open(a.o, "w").write(txt)
```

```python
import argparse
NAME = "adaLN_cond__sliding_block_cached__dense_activation_silu__decode"

WS_MOD  = 0x00000
WS_FLG  = 61440
WS_FLB  = 62464
WS_QF   = 63488
NCLR    = 8
WS_X1   = 0x40000
WS_O    = 0x30000
WS_AP   = 0x60000
WS_QP   = 0x100000
WS_OP   = 0x180000
WS_END  = WS_OP + 27*20480
STAMP_OFF = 0x20000000
L_Q, L_SM, L_FL = 0, 256, 384
L_ACT, L_XN, L_TA = 1024, 11264, 21504
L_KH  = 62464
L_W1  = L_TA
L_W2  = L_W1 + 81920
L_WO  = L_W2
L_G1  = L_W2 + 32768
L_TB  = L_G1
L_BN  = L_G1 + 16384
L_CS  = L_G1
L_END = L_BN + 4096
L_R1  = L_XN
assert L_KH + 35*1024 <= L_WO and L_END <= 163840
LOG2E, NLOG2E, SCALE, INV640, EPS = 0x3fb8aa3b, 0xbfb8aa3b, 0x3db504f3, 0x3acccccd, 0x3727c5ac
K, V, WS, WO, TA, TB, X, C, OUT, DBG, T0 = 44, 48, 52, 56, 60, 64, 68, 72, 76, 80, 92
KH = C
STS = 40
sr = lambda r: f"s[{r}:{r+3}]"
DPPF = "row_mask:0xf bank_mask:0xf"
MF = "v_mfma_f32_16x16x32_bf16"
q4 = lambda r: f"v[{r}:{r+3}]"
q2 = lambda r: f"v[{r}:{r+1}]"

class G:
    def __init__(self, a):
        self.L = []; self.lab = 0; self.a = a
    def A(self, s):
        for x in s.split("\n"):
            x = x.strip()
            if x: self.L.append(("" if x.endswith(":") else "    ") + x)
    def newlab(self, p="L"):
        self.lab += 1; return f"{p}_{self.lab}"
    def stamp(self, k, diag=0):
        if self.a.stamps and diag == self.a.diag: self.A(f"s_memrealtime s[{16+2*k}:{17+2*k}]")
    def srd(self, d, lo, hi, size):
        self.A(f"s_mov_b32 s{d}, {lo}\ns_mov_b32 s{d+1}, {hi}\ns_mov_b32 s{d+2}, {size}\ns_mov_b32 s{d+3}, 0x20000")
    def srdo(self, d, lo, hi, off, size):
        self.A(f"s_add_u32 s{d}, {lo}, {off}\ns_addc_u32 s{d+1}, {hi}, 0\ns_mov_b32 s{d+2}, {size}\ns_mov_b32 s{d+3}, 0x20000")
    def unpack(self, lo, hi, src):
        self.A(f"v_lshlrev_b32 v{lo}, 16, v{src}\nv_and_b32 v{hi}, 0xffff0000, v{src}")
    def pk(self, op, d, a, b, mods=""):
        self.A(f"v_pk_{op}_f32 {q2(d)}, {q2(a)}, {b} {mods}")
    def maxtree(self, dst, regs):
        regs = list(regs); A = self.A
        if len(regs) == 2:
            A(f"v_max_u32 v{dst}, v{regs[0]}, v{regs[1]}"); return
        A(f"v_max3_u32 v{dst}, v{regs[0]}, v{regs[1]}, v{regs[2]}"); regs = regs[3:]
        while len(regs) >= 2:
            A(f"v_max3_u32 v{dst}, v{dst}, v{regs[0]}, v{regs[1]}"); regs = regs[2:]
        if regs: A(f"v_max_u32 v{dst}, v{dst}, v{regs[0]}")
    def poll(self, loads, regs, tmp, code, first_loaded=False, sleep=1):
        A = self.A; regs = list(regs)
        lp = self.newlab("Lpoll"); ck = self.newlab("Lchk"); dn = self.newlab("Lpd")
        A(f"s_mov_b32 s14, {0 if 'e' in self.a.x else self.a.limit}")
        if first_loaded: A(f"s_branch {ck}")
        A(f"{lp}:")
        for l in loads: A(l)
        A("s_waitcnt vmcnt(0)")
        A(f"{ck}:")
        if len(regs) == 1: tmp = regs[0]
        else: self.maxtree(tmp, regs)
        A(f"v_cmp_eq_u32 vcc, -1, v{tmp}\ns_cbranch_vccz {dn}\ns_mov_b64 exec, vcc")
        if sleep: A(f"s_sleep {sleep}")
        A(f"s_sub_u32 s14, s14, 1\ns_cbranch_scc0 {lp}\ns_or_b32 s15, s15, {code}\n{dn}:\ns_mov_b64 exec, -1")
    def sleep(self, n):
        while n > 0:
            self.A(f"s_sleep {min(n, 120)}"); n -= 120
    def spin(self, off, target, code, vt=12, va=15):
        a = self.newlab("Lsp"); b = self.newlab("Lspd")
        self.A(f"""
        s_mov_b32 s14, {self.a.limit*8}
        {a}:
        ds_read_b32 v{vt}, v{va} offset:{off}
        s_waitcnt lgkmcnt(0)
        v_readfirstlane_b32 s8, v{vt}
        s_nop 0
        s_cmp_ge_u32 s8, {target}
        s_cbranch_scc1 {b}
        s_sleep 1
        s_sub_u32 s14, s14, 1
        s_cbranch_scc0 {a}
        s_or_b32 s15, s15, {code}
        {b}:
        """)
    def bump(self, off, vt=12, va=15):
        self.A(f"v_mov_b32 v{vt}, 1\ns_mov_b64 exec, 1\nds_add_u32 v{va}, v{vt} offset:{off}\ns_mov_b64 exec, -1")
    def silu(self, regs, tmps):
        A = self.A
        for r, t in zip(regs, tmps): A(f"v_mul_f32 v{t}, {hex(NLOG2E)}, v{r}")
        for t in tmps: A(f"v_exp_f32 v{t}, v{t}")
        A("s_nop 0")
        for t in tmps: A(f"v_add_f32 v{t}, 1.0, v{t}")
        for t in tmps: A(f"v_rcp_f32 v{t}, v{t}")
        A("s_nop 0")
        for r, t in zip(regs, tmps): A(f"v_mul_f32 v{r}, v{r}, v{t}")
    def store2(self, stores, cond_reg):
        a = self.newlab("Lwt"); b = self.newlab("Lsd")
        self.A(f"s_cbranch_scc0 {a}")
        for s in stores: self.A(s)
        self.A(f"s_branch {b}\n{a}:")
        for s in stores: self.A(s + " sc1")
        self.A(f"{b}:")
    def samexcd(self, reg):
        if self.a.nolocal: self.A("s_cmp_eq_u32 s3, 99")
        elif 'z' in self.a.x: self.A("s_cmp_eq_u32 s3, s3")
        else: self.A(f"v_cmp_ne_u32 vcc, s97, v{reg}\ns_cmp_eq_u64 vcc, 0")

    def prologue(self):
        A = self.A; a = self.a
        ek = -(-(WS_FLG + (256 << a.fs)) // 8192)
        self.L += [f"; @launch grid=(256,1,1) block=(512,1,1) lds={L_END}",
                   '.amdgcn_target "amdgcn-amd-amdhsa--gfx950"', ".text", f".globl {NAME}_kernel", ".p2align 8",
                   f".type {NAME}_kernel,@function", f"{NAME}_kernel:"]
        A("""
        s_cmp_ge_u32 s2, 256
        s_cbranch_scc1 L_end
        s_load_dwordx16 s[16:31], s[0:1], 0
        s_load_dwordx8 s[32:39], s[0:1], 64
        s_load_dwordx2 s[40:41], s[0:1], 96
        """)
        if a.stamps: A("s_memrealtime s[42:43]")
        A(f"""
        v_lshrrev_b32 v1, 6, v0
        s_and_b32 s4, s2, 7
        v_readfirstlane_b32 s3, v1
        """)
        if a.cpf == 0: A(f"v_mul_u32_u24 v8, {a.pad//512}, v0\nglobal_load_dwordx4 v[24:27], v8, s[100:101] offset:-16")
        if a.cpf == 1: A(f"""
        s_bfe_u32 s8, s2, 0x30003
        s_mul_i32 s8, s8, {a.pad//8}
        v_lshlrev_b32 v8, 7, v0
        v_add_u32 v8, s8, v8
        v_cmp_gt_u32 vcc, {a.pad//1024}, v0
        s_and_saveexec_b64 s[10:11], vcc
        s_cbranch_execz L_npf
        global_load_dword v24, v8, s[100:101] offset:-16
        L_npf:
        s_mov_b64 exec, -1
        """)
        A(f"""
        v_and_b32 v1, 63, v0
        v_lshrrev_b32 v2, 4, v1
        v_and_b32 v3, 15, v1
        v_lshlrev_b32 v4, 6, v3
        v_lshl_add_u32 v4, v2, 4, v4
        v_lshlrev_b32 v5, 4, v1
        v_lshlrev_b32 v6, 2, v1
        v_and_b32 v13, 3, v1
        s_lshr_b32 s5, s2, 3
        s_lshl_b32 s6, s4, 2
        s_and_b32 s8, s5, 3
        s_add_u32 s6, s6, s8
        s_lshr_b32 s7, s5, 2
        """)
        hm = a.hm
        A(f"""
        s_mul_i32 s84, s8, {hm[1]}
        s_mul_i32 s9, s4, {hm[0]}
        s_add_u32 s84, s84, s9
        s_lshl_b32 s8, s7, 5
        s_add_u32 s84, s84, s8
        s_lshl_b32 s14, s84, 20
        """)
        if a.w7: A(f"""
        s_lshl_b32 s9, s3, 10
        s_sub_u32 s9, s9, 1024
        s_cmp_eq_u32 s3, 0
        s_cselect_b32 s9, {224*1024}, s9
        s_cselect_b32 s13, 1, 7
        """)
        else: A("s_lshl_b32 s9, s3, 10\ns_mov_b32 s13, 8")
        A(f"""
        s_sub_u32 s12, 0x40000, s9
        s_add_u32 s14, s14, s9
        s_add_u32 s14, s14, 0xC0000
        s_mov_b32 s15, 0
        s_mul_i32 s97, s3, 1280
        s_and_b32 s8, s5, 15
        s_lshr_b32 s8, s8, 1
        s_lshl_b32 s9, s8, 3
        s_add_u32 s9, s9, s4
        s_lshl_b32 s91, s9, 1
        s_and_b32 s10, s5, 1
        s_add_u32 s91, s91, s10
        s_mul_i32 s11, s3, 5120
        s_add_u32 m0, s11, {L_TA}
        v_mov_b32 v15, {L_FL}
        v_mov_b32 v8, 0
        v_mov_b32 v9, 0
        v_mov_b32 v10, 0
        v_mov_b32 v11, 0
        ds_write_b128 v15, v[8:11]
        s_nop 1
        v_mov_b32 v8, -1
        v_mov_b32 v9, -1
        v_mov_b32 v10, -1
        v_mov_b32 v11, -1
        s_cmp_lt_u32 s5, 16
        s_cbranch_scc1 L_p_mod
        s_mov_b32 s85, 1
        v_lshrrev_b32 v12, 3, v1
        v_lshlrev_b32 v12, 13, v12
        v_and_b32 v14, 7, v1
        v_lshl_add_u32 v12, v14, 4, v12
        s_lshl_b32 s99, s4, 3
        s_add_u32 s99, s99, s8
        s_lshr_b32 s9, s8, 1
        s_mul_i32 s9, s9, {hm[1]*256}
        s_mul_i32 s11, s4, {hm[0]*256}
        s_add_u32 s9, s9, s11
        s_and_b32 s11, s8, 1
        s_lshl_b32 s11, s11, 7
        s_add_u32 s9, s9, s11
        s_mul_i32 s10, s10, {320*8192}
        s_add_u32 s9, s9, s10
        s_mov_b32 s11, {8*8192}
        s_waitcnt lgkmcnt(0)
        s_add_u32 s{T0}, s22, s9
        s_addc_u32 s{T0+1}, s23, 0
        s_sub_u32 s{T0+2}, {640*8192}, s9
        s_branch L_p_j
        L_p_mod:
        s_mov_b32 s85, 2
        v_lshrrev_b32 v12, 2, v1
        v_mul_u32_u24 v12, 7680, v12
        v_lshl_add_u32 v12, v13, 4, v12
        s_lshl_b32 s9, s91, 6
        s_mov_b32 s11, {16*7680}
        s_mov_b32 s99, 0
        s_waitcnt lgkmcnt(0)
        s_add_u32 s{T0}, s34, s9
        s_addc_u32 s{T0+1}, s35, 0
        s_sub_u32 s{T0+2}, {640*7680}, s9
        s_cmp_lt_u32 s91, 120
        s_cbranch_scc1 L_p_j
        s_mov_b32 s85, 8
        s_mov_b32 s{T0+2}, 0
        L_p_j:
        s_mov_b32 s{T0+3}, 0x20000
        """)
        if 'n' in a.x: A(f"s_mov_b32 s{T0+2}, 0")
        self.srd(WS, "s40", "s41", hex(WS_END)); self.srd(DBG, "s38", "s39", 256)
        self.srd(X, "s16", "s17", 10240); self.srd(C, "s32", "s33", 10240)
        A(f"""
        s_lshl_b32 s87, s6, 3
        s_add_u32 s87, s87, s7
        s_cmp_eq_u32 s3, 0
        s_cbranch_scc0 L_p_nh
        s_setprio 3
        s_cmp_eq_u32 s85, 8
        s_cbranch_scc0 L_p_nc
        s_sub_u32 s8, s91, 120
        s_mul_i32 s8, s8, {ek*1024}
        """)
        for i in range(ek):
            if i and i % 4 == 0: A("s_add_u32 s8, s8, 4096")
            A(f"buffer_store_dwordx4 v[8:11], v5, {sr(WS)}, s8 offen offset:{(i%4)*1024} sc1")
        A(f"""
        s_waitcnt vmcnt(0)
        v_mov_b32 v14, 1
        s_mov_b64 exec, 1
        buffer_atomic_add v14, off, {sr(DBG)}, 0 sc1
        s_mov_b64 exec, -1
        s_sub_u32 s8, s91, 120
        s_mul_i32 s8, s8, 20480
        s_add_u32 s8, s8, {hex(WS_AP)}
        s_add_u32 s9, s8, 20480
        L_p_c2:
        buffer_store_dwordx4 v[8:11], v5, {sr(WS)}, s8 offen sc1
        s_add_u32 s8, s8, 1024
        s_cmp_lt_u32 s8, s9
        s_cbranch_scc1 L_p_c2
        L_p_nc:
        L_p_nh:
        s_cmp_eq_u32 s85, 2
        s_cbranch_scc0 L_p_nxc
        """)
        A("s_sub_u32 s8, s91, 20\ns_cmp_lt_u32 s8, 20\ns_cbranch_scc0 L_p_nx")
        for i in range(5): A(f"buffer_load_dword v{24+i}, v6, {sr(X)}, s97 offen offset:{i*256}")
        A("L_p_nx:")
        for i in range(5): A(f"buffer_load_dword v{56+i}, v6, {sr(C)}, s97 offen offset:{i*256}")
        A("L_p_nxc:\ns_mul_i32 s8, s3, s11\ns_mul_i32 s8, s8, 5")
        for u in range(5):
            A(f"buffer_load_dwordx4 v12, {sr(T0)}, s8 offen nt lds")
            if u < 4: A("s_add_u32 m0, m0, 1024\ns_add_u32 s8, s8, s11")
        self.srdo(K, "s18", "s19", "s14", "s12")
        A("s_waitcnt lgkmcnt(0)\ns_barrier")

    def setup2(self):
        A = self.A
        self.srdo(V, "s20", "s21", "s14", "s12")
        A(f"""
        s_sub_i32 s98, s5, 12
        """)
        if self.a.remap: A("""
        s_and_b32 s8, s98, 3
        s_lshl_b32 s8, s8, 1
        s_lshr_b32 s9, s98, 2
        s_add_u32 s8, s8, s9
        s_cmp_lt_u32 s98, 8
        s_cselect_b32 s98, s8, s98
        """)
        A(f"""
        s_max_i32 s9, s98, 0
        s_lshl_b32 s9, s9, 6
        s_mul_i32 s8, s4, {self.a.hm[0]*128*1280}
        s_add_u32 s8, s8, s9
        s_add_u32 s{WO}, s24, s8
        s_addc_u32 s{WO+1}, s25, 0
        s_sub_u32 s{WO+2}, {4096*1280}, s8
        s_mov_b32 s{WO+3}, 0x20000
        """)
        if 'o' in self.a.x: A(f"s_mov_b32 s{WO+2}, 0")
        self.srd(OUT, "s36", "s37", 10240)
        A("s_lshl_b32 s8, s84, 20\ns_add_u32 s8, s8, 0xC0000")
        self.srdo(KH, "s18", "s19", "s8", "0x40000")
        A(f"""
        s_mul_i32 s8, s5, 86
        s_lshr_b32 s8, s8, 8
        s_mul_i32 s9, s8, 3
        s_sub_u32 s93, s5, s9
        s_lshl_b32 s8, s8, 3
        s_add_u32 s8, s8, s4
        s_lshl_b32 s10, s8, 7
        s_add_u32 s{TA}, s28, s10
        s_addc_u32 s{TA+1}, s29, 0
        s_sub_u32 s{TA+2}, {640*3456}, s10
        s_mov_b32 s{TA+3}, 0x20000
        s_mul_i32 s10, s8, {64*1280}
        s_lshl_b32 s11, s93, 9
        s_add_u32 s10, s10, s11
        s_add_u32 s{TB}, s30, s10
        s_addc_u32 s{TB+1}, s31, 0
        s_sub_u32 s{TB+2}, {64*1280}, s11
        s_mov_b32 s{TB+3}, 0x20000
        s_mul_i32 s101, s8, 20480
        s_lshl_b32 s11, s93, 13
        s_add_u32 s101, s101, s11
        s_add_u32 s101, s101, {hex(WS_OP)}
        s_cmp_lt_u32 s8, 27
        s_cselect_b32 s100, 1, 0
        s_cmp_ge_i32 s98, 0
        s_cselect_b32 s100, 2, s100
        s_mul_i32 s90, s4, 10240
        s_add_u32 s90, s90, {hex(WS_X1)}
        s_lshl_b32 s96, s98, 3
        s_add_u32 s96, s96, s4
        s_getreg_b32 s97, hwreg(HW_REG_XCC_ID)
        s_and_b32 s97, s97, 15
        s_lshl_b32 s10, s3, 6
        v_lshlrev_b32 v7, 9, v2
        v_lshl_add_u32 v7, v3, 2, v7
        v_add_u32 v7, s10, v7
        v_lshrrev_b32 v0, 2, v1
        v_mul_u32_u24 v0, 1280, v0
        v_lshl_add_u32 v0, v13, 4, v0
        v_and_b32 v8, 1, v3
        v_lshlrev_b32 v8, 4, v8
        v_mov_b32 v9, 0xffff
        v_lshlrev_b32 v9, v8, v9
        v_lshrrev_b32 v8, 1, v3
        """)
        for r in range(4):
            A(f"v_cmp_eq_u32 vcc, {r}, v8\ns_nop 1\nv_cndmask_b32 v{16+r}, 0, v9, vcc")
        if self.a.stamps: A("s_mov_b32 s16, s42\ns_mov_b32 s17, s43")

    def init1(self):
        A = self.A
        for i in range(5): self.unpack(32+2*i, 33+2*i, 56+i)
        self.silu(list(range(32, 42)), list(range(44, 54)))
        for i in range(5):
            A(f"v_cvt_pk_bf16_f32 v{56+i}, v{32+2*i}, v{33+2*i}")
            A(f"ds_write_b32 v7, v{56+i} offset:{L_ACT + i*2048}")
        A("s_sub_u32 s8, s91, 20\ns_cmp_lt_u32 s8, 20\ns_cbranch_scc0 L_c_a")
        self.ln_body(False)
        for i in range(5): A(f"ds_write_b32 v7, v{24+i} offset:{L_XN + i*2048}")

    def clears1(self, fl, tag):
        self.A(f"""
        s_lshl_b32 s8, s87, 8
        s_add_u32 s8, s8, {hex(WS_O)}
        s_mov_b64 exec, 0xffff
        buffer_store_dwordx4 v[48:51], v5, {sr(WS)}, s8 offen {fl}
        s_cmp_eq_u32 s100, 2
        s_cbranch_scc0 L_h_nx{tag}
        s_lshl_b32 s8, s98, 9
        s_add_u32 s8, s8, s90
        s_mov_b32 exec_lo, -1
        buffer_store_dwordx4 v[48:51], v5, {sr(WS)}, s8 offen {fl}
        L_h_nx{tag}:
        s_lshl_b32 s8, s87, 2
        s_add_u32 s8, s8, {WS_FLB}
        s_mov_b64 exec, 1
        s_waitcnt vmcnt(0)
        buffer_store_dword v46, off, {sr(WS)}, s8 {fl}
        s_mov_b64 exec, -1
        """)
    def clears2(self):
        A = self.A
        A("v_mov_b32 v192, -1\nv_mov_b32 v193, -1\nv_mov_b32 v194, -1\nv_mov_b32 v195, -1\ns_cmp_eq_u32 s100, 1\ns_cbranch_scc0 L_h_no")
        for i in range(4): A(f"buffer_store_dwordx4 v[192:195], v5, {sr(WS)}, s101 offen offset:{i*1024} sc1")
        A("s_cmp_eq_u32 s93, 2\ns_cbranch_scc1 L_h_no\ns_add_u32 s8, s101, 4096")
        for i in range(4): A(f"buffer_store_dwordx4 v[192:195], v5, {sr(WS)}, s8 offen offset:{i*1024} sc1")
        A("L_h_no:")

    def helper(self, vload):
        A = self.A; a = self.a
        AF = lambda k, nt: (64 + 4*(k*4+nt)) if k < 8 else (208 + 4*((k-8)*4+nt))
        A("L_helper:")
        A(f"""
        s_waitcnt vmcnt(0)
        s_cmp_eq_u32 s85, 8
        s_cbranch_scc0 L_h_nb
        v_mov_b32 v14, 1
        s_mov_b64 exec, 1
        buffer_atomic_add v14, off, {sr(DBG)}, 0 offset:128 sc1
        s_mov_b64 exec, -1
        L_h_nb:
        """)
        cld = f"buffer_load_dword v12, off, {sr(DBG)}, 0 sc1"
        if a.cl == 0: A(cld)
        self.spin(4, 7, 256, vt=14)
        if a.cl == 1: A(cld)
        if a.cl == 2: A(f"s_cmp_eq_u32 s85, 2\ns_cbranch_scc0 L_h_c2\n{cld}\nL_h_c2:")
        self.stamp(9)
        A(f"""
        v_lshrrev_b32 v8, 2, v3
        s_cmp_eq_u32 s85, 2
        s_cbranch_scc1 L_h_mod
        v_lshlrev_b32 v10, 10, v2
        v_lshl_add_u32 v10, v8, 7, v10
        v_lshl_add_u32 v10, v13, 3, v10
        """)
        for k in range(10):
            for nt in range(4):
                r = AF(k, nt)
                A(f"ds_read_b64_tr_b16 {q2(r)}, v10 offset:{L_TA + k*4096 + nt*32}")
                A(f"ds_read_b64_tr_b16 {q2(r+2)}, v10 offset:{L_TA + k*4096 + nt*32 + 512}")
        if a.cl == 2: A(f"s_waitcnt lgkmcnt(0)\n{cld}")
        A(f"""
        s_branch L_h_cnt
        L_h_mod:
        v_lshlrev_b32 v10, 9, v2
        v_lshl_add_u32 v10, v8, 6, v10
        v_lshl_add_u32 v10, v13, 3, v10
        """)
        def rd(i):
            A(f"ds_read_b128 {q4(24+4*i)}, v4 offset:{L_ACT + i*1024}")
            for par in range(2):
                for nt in range(2):
                    r = 64 + 4*((2*i+par)*2+nt)
                    A(f"ds_read_b64_tr_b16 {q2(r)}, v10 offset:{L_TA + (2*i+par)*2048 + nt*32}")
                    A(f"ds_read_b64_tr_b16 {q2(r+2)}, v10 offset:{L_TA + (2*i+par)*2048 + nt*32 + 256}")
        if a.stamps: A("s_waitcnt lgkmcnt(0)")
        rd(0)
        for i in range(10):
            if i < 9:
                rd(i+1); A("s_waitcnt lgkmcnt(9)")
            else: A("s_waitcnt lgkmcnt(0)")
            for par in range(2):
                for nt in range(2):
                    r = 64 + 4*((2*i+par)*2+nt); a_ = 224 + 8*par + 4*nt
                    A(f"{MF} {q4(a_)}, {q4(r)}, {q4(24+4*i)}, {'0' if i == 0 else q4(a_)}")
        A(f"""
        v_and_b32 v8, 7, v3
        v_lshrrev_b32 v9, 3, v3
        v_lshlrev_b32 v11, 6, v8
        v_lshl_add_u32 v11, v9, 5, v11
        v_lshl_add_u32 v11, v2, 3, v11
        s_lshl_b32 s9, s91, 9
        s_add_u32 s8, s9, {L_XN - 20*512}
        v_add_u32 v14, s8, v11
        s_nop 1
        """)
        for r in range(4):
            A(f"v_add_f32_dpp v{24+r}, v{232+r}, v{224+r} row_ror:8 row_mask:0xf bank_mask:0x3")
            A(f"v_add_f32_dpp v{24+r}, v{228+r}, v{236+r} row_ror:8 row_mask:0xf bank_mask:0xc")
        A("v_cvt_pk_bf16_f32 v40, v24, v25\nv_cvt_pk_bf16_f32 v41, v26, v27")
        A("s_sub_u32 s8, s91, 20\ns_cmp_lt_u32 s8, 20\ns_cbranch_scc0 L_h_pub")
        A("ds_read_b64 v[42:43], v14")
        for j in range(2): self.unpack(24+2*j, 25+2*j, 40+j)
        for r in range(4): A(f"v_add_f32 v{24+r}, 1.0, v{24+r}")
        for j in range(2): A(f"v_cvt_pk_bf16_f32 v{40+j}, v{24+2*j}, v{25+2*j}")
        for j in range(2): self.unpack(24+2*j, 25+2*j, 40+j)
        A("s_waitcnt lgkmcnt(0)")
        for j in range(2): self.unpack(28+2*j, 29+2*j, 42+j)
        for r in range(4): A(f"v_mul_f32 v{24+r}, v{24+r}, v{28+r}")
        for j in range(2): A(f"v_cvt_pk_bf16_f32 v{40+j}, v{24+2*j}, v{25+2*j}")
        A(f"""
        L_h_pub:
        v_min_u32 v40, -2, v40
        v_min_u32 v41, -2, v41
        v_add_u32 v11, {L_BN}, v11
        v_add_u32 v14, {L_BN}, v5
        ds_write_b64 v11, v[40:41]
        ds_read_b128 v[40:43], v14
        L_h_cnt:
        s_mov_b32 s14, {a.limit}
        L_wc:
        s_waitcnt vmcnt(0)
        v_readfirstlane_b32 s8, v12
        s_nop 0
        s_cmp_ge_u32 s8, {NCLR}
        s_cbranch_scc1 L_wcd
        s_sleep {a.sc}
        buffer_load_dword v12, off, {sr(DBG)}, 0 sc1
        s_sub_u32 s14, s14, 1
        s_cbranch_scc0 L_wc
        s_or_b32 s15, s15, 1
        L_wcd:
        s_cmp_eq_u32 s85, 2
        s_cbranch_scc0 L_h_np
        s_mov_b32 exec_hi, 0
        s_waitcnt lgkmcnt(0)
        buffer_store_dwordx4 v[40:43], v5, {sr(WS)}, s9 offen sc1
        s_mov_b64 exec, -1
        L_h_np:
        s_lshl_b32 s8, s87, {a.fs}
        s_add_u32 s8, s8, {self.fbase()}
        v_mov_b32 v12, s97
        s_mov_b64 exec, 1
        buffer_store_dword v12, off, {sr(WS)}, s8 sc1
        s_mov_b64 exec, -1
        """)
        if a.oc == 0: self.clears2()
        self.stamp(1)
        A(f"""
        s_cmp_lt_i32 s98, 0
        s_cbranch_scc1 L_h_nwo
        s_mov_b32 m0, {L_WO}
        s_mov_b32 s8, 0
        L_h_wo:
        s_waitcnt vmcnt({a.dw-1})
        buffer_load_dwordx4 v0, {sr(WO)}, s8 offen {a.wof} lds
        s_add_u32 m0, m0, 1024
        s_sub_u32 s9, m0, {L_WO}
        s_and_b32 s10, s9, 0x1fff
        s_cselect_b32 s10, 0, {(a.hm[1]-1)*128*1280}
        s_add_u32 s8, s8, s10
        s_add_u32 s8, s8, 20480
        s_cmp_lt_u32 s9, 32768
        s_cbranch_scc1 L_h_wo
        L_h_nwo:
        """)
        A(f"v_and_b32 v14, 0x7c, v6\ns_lshl_b32 s43, s4, 7\ns_add_u32 s43, s43, {WS_FLG}")
        ids = lambda r: f"buffer_load_dword v{r}, v14, {sr(WS)}, s43 offen sc1"
        A("s_bitcmp1_b32 s85, 0\ns_cbranch_scc0 L_h_getq0")
        A(f"""
        v_and_b32 v8, 7, v3
        v_lshrrev_b32 v9, 3, v3
        v_mul_u32_u24 v12, 10240, v9
        v_lshl_add_u32 v12, v8, 6, v12
        v_lshl_add_u32 v12, v2, 4, v12
        v_lshlrev_b32 v196, 8, v8
        v_lshl_add_u32 v196, v9, 6, v196
        v_lshl_add_u32 v196, v2, 4, v196
        v_add_u32 v196, {L_BN}, v196
        v_add_u32 v197, {L_BN}, v5
        v_lshlrev_b32 v198, 10, v2
        v_lshl_add_u32 v198, v3, 4, v198
        s_and_b32 s10, s5, 1
        s_mul_i32 s8, s10, 5120
        s_add_u32 s42, s8, 2560
        s_lshr_b32 s11, s99, 1
        s_and_b32 s9, s5, 15
        s_lshl_b32 s9, s9, 2
        s_add_u32 s9, s9, s43
        s_add_u32 s9, s9, {WS_QF - WS_FLG}
        s_lshl_b32 s11, s11, 13
        s_lshl_b32 s10, s10, 9
        s_add_u32 s11, s11, s10
        s_and_b32 s10, s99, 1
        s_lshl_b32 s10, s10, 8
        s_add_u32 s11, s11, s10
        s_add_u32 s11, s11, {hex(WS_QP)}
        s_add_u32 s10, s11, 4096
        """)
        loads = [f"buffer_load_dwordx4 {q4(24+4*k)}, v12, {sr(WS)}, {'s8' if k < 5 else 's42'} offen offset:{(k%5)*512} sc1" for k in range(10)]
        self.sleep(a.wa - a.lead)
        if a.mode: A("v_mov_b32 v240, 1\nds_write_b32 v15, v240")
        self.sleep(a.lead)
        self.poll(loads, range(24, 64), 241, 2, sleep=a.s1)
        A(ids(12))
        self.stamp(2)
        A("v_cmp_lt_u32 vcc, 7, v3\ns_waitcnt lgkmcnt(0)")
        ACC = [8, 20, 248, 252]
        for k in range(11):
            if k < 10:
                for j in (4*k, 4*k+2):
                    self.unpack(240, 241, 24+j); self.unpack(242, 243, 25+j)
                    for r in range(4): A(f"v_add_f32_dpp v{244+r}, v{240+r}, v{240+r} row_ror:8 {DPPF}")
                    A(f"v_cvt_pk_bf16_f32 v{24+j}, v244, v245\nv_cvt_pk_bf16_f32 v{25+j}, v246, v247")
            if k >= 1:
                for nt in range(4):
                    A(f"{MF} {q4(ACC[nt])}, {q4(AF(k-1, nt))}, {q4(24+4*(k-1))}, {'0' if k == 1 else q4(ACC[nt])}")
        A("s_nop 5")
        for j in range(2):
            for r in range(4): A(f"v_cndmask_b32 v{24+4*j+r}, v{ACC[2*j]+r}, v{ACC[2*j+1]+r}, vcc")
        A("""
        ds_write_b128 v196, v[24:27]
        ds_write_b128 v196, v[28:31] offset:128
        ds_read_b128 v[32:35], v197
        ds_read_b128 v[36:39], v197 offset:1024
        s_waitcnt vmcnt(0)
        """)
        self.samexcd(12)
        A("s_waitcnt lgkmcnt(0)")
        self.store2([f"buffer_store_dwordx4 v[32:35], v198, {sr(WS)}, s11 offen", f"buffer_store_dwordx4 v[36:39], v198, {sr(WS)}, s10 offen",
                     f"s_mov_b64 exec, 1\ns_waitcnt vmcnt(0)\nbuffer_store_dword v1, off, {sr(WS)}, s9"], 12)
        A("s_mov_b64 exec, -1")
        self.stamp(8)
        self.sleep(a.w3)
        A("s_branch L_h_getq\nL_h_getq0:")
        A("s_waitcnt vmcnt(0) lgkmcnt(0)")
        A("s_cmp_lt_i32 s98, 0\ns_cbranch_scc0 L_h_getq")
        for i in range(16):
            A(f"s_waitcnt vmcnt({a.dm-1})")
            vload(i)
        self.sleep(a.w2 - a.lead)
        if a.mode: A("v_mov_b32 v240, 1\nds_write_b32 v15, v240")
        self.sleep(a.lead)
        A(f"""
        L_h_getq:
        v_lshlrev_b32 v12, 2, v13
        s_and_b32 s9, s5, 3
        s_lshl_b32 s9, s9, 4
        s_add_u32 s9, s9, s43
        s_add_u32 s9, s9, {WS_QF - WS_FLG}
        {ids(45)}
        """)
        self.poll([f"buffer_load_dword v44, v12, {sr(WS)}, s9 offen sc1"], [44], 45, 4, sleep=a.s2)
        A(f"""
        v_lshlrev_b32 v12, 3, v1
        s_lshl_b32 s8, s87, 10
        s_add_u32 s8, s8, {hex(WS_QP)}
        buffer_load_dwordx2 v[40:41], v12, {sr(WS)}, s8 offen sc1
        buffer_load_dwordx2 v[42:43], v12, {sr(WS)}, s8 offen offset:512 sc1
        v_mov_b32 v46, s97
        v_mov_b32 v48, -1
        v_mov_b32 v49, -1
        v_mov_b32 v50, -1
        v_mov_b32 v51, -1
        """)
        self.samexcd(45)
        A("s_cbranch_scc0 L_h_cw")
        self.clears1("", "a")
        A("s_branch L_h_cd\nL_h_cw:")
        self.clears1("sc1", "b")
        A("L_h_cd:")
        A(f"""
        v_add_f32 v32, v40, v42
        v_add_f32 v33, v41, v43
        v_cvt_pk_bf16_f32 v32, v32, v33
        ds_write_b32 v6, v32 offset:{L_Q}
        s_waitcnt lgkmcnt(0)
        ds_write_b32 v15, v15
        """)
        self.stamp(3)
        A(f"""
        s_setprio 0
        s_cmp_lt_i32 s98, 0
        s_cbranch_scc1 L_h_nv
        """)
        for i in range(16):
            A(f"s_waitcnt vmcnt({a.dh-1})")
            vload(i)
        A(f"""
        L_h_nv:
        s_cmp_eq_u32 s100, 1
        s_cbranch_scc0 L_h_ncs
        s_mov_b32 m0, {L_CS}
        s_mov_b32 s8, {WS_MOD + 60*512}
        L_h_cs:
        buffer_load_dwordx4 v5, {sr(WS)}, s8 offen sc1 lds
        s_add_u32 m0, m0, 1024
        s_add_u32 s8, s8, 1024
        s_cmp_lt_u32 s8, {WS_MOD + 100*512}
        s_cbranch_scc1 L_h_cs
        """)
        if a.w2e:
            self.w2addr(8, 9, 10)
            A(f"""
            s_mov_b32 m0, {L_W2}
            s_mov_b32 s8, 0
            L_h_w2:
            s_waitcnt vmcnt({a.dh})
            buffer_load_dwordx4 v8, {sr(TB)}, s8 offen nt lds
            buffer_load_dwordx4 v9, {sr(TB)}, s8 offen offset:1024 nt lds
            s_add_u32 m0, m0, 2048
            s_add_u32 s8, s8, {8*1280}
            s_cmp_eq_u32 s8, {64*1280}
            s_cselect_b32 s8, 256, s8
            s_cselect_b32 s9, s93, 0
            s_cmp_eq_u32 s9, 2
            s_cbranch_scc1 L_h_ncs
            s_cmp_lt_u32 m0, {L_W2 + 32768}
            s_cbranch_scc1 L_h_w2
            """)
        A("L_h_ncs:")
        self.spin(8, 7, 2048)
        A(f"v_add_u32 v8, {L_KH}, v5")
        for i in range(32): A(f"ds_read_b128 {q4(64+4*i)}, v8 offset:{i*1024}")

    def w1addr(self, ve, vo, vt):
        self.A(f"""
        v_lshrrev_b32 v{vo}, 3, v1
        v_mul_u32_u24 v{vo}, 3456, v{vo}
        v_and_b32 v{vt}, 1, v2
        v_lshlrev_b32 v{vt}, 1, v{vt}
        v_and_b32 v{ve}, 7, v1
        v_xor_b32 v{ve}, v{ve}, v{vt}
        v_xor_b32 v{vt}, 4, v{ve}
        v_lshl_add_u32 v{ve}, v{ve}, 4, v{vo}
        v_lshl_add_u32 v{vo}, v{vt}, 4, v{vo}
        v_add_u32 v{vo}, {8*3456 - 1024}, v{vo}
        """)
    def w2addr(self, ve, vo, vt):
        self.A(f"""
        v_lshlrev_b32 v{vt}, 1, v2
        v_xor_b32 v{vt}, v{vt}, v3
        v_mul_u32_u24 v{vo}, 1280, v2
        v_lshl_add_u32 v{ve}, v{vt}, 4, v{vo}
        v_xor_b32 v{vt}, 8, v{vt}
        v_lshl_add_u32 v{vo}, v{vt}, 4, v{vo}
        v_add_u32 v{vo}, {5120 - 1024}, v{vo}
        """)
    def w1loop(self, lab, ve, vo, so, end, thr=0):
        self.A(f"""
        {lab}:
        {f"s_waitcnt vmcnt({thr})" if thr else ""}
        buffer_load_dwordx4 v{ve}, {sr(TA)}, {so} offen {self.a.w1f} lds
        buffer_load_dwordx4 v{vo}, {sr(TA)}, {so} offen offset:1024 {self.a.w1f} lds
        s_add_u32 m0, m0, 2048
        s_add_u32 {so}, {so}, {16*3456}
        s_cmp_lt_u32 m0, {end}
        s_cbranch_scc1 {lab}
        """)
    def gen(self):
        A = self.A; a = self.a
        d, d0, nm = a.depth, a.d0, a.nm
        KR = 64
        VR = [192 + 4*i for i in range(16)] + [64 + 4*i for i in range(16)]
        so = lambda i: f"s_mul_i32 s86, s13, {i*1024}"
        def kload(i): A(f"{so(i)}\nbuffer_load_dwordx4 {q4(KR+4*i)}, v4, {sr(K)}, s86 offen nt")
        def vload(i): A(f"{so(i)}\nbuffer_load_dwordx4 {q4(VR[i])}, v5, {sr(V)}, s86 offen nt")
        def hload(u):
            A(f"s_add_u32 s8, s88, {7*u*1024}\ns_add_u32 m0, s8, {L_KH}\n" + (f"s_add_u32 s8, s8, {224*1024}" if a.w7 else "s_lshl_b32 s8, s8, 3"))
            A(f"buffer_load_dwordx4 v4, {sr(KH)}, s8 offen nt lds")
        kseq = []
        for i in range(32):
            kseq.append(("K", i))
            if not a.hpos and i % 6 == 5 and i//6 < 5: kseq.append(("H", i//6))
            if a.hpos and i == a.hpos: kseq += [("H", u) for u in range(5)]
        for i in range(16): kseq.append(("V", i))
        def issue(op): {"K": kload, "V": vload, "H": hload}[op[0]](op[1])

        self.prologue()
        assert all(op[0] == "K" for op in kseq[:nm])
        A("s_cmp_eq_u32 s3, 0\ns_cbranch_scc1 L_c_j")
        for i in range(nm): kload(i)
        A("L_c_j:")
        self.setup2()
        A(f"s_cmp_eq_u32 s85, 2\ns_cbranch_scc0 L_c_a\ns_waitcnt vmcnt({5+nm})")
        A("s_cmp_eq_u32 s3, 0\ns_cbranch_scc0 L_c_i1\ns_waitcnt vmcnt(5)\nL_c_i1:")
        self.init1()
        A("L_c_a:\ns_cmp_eq_u32 s3, 0\ns_cbranch_scc1 L_helper")
        A(f"s_lshl_b32 s88, s3, 10\ns_sub_u32 s88, s88, 1024\ns_mov_b64 vcc, {0 if a.mode else -1}\ns_waitcnt vmcnt({nm}) lgkmcnt(0)")
        self.bump(4)
        if a.rows: A(f"s_bitcmp1_b32 {a.rows}, s5\ns_cselect_b64 vcc, 0, -1")
        if a.par: A(f"s_bitcmp1_b32 {a.par}, s97\ns_cselect_b32 s92, -1, 1")
        hdone = kseq.index(("H", 4)) + d
        assert hdone < len(kseq)
        for n, op in enumerate(kseq):
            if n < nm: continue
            if n >= len(kseq) - a.nfree: pass
            elif n < a.n0 or d == d0: A(f"s_waitcnt vmcnt({d0-1})")
            else:
                if (n - a.n0) % a.chk == 0 and n <= a.nref and not a.rows:
                    if n > a.n0: A("s_waitcnt lgkmcnt(0)\n" + ("v_cmp_eq_u32 vcc, 1, v14" if a.mode else "v_cmp_gt_u32 vcc, 2, v14"))
                    A("ds_read_b32 v14, v15")
                lb = self.newlab("Ld")
                A(f"s_cbranch_vccz {lb}\ns_waitcnt vmcnt({d0-1})\n{lb}:\ns_waitcnt vmcnt({(a.de if n < a.ne else d)-1})")
            if n == hdone: self.bump(8)
            issue(op)
            if n in (16, 32, 48): self.stamp(n//16)
        self.spin(0, 2, 1024)
        A("s_branch L_qk")
        self.helper(vload)
        A("L_qk:")
        A(f"""
        v_lshlrev_b32 v8, 6, v13
        v_lshl_add_u32 v8, v2, 4, v8
        ds_read_b128 v[24:27], v8 offset:{L_Q}
        v_lshrrev_b32 v9, 2, v3
        s_waitcnt lgkmcnt(0)
        """)
        for t in range(4):
            A(f"v_cmp_eq_u32 vcc, {t}, v9\ns_nop 1")
            for r in range(4): A(f"v_cndmask_b32 v{32+4*t+r}, 0, v{24+r}, vcc")
        A("s_waitcnt vmcnt(16)\ns_nop 0")
        for half in range(2):
            for gg in range(4):
                for t in range(4):
                    i = 16*half + 4*gg + t
                    A(f"{MF} {q4(48+4*gg)}, {q4(KR+4*i)}, {q4(32+4*t)}, {'0' if t == 0 else q4(48+4*gg)}")
            if half == 0:
                for i in range(16, 16 + a.d1): vload(i)
            A("s_nop 7")
            for j in range(4):
                for gg in range(4):
                    g = half*4 + gg
                    if j == 0: A(f"v_mov_b32_dpp v{24+g}, v{48+4*gg} quad_perm:[0,0,0,0] {DPPF}")
                    else: A(f"v_add_f32_dpp v{24+g}, v{48+4*gg+j}, v{24+g} quad_perm:[{j},{j},{j},{j}] {DPPF}")
            A("s_nop 1")
        self.stamp(4)
        self.softmax1()
        for i in range(16 + a.d1, 32):
            if i == a.ism: self.small_loads()
            ex = 2 if a.ism <= i < a.ism + a.d2 else 0
            if a.nref < 100 and a.dl < a.d2:
                lb = self.newlab("Ld")
                A(f"s_cmp_eq_u32 s44, 0\ns_cbranch_scc1 {lb}\ns_waitcnt vmcnt({a.dl-1+ex})\n{lb}:")
            A(f"s_waitcnt vmcnt({a.d2-1+ex})")
            vload(i)
        assert 16 + a.d1 <= a.ism < 32 - a.d2
        self.stamp(5)
        if a.pfe: self.tpf()
        self.softmax2()
        def abuild(i):
            for r in range(4):
                A(f"v_and_b32_dpp v{32+4*(i%2)+r}, v{24+i//4}, v{16+r} row_newbcast:{4*(i%4)} {DPPF}")
        abuild(0)
        for i in range(32):
            if i + 1 < 32: abuild(i+1)
            else: A("s_nop 1")
            if 31 - i < a.d2: A(f"s_waitcnt vmcnt({31-i})")
            A(f"{MF} v[20:23], {q4(32+4*(i%2))}, {q4(VR[i])}, {'0' if i == 0 else 'v[20:23]'}")
            if i == 31 - a.d2: self.tail_prep()
        self.tail1()
        self.reducer()
        self.mlp()
        self.finish()
        self.subs()
        L = self.L
        L += ['.section .rodata,"a"', ".p2align 6", f".amdhsa_kernel {NAME}_kernel",
              "  .amdhsa_next_free_vgpr 256", "  .amdhsa_next_free_sgpr 102", "  .amdhsa_accum_offset 256",
              "  .amdhsa_group_segment_fixed_size 0", "  .amdhsa_kernarg_size 104", "  .amdhsa_user_sgpr_count 2",
              "  .amdhsa_user_sgpr_kernarg_segment_ptr 1", "  .amdhsa_system_sgpr_workgroup_id_x 1", ".end_amdhsa_kernel"]
        return "\n".join(L) + "\n"

    def softmax1(self):
        A = self.A
        A(f"s_mov_b32 s8, {hex(SCALE)}")
        for g in range(0, 8, 2):
            A(f"v_cvt_pk_bf16_f32 v8, v{24+g}, v{25+g}")
            self.unpack(24+g, 25+g, 8)
            A(f"v_mul_f32 v{24+g}, s8, v{24+g}\nv_mul_f32 v{25+g}, s8, v{25+g}")
            A(f"v_cvt_pk_bf16_f32 v8, v{24+g}, v{25+g}")
            self.unpack(24+g, 25+g, 8)
        def wred(op, sdst):
            for c in (f"row_ror:4 {DPPF}", f"row_ror:8 {DPPF}", "row_bcast:15 row_mask:0xa bank_mask:0xf", "row_bcast:31 row_mask:0xc bank_mask:0xf"):
                A(f"s_nop 1\n{op}_dpp v8, v8, v8 {c}")
            A(f"s_nop 1\nv_readlane_b32 {sdst}, v8, 63")
        A("v_max3_f32 v8, v24, v25, v26\nv_max3_f32 v8, v8, v27, v28\nv_max3_f32 v8, v8, v29, v30\nv_max_f32 v8, v8, v31")
        wred("v_max_f32", "s95")
        A(f"s_mov_b32 s8, {hex(LOG2E)}\ns_nop 1")
        for g in range(8): A(f"v_subrev_f32 v{24+g}, s95, v{24+g}")
        for g in range(8): A(f"v_mul_f32 v{24+g}, s8, v{24+g}")
        for g in range(8): A(f"v_exp_f32 v{24+g}, v{24+g}")
        A("""
        s_nop 0
        v_add_f32 v8, v24, v25
        v_add_f32 v9, v26, v27
        v_add_f32 v10, v28, v29
        v_add_f32 v11, v30, v31
        v_add_f32 v8, v8, v9
        v_add_f32 v10, v10, v11
        v_add_f32 v8, v8, v10
        """)
        wred("v_add_f32", "s10")
        A(f"""
        s_lshl_b32 s11, s3, 3
        v_mov_b32 v10, s95
        v_mov_b32 v9, s11
        v_mov_b32 v11, s10
        ds_write_b64 v9, v[10:11] offset:{L_SM}
        s_waitcnt lgkmcnt(0)
        """)
        self.bump(12)
    def softmax2(self):
        A = self.A
        self.spin(12, 8, 4096)
        A(f"""
        v_and_b32 v9, 7, v1
        v_lshlrev_b32 v9, 3, v9
        s_mov_b32 s8, {hex(LOG2E)}
        ds_read_b64 v[10:11], v9 offset:{L_SM}
        s_waitcnt lgkmcnt(0)
        v_max_f32_dpp v8, v10, v10 row_ror:4 {DPPF}
        s_nop 1
        v_max_f32_dpp v8, v8, v8 row_ror:2 {DPPF}
        s_nop 1
        v_max_f32_dpp v8, v8, v8 row_ror:1 {DPPF}
        v_sub_f32 v10, v10, v8
        v_sub_f32 v12, s95, v8
        v_mul_f32 v10, s8, v10
        v_mul_f32 v12, s8, v12
        v_exp_f32 v10, v10
        v_exp_f32 v12, v12
        s_nop 0
        v_mul_f32 v10, v10, v11
        s_nop 1
        v_add_f32_dpp v10, v10, v10 quad_perm:[1,0,3,2] {DPPF}
        s_nop 1
        v_add_f32_dpp v10, v10, v10 quad_perm:[2,3,0,1] {DPPF}
        s_nop 1
        v_add_f32_dpp v10, v10, v10 row_half_mirror {DPPF}
        v_rcp_f32 v10, v10
        s_nop 0
        v_mul_f32 v10, v10, v12
        """)
        for g in range(8): A(f"v_mul_f32 v{24+g}, v10, v{24+g}")
        for g in range(8): A(f"v_cvt_pk_bf16_f32 v{24+g}, v{24+g}, v{24+g}")
        A("s_nop 1")

    def flg(self): return f"s_lshl_b32 s10, s4, {self.a.fs+5}\ns_add_u32 s10, s10, {WS_FLB}\nbuffer_load_dword v132, v129, {sr(WS)}, s10 offen sc1"
    def cntb(self): return f"buffer_load_dword v128, off, {sr(DBG)}, 0 offset:128 sc1"
    def fbase(self): return WS_FLG
    def chk_b(self):
        a_, b_ = self.newlab("Lb"), self.newlab("Lbd")
        self.A(f"""
        s_mov_b32 s14, {self.a.limit}
        {a_}:
        v_readfirstlane_b32 s8, v128
        s_nop 0
        s_cmp_ge_u32 s8, {NCLR}
        s_cbranch_scc1 {b_}
        {self.cntb()}
        s_waitcnt vmcnt(0)
        s_sub_u32 s14, s14, 1
        s_cbranch_scc0 {a_}
        s_or_b32 s15, s15, 8
        {b_}:
        """)
    def mlp_small(self):
        o = []
        for i in range(5): o.append(f"s_mov_b32 s9, {WS_MOD + 80*512 + i*2048}\nbuffer_load_dword v{133+i}, v7, {sr(WS)}, s9 offen sc1")
        for i in range(5): o.append(f"s_mov_b32 s9, {WS_MOD + 60*512 + i*2048}\nbuffer_load_dword v{138+i}, v7, {sr(WS)}, s9 offen sc1")
        return o
    def red_small(self):
        return [f"buffer_load_dword v143, v148, {sr(WS)}, s42 offen sc1", f"buffer_load_dword v144, v149, {sr(WS)}, s43 offen sc1"]
    def small_loads(self):
        A = self.A
        A(f"""
        v_and_b32 v146, 7, v1
        v_and_b32 v147, 1, v2
        v_lshlrev_b32 v147, 2, v147
        v_lshl_add_u32 v148, v146, 3, v147
        v_lshl_add_u32 v149, v146, 6, v147
        v_and_b32 v129, 31, v1
        v_lshlrev_b32 v129, {self.a.fs}, v129
        """)
        A(self.flg()); A(self.cntb())

    def oloads(self): return [f"buffer_load_dwordx4 {q4(200+4*k)}, v42, {sr(WS)}, s89 offen offset:{k*64} sc1" for k in range(2)]
    def tail_prep(self):
        A = self.A
        A(f"""
        s_lshl_b32 s8, s3, 9
        v_lshlrev_b32 v40, 5, v3
        v_lshl_add_u32 v40, v2, 4, v40
        v_add_u32 v40, s8, v40
        v_lshlrev_b32 v41, 3, v1
        s_lshl_b32 s88, s87, 8
        s_add_u32 s88, s88, {hex(WS_O)}
        v_lshlrev_b32 v42, 8, v146
        v_lshl_add_u32 v42, v2, 4, v42
        v_lshrrev_b32 v9, 3, v1
        v_lshlrev_b32 v45, 10, v9
        v_lshl_add_u32 v45, v146, 4, v45
        s_cmp_lt_i32 s98, 0
        s_cbranch_scc1 L_tp_done
        s_lshl_b32 s8, s3, 10
        s_add_u32 s8, s8, {L_TB}
        v_lshrrev_b32 v8, 3, v3
        v_lshlrev_b32 v48, 7, v146
        v_lshl_add_u32 v48, v8, 6, v48
        v_lshl_add_u32 v48, v2, 4, v48
        v_add_u32 v48, s8, v48
        v_add_u32 v49, {L_TB}, v5
        s_lshl_b32 s89, s4, 13
        s_lshr_b32 s8, s3, 1
        s_lshl_b32 s8, s8, 11
        s_add_u32 s89, s89, s8
        s_and_b32 s8, s3, 1
        s_lshl_b32 s8, s8, 7
        s_add_u32 s89, s89, s8
        s_add_u32 s89, s89, {hex(WS_O)}
        s_lshl_b32 s94, s96, 10
        s_add_u32 s94, s94, {hex(WS_AP)}
        s_lshl_b32 s92, s98, 13
        s_lshl_b32 s8, s3, 7
        s_add_u32 s92, s92, s8
        s_add_u32 s92, s92, {hex(WS_AP)}
        s_lshl_b32 s43, s98, 9
        s_lshl_b32 s9, s3, 6
        s_add_u32 s42, s43, s9
        s_add_u32 s91, s42, s90
        s_add_u32 s42, s42, {WS_MOD + 40*512}
        s_lshl_b32 s9, s4, 3
        s_add_u32 s43, s43, s9
        s_add_u32 s99, s43, s90
        s_add_u32 s43, s43, {WS_MOD + 100*512}
        s_mul_i32 s9, s3, 1280
        s_lshl_b32 s10, s98, 6
        s_add_u32 s9, s9, s10
        buffer_load_dword v145, v148, {sr(X)}, s9 offen
        v_lshrrev_b32 v8, 1, v2
        v_lshlrev_b32 v8, 4, v8
        v_sub_u32 v14, 16, v8
        v_lshrrev_b32 v8, 2, v3
        v_lshl_add_u32 v8, v2, 3, v8
        v_lshlrev_b32 v8, 6, v8
        v_lshl_add_u32 v8, v13, 3, v8
        s_lshl_b32 s8, s3, 12
        s_add_u32 s8, s8, {L_WO}
        v_add_u32 v8, s8, v8
        """)
        for l in self.red_small(): A(l)
        for k in range(2):
            for m in range(2):
                r = 152 + 8*k + 4*m
                A(f"ds_read_b64_tr_b16 {q2(r)}, v8 offset:{k*2048 + m*32}")
                A(f"ds_read_b64_tr_b16 {q2(r+2)}, v8 offset:{k*2048 + m*32 + 256}")
        self.poll([self.flg()], [132], 8, 8, first_loaded=True)
        self.chk_b()
        for l in self.oloads(): A(l)
        A("L_tp_done:")

    def sum8(self, addr, base, step):
        A = self.A
        if self.a.stamps: A("s_waitcnt lgkmcnt(0)")
        for j in range(8): A(f"ds_read_b128 {q4(64+4*j)}, {addr} offset:{base + j*step}")
        for j in range(0, 8, 2):
            A(f"s_waitcnt lgkmcnt({6-j})")
            for r in (0, 2): self.pk("add", 64+4*j+r, 64+4*j+r, q2(68+4*j+r))
            if j == 2:
                for r in (0, 2): self.pk("add", 64+r, 64+r, q2(72+r))
        for r in (0, 2): self.pk("add", 80+r, 80+r, q2(88+r))
        for r in (0, 2): self.pk("add", 64+r, 64+r, q2(80+r))
    def red_fin(self):
        self.A(f"""
        v_permlane32_swap_b32 v64, v65
        v_permlane32_swap_b32 v66, v67
        v_add_f32 v64, v64, v65
        v_add_f32 v66, v66, v67
        s_nop 1
        v_permlane16_swap_b32 v64, v66
        v_add_f32 v64, v64, v66
        s_nop 1
        v_add_f32_dpp v64, v64, v64 row_ror:8 {DPPF}
        v_cvt_pk_bf16_f32 v64, 0, v64
        v_mul_f32 v64, v64, v208
        v_cvt_pk_bf16_f32 v64, 0, v64
        v_add_f32 v64, v64, v209
        v_mov_b32 v65, v64
        s_nop 1
        v_permlane32_swap_b32 v64, v65
        v_cvt_pk_bf16_f32 v68, v64, v65
        v_cvt_pk_bf16_f32 v69, v64, v65
        s_nop 1
        v_permlane16_swap_b32 v68, v69
        """)

    def tpf(self):
        A = self.A; a = self.a
        if a.pf:
            A("s_cmp_eq_u32 s100, 1\ns_cbranch_scc0 L_h_npf\ns_cmp_eq_u32 s3, 0\ns_cbranch_scc0 L_h_npf")
            self.w1addr(8, 9, 10)
            A(f"s_mov_b32 m0, {L_W1}\ns_mov_b32 s8, 0")
            self.w1loop("L_h_pf", 8, 9, "s8", L_W1 + a.pf*2048, a.dp)
            A("L_h_npf:")

    def tail1(self):
        A = self.A; a = self.a
        A(f"""
        s_mov_b32 exec_hi, 0
        s_nop 6
        ds_write_b128 v40, v[20:23] offset:{L_R1}
        s_mov_b64 exec, -1
        """)
        self.samexcd(132)
        A("s_cselect_b32 s95, 1, 0")
        if a.oc == 1:
            A("s_cmp_eq_u32 s3, 0\ns_cbranch_scc0 L_h_no2")
            self.clears2()
            A("s_waitcnt vmcnt(0)\nL_h_no2:")
        if not a.pfe: self.tpf()
        A("s_waitcnt lgkmcnt(0)\ns_barrier")
        self.stamp(6)
        A("s_cmp_eq_u32 s3, 0\ns_cbranch_scc0 L_opub\ns_mov_b32 exec_hi, 0")
        self.sum8("v5", L_R1, 512)
        A("v_cvt_pk_bf16_f32 v46, v64, v65\nv_cvt_pk_bf16_f32 v47, v66, v67\nv_min_u32 v46, -2, v46\nv_min_u32 v47, -2, v47\ns_cmp_eq_u32 s95, 1")
        self.store2([f"buffer_store_dwordx2 v[46:47], v41, {sr(WS)}, s88 offen"], 132)
        A("s_mov_b64 exec, -1\nL_opub:")
        self.stamp(5)
        if a.notail: A("s_branch L_fin")
        A("s_cmp_eq_u32 s100, 1\ns_cbranch_scc1 L_mlp\ns_cmp_eq_u32 s100, 2\ns_cbranch_scc0 L_fin")

    def reducer(self):
        A = self.A; a = self.a
        self.poll(self.red_small(), [143, 144], 8, 8, first_loaded=True)
        A("""
        v_lshlrev_b32 v208, v14, v143
        v_and_b32 v208, 0xffff0000, v208
        v_lshlrev_b32 v209, v14, v145
        v_and_b32 v209, 0xffff0000, v209
        """)
        self.poll(self.oloads(), range(200, 208), 8, 512, first_loaded=True, sleep=a.so)
        for k in range(2):
            for m in range(2):
                A(f"{MF} {q4(96+4*m)}, {q4(152+8*k+4*m)}, {q4(200+4*k)}, {'0' if k == 0 else q4(96+4*m)}")
        A("v_cmp_lt_u32 vcc, 7, v3\ns_nop 6")
        for r in range(4): A(f"v_cndmask_b32 v{96+r}, v{96+r}, v{100+r}, vcc")
        A("ds_write_b128 v48, v[96:99]\ns_waitcnt lgkmcnt(0)\ns_barrier\ns_cmp_eq_u32 s3, 0\ns_cbranch_scc0 L_apdone")
        self.sum8("v49", 0, 1024)
        for r in range(4): A(f"v_min_u32 v{96+r}, -2, v{64+r}")
        A(f"buffer_store_dwordx4 v[96:99], v5, {sr(WS)}, s94 offen sc1\nL_apdone:")
        self.stamp(7)
        self.sleep(a.wap)
        self.poll([f"buffer_load_dwordx4 v[64:67], v45, {sr(WS)}, s92 offen sc1"], range(64, 68), 8, 16, sleep=a.sr)
        self.red_fin()
        A("v_min_u32 v68, -2, v68\nv_min_u32 v69, -2, v69\ns_mov_b64 exec, 0xff\ns_cmp_eq_u32 s95, 1")
        self.store2([f"buffer_store_dwordx2 v[68:69], v41, {sr(WS)}, s91 offen"], 132)
        A("s_mov_b64 exec, -1")
        self.stamp(8)
        A(f"""
        s_cmp_eq_u32 s3, 7
        s_cbranch_scc0 L_fin
        v_lshlrev_b32 v208, v14, v144
        v_and_b32 v208, 0xffff0000, v208
        v_mul_u32_u24 v10, 20480, v9
        v_lshl_add_u32 v10, v146, 4, v10
        v_mul_u32_u24 v12, 1280, v1
        s_lshl_b32 s8, s96, 7
        s_add_u32 s8, s8, {hex(WS_OP)}
        s_add_u32 s9, s8, {8*20480}
        s_add_u32 s10, s8, {16*20480}
        s_add_u32 s11, s8, {24*20480}
        s_lshl_b32 s88, s96, 3
        """)
        self.poll([f"buffer_load_dword v145, v149, {sr(WS)}, s99 offen sc1"], [145], 13, 32, sleep=2)
        A("v_lshlrev_b32 v209, v14, v145\nv_and_b32 v209, 0xffff0000, v209")
        self.sleep(a.wop)
        loads = [f"buffer_load_dwordx4 {q4(64+4*i)}, v10, {sr(WS)}, s{8+i} offen sc1" for i in range(4)]
        self.poll(loads, range(64, 80), 13, 16, sleep=a.sr)
        for a_, b_ in ((64, 68), (72, 76), (64, 72)):
            for r in (0, 2): self.pk("add", a_+r, a_+r, q2(b_+r))
        A("s_nop 0")
        self.red_fin()
        A(f"""
        s_mov_b64 exec, 0xff
        buffer_store_dwordx2 v[68:69], v12, {sr(OUT)}, s88 offen
        s_mov_b64 exec, -1
        """)
        self.stamp(9)
        A("s_branch L_fin")

    def mlp(self):
        A = self.A; a = self.a
        W1F, W2F, AC, GR = 64, 104, 136, 152
        np_ = (40 - a.pf)//8; assert (40 - a.pf) % 8 == 0 and a.pf <= 32
        A("L_mlp:")
        self.w1addr(15, 14, 12)
        A(f"""
        s_mul_i32 s86, s3, {np_*16*3456}
        s_add_u32 s86, s86, {a.pf*16*3456}
        s_mul_i32 s87, s3, {np_*2048}
        s_add_u32 m0, s87, {L_W1 + a.pf*2048}
        s_add_u32 s87, s87, {L_W1 + a.pf*2048 + np_*2048}
        s_barrier
        """)
        if a.oc == 2:
            A("s_cmp_eq_u32 s3, 0\ns_cbranch_scc0 L_h_no2")
            self.clears2()
            A("L_h_no2:")
        self.w1loop("L_t1", 15, 14, "s86", "s87")
        if not a.w2e:
            self.w2addr(15, 14, 12)
            A(f"""
            s_lshl_b32 s87, s3, 11
            s_add_u32 m0, s87, {L_W2}
            s_mul_i32 s86, s3, {8*1280}
            buffer_load_dwordx4 v15, {sr(TB)}, s86 offen nt lds
            buffer_load_dwordx4 v14, {sr(TB)}, s86 offen offset:1024 nt lds
            s_cmp_eq_u32 s93, 2
            s_cbranch_scc1 L_mlp_nt
            s_add_u32 m0, m0, 16384
            s_add_u32 s86, s86, 256
            buffer_load_dwordx4 v15, {sr(TB)}, s86 offen nt lds
            buffer_load_dwordx4 v14, {sr(TB)}, s86 offen offset:1024 nt lds
            L_mlp_nt:
            """)
        self.stamp(2)
        A(f"v_add_u32 v8, {L_CS}, v7")
        for i in range(5): A(f"ds_read_b32 v{133+i}, v8 offset:{10240 + i*2048}")
        for i in range(5): A(f"ds_read_b32 v{138+i}, v8 offset:{i*2048}")
        A("s_waitcnt lgkmcnt(0)")
        self.stamp(3)
        self.poll([self.flg()] + self.mlp_small(), list(range(132, 143)), 8, 64, first_loaded=True)
        for i in range(5):
            self.unpack(208+2*i, 209+2*i, 133+i)
            A(f"v_add_f32 v{208+2*i}, 1.0, v{208+2*i}\nv_add_f32 v{209+2*i}, 1.0, v{209+2*i}")
            A(f"v_cvt_pk_bf16_f32 v8, v{208+2*i}, v{209+2*i}")
            self.unpack(208+2*i, 209+2*i, 8)
            self.unpack(218+2*i, 219+2*i, 138+i)
        A(f"""
        v_lshrrev_b32 v8, 2, v3
        v_lshlrev_b32 v10, 10, v2
        v_lshl_add_u32 v10, v8, 7, v10
        v_lshl_add_u32 v10, v13, 3, v10
        s_lshr_b32 s8, s3, 1
        s_mul_i32 s9, s8, 20480
        s_add_u32 s9, s9, {L_W1}
        v_add_u32 v10, s9, v10
        v_and_b32 v9, 1, v2
        v_lshrrev_b32 v12, 3, v3
        v_lshl_add_u32 v12, v9, 1, v12
        s_and_b32 s10, s3, 1
        s_lshl_b32 s10, s10, 1
        v_xor_b32 v12, s10, v12
        v_xor_b32 v184, 1, v12
        v_lshl_add_u32 v184, v184, 5, v10
        v_lshl_add_u32 v10, v12, 5, v10
        v_lshl_add_u32 v11, v2, 2, v8
        v_lshlrev_b32 v11, 8, v11
        v_lshl_add_u32 v11, v13, 3, v11
        v_add_u32 v11, {L_W2}, v11
        v_lshl_add_u32 v12, v9, 2, v8
        s_and_b32 s9, s3, 3
        s_lshl_b32 s9, s9, 1
        v_xor_b32 v12, s9, v12
        v_xor_b32 v185, 1, v12
        v_lshl_add_u32 v185, v185, 5, v11
        v_lshl_add_u32 v11, v12, 5, v11
        v_lshlrev_b32 v186, 6, v146
        v_lshl_add_u32 v186, v2, 4, v186
        s_mul_i32 s9, s8, 2560
        v_add_u32 v186, s9, v186
        s_lshl_b32 s9, s3, 11
        s_add_u32 s9, s9, {L_G1}
        v_add_u32 v187, s9, v5
        v_lshrrev_b32 v9, 3, v3
        v_lshlrev_b32 v188, 10, v9
        v_lshl_add_u32 v188, v2, 8, v188
        v_lshl_add_u32 v188, v146, 4, v188
        v_add_u32 v188, {L_G1}, v188
        v_lshlrev_b32 v190, 4, v146
        v_lshl_add_u32 v190, v2, 7, v190
        s_add_u32 s43, s90, 4096
        s_add_u32 s89, s90, 8192
        s_lshl_b32 s9, s3, 10
        s_add_u32 s42, s101, s9
        s_mov_b32 s86, 0x00ff00ff
        s_mov_b32 s87, 0x00ff00ff
        s_add_u32 s88, s42, 4096
        s_waitcnt vmcnt(0)
        """)
        self.stamp(4)
        A("""
        s_barrier
        """)
        self.stamp(1)
        loads = [f"buffer_load_dword v{24+i}, v7, {sr(WS)}, {['s90','s43','s89'][i//2]} offen offset:{(i%2)*2048} sc1" for i in range(5)]
        for l in loads: A(l)
        for k in range(5):
            for t in range(2):
                r = W1F + 8*k + 4*t
                A(f"ds_read_b64_tr_b16 {q2(r)}, {'v184' if t else 'v10'} offset:{k*4096}")
                A(f"ds_read_b64_tr_b16 {q2(r+2)}, {'v184' if t else 'v10'} offset:{k*4096 + 512}")
        A("s_cmp_ge_u32 s3, 4\ns_cbranch_scc1 L_now2")
        for m in range(4):
            for j in range(2):
                r = W2F + 8*m + 4*j
                A(f"ds_read_b64_tr_b16 {q2(r)}, {'v185' if m % 2 else 'v11'} offset:{(m//2)*16384 + j*8192}")
                A(f"ds_read_b64_tr_b16 {q2(r+2)}, {'v185' if m % 2 else 'v11'} offset:{(m//2)*16384 + j*8192 + 4096}")
        A("L_now2:\ns_waitcnt vmcnt(0)")
        self.poll(loads, range(24, 29), 8, 128, first_loaded=True, sleep=a.sx)
        self.stamp(8)
        if a.fast:
            self.ln_body(True)
            for i in range(5): A(f"v_pk_fma_f32 {q2(32+2*i)}, {q2(32+2*i)}, {q2(208+2*i)}, {q2(218+2*i)}")
        else:
            self.ln_body(False, pack=False)
            self.rnd(range(32, 42))
            for i in range(5): self.pk("mul", 32+2*i, 32+2*i, q2(208+2*i))
            self.rnd(range(32, 42))
            for i in range(5): self.pk("add", 32+2*i, 32+2*i, q2(218+2*i))
        for i in range(5):
            A(f"v_cvt_pk_bf16_f32 v{24+i}, v{32+2*i}, v{33+2*i}")
            A(f"ds_write_b32 v7, v{24+i} offset:{L_ACT + i*2048}")
        A("s_waitcnt lgkmcnt(0)\ns_barrier")
        for k in range(5): A(f"ds_read_b128 {q4(32+4*k)}, v186 offset:{L_ACT + k*512}")
        for k in range(5):
            A(f"s_waitcnt lgkmcnt({4-k})")
            for t in range(2):
                A(f"{MF} {q4(AC+4*t)}, {q4(W1F+8*k+4*t)}, {q4(32+4*k)}, {'0' if k == 0 else q4(AC+4*t)}")
        A(f"s_nop 6\nds_write_b128 v187, {q4(AC)}\nds_write_b128 v187, {q4(AC+4)} offset:1024\ns_waitcnt lgkmcnt(0)\ns_barrier")
        A("s_cmp_ge_u32 s3, 4\ns_cbranch_scc1 L_fin")
        for j in range(2):
            for k in range(4): A(f"ds_read_b128 {q4(GR+16*j+4*k)}, v188 offset:{k*4096 + j*2048}")
        for j in range(2):
            b0 = GR + 16*j
            A(f"s_waitcnt lgkmcnt({4-4*j})")
            for a_, b_ in ((0, 4), (8, 12), (0, 8)):
                for r in (0, 2): self.pk("add", b0+a_+r, b0+a_+r, q2(b0+b_+r))
            for r in range(4): A(f"v_cvt_pk_bf16_f32 v{32+4*j+r}, 0, v{b0+r}")
        A(f"s_mov_b32 s8, {hex(NLOG2E)}")
        for r in range(0, 8, 2): self.pk("mul", 40+r, 32+r, "s[8:9]", "op_sel_hi:[1,0]")
        for r in range(8): A(f"v_exp_f32 v{40+r}, v{40+r}")
        for r in range(0, 8, 2): self.pk("add", 40+r, 40+r, "1.0", "op_sel_hi:[1,0]")
        for r in range(8): A(f"v_rcp_f32 v{40+r}, v{40+r}")
        for r in range(0, 8, 2): self.pk("mul", 32+r, 32+r, q2(40+r))
        A(f"""
        v_cvt_pk_bf16_f32 v24, v32, v33
        v_cvt_pk_bf16_f32 v25, v34, v35
        v_cvt_pk_bf16_f32 v28, v36, v37
        v_cvt_pk_bf16_f32 v29, v38, v39
        v_mov_b32_dpp v26, v24 row_ror:8 {DPPF}
        v_mov_b32_dpp v27, v25 row_ror:8 {DPPF}
        v_mov_b32_dpp v30, v28 row_ror:8 {DPPF}
        v_mov_b32_dpp v31, v29 row_ror:8 {DPPF}
        """)
        for hf in range(2):
            for j in range(2):
                for m in (2*hf, 2*hf+1):
                    A(f"{MF} {q4(AC+4*m)}, {q4(W2F+8*m+4*j)}, {q4(24+4*j)}, {'0' if j == 0 else q4(AC+4*m)}")
        A("s_mov_b64 exec, s[86:87]\ns_cmp_eq_u32 s93, 2\ns_nop 0")
        for m in range(4):
            if m == 2: A("s_cbranch_scc1 L_opd")
            for r in range(4): A(f"v_min_u32 v{AC+4*m+r}, -2, v{AC+4*m+r}")
            A(f"buffer_store_dwordx4 {q4(AC+4*m)}, v190, {sr(WS)}, {'s42' if m < 2 else 's88'} offen offset:{(m%2)*512} sc1")
        A("L_opd:")
        A("s_mov_b64 exec, -1")
        self.stamp(9)

    def finish(self):
        A = self.A
        A("L_fin:\ns_cmp_eq_u32 s15, 0\ns_cbranch_scc1 L_noerr")
        A(f"v_mov_b32 v8, s15\ns_mov_b64 exec, 1\nbuffer_atomic_or v8, off, {sr(DBG)}, 0 offset:4 sc1\ns_mov_b64 exec, -1\nL_noerr:")
        if self.a.stamps:
            self.stamp(10)
            A("s_waitcnt lgkmcnt(0)")
            self.srdo(STS, f"s{WS}", f"s{WS+1}", hex(STAMP_OFF), "0x100000")
            A("s_mov_b32 s38, s97\ns_lshl_b32 s39, s100, 8\ns_or_b32 s39, s39, s85")
            A(f"s_mul_i32 s8, s2, {12*8*2}")
            A("s_cmp_eq_u32 s3, 0\ns_cbranch_scc1 L_st\ns_cmp_eq_u32 s3, 7\ns_cbranch_scc0 L_end\ns_add_u32 s8, s8, 96\nL_st:\ns_mov_b64 exec, 1")
            for k in range(12):
                A(f"v_mov_b32 v8, s{16+2*k}\nv_mov_b32 v9, s{17+2*k}\nbuffer_store_dwordx2 v[8:9], off, {sr(STS)}, s8 offset:{8*k}\ns_nop 1")
        A("L_end:\ns_endpgm")

    def subs(self):
        A = self.A
        pass
    def rnd(self, regs):
        for r in regs: self.A(f"v_cvt_pk_bf16_f32 v{r}, 0, v{r}")
    def ln_body(self, fast, pack=True):
        A = self.A
        for i in range(5):
            self.unpack(32+2*i, 33+2*i, 24+i)
            if i == 0: A("v_readfirstlane_b32 s8, v32")
        NEG = "op_sel_hi:[1,0] neg_lo:[0,1] neg_hi:[0,1]"
        for i in range(5): self.pk("add", 42+2*i, 32+2*i, "s[8:9]", NEG)
        self.pk("add", 52, 42, "v[44:45]"); self.pk("mul", 54, 42, "v[42:43]")
        for i in range(1, 5):
            if i > 1: self.pk("add", 52, 52, q2(42+2*i))
            A(f"v_pk_fma_f32 v[54:55], {q2(42+2*i)}, {q2(42+2*i)}, v[54:55]")
        A("v_add_f32 v52, v52, v53\nv_add_f32 v53, v54, v55\ns_nop 0")
        for c in (f"row_ror:1 {DPPF}", f"row_ror:2 {DPPF}", f"row_ror:4 {DPPF}", f"row_ror:8 {DPPF}",
                  "row_bcast:15 row_mask:0xa bank_mask:0xf", "row_bcast:31 row_mask:0xc bank_mask:0xf"):
            A(f"v_add_f32_dpp v52, v52, v52 {c}\nv_add_f32_dpp v53, v53, v53 {c}\ns_nop 0")
        A(f"""
        v_readlane_b32 s9, v52, 63
        v_readlane_b32 s10, v53, 63
        v_mov_b32 v54, {hex(INV640)}
        s_nop 0
        v_mul_f32 v52, s9, v54
        v_mul_f32 v53, s10, v54
        v_fma_f32 v53, -v52, v52, v53
        v_add_f32 v52, s8, v52
        v_max_f32 v53, 0, v53
        v_cvt_pk_bf16_f32 v52, 0, v52
        v_cvt_pk_bf16_f32 v54, 0, v53
        v_add_f32 v54, {hex(EPS)}, v54
        v_cvt_pk_bf16_f32 v54, 0, v54
        v_sqrt_f32 v54, v54
        """)
        for i in range(5): self.pk("add", 32+2*i, 32+2*i, "v[52:53]", NEG)
        A("v_cvt_pk_bf16_f32 v54, 0, v54\nv_rcp_f32 v54, v54")
        if fast: A("s_nop 0")
        else: self.rnd(range(32, 42))
        for i in range(5): self.pk("mul", 32+2*i, 32+2*i, "v[54:55]", "op_sel_hi:[1,0]")
        if not fast and pack:
            for i in range(5): A(f"v_cvt_pk_bf16_f32 v{24+i}, v{32+2*i}, v{33+2*i}")

if __name__ == "__main__":
    ap = argparse.ArgumentParser()
    ap.add_argument("-o", default="k.s"); ap.add_argument("--stamps", action="store_true")
    ap.add_argument("--fast", action="store_true"); ap.add_argument("--nolocal", action="store_true"); ap.add_argument("--notail", action="store_true")
    for n, v in dict(dp=0, w2e=0, pfe=0, cpf=2, oc=0, cl=0, sc=2, nfree=3, fs=2, w7=1, hpos=0, rows=0, remap=1, dw=10, dm=4, nref=100, dl=4, wap=16, mode=0, lead=0, de=6, ne=0, dh=12, pf=0, rx=0, ry=0, par=0, diag=0, limit=40000, pad=20480, depth=3, d0=3, nm=3, n0=16, chk=3, d1=4, d2=8, ism=21, wa=0, w2=0, w3=0,
                     s1=8, s2=2, sr=0, sx=0, so=0, wx=20, wop=0).items():
        ap.add_argument("--" + n, type=int, default=v)
    ap.add_argument("--wof", default="")
    ap.add_argument("--w1f", default=""); ap.add_argument("--w2f", default="nt")
    ap.add_argument("--x", default=""); ap.add_argument("--cf", default="sc1")
    ap.add_argument("--hm", default="4,1")
    a = ap.parse_args(); a.hm = [int(v) for v in a.hm.split(",")]
    txt = G(a).gen()
    if 's' in a.x: txt = "\n".join(l for l in txt.split("\n") if not ("buffer_store" in l and "s[52:55]" in l))
    drop = lambda pred: "\n".join(l for l in txt.split("\n") if not pred(l))
    if 'e' in a.x: txt = drop(lambda l: "buffer_atomic_or" in l)
    if 'S' in a.x: txt = drop(lambda l: "buffer_store" in l and "sc1" in l)
    if 'A' in a.x: txt = drop(lambda l: "s[80:83]" in l)
    if 'O' in a.x: txt = drop(lambda l: "buffer_store_dwordx2 v[46:47]" in l)
    if 'L' in a.x: txt = drop(lambda l: "buffer_load_dwordx4 v[128:131]" in l)
    if 'M' in a.x: txt = drop(lambda l: "buffer_load_dword v132" in l)
    if 'f' in a.x: txt = drop(lambda l: "buffer_store_dword v12, off" in l)
    if 'F' in a.x: txt = drop(lambda l: "buffer_store_dword v1, off" in l)
    if 'g' in a.x: txt = drop(lambda l: "buffer_store_dwordx4 v[192:195]" in l)
    if 'i' in a.x: txt = drop(lambda l: "buffer_store_dwordx4 v[8:11]" in l)
    if 'p' in a.x: txt = drop(lambda l: "buffer_store_dwordx4 v[40:43]" in l)
    if 'q' in a.x: txt = drop(lambda l: "buffer_store_dwordx4 v[32:35]" in l or "buffer_store_dwordx4 v[36:39]" in l)
    if 'l' in a.x: txt = "\n".join(l for l in txt.split("\n") if not ("buffer_load" in l and "s[52:55]" in l))
    open(a.o, "w").write(txt)
```

```python
import argparse
NAME = "adaLN_cond__sliding_block_cached__dense_activation_silu__decode"

WS_MOD  = 0x00000
WS_FLG  = 61440
WS_FLB  = 62464
WS_QF   = 63488
NCLR    = 8
WS_X1   = 0x40000
WS_O    = 0x30000
WS_AP   = 0x60000
WS_QP   = 0x100000
WS_OP   = 0x180000
WS_END  = WS_OP + 27*20480
STAMP_OFF = 0x20000000
L_Q, L_SM, L_FL = 0, 256, 384
L_ACT, L_XN, L_TA = 1024, 11264, 21504
L_KH  = 62464
L_W1  = L_TA
L_W2  = L_W1 + 81920
L_WO  = L_W2
L_G1  = L_W2 + 32768
L_TB  = L_G1
L_BN  = L_G1 + 16384
L_CS  = L_G1
L_END = L_BN + 4096
L_R1  = L_XN
assert L_KH + 35*1024 <= L_WO and L_END <= 163840
LOG2E, NLOG2E, SCALE, INV640, EPS = 0x3fb8aa3b, 0xbfb8aa3b, 0x3db504f3, 0x3acccccd, 0x3727c5ac
K, V, WS, WO, TA, TB, X, C, OUT, DBG, T0 = 44, 48, 52, 56, 60, 64, 68, 72, 76, 80, 92
KH = C
STS = 40
sr = lambda r: f"s[{r}:{r+3}]"
DPPF = "row_mask:0xf bank_mask:0xf"
MF = "v_mfma_f32_16x16x32_bf16"
q4 = lambda r: f"v[{r}:{r+3}]"
q2 = lambda r: f"v[{r}:{r+1}]"

class G:
    def __init__(self, a):
        self.L = []; self.lab = 0; self.a = a
    def A(self, s):
        for x in s.split("\n"):
            x = x.strip()
            if x: self.L.append(("" if x.endswith(":") else "    ") + x)
    def newlab(self, p="L"):
        self.lab += 1; return f"{p}_{self.lab}"
    def stamp(self, k, diag=0):
        if self.a.stamps and diag == self.a.diag: self.A(f"s_memrealtime s[{16+2*k}:{17+2*k}]")
    def srd(self, d, lo, hi, size):
        self.A(f"s_mov_b32 s{d}, {lo}\ns_mov_b32 s{d+1}, {hi}\ns_mov_b32 s{d+2}, {size}\ns_mov_b32 s{d+3}, 0x20000")
    def srdo(self, d, lo, hi, off, size):
        self.A(f"s_add_u32 s{d}, {lo}, {off}\ns_addc_u32 s{d+1}, {hi}, 0\ns_mov_b32 s{d+2}, {size}\ns_mov_b32 s{d+3}, 0x20000")
    def unpack(self, lo, hi, src):
        self.A(f"v_lshlrev_b32 v{lo}, 16, v{src}\nv_and_b32 v{hi}, 0xffff0000, v{src}")
    def pk(self, op, d, a, b, mods=""):
        self.A(f"v_pk_{op}_f32 {q2(d)}, {q2(a)}, {b} {mods}")
    def maxtree(self, dst, regs):
        regs = list(regs); A = self.A
        if len(regs) == 2:
            A(f"v_max_u32 v{dst}, v{regs[0]}, v{regs[1]}"); return
        A(f"v_max3_u32 v{dst}, v{regs[0]}, v{regs[1]}, v{regs[2]}"); regs = regs[3:]
        while len(regs) >= 2:
            A(f"v_max3_u32 v{dst}, v{dst}, v{regs[0]}, v{regs[1]}"); regs = regs[2:]
        if regs: A(f"v_max_u32 v{dst}, v{dst}, v{regs[0]}")
    def poll(self, loads, regs, tmp, code, first_loaded=False, sleep=1):
        A = self.A; regs = list(regs)
        lp = self.newlab("Lpoll"); ck = self.newlab("Lchk"); dn = self.newlab("Lpd")
        A(f"s_mov_b32 s14, {0 if 'e' in self.a.x else self.a.limit}")
        if first_loaded: A(f"s_branch {ck}")
        A(f"{lp}:")
        for l in loads: A(l)
        A("s_waitcnt vmcnt(0)")
        A(f"{ck}:")
        if len(regs) == 1: tmp = regs[0]
        else: self.maxtree(tmp, regs)
        A(f"v_cmp_eq_u32 vcc, -1, v{tmp}\ns_cbranch_vccz {dn}\ns_mov_b64 exec, vcc")
        if sleep: A(f"s_sleep {sleep}")
        A(f"s_sub_u32 s14, s14, 1\ns_cbranch_scc0 {lp}\ns_or_b32 s15, s15, {code}\n{dn}:\ns_mov_b64 exec, -1")
    def sleep(self, n):
        while n > 0:
            self.A(f"s_sleep {min(n, 120)}"); n -= 120
    def spin(self, off, target, code, vt=12, va=15):
        a = self.newlab("Lsp"); b = self.newlab("Lspd")
        self.A(f"""
        s_mov_b32 s14, {self.a.limit*8}
        {a}:
        ds_read_b32 v{vt}, v{va} offset:{off}
        s_waitcnt lgkmcnt(0)
        v_readfirstlane_b32 s8, v{vt}
        s_nop 0
        s_cmp_ge_u32 s8, {target}
        s_cbranch_scc1 {b}
        s_sleep 1
        s_sub_u32 s14, s14, 1
        s_cbranch_scc0 {a}
        s_or_b32 s15, s15, {code}
        {b}:
        """)
    def bump(self, off, vt=12, va=15):
        self.A(f"v_mov_b32 v{vt}, 1\ns_mov_b64 exec, 1\nds_add_u32 v{va}, v{vt} offset:{off}\ns_mov_b64 exec, -1")
    def silu(self, regs, tmps):
        A = self.A
        for r, t in zip(regs, tmps): A(f"v_mul_f32 v{t}, {hex(NLOG2E)}, v{r}")
        for t in tmps: A(f"v_exp_f32 v{t}, v{t}")
        A("s_nop 0")
        for t in tmps: A(f"v_add_f32 v{t}, 1.0, v{t}")
        for t in tmps: A(f"v_rcp_f32 v{t}, v{t}")
        A("s_nop 0")
        for r, t in zip(regs, tmps): A(f"v_mul_f32 v{r}, v{r}, v{t}")
    def store2(self, stores, cond_reg):
        a = self.newlab("Lwt"); b = self.newlab("Lsd")
        self.A(f"s_cbranch_scc0 {a}")
        for s in stores: self.A(s)
        self.A(f"s_branch {b}\n{a}:")
        for s in stores: self.A(s + " sc1")
        self.A(f"{b}:")
    def samexcd(self, reg):
        if self.a.nolocal: self.A("s_cmp_eq_u32 s3, 99")
        elif 'z' in self.a.x: self.A("s_cmp_eq_u32 s3, s3")
        else: self.A(f"v_cmp_ne_u32 vcc, s97, v{reg}\ns_cmp_eq_u64 vcc, 0")

    def prologue(self):
        A = self.A; a = self.a
        ek = -(-(WS_FLG + (256 << a.fs)) // 8192)
        self.L += [f"; @launch grid=(256,1,1) block=(512,1,1) lds={L_END}",
                   '.amdgcn_target "amdgcn-amd-amdhsa--gfx950"', ".text", f".globl {NAME}_kernel", ".p2align 8",
                   f".type {NAME}_kernel,@function", f"{NAME}_kernel:"]
        A("""
        s_cmp_ge_u32 s2, 256
        s_cbranch_scc1 L_end
        s_load_dwordx16 s[16:31], s[0:1], 0
        s_load_dwordx8 s[32:39], s[0:1], 64
        s_load_dwordx2 s[40:41], s[0:1], 96
        """)
        if a.stamps or a.fix: A("s_memrealtime s[42:43]")
        A(f"""
        v_lshrrev_b32 v1, 6, v0
        s_and_b32 s4, s2, 7
        v_readfirstlane_b32 s3, v1
        """)
        if a.cpf == 0: A(f"v_mul_u32_u24 v8, {a.pad//512}, v0\nglobal_load_dwordx4 v[24:27], v8, s[100:101] offset:-16")
        if a.cpf == 1: A(f"""
        s_bfe_u32 s8, s2, 0x30003
        s_mul_i32 s8, s8, {a.pad//8}
        v_lshlrev_b32 v8, 7, v0
        v_add_u32 v8, s8, v8
        v_cmp_gt_u32 vcc, {a.pad//1024}, v0
        s_and_saveexec_b64 s[10:11], vcc
        s_cbranch_execz L_npf
        global_load_dword v24, v8, s[100:101] offset:-16
        L_npf:
        s_mov_b64 exec, -1
        """)
        A(f"""
        v_and_b32 v1, 63, v0
        v_lshrrev_b32 v2, 4, v1
        v_and_b32 v3, 15, v1
        v_lshlrev_b32 v4, 6, v3
        v_lshl_add_u32 v4, v2, 4, v4
        v_lshlrev_b32 v5, 4, v1
        v_lshlrev_b32 v6, 2, v1
        v_and_b32 v13, 3, v1
        s_lshr_b32 s5, s2, 3
        s_lshl_b32 s6, s4, 2
        s_and_b32 s8, s5, 3
        s_add_u32 s6, s6, s8
        s_lshr_b32 s7, s5, 2
        """)
        hm = a.hm
        A(f"""
        s_mul_i32 s84, s8, {hm[1]}
        s_mul_i32 s9, s4, {hm[0]}
        s_add_u32 s84, s84, s9
        s_lshl_b32 s8, s7, 5
        s_add_u32 s84, s84, s8
        s_lshl_b32 s14, s84, 20
        """)
        if a.w7: A(f"""
        s_lshl_b32 s9, s3, 10
        s_sub_u32 s9, s9, 1024
        s_cmp_eq_u32 s3, 0
        s_cselect_b32 s9, {224*1024}, s9
        s_cselect_b32 s13, 1, 7
        """)
        else: A("s_lshl_b32 s9, s3, 10\ns_mov_b32 s13, 8")
        A(f"""
        s_sub_u32 s12, 0x40000, s9
        s_add_u32 s14, s14, s9
        s_add_u32 s14, s14, 0xC0000
        s_mov_b32 s15, 0
        s_mul_i32 s97, s3, 1280
        s_and_b32 s8, s5, 15
        s_lshr_b32 s8, s8, 1
        s_lshl_b32 s9, s8, 3
        s_add_u32 s9, s9, s4
        s_lshl_b32 s91, s9, 1
        s_and_b32 s10, s5, 1
        s_add_u32 s91, s91, s10
        s_mul_i32 s11, s3, 5120
        s_add_u32 m0, s11, {L_TA}
        v_mov_b32 v15, {L_FL}
        v_mov_b32 v8, 0
        v_mov_b32 v9, 0
        v_mov_b32 v10, 0
        v_mov_b32 v11, 0
        ds_write_b128 v15, v[8:11]
        s_nop 1
        v_mov_b32 v8, -1
        v_mov_b32 v9, -1
        v_mov_b32 v10, -1
        v_mov_b32 v11, -1
        s_cmp_lt_u32 s5, 16
        s_cbranch_scc1 L_p_mod
        s_mov_b32 s85, 1
        v_lshrrev_b32 v12, 3, v1
        v_lshlrev_b32 v12, 13, v12
        v_and_b32 v14, 7, v1
        v_lshl_add_u32 v12, v14, 4, v12
        s_lshl_b32 s99, s4, 3
        s_add_u32 s99, s99, s8
        s_lshr_b32 s9, s8, 1
        s_mul_i32 s9, s9, {hm[1]*256}
        s_mul_i32 s11, s4, {hm[0]*256}
        s_add_u32 s9, s9, s11
        s_and_b32 s11, s8, 1
        s_lshl_b32 s11, s11, 7
        s_add_u32 s9, s9, s11
        s_mul_i32 s10, s10, {320*8192}
        s_add_u32 s9, s9, s10
        s_mov_b32 s11, {8*8192}
        s_waitcnt lgkmcnt(0)
        s_add_u32 s{T0}, s22, s9
        s_addc_u32 s{T0+1}, s23, 0
        s_sub_u32 s{T0+2}, {640*8192}, s9
        s_branch L_p_j
        L_p_mod:
        s_mov_b32 s85, 2
        v_lshrrev_b32 v12, 2, v1
        v_mul_u32_u24 v12, 7680, v12
        v_lshl_add_u32 v12, v13, 4, v12
        s_lshl_b32 s9, s91, 6
        s_mov_b32 s11, {16*7680}
        s_mov_b32 s99, 0
        s_waitcnt lgkmcnt(0)
        s_add_u32 s{T0}, s34, s9
        s_addc_u32 s{T0+1}, s35, 0
        s_sub_u32 s{T0+2}, {640*7680}, s9
        s_cmp_lt_u32 s91, 120
        s_cbranch_scc1 L_p_j
        s_mov_b32 s85, 8
        s_mov_b32 s{T0+2}, 0
        L_p_j:
        s_mov_b32 s{T0+3}, 0x20000
        """)
        if 'n' in a.x: A(f"s_mov_b32 s{T0+2}, 0")
        self.srd(WS, "s40", "s41", hex(WS_END)); self.srd(DBG, "s38", "s39", 256)
        self.srd(X, "s16", "s17", 10240); self.srd(C, "s32", "s33", 10240)
        A(f"""
        s_lshl_b32 s87, s6, 3
        s_add_u32 s87, s87, s7
        s_cmp_eq_u32 s3, 0
        s_cbranch_scc0 L_p_nh
        s_setprio 3
        s_cmp_eq_u32 s85, 8
        s_cbranch_scc0 L_p_nc
        s_sub_u32 s8, s91, 120
        s_mul_i32 s8, s8, {ek*1024}
        """)
        for i in range(ek):
            if i and i % 4 == 0: A("s_add_u32 s8, s8, 4096")
            A(f"buffer_store_dwordx4 v[8:11], v5, {sr(WS)}, s8 offen offset:{(i%4)*1024} sc1")
        A(f"""
        s_waitcnt vmcnt(0)
        v_mov_b32 v14, 1
        s_mov_b64 exec, 1
        buffer_atomic_add v14, off, {sr(DBG)}, 0 sc1
        s_mov_b64 exec, -1
        s_sub_u32 s8, s91, 120
        s_mul_i32 s8, s8, 20480
        s_add_u32 s8, s8, {hex(WS_AP)}
        s_add_u32 s9, s8, 20480
        L_p_c2:
        buffer_store_dwordx4 v[8:11], v5, {sr(WS)}, s8 offen sc1
        s_add_u32 s8, s8, 1024
        s_cmp_lt_u32 s8, s9
        s_cbranch_scc1 L_p_c2
        L_p_nc:
        L_p_nh:
        s_cmp_eq_u32 s85, 2
        s_cbranch_scc0 L_p_nxc
        """)
        A("s_sub_u32 s8, s91, 20\ns_cmp_lt_u32 s8, 20\ns_cbranch_scc0 L_p_nx")
        for i in range(5): A(f"buffer_load_dword v{24+i}, v6, {sr(X)}, s97 offen offset:{i*256}")
        A("L_p_nx:")
        for i in range(5): A(f"buffer_load_dword v{56+i}, v6, {sr(C)}, s97 offen offset:{i*256}")
        A("L_p_nxc:\ns_mul_i32 s8, s3, s11\ns_mul_i32 s8, s8, 5")
        for u in range(5):
            A(f"buffer_load_dwordx4 v12, {sr(T0)}, s8 offen nt lds")
            if u < 4: A("s_add_u32 m0, m0, 1024\ns_add_u32 s8, s8, s11")
        self.srdo(K, "s18", "s19", "s14", "s12")
        A("s_waitcnt lgkmcnt(0)\ns_barrier")

    def setup2(self):
        A = self.A
        self.srdo(V, "s20", "s21", "s14", "s12")
        A(f"""
        s_sub_i32 s98, s5, 12
        """)
        if self.a.remap: A("""
        s_and_b32 s8, s98, 3
        s_lshl_b32 s8, s8, 1
        s_lshr_b32 s9, s98, 2
        s_add_u32 s8, s8, s9
        s_cmp_lt_u32 s98, 8
        s_cselect_b32 s98, s8, s98
        """)
        A(f"""
        s_max_i32 s9, s98, 0
        s_lshl_b32 s9, s9, 6
        s_mul_i32 s8, s4, {self.a.hm[0]*128*1280}
        s_add_u32 s8, s8, s9
        s_add_u32 s{WO}, s24, s8
        s_addc_u32 s{WO+1}, s25, 0
        s_sub_u32 s{WO+2}, {4096*1280}, s8
        s_mov_b32 s{WO+3}, 0x20000
        """)
        if 'o' in self.a.x: A(f"s_mov_b32 s{WO+2}, 0")
        self.srd(OUT, "s36", "s37", 10240)
        A("s_lshl_b32 s8, s84, 20\ns_add_u32 s8, s8, 0xC0000")
        self.srdo(KH, "s18", "s19", "s8", "0x40000")
        A(f"""
        s_mul_i32 s8, s5, 86
        s_lshr_b32 s8, s8, 8
        s_mul_i32 s9, s8, 3
        s_sub_u32 s93, s5, s9
        s_lshl_b32 s8, s8, 3
        s_add_u32 s8, s8, s4
        s_lshl_b32 s10, s8, 7
        s_add_u32 s{TA}, s28, s10
        s_addc_u32 s{TA+1}, s29, 0
        s_sub_u32 s{TA+2}, {640*3456}, s10
        s_mov_b32 s{TA+3}, 0x20000
        s_mul_i32 s10, s8, {64*1280}
        s_lshl_b32 s11, s93, 9
        s_add_u32 s10, s10, s11
        s_add_u32 s{TB}, s30, s10
        s_addc_u32 s{TB+1}, s31, 0
        s_sub_u32 s{TB+2}, {64*1280}, s11
        s_mov_b32 s{TB+3}, 0x20000
        s_mul_i32 s101, s8, 20480
        s_lshl_b32 s11, s93, 13
        s_add_u32 s101, s101, s11
        s_add_u32 s101, s101, {hex(WS_OP)}
        s_cmp_lt_u32 s8, 27
        s_cselect_b32 s100, 1, 0
        s_cmp_ge_i32 s98, 0
        s_cselect_b32 s100, 2, s100
        s_mul_i32 s90, s4, 10240
        s_add_u32 s90, s90, {hex(WS_X1)}
        s_lshl_b32 s96, s98, 3
        s_add_u32 s96, s96, s4
        s_getreg_b32 s97, hwreg(HW_REG_XCC_ID)
        s_and_b32 s97, s97, 15
        s_lshl_b32 s10, s3, 6
        v_lshlrev_b32 v7, 9, v2
        v_lshl_add_u32 v7, v3, 2, v7
        v_add_u32 v7, s10, v7
        v_lshrrev_b32 v0, 2, v1
        v_mul_u32_u24 v0, 1280, v0
        v_lshl_add_u32 v0, v13, 4, v0
        v_and_b32 v8, 1, v3
        v_lshlrev_b32 v8, 4, v8
        v_mov_b32 v9, 0xffff
        v_lshlrev_b32 v9, v8, v9
        v_lshrrev_b32 v8, 1, v3
        """)
        for r in range(4):
            A(f"v_cmp_eq_u32 vcc, {r}, v8\ns_nop 1\nv_cndmask_b32 v{16+r}, 0, v9, vcc")
        if self.a.stamps or self.a.fix: A("s_mov_b32 s16, s42\ns_mov_b32 s17, s43")

    def init1(self):
        A = self.A
        for i in range(5): self.unpack(32+2*i, 33+2*i, 56+i)
        self.silu(list(range(32, 42)), list(range(44, 54)))
        for i in range(5):
            A(f"v_cvt_pk_bf16_f32 v{56+i}, v{32+2*i}, v{33+2*i}")
            A(f"ds_write_b32 v7, v{56+i} offset:{L_ACT + i*2048}")
        A("s_sub_u32 s8, s91, 20\ns_cmp_lt_u32 s8, 20\ns_cbranch_scc0 L_c_a")
        self.ln_body(False)
        for i in range(5): A(f"ds_write_b32 v7, v{24+i} offset:{L_XN + i*2048}")

    def clears1(self, fl, tag):
        self.A(f"""
        s_lshl_b32 s8, s87, 8
        s_add_u32 s8, s8, {hex(WS_O)}
        s_mov_b64 exec, 0xffff
        buffer_store_dwordx4 v[48:51], v5, {sr(WS)}, s8 offen {fl}
        s_cmp_eq_u32 s100, 2
        s_cbranch_scc0 L_h_nx{tag}
        s_lshl_b32 s8, s98, 9
        s_add_u32 s8, s8, s90
        s_mov_b32 exec_lo, -1
        buffer_store_dwordx4 v[48:51], v5, {sr(WS)}, s8 offen {fl}
        L_h_nx{tag}:
        s_lshl_b32 s8, s87, 2
        s_add_u32 s8, s8, {WS_FLB}
        s_mov_b64 exec, 1
        s_waitcnt vmcnt(0)
        buffer_store_dword v46, off, {sr(WS)}, s8 {fl}
        s_mov_b64 exec, -1
        """)
    def clears2(self):
        A = self.A
        A("v_mov_b32 v192, -1\nv_mov_b32 v193, -1\nv_mov_b32 v194, -1\nv_mov_b32 v195, -1\ns_cmp_eq_u32 s100, 1\ns_cbranch_scc0 L_h_no")
        for i in range(4): A(f"buffer_store_dwordx4 v[192:195], v5, {sr(WS)}, s101 offen offset:{i*1024} sc1")
        A("s_cmp_eq_u32 s93, 2\ns_cbranch_scc1 L_h_no\ns_add_u32 s8, s101, 4096")
        for i in range(4): A(f"buffer_store_dwordx4 v[192:195], v5, {sr(WS)}, s8 offen offset:{i*1024} sc1")
        A("L_h_no:")

    def helper(self, vload):
        A = self.A; a = self.a
        AF = lambda k, nt: (64 + 4*(k*4+nt)) if k < 8 else (208 + 4*((k-8)*4+nt))
        A("L_helper:")
        A(f"""
        s_waitcnt vmcnt(0)
        s_cmp_eq_u32 s85, 8
        s_cbranch_scc0 L_h_nb
        v_mov_b32 v14, 1
        s_mov_b64 exec, 1
        buffer_atomic_add v14, off, {sr(DBG)}, 0 offset:128 sc1
        s_mov_b64 exec, -1
        L_h_nb:
        """)
        cld = f"buffer_load_dword v12, off, {sr(DBG)}, 0 sc1"
        if a.cl == 0: A(cld)
        self.spin(4, 7, 256, vt=14)
        if a.cl == 1: A(cld)
        if a.cl == 2: A(f"s_cmp_eq_u32 s85, 2\ns_cbranch_scc0 L_h_c2\n{cld}\nL_h_c2:")
        self.stamp(9)
        A(f"""
        v_lshrrev_b32 v8, 2, v3
        s_cmp_eq_u32 s85, 2
        s_cbranch_scc1 L_h_mod
        v_lshlrev_b32 v10, 10, v2
        v_lshl_add_u32 v10, v8, 7, v10
        v_lshl_add_u32 v10, v13, 3, v10
        """)
        for k in range(10):
            for nt in range(4):
                r = AF(k, nt)
                A(f"ds_read_b64_tr_b16 {q2(r)}, v10 offset:{L_TA + k*4096 + nt*32}")
                A(f"ds_read_b64_tr_b16 {q2(r+2)}, v10 offset:{L_TA + k*4096 + nt*32 + 512}")
        if a.cl == 2: A(f"s_waitcnt lgkmcnt(0)\n{cld}")
        A(f"""
        s_branch L_h_cnt
        L_h_mod:
        v_lshlrev_b32 v10, 9, v2
        v_lshl_add_u32 v10, v8, 6, v10
        v_lshl_add_u32 v10, v13, 3, v10
        """)
        def rd(i):
            A(f"ds_read_b128 {q4(24+4*i)}, v4 offset:{L_ACT + i*1024}")
            for par in range(2):
                for nt in range(2):
                    r = 64 + 4*((2*i+par)*2+nt)
                    A(f"ds_read_b64_tr_b16 {q2(r)}, v10 offset:{L_TA + (2*i+par)*2048 + nt*32}")
                    A(f"ds_read_b64_tr_b16 {q2(r+2)}, v10 offset:{L_TA + (2*i+par)*2048 + nt*32 + 256}")
        if a.stamps: A("s_waitcnt lgkmcnt(0)")
        rd(0)
        for i in range(10):
            if i < 9:
                rd(i+1); A("s_waitcnt lgkmcnt(9)")
            else: A("s_waitcnt lgkmcnt(0)")
            for par in range(2):
                for nt in range(2):
                    r = 64 + 4*((2*i+par)*2+nt); a_ = 224 + 8*par + 4*nt
                    A(f"{MF} {q4(a_)}, {q4(r)}, {q4(24+4*i)}, {'0' if i == 0 else q4(a_)}")
        A(f"""
        v_and_b32 v8, 7, v3
        v_lshrrev_b32 v9, 3, v3
        v_lshlrev_b32 v11, 6, v8
        v_lshl_add_u32 v11, v9, 5, v11
        v_lshl_add_u32 v11, v2, 3, v11
        s_lshl_b32 s9, s91, 9
        s_add_u32 s8, s9, {L_XN - 20*512}
        v_add_u32 v14, s8, v11
        s_nop 1
        """)
        for r in range(4):
            A(f"v_add_f32_dpp v{24+r}, v{232+r}, v{224+r} row_ror:8 row_mask:0xf bank_mask:0x3")
            A(f"v_add_f32_dpp v{24+r}, v{228+r}, v{236+r} row_ror:8 row_mask:0xf bank_mask:0xc")
        A("v_cvt_pk_bf16_f32 v40, v24, v25\nv_cvt_pk_bf16_f32 v41, v26, v27")
        A("s_sub_u32 s8, s91, 20\ns_cmp_lt_u32 s8, 20\ns_cbranch_scc0 L_h_pub")
        A("ds_read_b64 v[42:43], v14")
        for j in range(2): self.unpack(24+2*j, 25+2*j, 40+j)
        for r in range(4): A(f"v_add_f32 v{24+r}, 1.0, v{24+r}")
        for j in range(2): A(f"v_cvt_pk_bf16_f32 v{40+j}, v{24+2*j}, v{25+2*j}")
        for j in range(2): self.unpack(24+2*j, 25+2*j, 40+j)
        A("s_waitcnt lgkmcnt(0)")
        for j in range(2): self.unpack(28+2*j, 29+2*j, 42+j)
        for r in range(4): A(f"v_mul_f32 v{24+r}, v{24+r}, v{28+r}")
        for j in range(2): A(f"v_cvt_pk_bf16_f32 v{40+j}, v{24+2*j}, v{25+2*j}")
        A(f"""
        L_h_pub:
        v_min_u32 v40, -2, v40
        v_min_u32 v41, -2, v41
        v_add_u32 v11, {L_BN}, v11
        v_add_u32 v14, {L_BN}, v5
        ds_write_b64 v11, v[40:41]
        ds_read_b128 v[40:43], v14
        L_h_cnt:
        s_mov_b32 s14, {a.limit}
        L_wc:
        s_waitcnt vmcnt(0)
        v_readfirstlane_b32 s8, v12
        s_nop 0
        s_cmp_ge_u32 s8, {NCLR}
        s_cbranch_scc1 L_wcd
        s_sleep {a.sc}
        buffer_load_dword v12, off, {sr(DBG)}, 0 sc1
        s_sub_u32 s14, s14, 1
        s_cbranch_scc0 L_wc
        s_or_b32 s15, s15, 1
        L_wcd:
        s_cmp_eq_u32 s85, 2
        s_cbranch_scc0 L_h_np
        s_mov_b32 exec_hi, 0
        s_waitcnt lgkmcnt(0)
        buffer_store_dwordx4 v[40:43], v5, {sr(WS)}, s9 offen sc1
        s_mov_b64 exec, -1
        L_h_np:
        s_lshl_b32 s8, s87, {a.fs}
        s_add_u32 s8, s8, {self.fbase()}
        v_mov_b32 v12, s97
        s_mov_b64 exec, 1
        buffer_store_dword v12, off, {sr(WS)}, s8 sc1
        s_mov_b64 exec, -1
        """)
        if a.oc == 0: self.clears2()
        self.stamp(1)
        A(f"""
        s_cmp_lt_i32 s98, 0
        s_cbranch_scc1 L_h_nwo
        s_mov_b32 m0, {L_WO}
        s_mov_b32 s8, 0
        L_h_wo:
        s_waitcnt vmcnt({a.dw-1})
        buffer_load_dwordx4 v0, {sr(WO)}, s8 offen {a.wof} lds
        s_add_u32 m0, m0, 1024
        s_sub_u32 s9, m0, {L_WO}
        s_and_b32 s10, s9, 0x1fff
        s_cselect_b32 s10, 0, {(a.hm[1]-1)*128*1280}
        s_add_u32 s8, s8, s10
        s_add_u32 s8, s8, 20480
        s_cmp_lt_u32 s9, 32768
        s_cbranch_scc1 L_h_wo
        L_h_nwo:
        """)
        A(f"v_and_b32 v14, 0x7c, v6\ns_lshl_b32 s43, s4, 7\ns_add_u32 s43, s43, {WS_FLG}")
        ids = lambda r: f"buffer_load_dword v{r}, v14, {sr(WS)}, s43 offen sc1"
        A("s_bitcmp1_b32 s85, 0\ns_cbranch_scc0 L_h_getq0")
        A(f"""
        v_and_b32 v8, 7, v3
        v_lshrrev_b32 v9, 3, v3
        v_mul_u32_u24 v12, 10240, v9
        v_lshl_add_u32 v12, v8, 6, v12
        v_lshl_add_u32 v12, v2, 4, v12
        v_lshlrev_b32 v196, 8, v8
        v_lshl_add_u32 v196, v9, 6, v196
        v_lshl_add_u32 v196, v2, 4, v196
        v_add_u32 v196, {L_BN}, v196
        v_add_u32 v197, {L_BN}, v5
        v_lshlrev_b32 v198, 10, v2
        v_lshl_add_u32 v198, v3, 4, v198
        s_and_b32 s10, s5, 1
        s_mul_i32 s8, s10, 5120
        s_add_u32 s42, s8, 2560
        s_lshr_b32 s11, s99, 1
        s_and_b32 s9, s5, 15
        s_lshl_b32 s9, s9, 2
        s_add_u32 s9, s9, s43
        s_add_u32 s9, s9, {WS_QF - WS_FLG}
        s_lshl_b32 s11, s11, 13
        s_lshl_b32 s10, s10, 9
        s_add_u32 s11, s11, s10
        s_and_b32 s10, s99, 1
        s_lshl_b32 s10, s10, 8
        s_add_u32 s11, s11, s10
        s_add_u32 s11, s11, {hex(WS_QP)}
        s_add_u32 s10, s11, 4096
        """)
        loads = [f"buffer_load_dwordx4 {q4(24+4*k)}, v12, {sr(WS)}, {'s8' if k < 5 else 's42'} offen offset:{(k%5)*512} sc1" for k in range(10)]
        self.sleep(a.wa - a.lead)
        if a.mode: A("v_mov_b32 v240, 1\nds_write_b32 v15, v240")
        self.sleep(a.lead)
        self.poll(loads, range(24, 64), 241, 2, sleep=a.s1)
        A(ids(12))
        self.stamp(2)
        A("v_cmp_lt_u32 vcc, 7, v3\ns_waitcnt lgkmcnt(0)")
        ACC = [8, 20, 248, 252]
        for k in range(11):
            if k < 10:
                for j in (4*k, 4*k+2):
                    self.unpack(240, 241, 24+j); self.unpack(242, 243, 25+j)
                    for r in range(4): A(f"v_add_f32_dpp v{244+r}, v{240+r}, v{240+r} row_ror:8 {DPPF}")
                    A(f"v_cvt_pk_bf16_f32 v{24+j}, v244, v245\nv_cvt_pk_bf16_f32 v{25+j}, v246, v247")
            if k >= 1:
                for nt in range(4):
                    A(f"{MF} {q4(ACC[nt])}, {q4(AF(k-1, nt))}, {q4(24+4*(k-1))}, {'0' if k == 1 else q4(ACC[nt])}")
        A("s_nop 5")
        for j in range(2):
            for r in range(4): A(f"v_cndmask_b32 v{24+4*j+r}, v{ACC[2*j]+r}, v{ACC[2*j+1]+r}, vcc")
        A("""
        ds_write_b128 v196, v[24:27]
        ds_write_b128 v196, v[28:31] offset:128
        ds_read_b128 v[32:35], v197
        ds_read_b128 v[36:39], v197 offset:1024
        s_waitcnt vmcnt(0)
        """)
        self.samexcd(12)
        A("s_waitcnt lgkmcnt(0)")
        self.store2([f"buffer_store_dwordx4 v[32:35], v198, {sr(WS)}, s11 offen", f"buffer_store_dwordx4 v[36:39], v198, {sr(WS)}, s10 offen",
                     f"s_mov_b64 exec, 1\ns_waitcnt vmcnt(0)\nbuffer_store_dword v1, off, {sr(WS)}, s9"], 12)
        A("s_mov_b64 exec, -1")
        self.stamp(8)
        self.sleep(a.w3)
        A("s_branch L_h_getq\nL_h_getq0:")
        A("s_waitcnt vmcnt(0) lgkmcnt(0)")
        A("s_cmp_lt_i32 s98, 0\ns_cbranch_scc0 L_h_getq")
        for i in range(16):
            A(f"s_waitcnt vmcnt({a.dm-1})")
            vload(i)
        self.sleep(a.w2 - a.lead)
        if a.mode: A("v_mov_b32 v240, 1\nds_write_b32 v15, v240")
        self.sleep(a.lead)
        A(f"""
        L_h_getq:
        v_lshlrev_b32 v12, 2, v13
        s_and_b32 s9, s5, 3
        s_lshl_b32 s9, s9, 4
        s_add_u32 s9, s9, s43
        s_add_u32 s9, s9, {WS_QF - WS_FLG}
        {ids(45)}
        """)
        self.poll([f"buffer_load_dword v44, v12, {sr(WS)}, s9 offen sc1"], [44], 45, 4, sleep=a.s2)
        A(f"""
        v_lshlrev_b32 v12, 3, v1
        s_lshl_b32 s8, s87, 10
        s_add_u32 s8, s8, {hex(WS_QP)}
        buffer_load_dwordx2 v[40:41], v12, {sr(WS)}, s8 offen sc1
        buffer_load_dwordx2 v[42:43], v12, {sr(WS)}, s8 offen offset:512 sc1
        v_mov_b32 v46, s97
        v_mov_b32 v48, -1
        v_mov_b32 v49, -1
        v_mov_b32 v50, -1
        v_mov_b32 v51, -1
        """)
        self.samexcd(45)
        A("s_cbranch_scc0 L_h_cw")
        self.clears1("", "a")
        A("s_branch L_h_cd\nL_h_cw:")
        self.clears1("sc1", "b")
        A("L_h_cd:")
        A(f"""
        v_add_f32 v32, v40, v42
        v_add_f32 v33, v41, v43
        v_cvt_pk_bf16_f32 v32, v32, v33
        ds_write_b32 v6, v32 offset:{L_Q}
        s_waitcnt lgkmcnt(0)
        ds_write_b32 v15, v15
        """)
        self.stamp(3)
        A(f"""
        s_setprio 0
        s_cmp_lt_i32 s98, 0
        s_cbranch_scc1 L_h_nv
        """)
        for i in range(16):
            A(f"s_waitcnt vmcnt({a.dh-1})")
            vload(i)
        A(f"""
        L_h_nv:
        s_cmp_eq_u32 s100, 1
        s_cbranch_scc0 L_h_ncs
        s_mov_b32 m0, {L_CS}
        s_mov_b32 s8, {WS_MOD + 60*512}
        L_h_cs:
        buffer_load_dwordx4 v5, {sr(WS)}, s8 offen sc1 lds
        s_add_u32 m0, m0, 1024
        s_add_u32 s8, s8, 1024
        s_cmp_lt_u32 s8, {WS_MOD + 100*512}
        s_cbranch_scc1 L_h_cs
        """)
        if a.w2e:
            self.w2addr(8, 9, 10)
            A(f"""
            s_mov_b32 m0, {L_W2}
            s_mov_b32 s8, 0
            L_h_w2:
            s_waitcnt vmcnt({a.dh})
            buffer_load_dwordx4 v8, {sr(TB)}, s8 offen nt lds
            buffer_load_dwordx4 v9, {sr(TB)}, s8 offen offset:1024 nt lds
            s_add_u32 m0, m0, 2048
            s_add_u32 s8, s8, {8*1280}
            s_cmp_eq_u32 s8, {64*1280}
            s_cselect_b32 s8, 256, s8
            s_cselect_b32 s9, s93, 0
            s_cmp_eq_u32 s9, 2
            s_cbranch_scc1 L_h_ncs
            s_cmp_lt_u32 m0, {L_W2 + 32768}
            s_cbranch_scc1 L_h_w2
            """)
        A("L_h_ncs:")
        self.spin(8, 7, 2048)
        A(f"v_add_u32 v8, {L_KH}, v5")
        for i in range(32): A(f"ds_read_b128 {q4(64+4*i)}, v8 offset:{i*1024}")

    def w1addr(self, ve, vo, vt):
        self.A(f"""
        v_lshrrev_b32 v{vo}, 3, v1
        v_mul_u32_u24 v{vo}, 3456, v{vo}
        v_and_b32 v{vt}, 1, v2
        v_lshlrev_b32 v{vt}, 1, v{vt}
        v_and_b32 v{ve}, 7, v1
        v_xor_b32 v{ve}, v{ve}, v{vt}
        v_xor_b32 v{vt}, 4, v{ve}
        v_lshl_add_u32 v{ve}, v{ve}, 4, v{vo}
        v_lshl_add_u32 v{vo}, v{vt}, 4, v{vo}
        v_add_u32 v{vo}, {8*3456 - 1024}, v{vo}
        """)
    def w2addr(self, ve, vo, vt):
        self.A(f"""
        v_lshlrev_b32 v{vt}, 1, v2
        v_xor_b32 v{vt}, v{vt}, v3
        v_mul_u32_u24 v{vo}, 1280, v2
        v_lshl_add_u32 v{ve}, v{vt}, 4, v{vo}
        v_xor_b32 v{vt}, 8, v{vt}
        v_lshl_add_u32 v{vo}, v{vt}, 4, v{vo}
        v_add_u32 v{vo}, {5120 - 1024}, v{vo}
        """)
    def w1loop(self, lab, ve, vo, so, end, thr=0):
        self.A(f"""
        {lab}:
        {f"s_waitcnt vmcnt({thr})" if thr else ""}
        buffer_load_dwordx4 v{ve}, {sr(TA)}, {so} offen {self.a.w1f} lds
        buffer_load_dwordx4 v{vo}, {sr(TA)}, {so} offen offset:1024 {self.a.w1f} lds
        s_add_u32 m0, m0, 2048
        s_add_u32 {so}, {so}, {16*3456}
        s_cmp_lt_u32 m0, {end}
        s_cbranch_scc1 {lab}
        """)
    def gen(self):
        A = self.A; a = self.a
        d, d0, nm = a.depth, a.d0, a.nm
        KR = 64
        VR = [192 + 4*i for i in range(16)] + [64 + 4*i for i in range(16)]
        so = lambda i: f"s_mul_i32 s86, s13, {i*1024}"
        def kload(i): A(f"{so(i)}\nbuffer_load_dwordx4 {q4(KR+4*i)}, v4, {sr(K)}, s86 offen nt")
        def vload(i): A(f"{so(i)}\nbuffer_load_dwordx4 {q4(VR[i])}, v5, {sr(V)}, s86 offen nt")
        def hload(u):
            A(f"s_add_u32 s8, s88, {7*u*1024}\ns_add_u32 m0, s8, {L_KH}\n" + (f"s_add_u32 s8, s8, {224*1024}" if a.w7 else "s_lshl_b32 s8, s8, 3"))
            A(f"buffer_load_dwordx4 v4, {sr(KH)}, s8 offen nt lds")
        kseq = []
        for i in range(32):
            kseq.append(("K", i))
            if not a.hpos and i % 6 == 5 and i//6 < 5: kseq.append(("H", i//6))
            if a.hpos and i == a.hpos: kseq += [("H", u) for u in range(5)]
        for i in range(16): kseq.append(("V", i))
        def issue(op): {"K": kload, "V": vload, "H": hload}[op[0]](op[1])

        self.prologue()
        assert all(op[0] == "K" for op in kseq[:nm])
        A("s_cmp_eq_u32 s3, 0\ns_cbranch_scc1 L_c_j")
        for i in range(nm): kload(i)
        A("L_c_j:")
        self.setup2()
        A(f"s_cmp_eq_u32 s85, 2\ns_cbranch_scc0 L_c_a\ns_waitcnt vmcnt({5+nm})")
        A("s_cmp_eq_u32 s3, 0\ns_cbranch_scc0 L_c_i1\ns_waitcnt vmcnt(5)\nL_c_i1:")
        self.init1()
        A("L_c_a:\ns_cmp_eq_u32 s3, 0\ns_cbranch_scc1 L_helper")
        A(f"s_lshl_b32 s88, s3, 10\ns_sub_u32 s88, s88, 1024\ns_mov_b64 vcc, {0 if a.mode else -1}\ns_waitcnt vmcnt({nm}) lgkmcnt(0)")
        self.bump(4)
        if a.rows: A(f"s_bitcmp1_b32 {a.rows}, s5\ns_cselect_b64 vcc, 0, -1")
        if a.par: A(f"s_bitcmp1_b32 {a.par}, s97\ns_cselect_b32 s92, -1, 1")
        hdone = kseq.index(("H", 4)) + d
        assert hdone < len(kseq)
        for n, op in enumerate(kseq):
            if n < nm: continue
            if n >= len(kseq) - a.nfree: pass
            elif n < a.n0 or d == d0: A(f"s_waitcnt vmcnt({d0-1})")
            else:
                if (n - a.n0) % a.chk == 0 and n <= a.nref and not a.rows:
                    if n > a.n0: A("s_waitcnt lgkmcnt(0)\n" + ("v_cmp_eq_u32 vcc, 1, v14" if a.mode else "v_cmp_gt_u32 vcc, 2, v14"))
                    A("ds_read_b32 v14, v15")
                lb = self.newlab("Ld")
                A(f"s_cbranch_vccz {lb}\ns_waitcnt vmcnt({d0-1})\n{lb}:\ns_waitcnt vmcnt({(a.de if n < a.ne else d)-1})")
            if n == hdone: self.bump(8)
            issue(op)
            if n in (16, 32, 48): self.stamp(n//16)
        self.spin(0, 2, 1024)
        A("s_branch L_qk")
        self.helper(vload)
        A("L_qk:")
        A(f"""
        v_lshlrev_b32 v8, 6, v13
        v_lshl_add_u32 v8, v2, 4, v8
        ds_read_b128 v[24:27], v8 offset:{L_Q}
        v_lshrrev_b32 v9, 2, v3
        s_waitcnt lgkmcnt(0)
        """)
        for t in range(4):
            A(f"v_cmp_eq_u32 vcc, {t}, v9\ns_nop 1")
            for r in range(4): A(f"v_cndmask_b32 v{32+4*t+r}, 0, v{24+r}, vcc")
        A("s_waitcnt vmcnt(16)\ns_nop 0")
        for half in range(2):
            for gg in range(4):
                for t in range(4):
                    i = 16*half + 4*gg + t
                    A(f"{MF} {q4(48+4*gg)}, {q4(KR+4*i)}, {q4(32+4*t)}, {'0' if t == 0 else q4(48+4*gg)}")
            if half == 0:
                for i in range(16, 16 + a.d1): vload(i)
            A("s_nop 7")
            for j in range(4):
                for gg in range(4):
                    g = half*4 + gg
                    if j == 0: A(f"v_mov_b32_dpp v{24+g}, v{48+4*gg} quad_perm:[0,0,0,0] {DPPF}")
                    else: A(f"v_add_f32_dpp v{24+g}, v{48+4*gg+j}, v{24+g} quad_perm:[{j},{j},{j},{j}] {DPPF}")
            A("s_nop 1")
        self.stamp(4)
        self.softmax1()
        for i in range(16 + a.d1, 32):
            if i == a.ism: self.small_loads()
            ex = 2 if a.ism <= i < a.ism + a.d2 else 0
            if a.nref < 100 and a.dl < a.d2:
                lb = self.newlab("Ld")
                A(f"s_cmp_eq_u32 s44, 0\ns_cbranch_scc1 {lb}\ns_waitcnt vmcnt({a.dl-1+ex})\n{lb}:")
            A(f"s_waitcnt vmcnt({a.d2-1+ex})")
            vload(i)
        assert 16 + a.d1 <= a.ism < 32 - a.d2
        self.stamp(5)
        if a.pfe: self.tpf()
        self.softmax2()
        def abuild(i):
            for r in range(4):
                A(f"v_and_b32_dpp v{32+4*(i%2)+r}, v{24+i//4}, v{16+r} row_newbcast:{4*(i%4)} {DPPF}")
        abuild(0)
        for i in range(32):
            if i + 1 < 32: abuild(i+1)
            else: A("s_nop 1")
            if 31 - i < a.d2: A(f"s_waitcnt vmcnt({31-i})")
            A(f"{MF} v[20:23], {q4(32+4*(i%2))}, {q4(VR[i])}, {'0' if i == 0 else 'v[20:23]'}")
            if i == 31 - a.d2: self.tail_prep()
        self.tail1()
        self.reducer()
        self.mlp()
        self.finish()
        self.subs()
        L = self.L
        L += ['.section .rodata,"a"', ".p2align 6", f".amdhsa_kernel {NAME}_kernel",
              "  .amdhsa_next_free_vgpr 256", "  .amdhsa_next_free_sgpr 102", "  .amdhsa_accum_offset 256",
              "  .amdhsa_group_segment_fixed_size 0", "  .amdhsa_kernarg_size 104", "  .amdhsa_user_sgpr_count 2",
              "  .amdhsa_user_sgpr_kernarg_segment_ptr 1", "  .amdhsa_system_sgpr_workgroup_id_x 1", ".end_amdhsa_kernel"]
        return "\n".join(L) + "\n"

    def softmax1(self):
        A = self.A
        A(f"s_mov_b32 s8, {hex(SCALE)}")
        for g in range(0, 8, 2):
            A(f"v_cvt_pk_bf16_f32 v8, v{24+g}, v{25+g}")
            self.unpack(24+g, 25+g, 8)
            A(f"v_mul_f32 v{24+g}, s8, v{24+g}\nv_mul_f32 v{25+g}, s8, v{25+g}")
            A(f"v_cvt_pk_bf16_f32 v8, v{24+g}, v{25+g}")
            self.unpack(24+g, 25+g, 8)
        def wred(op, sdst):
            for c in (f"row_ror:4 {DPPF}", f"row_ror:8 {DPPF}", "row_bcast:15 row_mask:0xa bank_mask:0xf", "row_bcast:31 row_mask:0xc bank_mask:0xf"):
                A(f"s_nop 1\n{op}_dpp v8, v8, v8 {c}")
            A(f"s_nop 1\nv_readlane_b32 {sdst}, v8, 63")
        A("v_max3_f32 v8, v24, v25, v26\nv_max3_f32 v8, v8, v27, v28\nv_max3_f32 v8, v8, v29, v30\nv_max_f32 v8, v8, v31")
        wred("v_max_f32", "s95")
        A(f"s_mov_b32 s8, {hex(LOG2E)}\ns_nop 1")
        for g in range(8): A(f"v_subrev_f32 v{24+g}, s95, v{24+g}")
        for g in range(8): A(f"v_mul_f32 v{24+g}, s8, v{24+g}")
        for g in range(8): A(f"v_exp_f32 v{24+g}, v{24+g}")
        A("""
        s_nop 0
        v_add_f32 v8, v24, v25
        v_add_f32 v9, v26, v27
        v_add_f32 v10, v28, v29
        v_add_f32 v11, v30, v31
        v_add_f32 v8, v8, v9
        v_add_f32 v10, v10, v11
        v_add_f32 v8, v8, v10
        """)
        wred("v_add_f32", "s10")
        A(f"""
        s_lshl_b32 s11, s3, 3
        v_mov_b32 v10, s95
        v_mov_b32 v9, s11
        v_mov_b32 v11, s10
        ds_write_b64 v9, v[10:11] offset:{L_SM}
        s_waitcnt lgkmcnt(0)
        """)
        self.bump(12)
    def softmax2(self):
        A = self.A
        self.spin(12, 8, 4096)
        A(f"""
        v_and_b32 v9, 7, v1
        v_lshlrev_b32 v9, 3, v9
        s_mov_b32 s8, {hex(LOG2E)}
        ds_read_b64 v[10:11], v9 offset:{L_SM}
        s_waitcnt lgkmcnt(0)
        v_max_f32_dpp v8, v10, v10 row_ror:4 {DPPF}
        s_nop 1
        v_max_f32_dpp v8, v8, v8 row_ror:2 {DPPF}
        s_nop 1
        v_max_f32_dpp v8, v8, v8 row_ror:1 {DPPF}
        v_sub_f32 v10, v10, v8
        v_sub_f32 v12, s95, v8
        v_mul_f32 v10, s8, v10
        v_mul_f32 v12, s8, v12
        v_exp_f32 v10, v10
        v_exp_f32 v12, v12
        s_nop 0
        v_mul_f32 v10, v10, v11
        s_nop 1
        v_add_f32_dpp v10, v10, v10 quad_perm:[1,0,3,2] {DPPF}
        s_nop 1
        v_add_f32_dpp v10, v10, v10 quad_perm:[2,3,0,1] {DPPF}
        s_nop 1
        v_add_f32_dpp v10, v10, v10 row_half_mirror {DPPF}
        v_rcp_f32 v10, v10
        s_nop 0
        v_mul_f32 v10, v10, v12
        """)
        for g in range(8): A(f"v_mul_f32 v{24+g}, v10, v{24+g}")
        for g in range(8): A(f"v_cvt_pk_bf16_f32 v{24+g}, v{24+g}, v{24+g}")
        A("s_nop 1")

    def flg(self): return f"s_lshl_b32 s10, s4, {self.a.fs+5}\ns_add_u32 s10, s10, {WS_FLB}\nbuffer_load_dword v132, v129, {sr(WS)}, s10 offen sc1"
    def cntb(self): return f"buffer_load_dword v128, off, {sr(DBG)}, 0 offset:128 sc1"
    def fbase(self): return WS_FLG
    def chk_b(self):
        a_, b_ = self.newlab("Lb"), self.newlab("Lbd")
        self.A(f"""
        s_mov_b32 s14, {self.a.limit}
        {a_}:
        v_readfirstlane_b32 s8, v128
        s_nop 0
        s_cmp_ge_u32 s8, {NCLR}
        s_cbranch_scc1 {b_}
        {self.cntb()}
        s_waitcnt vmcnt(0)
        s_sub_u32 s14, s14, 1
        s_cbranch_scc0 {a_}
        s_or_b32 s15, s15, 8
        {b_}:
        """)
    def mlp_small(self):
        o = []
        for i in range(5): o.append(f"s_mov_b32 s9, {WS_MOD + 80*512 + i*2048}\nbuffer_load_dword v{133+i}, v7, {sr(WS)}, s9 offen sc1")
        for i in range(5): o.append(f"s_mov_b32 s9, {WS_MOD + 60*512 + i*2048}\nbuffer_load_dword v{138+i}, v7, {sr(WS)}, s9 offen sc1")
        return o
    def red_small(self):
        return [f"buffer_load_dword v143, v148, {sr(WS)}, s42 offen sc1", f"buffer_load_dword v144, v149, {sr(WS)}, s43 offen sc1"]
    def small_loads(self):
        A = self.A
        A(f"""
        v_and_b32 v146, 7, v1
        v_and_b32 v147, 1, v2
        v_lshlrev_b32 v147, 2, v147
        v_lshl_add_u32 v148, v146, 3, v147
        v_lshl_add_u32 v149, v146, 6, v147
        v_and_b32 v129, 31, v1
        v_lshlrev_b32 v129, {self.a.fs}, v129
        """)
        A(self.flg()); A(self.cntb())

    def oloads(self): return [f"buffer_load_dwordx4 {q4(200+4*k)}, v42, {sr(WS)}, s89 offen offset:{k*64} sc1" for k in range(2)]
    def tail_prep(self):
        A = self.A
        A(f"""
        s_lshl_b32 s8, s3, 9
        v_lshlrev_b32 v40, 5, v3
        v_lshl_add_u32 v40, v2, 4, v40
        v_add_u32 v40, s8, v40
        v_lshlrev_b32 v41, 3, v1
        s_lshl_b32 s88, s87, 8
        s_add_u32 s88, s88, {hex(WS_O)}
        v_lshlrev_b32 v42, 8, v146
        v_lshl_add_u32 v42, v2, 4, v42
        v_lshrrev_b32 v9, 3, v1
        v_lshlrev_b32 v45, 10, v9
        v_lshl_add_u32 v45, v146, 4, v45
        s_cmp_lt_i32 s98, 0
        s_cbranch_scc1 L_tp_done
        s_lshl_b32 s8, s3, 10
        s_add_u32 s8, s8, {L_TB}
        v_lshrrev_b32 v8, 3, v3
        v_lshlrev_b32 v48, 7, v146
        v_lshl_add_u32 v48, v8, 6, v48
        v_lshl_add_u32 v48, v2, 4, v48
        v_add_u32 v48, s8, v48
        v_add_u32 v49, {L_TB}, v5
        s_lshl_b32 s89, s4, 13
        s_lshr_b32 s8, s3, 1
        s_lshl_b32 s8, s8, 11
        s_add_u32 s89, s89, s8
        s_and_b32 s8, s3, 1
        s_lshl_b32 s8, s8, 7
        s_add_u32 s89, s89, s8
        s_add_u32 s89, s89, {hex(WS_O)}
        s_lshl_b32 s94, s96, 10
        s_add_u32 s94, s94, {hex(WS_AP)}
        s_lshl_b32 s92, s98, 13
        s_lshl_b32 s8, s3, 7
        s_add_u32 s92, s92, s8
        s_add_u32 s92, s92, {hex(WS_AP)}
        s_lshl_b32 s43, s98, 9
        s_lshl_b32 s9, s3, 6
        s_add_u32 s42, s43, s9
        s_add_u32 s91, s42, s90
        s_add_u32 s42, s42, {WS_MOD + 40*512}
        s_lshl_b32 s9, s4, 3
        s_add_u32 s43, s43, s9
        s_add_u32 s99, s43, s90
        s_add_u32 s43, s43, {WS_MOD + 100*512}
        s_mul_i32 s9, s3, 1280
        s_lshl_b32 s10, s98, 6
        s_add_u32 s9, s9, s10
        buffer_load_dword v145, v148, {sr(X)}, s9 offen
        v_lshrrev_b32 v8, 1, v2
        v_lshlrev_b32 v8, 4, v8
        v_sub_u32 v14, 16, v8
        v_lshrrev_b32 v8, 2, v3
        v_lshl_add_u32 v8, v2, 3, v8
        v_lshlrev_b32 v8, 6, v8
        v_lshl_add_u32 v8, v13, 3, v8
        s_lshl_b32 s8, s3, 12
        s_add_u32 s8, s8, {L_WO}
        v_add_u32 v8, s8, v8
        """)
        for l in self.red_small(): A(l)
        for k in range(2):
            for m in range(2):
                r = 152 + 8*k + 4*m
                A(f"ds_read_b64_tr_b16 {q2(r)}, v8 offset:{k*2048 + m*32}")
                A(f"ds_read_b64_tr_b16 {q2(r+2)}, v8 offset:{k*2048 + m*32 + 256}")
        self.poll([self.flg()], [132], 8, 8, first_loaded=True)
        self.chk_b()
        for l in self.oloads(): A(l)
        A("L_tp_done:")

    def sum8(self, addr, base, step):
        A = self.A
        if self.a.stamps: A("s_waitcnt lgkmcnt(0)")
        for j in range(8): A(f"ds_read_b128 {q4(64+4*j)}, {addr} offset:{base + j*step}")
        for j in range(0, 8, 2):
            A(f"s_waitcnt lgkmcnt({6-j})")
            for r in (0, 2): self.pk("add", 64+4*j+r, 64+4*j+r, q2(68+4*j+r))
            if j == 2:
                for r in (0, 2): self.pk("add", 64+r, 64+r, q2(72+r))
        for r in (0, 2): self.pk("add", 80+r, 80+r, q2(88+r))
        for r in (0, 2): self.pk("add", 64+r, 64+r, q2(80+r))
    def red_fin(self):
        self.A(f"""
        v_permlane32_swap_b32 v64, v65
        v_permlane32_swap_b32 v66, v67
        v_add_f32 v64, v64, v65
        v_add_f32 v66, v66, v67
        s_nop 1
        v_permlane16_swap_b32 v64, v66
        v_add_f32 v64, v64, v66
        s_nop 1
        v_add_f32_dpp v64, v64, v64 row_ror:8 {DPPF}
        v_cvt_pk_bf16_f32 v64, 0, v64
        v_mul_f32 v64, v64, v208
        v_cvt_pk_bf16_f32 v64, 0, v64
        v_add_f32 v64, v64, v209
        v_mov_b32 v65, v64
        s_nop 1
        v_permlane32_swap_b32 v64, v65
        v_cvt_pk_bf16_f32 v68, v64, v65
        v_cvt_pk_bf16_f32 v69, v64, v65
        s_nop 1
        v_permlane16_swap_b32 v68, v69
        """)

    def tpf(self):
        A = self.A; a = self.a
        if a.pf:
            A("s_cmp_eq_u32 s100, 1\ns_cbranch_scc0 L_h_npf\ns_cmp_eq_u32 s3, 0\ns_cbranch_scc0 L_h_npf")
            self.w1addr(8, 9, 10)
            A(f"s_mov_b32 m0, {L_W1}\ns_mov_b32 s8, 0")
            self.w1loop("L_h_pf", 8, 9, "s8", L_W1 + a.pf*2048, a.dp)
            A("L_h_npf:")

    def tail1(self):
        A = self.A; a = self.a
        A(f"""
        s_mov_b32 exec_hi, 0
        s_nop 6
        ds_write_b128 v40, v[20:23] offset:{L_R1}
        s_mov_b64 exec, -1
        """)
        self.samexcd(132)
        A("s_cselect_b32 s95, 1, 0")
        if a.oc == 1:
            A("s_cmp_eq_u32 s3, 0\ns_cbranch_scc0 L_h_no2")
            self.clears2()
            A("s_waitcnt vmcnt(0)\nL_h_no2:")
        if not a.pfe: self.tpf()
        A("s_waitcnt lgkmcnt(0)\ns_barrier")
        self.stamp(6)
        A("s_cmp_eq_u32 s3, 0\ns_cbranch_scc0 L_opub\ns_mov_b32 exec_hi, 0")
        self.sum8("v5", L_R1, 512)
        A("v_cvt_pk_bf16_f32 v46, v64, v65\nv_cvt_pk_bf16_f32 v47, v66, v67\nv_min_u32 v46, -2, v46\nv_min_u32 v47, -2, v47\ns_cmp_eq_u32 s95, 1")
        self.store2([f"buffer_store_dwordx2 v[46:47], v41, {sr(WS)}, s88 offen"], 132)
        A("s_mov_b64 exec, -1\nL_opub:")
        self.stamp(5)
        if a.notail: A("s_branch L_fin")
        A("s_cmp_eq_u32 s100, 1\ns_cbranch_scc1 L_mlp\ns_cmp_eq_u32 s100, 2\ns_cbranch_scc0 L_fin")

    def reducer(self):
        A = self.A; a = self.a
        self.poll(self.red_small(), [143, 144], 8, 8, first_loaded=True)
        A("""
        v_lshlrev_b32 v208, v14, v143
        v_and_b32 v208, 0xffff0000, v208
        v_lshlrev_b32 v209, v14, v145
        v_and_b32 v209, 0xffff0000, v209
        """)
        self.poll(self.oloads(), range(200, 208), 8, 512, first_loaded=True, sleep=a.so)
        for k in range(2):
            for m in range(2):
                A(f"{MF} {q4(96+4*m)}, {q4(152+8*k+4*m)}, {q4(200+4*k)}, {'0' if k == 0 else q4(96+4*m)}")
        A("v_cmp_lt_u32 vcc, 7, v3\ns_nop 6")
        for r in range(4): A(f"v_cndmask_b32 v{96+r}, v{96+r}, v{100+r}, vcc")
        A("ds_write_b128 v48, v[96:99]\ns_waitcnt lgkmcnt(0)\ns_barrier\ns_cmp_eq_u32 s3, 0\ns_cbranch_scc0 L_apdone")
        self.sum8("v49", 0, 1024)
        for r in range(4): A(f"v_min_u32 v{96+r}, -2, v{64+r}")
        A(f"buffer_store_dwordx4 v[96:99], v5, {sr(WS)}, s94 offen sc1\nL_apdone:")
        self.stamp(7)
        self.sleep(a.wap)
        self.poll([f"buffer_load_dwordx4 v[64:67], v45, {sr(WS)}, s92 offen sc1"], range(64, 68), 8, 16, sleep=a.sr)
        self.red_fin()
        A("v_min_u32 v68, -2, v68\nv_min_u32 v69, -2, v69\ns_mov_b64 exec, 0xff\ns_cmp_eq_u32 s95, 1")
        self.store2([f"buffer_store_dwordx2 v[68:69], v41, {sr(WS)}, s91 offen"], 132)
        A("s_mov_b64 exec, -1")
        self.stamp(8)
        A(f"""
        s_cmp_eq_u32 s3, 7
        s_cbranch_scc0 L_fin
        v_lshlrev_b32 v208, v14, v144
        v_and_b32 v208, 0xffff0000, v208
        v_mul_u32_u24 v10, 20480, v9
        v_lshl_add_u32 v10, v146, 4, v10
        v_mul_u32_u24 v12, 1280, v1
        s_lshl_b32 s8, s96, 7
        s_add_u32 s8, s8, {hex(WS_OP)}
        s_add_u32 s9, s8, {8*20480}
        s_add_u32 s10, s8, {16*20480}
        s_add_u32 s11, s8, {24*20480}
        s_lshl_b32 s88, s96, 3
        """)
        self.poll([f"buffer_load_dword v145, v149, {sr(WS)}, s99 offen sc1"], [145], 13, 32, sleep=2)
        A("v_lshlrev_b32 v209, v14, v145\nv_and_b32 v209, 0xffff0000, v209")
        self.sleep(a.wop)
        loads = [f"buffer_load_dwordx4 {q4(64+4*i)}, v10, {sr(WS)}, s{8+i} offen sc1" for i in range(4)]
        self.poll(loads, range(64, 80), 13, 16, sleep=a.sr)
        for a_, b_ in ((64, 68), (72, 76), (64, 72)):
            for r in (0, 2): self.pk("add", a_+r, a_+r, q2(b_+r))
        A("s_nop 0")
        self.red_fin()
        A(f"""
        s_mov_b64 exec, 0xff
        buffer_store_dwordx2 v[68:69], v12, {sr(OUT)}, s88 offen {a.of}
        s_mov_b64 exec, -1
        """)
        self.stamp(9)
        A("s_branch L_fin")

    def mlp(self):
        A = self.A; a = self.a
        W1F, W2F, AC, GR = 64, 104, 136, 152
        np_ = (40 - a.pf)//8; assert (40 - a.pf) % 8 == 0 and a.pf <= 32
        A("L_mlp:")
        self.w1addr(15, 14, 12)
        A(f"""
        s_mul_i32 s86, s3, {np_*16*3456}
        s_add_u32 s86, s86, {a.pf*16*3456}
        s_mul_i32 s87, s3, {np_*2048}
        s_add_u32 m0, s87, {L_W1 + a.pf*2048}
        s_add_u32 s87, s87, {L_W1 + a.pf*2048 + np_*2048}
        s_barrier
        """)
        if a.oc == 2:
            A("s_cmp_eq_u32 s3, 0\ns_cbranch_scc0 L_h_no2")
            self.clears2()
            A("L_h_no2:")
        self.w1loop("L_t1", 15, 14, "s86", "s87")
        if not a.w2e:
            self.w2addr(15, 14, 12)
            A(f"""
            s_lshl_b32 s87, s3, 11
            s_add_u32 m0, s87, {L_W2}
            s_mul_i32 s86, s3, {8*1280}
            buffer_load_dwordx4 v15, {sr(TB)}, s86 offen nt lds
            buffer_load_dwordx4 v14, {sr(TB)}, s86 offen offset:1024 nt lds
            s_cmp_eq_u32 s93, 2
            s_cbranch_scc1 L_mlp_nt
            s_add_u32 m0, m0, 16384
            s_add_u32 s86, s86, 256
            buffer_load_dwordx4 v15, {sr(TB)}, s86 offen nt lds
            buffer_load_dwordx4 v14, {sr(TB)}, s86 offen offset:1024 nt lds
            L_mlp_nt:
            """)
        self.stamp(2)
        A(f"v_add_u32 v8, {L_CS}, v7")
        for i in range(5): A(f"ds_read_b32 v{133+i}, v8 offset:{10240 + i*2048}")
        for i in range(5): A(f"ds_read_b32 v{138+i}, v8 offset:{i*2048}")
        A("s_waitcnt lgkmcnt(0)")
        self.stamp(3)
        self.poll([self.flg()] + self.mlp_small(), list(range(132, 143)), 8, 64, first_loaded=True)
        for i in range(5):
            self.unpack(208+2*i, 209+2*i, 133+i)
            A(f"v_add_f32 v{208+2*i}, 1.0, v{208+2*i}\nv_add_f32 v{209+2*i}, 1.0, v{209+2*i}")
            A(f"v_cvt_pk_bf16_f32 v8, v{208+2*i}, v{209+2*i}")
            self.unpack(208+2*i, 209+2*i, 8)
            self.unpack(218+2*i, 219+2*i, 138+i)
        A(f"""
        v_lshrrev_b32 v8, 2, v3
        v_lshlrev_b32 v10, 10, v2
        v_lshl_add_u32 v10, v8, 7, v10
        v_lshl_add_u32 v10, v13, 3, v10
        s_lshr_b32 s8, s3, 1
        s_mul_i32 s9, s8, 20480
        s_add_u32 s9, s9, {L_W1}
        v_add_u32 v10, s9, v10
        v_and_b32 v9, 1, v2
        v_lshrrev_b32 v12, 3, v3
        v_lshl_add_u32 v12, v9, 1, v12
        s_and_b32 s10, s3, 1
        s_lshl_b32 s10, s10, 1
        v_xor_b32 v12, s10, v12
        v_xor_b32 v184, 1, v12
        v_lshl_add_u32 v184, v184, 5, v10
        v_lshl_add_u32 v10, v12, 5, v10
        v_lshl_add_u32 v11, v2, 2, v8
        v_lshlrev_b32 v11, 8, v11
        v_lshl_add_u32 v11, v13, 3, v11
        v_add_u32 v11, {L_W2}, v11
        v_lshl_add_u32 v12, v9, 2, v8
        s_and_b32 s9, s3, 3
        s_lshl_b32 s9, s9, 1
        v_xor_b32 v12, s9, v12
        v_xor_b32 v185, 1, v12
        v_lshl_add_u32 v185, v185, 5, v11
        v_lshl_add_u32 v11, v12, 5, v11
        v_lshlrev_b32 v186, 6, v146
        v_lshl_add_u32 v186, v2, 4, v186
        s_mul_i32 s9, s8, 2560
        v_add_u32 v186, s9, v186
        s_lshl_b32 s9, s3, 11
        s_add_u32 s9, s9, {L_G1}
        v_add_u32 v187, s9, v5
        v_lshrrev_b32 v9, 3, v3
        v_lshlrev_b32 v188, 10, v9
        v_lshl_add_u32 v188, v2, 8, v188
        v_lshl_add_u32 v188, v146, 4, v188
        v_add_u32 v188, {L_G1}, v188
        v_lshlrev_b32 v190, 4, v146
        v_lshl_add_u32 v190, v2, 7, v190
        s_add_u32 s43, s90, 4096
        s_add_u32 s89, s90, 8192
        s_lshl_b32 s9, s3, 10
        s_add_u32 s42, s101, s9
        s_mov_b32 s86, 0x00ff00ff
        s_mov_b32 s87, 0x00ff00ff
        s_add_u32 s88, s42, 4096
        s_waitcnt vmcnt(0)
        """)
        self.stamp(4)
        A("""
        s_barrier
        """)
        self.stamp(1)
        loads = [f"buffer_load_dword v{24+i}, v7, {sr(WS)}, {['s90','s43','s89'][i//2]} offen offset:{(i%2)*2048} sc1" for i in range(5)]
        for l in loads: A(l)
        for k in range(5):
            for t in range(2):
                r = W1F + 8*k + 4*t
                A(f"ds_read_b64_tr_b16 {q2(r)}, {'v184' if t else 'v10'} offset:{k*4096}")
                A(f"ds_read_b64_tr_b16 {q2(r+2)}, {'v184' if t else 'v10'} offset:{k*4096 + 512}")
        A("s_cmp_ge_u32 s3, 4\ns_cbranch_scc1 L_now2")
        for m in range(4):
            for j in range(2):
                r = W2F + 8*m + 4*j
                A(f"ds_read_b64_tr_b16 {q2(r)}, {'v185' if m % 2 else 'v11'} offset:{(m//2)*16384 + j*8192}")
                A(f"ds_read_b64_tr_b16 {q2(r+2)}, {'v185' if m % 2 else 'v11'} offset:{(m//2)*16384 + j*8192 + 4096}")
        A("L_now2:\ns_waitcnt vmcnt(0)")
        self.poll(loads, range(24, 29), 8, 128, first_loaded=True, sleep=a.sx)
        self.stamp(8)
        if a.fast:
            self.ln_body(True)
            for i in range(5): A(f"v_pk_fma_f32 {q2(32+2*i)}, {q2(32+2*i)}, {q2(208+2*i)}, {q2(218+2*i)}")
        else:
            self.ln_body(False, pack=False)
            self.rnd(range(32, 42))
            for i in range(5): self.pk("mul", 32+2*i, 32+2*i, q2(208+2*i))
            self.rnd(range(32, 42))
            for i in range(5): self.pk("add", 32+2*i, 32+2*i, q2(218+2*i))
        for i in range(5):
            A(f"v_cvt_pk_bf16_f32 v{24+i}, v{32+2*i}, v{33+2*i}")
            A(f"ds_write_b32 v7, v{24+i} offset:{L_ACT + i*2048}")
        A("s_waitcnt lgkmcnt(0)\ns_barrier")
        for k in range(5): A(f"ds_read_b128 {q4(32+4*k)}, v186 offset:{L_ACT + k*512}")
        for k in range(5):
            A(f"s_waitcnt lgkmcnt({4-k})")
            for t in range(2):
                A(f"{MF} {q4(AC+4*t)}, {q4(W1F+8*k+4*t)}, {q4(32+4*k)}, {'0' if k == 0 else q4(AC+4*t)}")
        A(f"s_nop 6\nds_write_b128 v187, {q4(AC)}\nds_write_b128 v187, {q4(AC+4)} offset:1024\ns_waitcnt lgkmcnt(0)\ns_barrier")
        A("s_cmp_ge_u32 s3, 4\ns_cbranch_scc1 L_fin")
        for j in range(2):
            for k in range(4): A(f"ds_read_b128 {q4(GR+16*j+4*k)}, v188 offset:{k*4096 + j*2048}")
        for j in range(2):
            b0 = GR + 16*j
            A(f"s_waitcnt lgkmcnt({4-4*j})")
            for a_, b_ in ((0, 4), (8, 12), (0, 8)):
                for r in (0, 2): self.pk("add", b0+a_+r, b0+a_+r, q2(b0+b_+r))
            for r in range(4): A(f"v_cvt_pk_bf16_f32 v{32+4*j+r}, 0, v{b0+r}")
        A(f"s_mov_b32 s8, {hex(NLOG2E)}")
        for r in range(0, 8, 2): self.pk("mul", 40+r, 32+r, "s[8:9]", "op_sel_hi:[1,0]")
        for r in range(8): A(f"v_exp_f32 v{40+r}, v{40+r}")
        for r in range(0, 8, 2): self.pk("add", 40+r, 40+r, "1.0", "op_sel_hi:[1,0]")
        for r in range(8): A(f"v_rcp_f32 v{40+r}, v{40+r}")
        for r in range(0, 8, 2): self.pk("mul", 32+r, 32+r, q2(40+r))
        A(f"""
        v_cvt_pk_bf16_f32 v24, v32, v33
        v_cvt_pk_bf16_f32 v25, v34, v35
        v_cvt_pk_bf16_f32 v28, v36, v37
        v_cvt_pk_bf16_f32 v29, v38, v39
        v_mov_b32_dpp v26, v24 row_ror:8 {DPPF}
        v_mov_b32_dpp v27, v25 row_ror:8 {DPPF}
        v_mov_b32_dpp v30, v28 row_ror:8 {DPPF}
        v_mov_b32_dpp v31, v29 row_ror:8 {DPPF}
        """)
        for hf in range(2):
            for j in range(2):
                for m in (2*hf, 2*hf+1):
                    A(f"{MF} {q4(AC+4*m)}, {q4(W2F+8*m+4*j)}, {q4(24+4*j)}, {'0' if j == 0 else q4(AC+4*m)}")
        A("s_mov_b64 exec, s[86:87]\ns_cmp_eq_u32 s93, 2\ns_nop 0")
        for m in range(4):
            if m == 2: A("s_cbranch_scc1 L_opd")
            for r in range(4): A(f"v_min_u32 v{AC+4*m+r}, -2, v{AC+4*m+r}")
            A(f"buffer_store_dwordx4 {q4(AC+4*m)}, v190, {sr(WS)}, {'s42' if m < 2 else 's88'} offen offset:{(m%2)*512} sc1")
        A("L_opd:")
        A("s_mov_b64 exec, -1")
        self.stamp(9)

    def finish(self):
        A = self.A
        A("L_fin:\ns_cmp_eq_u32 s15, 0\ns_cbranch_scc1 L_noerr")
        A(f"v_mov_b32 v8, s15\ns_mov_b64 exec, 1\nbuffer_atomic_or v8, off, {sr(DBG)}, 0 offset:4 sc1\ns_mov_b64 exec, -1\nL_noerr:")
        if self.a.fix: A(f"""
        s_cmp_eq_u32 s2, 0
        s_cbranch_scc0 L_end
        s_add_u32 s8, s16, {self.a.fix*100}
        L_fixw:
        s_sleep 4
        s_memrealtime s[10:11]
        s_waitcnt lgkmcnt(0)
        s_sub_u32 s10, s8, s10
        s_cmp_gt_i32 s10, 0
        s_cbranch_scc1 L_fixw
        """)
        if self.a.stamps:
            self.stamp(10)
            A("s_waitcnt lgkmcnt(0)")
            self.srdo(STS, f"s{WS}", f"s{WS+1}", hex(STAMP_OFF), "0x100000")
            A("s_mov_b32 s38, s97\ns_lshl_b32 s39, s100, 8\ns_or_b32 s39, s39, s85")
            A(f"s_mul_i32 s8, s2, {12*8*2}")
            A("s_cmp_eq_u32 s3, 0\ns_cbranch_scc1 L_st\ns_cmp_eq_u32 s3, 7\ns_cbranch_scc0 L_end\ns_add_u32 s8, s8, 96\nL_st:\ns_mov_b64 exec, 1")
            for k in range(12):
                A(f"v_mov_b32 v8, s{16+2*k}\nv_mov_b32 v9, s{17+2*k}\nbuffer_store_dwordx2 v[8:9], off, {sr(STS)}, s8 offset:{8*k}\ns_nop 1")
        A("L_end:\ns_endpgm")

    def subs(self):
        A = self.A
        pass
    def rnd(self, regs):
        for r in regs: self.A(f"v_cvt_pk_bf16_f32 v{r}, 0, v{r}")
    def ln_body(self, fast, pack=True):
        A = self.A
        for i in range(5):
            self.unpack(32+2*i, 33+2*i, 24+i)
            if i == 0: A("v_readfirstlane_b32 s8, v32")
        NEG = "op_sel_hi:[1,0] neg_lo:[0,1] neg_hi:[0,1]"
        for i in range(5): self.pk("add", 42+2*i, 32+2*i, "s[8:9]", NEG)
        self.pk("add", 52, 42, "v[44:45]"); self.pk("mul", 54, 42, "v[42:43]")
        for i in range(1, 5):
            if i > 1: self.pk("add", 52, 52, q2(42+2*i))
            A(f"v_pk_fma_f32 v[54:55], {q2(42+2*i)}, {q2(42+2*i)}, v[54:55]")
        A("v_add_f32 v52, v52, v53\nv_add_f32 v53, v54, v55\ns_nop 0")
        for c in (f"row_ror:1 {DPPF}", f"row_ror:2 {DPPF}", f"row_ror:4 {DPPF}", f"row_ror:8 {DPPF}",
                  "row_bcast:15 row_mask:0xa bank_mask:0xf", "row_bcast:31 row_mask:0xc bank_mask:0xf"):
            A(f"v_add_f32_dpp v52, v52, v52 {c}\nv_add_f32_dpp v53, v53, v53 {c}\ns_nop 0")
        A(f"""
        v_readlane_b32 s9, v52, 63
        v_readlane_b32 s10, v53, 63
        v_mov_b32 v54, {hex(INV640)}
        s_nop 0
        v_mul_f32 v52, s9, v54
        v_mul_f32 v53, s10, v54
        v_fma_f32 v53, -v52, v52, v53
        v_add_f32 v52, s8, v52
        v_max_f32 v53, 0, v53
        v_cvt_pk_bf16_f32 v52, 0, v52
        v_cvt_pk_bf16_f32 v54, 0, v53
        v_add_f32 v54, {hex(EPS)}, v54
        v_cvt_pk_bf16_f32 v54, 0, v54
        v_sqrt_f32 v54, v54
        """)
        for i in range(5): self.pk("add", 32+2*i, 32+2*i, "v[52:53]", NEG)
        A("v_cvt_pk_bf16_f32 v54, 0, v54\nv_rcp_f32 v54, v54")
        if fast: A("s_nop 0")
        else: self.rnd(range(32, 42))
        for i in range(5): self.pk("mul", 32+2*i, 32+2*i, "v[54:55]", "op_sel_hi:[1,0]")
        if not fast and pack:
            for i in range(5): A(f"v_cvt_pk_bf16_f32 v{24+i}, v{32+2*i}, v{33+2*i}")

if __name__ == "__main__":
    ap = argparse.ArgumentParser()
    ap.add_argument("-o", default="k.s"); ap.add_argument("--stamps", action="store_true")
    ap.add_argument("--fast", action="store_true"); ap.add_argument("--nolocal", action="store_true"); ap.add_argument("--notail", action="store_true")
    for n, v in dict(dp=0, fix=0, w2e=0, pfe=0, cpf=2, oc=0, cl=0, sc=2, nfree=3, fs=2, w7=1, hpos=0, rows=0, remap=1, dw=10, dm=4, nref=100, dl=4, wap=16, mode=0, lead=0, de=6, ne=0, dh=12, pf=0, rx=0, ry=0, par=0, diag=0, limit=40000, pad=20480, depth=3, d0=3, nm=3, n0=16, chk=3, d1=4, d2=8, ism=21, wa=0, w2=0, w3=0,
                     s1=8, s2=2, sr=0, sx=0, so=0, wx=20, wop=0).items():
        ap.add_argument("--" + n, type=int, default=v)
    ap.add_argument("--wof", default="")
    ap.add_argument("--w1f", default=""); ap.add_argument("--w2f", default="nt")
    ap.add_argument("--of", default=""); ap.add_argument("--x", default=""); ap.add_argument("--cf", default="sc1")
    ap.add_argument("--hm", default="4,1")
    a = ap.parse_args(); a.hm = [int(v) for v in a.hm.split(",")]
    txt = G(a).gen()
    if 's' in a.x: txt = "\n".join(l for l in txt.split("\n") if not ("buffer_store" in l and "s[52:55]" in l))
    drop = lambda pred: "\n".join(l for l in txt.split("\n") if not pred(l))
    if 'e' in a.x: txt = drop(lambda l: "buffer_atomic_or" in l)
    if 'S' in a.x: txt = drop(lambda l: "buffer_store" in l and "sc1" in l)
    if 'A' in a.x: txt = drop(lambda l: "s[80:83]" in l)
    if 'O' in a.x: txt = drop(lambda l: "buffer_store_dwordx2 v[46:47]" in l)
    if 'L' in a.x: txt = drop(lambda l: "buffer_load_dwordx4 v[128:131]" in l)
    if 'M' in a.x: txt = drop(lambda l: "buffer_load_dword v132" in l)
    if 'f' in a.x: txt = drop(lambda l: "buffer_store_dword v12, off" in l)
    if 'F' in a.x: txt = drop(lambda l: "buffer_store_dword v1, off" in l)
    if 'g' in a.x: txt = drop(lambda l: "buffer_store_dwordx4 v[192:195]" in l)
    if 'i' in a.x: txt = drop(lambda l: "buffer_store_dwordx4 v[8:11]" in l)
    if 'p' in a.x: txt = drop(lambda l: "buffer_store_dwordx4 v[40:43]" in l)
    if 'q' in a.x: txt = drop(lambda l: "buffer_store_dwordx4 v[32:35]" in l or "buffer_store_dwordx4 v[36:39]" in l)
    if 'l' in a.x: txt = "\n".join(l for l in txt.split("\n") if not ("buffer_load" in l and "s[52:55]" in l))
    open(a.o, "w").write(txt)
```

```python
import argparse
NAME = "adaLN_cond__sliding_block_cached__dense_activation_silu__decode"

WS_MOD  = 0x00000
WS_FLG  = 61440
WS_FLB  = 62464
WS_QF   = 63488
NCLR    = 8
WS_X1   = 0x40000
WS_O    = 0x30000
WS_AP   = 0x60000
WS_QP   = 0x100000
WS_OP   = 0x180000
WS_END  = WS_OP + 27*20480
STAMP_OFF = 0x20000000
L_Q, L_SM, L_FL = 0, 256, 384
L_ACT, L_XN, L_TA = 1024, 11264, 21504
L_KH  = 62464
L_W1  = L_TA
L_W2  = L_W1 + 81920
L_WO  = L_W2
L_G1  = L_W2 + 32768
L_TB  = L_G1
L_BN  = L_G1 + 16384
L_CS  = L_G1
L_END = L_BN + 4096
L_R1  = L_XN
assert L_KH + 35*1024 <= L_WO and L_END <= 163840
LOG2E, NLOG2E, SCALE, INV640, EPS = 0x3fb8aa3b, 0xbfb8aa3b, 0x3db504f3, 0x3acccccd, 0x3727c5ac
K, V, WS, WO, TA, TB, X, C, OUT, DBG, T0 = 44, 48, 52, 56, 60, 64, 68, 72, 76, 80, 92
KH = C
STS = 40
sr = lambda r: f"s[{r}:{r+3}]"
DPPF = "row_mask:0xf bank_mask:0xf"
MF = "v_mfma_f32_16x16x32_bf16"
q4 = lambda r: f"v[{r}:{r+3}]"
q2 = lambda r: f"v[{r}:{r+1}]"

class G:
    def __init__(self, a):
        self.L = []; self.lab = 0; self.a = a
    def A(self, s):
        for x in s.split("\n"):
            x = x.strip()
            if x: self.L.append(("" if x.endswith(":") else "    ") + x)
    def newlab(self, p="L"):
        self.lab += 1; return f"{p}_{self.lab}"
    def stamp(self, k, diag=0):
        if self.a.stamps and diag == self.a.diag: self.A(f"s_memrealtime s[{16+2*k}:{17+2*k}]")
    def srd(self, d, lo, hi, size):
        self.A(f"s_mov_b32 s{d}, {lo}\ns_mov_b32 s{d+1}, {hi}\ns_mov_b32 s{d+2}, {size}\ns_mov_b32 s{d+3}, 0x20000")
    def srdo(self, d, lo, hi, off, size):
        self.A(f"s_add_u32 s{d}, {lo}, {off}\ns_addc_u32 s{d+1}, {hi}, 0\ns_mov_b32 s{d+2}, {size}\ns_mov_b32 s{d+3}, 0x20000")
    def unpack(self, lo, hi, src):
        self.A(f"v_lshlrev_b32 v{lo}, 16, v{src}\nv_and_b32 v{hi}, 0xffff0000, v{src}")
    def pk(self, op, d, a, b, mods=""):
        self.A(f"v_pk_{op}_f32 {q2(d)}, {q2(a)}, {b} {mods}")
    def maxtree(self, dst, regs):
        regs = list(regs); A = self.A
        if len(regs) == 2:
            A(f"v_max_u32 v{dst}, v{regs[0]}, v{regs[1]}"); return
        A(f"v_max3_u32 v{dst}, v{regs[0]}, v{regs[1]}, v{regs[2]}"); regs = regs[3:]
        while len(regs) >= 2:
            A(f"v_max3_u32 v{dst}, v{dst}, v{regs[0]}, v{regs[1]}"); regs = regs[2:]
        if regs: A(f"v_max_u32 v{dst}, v{dst}, v{regs[0]}")
    def poll(self, loads, regs, tmp, code, first_loaded=False, sleep=1):
        A = self.A; regs = list(regs)
        lp = self.newlab("Lpoll"); ck = self.newlab("Lchk"); dn = self.newlab("Lpd")
        A(f"s_mov_b32 s14, {0 if 'e' in self.a.x else self.a.limit}")
        if first_loaded: A(f"s_branch {ck}")
        A(f"{lp}:")
        for l in loads: A(l)
        A("s_waitcnt vmcnt(0)")
        A(f"{ck}:")
        if len(regs) == 1: tmp = regs[0]
        else: self.maxtree(tmp, regs)
        A(f"v_cmp_eq_u32 vcc, -1, v{tmp}\ns_cbranch_vccz {dn}\ns_mov_b64 exec, vcc")
        if sleep: A(f"s_sleep {sleep}")
        A(f"s_sub_u32 s14, s14, 1\ns_cbranch_scc0 {lp}\ns_or_b32 s15, s15, {code}\n{dn}:\ns_mov_b64 exec, -1")
    def sleep(self, n):
        while n > 0:
            self.A(f"s_sleep {min(n, 120)}"); n -= 120
    def spin(self, off, target, code, vt=12, va=15):
        a = self.newlab("Lsp"); b = self.newlab("Lspd")
        self.A(f"""
        s_mov_b32 s14, {self.a.limit*8}
        {a}:
        ds_read_b32 v{vt}, v{va} offset:{off}
        s_waitcnt lgkmcnt(0)
        v_readfirstlane_b32 s8, v{vt}
        s_nop 0
        s_cmp_ge_u32 s8, {target}
        s_cbranch_scc1 {b}
        s_sleep 1
        s_sub_u32 s14, s14, 1
        s_cbranch_scc0 {a}
        s_or_b32 s15, s15, {code}
        {b}:
        """)
    def bump(self, off, vt=12, va=15):
        self.A(f"v_mov_b32 v{vt}, 1\ns_mov_b64 exec, 1\nds_add_u32 v{va}, v{vt} offset:{off}\ns_mov_b64 exec, -1")
    def silu(self, regs, tmps):
        A = self.A
        for r, t in zip(regs, tmps): A(f"v_mul_f32 v{t}, {hex(NLOG2E)}, v{r}")
        for t in tmps: A(f"v_exp_f32 v{t}, v{t}")
        A("s_nop 0")
        for t in tmps: A(f"v_add_f32 v{t}, 1.0, v{t}")
        for t in tmps: A(f"v_rcp_f32 v{t}, v{t}")
        A("s_nop 0")
        for r, t in zip(regs, tmps): A(f"v_mul_f32 v{r}, v{r}, v{t}")
    def store2(self, stores, cond_reg):
        a = self.newlab("Lwt"); b = self.newlab("Lsd")
        self.A(f"s_cbranch_scc0 {a}")
        for s in stores: self.A(s)
        self.A(f"s_branch {b}\n{a}:")
        for s in stores: self.A(s + " sc1")
        self.A(f"{b}:")
    def samexcd(self, reg):
        if self.a.nolocal: self.A("s_cmp_eq_u32 s3, 99")
        elif 'z' in self.a.x: self.A("s_cmp_eq_u32 s3, s3")
        else: self.A(f"v_cmp_ne_u32 vcc, s97, v{reg}\ns_cmp_eq_u64 vcc, 0")

    def prologue(self):
        A = self.A; a = self.a
        ek = -(-(WS_FLG + (256 << a.fs)) // 8192)
        self.L += [f"; @launch grid=(256,1,1) block=(512,1,1) lds={L_END}",
                   '.amdgcn_target "amdgcn-amd-amdhsa--gfx950"', ".text", f".globl {NAME}_kernel", ".p2align 8",
                   f".type {NAME}_kernel,@function", f"{NAME}_kernel:"]
        A("""
        s_cmp_ge_u32 s2, 256
        s_cbranch_scc1 L_end
        s_load_dwordx16 s[16:31], s[0:1], 0
        s_load_dwordx8 s[32:39], s[0:1], 64
        s_load_dwordx2 s[40:41], s[0:1], 96
        """)
        if a.stamps or a.fix: A("s_memrealtime s[42:43]")
        A(f"""
        v_lshrrev_b32 v1, 6, v0
        s_and_b32 s4, s2, 7
        v_readfirstlane_b32 s3, v1
        """)
        A(f"""
        v_and_b32 v1, 63, v0
        v_lshrrev_b32 v2, 4, v1
        v_and_b32 v3, 15, v1
        v_lshlrev_b32 v4, 6, v3
        v_lshl_add_u32 v4, v2, 4, v4
        v_lshlrev_b32 v5, 4, v1
        v_lshlrev_b32 v6, 2, v1
        v_and_b32 v13, 3, v1
        s_lshr_b32 s5, s2, 3
        s_lshl_b32 s6, s4, 2
        s_and_b32 s8, s5, 3
        s_add_u32 s6, s6, s8
        s_lshr_b32 s7, s5, 2
        """)
        hm = a.hm
        A(f"""
        s_mul_i32 s84, s8, {hm[1]}
        s_mul_i32 s9, s4, {hm[0]}
        s_add_u32 s84, s84, s9
        s_lshl_b32 s8, s7, 5
        s_add_u32 s84, s84, s8
        s_lshl_b32 s14, s84, 20
        """)
        if a.w7: A(f"""
        s_lshl_b32 s9, s3, 10
        s_sub_u32 s9, s9, 1024
        s_cmp_eq_u32 s3, 0
        s_cselect_b32 s9, {224*1024}, s9
        s_cselect_b32 s13, 1, 7
        """)
        else: A("s_lshl_b32 s9, s3, 10\ns_mov_b32 s13, 8")
        A(f"""
        s_sub_u32 s12, 0x40000, s9
        s_add_u32 s14, s14, s9
        s_add_u32 s14, s14, 0xC0000
        s_mov_b32 s15, 0
        s_mul_i32 s97, s3, 1280
        s_and_b32 s8, s5, 15
        s_lshr_b32 s8, s8, 1
        s_lshl_b32 s9, s8, 3
        s_add_u32 s9, s9, s4
        s_lshl_b32 s91, s9, 1
        s_and_b32 s10, s5, 1
        s_add_u32 s91, s91, s10
        s_mul_i32 s11, s3, 5120
        s_add_u32 m0, s11, {L_TA}
        v_mov_b32 v15, {L_FL}
        v_mov_b32 v8, 0
        v_mov_b32 v9, 0
        v_mov_b32 v10, 0
        v_mov_b32 v11, 0
        ds_write_b128 v15, v[8:11]
        s_nop 1
        v_mov_b32 v8, -1
        v_mov_b32 v9, -1
        v_mov_b32 v10, -1
        v_mov_b32 v11, -1
        s_cmp_lt_u32 s5, 16
        s_cbranch_scc1 L_p_mod
        s_mov_b32 s85, 1
        v_lshrrev_b32 v12, 3, v1
        v_lshlrev_b32 v12, 13, v12
        v_and_b32 v14, 7, v1
        v_lshl_add_u32 v12, v14, 4, v12
        s_lshl_b32 s99, s4, 3
        s_add_u32 s99, s99, s8
        s_lshr_b32 s9, s8, 1
        s_mul_i32 s9, s9, {hm[1]*256}
        s_mul_i32 s11, s4, {hm[0]*256}
        s_add_u32 s9, s9, s11
        s_and_b32 s11, s8, 1
        s_lshl_b32 s11, s11, 7
        s_add_u32 s9, s9, s11
        s_mul_i32 s10, s10, {320*8192}
        s_add_u32 s9, s9, s10
        s_mov_b32 s11, {8*8192}
        s_waitcnt lgkmcnt(0)
        s_add_u32 s{T0}, s22, s9
        s_addc_u32 s{T0+1}, s23, 0
        s_sub_u32 s{T0+2}, {640*8192}, s9
        s_branch L_p_j
        L_p_mod:
        s_mov_b32 s85, 2
        v_lshrrev_b32 v12, 2, v1
        v_mul_u32_u24 v12, 7680, v12
        v_lshl_add_u32 v12, v13, 4, v12
        s_lshl_b32 s9, s91, 6
        s_mov_b32 s11, {16*7680}
        """)
        if 'm' in a.x: A(f"""
        v_lshrrev_b32 v12, 3, v1
        v_mul_u32_u24 v12, 7680, v12
        v_and_b32 v14, 7, v1
        v_lshl_add_u32 v12, v14, 4, v12
        s_lshr_b32 s9, s91, 1
        s_lshl_b32 s9, s9, 7
        s_mul_i32 s10, s10, {320*7680}
        s_add_u32 s9, s9, s10
        s_mov_b32 s11, {8*7680}
        """)
        A(f"""
        s_mov_b32 s99, 0
        s_waitcnt lgkmcnt(0)
        s_add_u32 s{T0}, s34, s9
        s_addc_u32 s{T0+1}, s35, 0
        s_sub_u32 s{T0+2}, {640*7680}, s9
        s_cmp_lt_u32 s91, 120
        s_cbranch_scc1 L_p_j
        s_mov_b32 s85, 8
        s_mov_b32 s{T0+2}, 0
        L_p_j:
        s_mov_b32 s{T0+3}, 0x20000
        """)
        if 'n' in a.x: A(f"s_mov_b32 s{T0+2}, 0")
        self.srd(WS, "s40", "s41", hex(WS_END)); self.srd(DBG, "s38", "s39", 256)
        self.srd(X, "s16", "s17", 10240); self.srd(C, "s32", "s33", 10240)
        A(f"""
        s_lshl_b32 s87, s6, 3
        s_add_u32 s87, s87, s7
        s_cmp_eq_u32 s3, 0
        s_cbranch_scc0 L_p_nh
        s_setprio 3
        s_cmp_eq_u32 s85, 8
        s_cbranch_scc0 L_p_nc
        s_sub_u32 s8, s91, 120
        s_mul_i32 s8, s8, {ek*1024}
        """)
        for i in range(ek):
            if i and i % 4 == 0: A("s_add_u32 s8, s8, 4096")
            A(f"buffer_store_dwordx4 v[8:11], v5, {sr(WS)}, s8 offen offset:{(i%4)*1024} sc1")
        A(f"""
        s_waitcnt vmcnt(0)
        v_mov_b32 v14, 1
        s_mov_b64 exec, 1
        buffer_atomic_add v14, off, {sr(DBG)}, 0 sc1
        s_mov_b64 exec, -1
        s_sub_u32 s8, s91, 120
        s_mul_i32 s8, s8, 20480
        s_add_u32 s8, s8, {hex(WS_AP)}
        s_add_u32 s9, s8, 20480
        L_p_c2:
        buffer_store_dwordx4 v[8:11], v5, {sr(WS)}, s8 offen sc1
        s_add_u32 s8, s8, 1024
        s_cmp_lt_u32 s8, s9
        s_cbranch_scc1 L_p_c2
        L_p_nc:
        L_p_nh:
        s_cmp_eq_u32 s85, 2
        s_cbranch_scc0 L_p_nxc
        """)
        A("s_sub_u32 s8, s91, 20\ns_cmp_lt_u32 s8, 20\ns_cbranch_scc0 L_p_nx")
        for i in range(5): A(f"buffer_load_dword v{24+i}, v6, {sr(X)}, s97 offen offset:{i*256}")
        A("L_p_nx:")
        for i in range(5): A(f"buffer_load_dword v{56+i}, v6, {sr(C)}, s97 offen offset:{i*256}")
        A("L_p_nxc:\ns_mul_i32 s8, s3, s11\ns_mul_i32 s8, s8, 5")
        for u in range(5):
            A(f"buffer_load_dwordx4 v12, {sr(T0)}, s8 offen nt lds")
            if u < 4: A("s_add_u32 m0, m0, 1024\ns_add_u32 s8, s8, s11")
        self.srdo(K, "s18", "s19", "s14", "s12")
        A("s_waitcnt lgkmcnt(0)\ns_barrier")

    def setup2(self):
        A = self.A
        self.srdo(V, "s20", "s21", "s14", "s12")
        A(f"""
        s_sub_i32 s98, s5, 12
        """)
        if self.a.remap: A("""
        s_and_b32 s8, s98, 3
        s_lshl_b32 s8, s8, 1
        s_lshr_b32 s9, s98, 2
        s_add_u32 s8, s8, s9
        s_cmp_lt_u32 s98, 8
        s_cselect_b32 s98, s8, s98
        """)
        A(f"""
        s_max_i32 s9, s98, 0
        s_lshl_b32 s9, s9, 6
        s_mul_i32 s8, s4, {self.a.hm[0]*128*1280}
        s_add_u32 s8, s8, s9
        s_add_u32 s{WO}, s24, s8
        s_addc_u32 s{WO+1}, s25, 0
        s_sub_u32 s{WO+2}, {4096*1280}, s8
        s_mov_b32 s{WO+3}, 0x20000
        """)
        if 'o' in self.a.x: A(f"s_mov_b32 s{WO+2}, 0")
        self.srd(OUT, "s36", "s37", 10240)
        A("s_lshl_b32 s8, s84, 20\ns_add_u32 s8, s8, 0xC0000")
        self.srdo(KH, "s18", "s19", "s8", "0x40000")
        A(f"""
        s_mul_i32 s8, s5, 86
        s_lshr_b32 s8, s8, 8
        s_mul_i32 s9, s8, 3
        s_sub_u32 s93, s5, s9
        s_lshl_b32 s8, s8, 3
        s_add_u32 s8, s8, s4
        s_lshl_b32 s10, s8, 7
        s_add_u32 s{TA}, s28, s10
        s_addc_u32 s{TA+1}, s29, 0
        s_sub_u32 s{TA+2}, {640*3456}, s10
        s_mov_b32 s{TA+3}, 0x20000
        s_mul_i32 s10, s8, {64*1280}
        s_lshl_b32 s11, s93, 9
        s_add_u32 s10, s10, s11
        s_add_u32 s{TB}, s30, s10
        s_addc_u32 s{TB+1}, s31, 0
        s_sub_u32 s{TB+2}, {64*1280}, s11
        s_mov_b32 s{TB+3}, 0x20000
        s_mul_i32 s101, s8, 20480
        s_lshl_b32 s11, s93, 13
        s_add_u32 s101, s101, s11
        s_add_u32 s101, s101, {hex(WS_OP)}
        s_cmp_lt_u32 s8, 27
        s_cselect_b32 s100, 1, 0
        s_cmp_ge_i32 s98, 0
        s_cselect_b32 s100, 2, s100
        s_mul_i32 s90, s4, 10240
        s_add_u32 s90, s90, {hex(WS_X1)}
        s_lshl_b32 s96, s98, 3
        s_add_u32 s96, s96, s4
        s_getreg_b32 s97, hwreg(HW_REG_XCC_ID)
        s_and_b32 s97, s97, 15
        s_lshl_b32 s10, s3, 6
        v_lshlrev_b32 v7, 9, v2
        v_lshl_add_u32 v7, v3, 2, v7
        v_add_u32 v7, s10, v7
        v_lshrrev_b32 v0, 2, v1
        v_mul_u32_u24 v0, 1280, v0
        v_lshl_add_u32 v0, v13, 4, v0
        v_and_b32 v8, 1, v3
        v_lshlrev_b32 v8, 4, v8
        v_mov_b32 v9, 0xffff
        v_lshlrev_b32 v9, v8, v9
        v_lshrrev_b32 v8, 1, v3
        """)
        for r in range(4):
            A(f"v_cmp_eq_u32 vcc, {r}, v8\ns_nop 1\nv_cndmask_b32 v{16+r}, 0, v9, vcc")
        if 'w' in self.a.x: A(f"""
        v_lshrrev_b32 v0, 3, v1
        v_mul_u32_u24 v0, 1280, v0
        v_and_b32 v8, 7, v1
        v_lshl_add_u32 v0, v8, 4, v0
        s_and_b32 s8, s98, 1
        s_mul_i32 s8, s8, {8*1280 - 64}
        v_add_u32 v0, s8, v0
        """)
        if self.a.stamps or self.a.fix: A("s_mov_b32 s16, s42\ns_mov_b32 s17, s43")

    def init1(self):
        A = self.A
        for i in range(5): self.unpack(32+2*i, 33+2*i, 56+i)
        self.silu(list(range(32, 42)), list(range(44, 54)))
        for i in range(5):
            A(f"v_cvt_pk_bf16_f32 v{56+i}, v{32+2*i}, v{33+2*i}")
            A(f"ds_write_b32 v7, v{56+i} offset:{L_ACT + i*2048}")
        A("s_sub_u32 s8, s91, 20\ns_cmp_lt_u32 s8, 20\ns_cbranch_scc0 L_c_a")
        self.ln_body(False)
        for i in range(5): A(f"ds_write_b32 v7, v{24+i} offset:{L_XN + i*2048}")

    def clears1(self, fl, tag):
        self.A(f"""
        s_lshl_b32 s8, s87, 8
        s_add_u32 s8, s8, {hex(WS_O)}
        s_mov_b64 exec, 0xffff
        buffer_store_dwordx4 v[48:51], v5, {sr(WS)}, s8 offen {fl}
        s_cmp_eq_u32 s100, 2
        s_cbranch_scc0 L_h_nx{tag}
        s_lshl_b32 s8, s98, 9
        s_add_u32 s8, s8, s90
        s_mov_b32 exec_lo, -1
        buffer_store_dwordx4 v[48:51], v5, {sr(WS)}, s8 offen {fl}
        L_h_nx{tag}:
        s_lshl_b32 s8, s87, 2
        s_add_u32 s8, s8, {WS_FLB}
        s_mov_b64 exec, 1
        s_waitcnt vmcnt(0)
        buffer_store_dword v46, off, {sr(WS)}, s8 {fl}
        s_mov_b64 exec, -1
        """)
    def clears2(self):
        A = self.A
        A("v_mov_b32 v192, -1\nv_mov_b32 v193, -1\nv_mov_b32 v194, -1\nv_mov_b32 v195, -1\ns_cmp_eq_u32 s100, 1\ns_cbranch_scc0 L_h_no")
        for i in range(4): A(f"buffer_store_dwordx4 v[192:195], v5, {sr(WS)}, s101 offen offset:{i*1024} sc1")
        A("s_cmp_eq_u32 s93, 2\ns_cbranch_scc1 L_h_no\ns_add_u32 s8, s101, 4096")
        for i in range(4): A(f"buffer_store_dwordx4 v[192:195], v5, {sr(WS)}, s8 offen offset:{i*1024} sc1")
        A("L_h_no:")

    def helper(self, vload):
        A = self.A; a = self.a
        AF = lambda k, nt: (64 + 4*(k*4+nt)) if k < 8 else (208 + 4*((k-8)*4+nt))
        A("L_helper:")
        A(f"""
        s_waitcnt vmcnt(0)
        s_cmp_eq_u32 s85, 8
        s_cbranch_scc0 L_h_nb
        v_mov_b32 v14, 1
        s_mov_b64 exec, 1
        buffer_atomic_add v14, off, {sr(DBG)}, 0 offset:128 sc1
        s_mov_b64 exec, -1
        L_h_nb:
        """)
        cld = f"buffer_load_dword v12, off, {sr(DBG)}, 0 sc1"
        if a.cl == 0: A(cld)
        self.spin(4, 7, 256, vt=14)
        if a.cl == 1: A(cld)
        if a.cl == 2: A(f"s_cmp_eq_u32 s85, 2\ns_cbranch_scc0 L_h_c2\n{cld}\nL_h_c2:")
        self.stamp(9)
        A(f"""
        v_lshrrev_b32 v8, 2, v3
        s_cmp_eq_u32 s85, 2
        s_cbranch_scc1 L_h_mod
        v_lshlrev_b32 v10, 10, v2
        v_lshl_add_u32 v10, v8, 7, v10
        v_lshl_add_u32 v10, v13, 3, v10
        """)
        for k in range(10):
            for nt in range(4):
                r = AF(k, nt)
                A(f"ds_read_b64_tr_b16 {q2(r)}, v10 offset:{L_TA + k*4096 + nt*32}")
                A(f"ds_read_b64_tr_b16 {q2(r+2)}, v10 offset:{L_TA + k*4096 + nt*32 + 512}")
        if a.cl == 2: A(f"s_waitcnt lgkmcnt(0)\n{cld}")
        A(f"""
        s_branch L_h_cnt
        L_h_mod:
        v_lshlrev_b32 v10, 9, v2
        v_lshl_add_u32 v10, v8, 6, v10
        v_lshl_add_u32 v10, v13, 3, v10
        """)
        def rd(i):
            A(f"ds_read_b128 {q4(24+4*i)}, v4 offset:{L_ACT + i*1024}")
            for par in range(2):
                for nt in range(2):
                    r = 64 + 4*((2*i+par)*2+nt)
                    A(f"ds_read_b64_tr_b16 {q2(r)}, v10 offset:{L_TA + (2*i+par)*2048 + nt*32}")
                    A(f"ds_read_b64_tr_b16 {q2(r+2)}, v10 offset:{L_TA + (2*i+par)*2048 + nt*32 + 256}")
        if a.stamps: A("s_waitcnt lgkmcnt(0)")
        rd(0)
        for i in range(10):
            if i < 9:
                rd(i+1); A("s_waitcnt lgkmcnt(9)")
            else: A("s_waitcnt lgkmcnt(0)")
            for par in range(2):
                for nt in range(2):
                    r = 64 + 4*((2*i+par)*2+nt); a_ = 224 + 8*par + 4*nt
                    A(f"{MF} {q4(a_)}, {q4(r)}, {q4(24+4*i)}, {'0' if i == 0 else q4(a_)}")
        A(f"""
        v_and_b32 v8, 7, v3
        v_lshrrev_b32 v9, 3, v3
        v_lshlrev_b32 v11, 6, v8
        v_lshl_add_u32 v11, v9, 5, v11
        v_lshl_add_u32 v11, v2, 3, v11
        s_lshl_b32 s9, s91, 9
        s_add_u32 s8, s9, {L_XN - 20*512}
        v_add_u32 v14, s8, v11
        s_nop 1
        """)
        for r in range(4):
            A(f"v_add_f32_dpp v{24+r}, v{232+r}, v{224+r} row_ror:8 row_mask:0xf bank_mask:0x3")
            A(f"v_add_f32_dpp v{24+r}, v{228+r}, v{236+r} row_ror:8 row_mask:0xf bank_mask:0xc")
        A("v_cvt_pk_bf16_f32 v40, v24, v25\nv_cvt_pk_bf16_f32 v41, v26, v27")
        A("s_sub_u32 s8, s91, 20\ns_cmp_lt_u32 s8, 20\ns_cbranch_scc0 L_h_pub")
        A("ds_read_b64 v[42:43], v14")
        for j in range(2): self.unpack(24+2*j, 25+2*j, 40+j)
        for r in range(4): A(f"v_add_f32 v{24+r}, 1.0, v{24+r}")
        for j in range(2): A(f"v_cvt_pk_bf16_f32 v{40+j}, v{24+2*j}, v{25+2*j}")
        for j in range(2): self.unpack(24+2*j, 25+2*j, 40+j)
        A("s_waitcnt lgkmcnt(0)")
        for j in range(2): self.unpack(28+2*j, 29+2*j, 42+j)
        for r in range(4): A(f"v_mul_f32 v{24+r}, v{24+r}, v{28+r}")
        for j in range(2): A(f"v_cvt_pk_bf16_f32 v{40+j}, v{24+2*j}, v{25+2*j}")
        A(f"""
        L_h_pub:
        v_min_u32 v40, -2, v40
        v_min_u32 v41, -2, v41
        v_add_u32 v11, {L_BN}, v11
        v_add_u32 v14, {L_BN}, v5
        ds_write_b64 v11, v[40:41]
        ds_read_b128 v[40:43], v14
        L_h_cnt:
        s_mov_b32 s14, {a.limit}
        L_wc:
        s_waitcnt vmcnt(0)
        v_readfirstlane_b32 s8, v12
        s_nop 0
        s_cmp_ge_u32 s8, {NCLR}
        s_cbranch_scc1 L_wcd
        s_sleep {a.sc}
        buffer_load_dword v12, off, {sr(DBG)}, 0 sc1
        s_sub_u32 s14, s14, 1
        s_cbranch_scc0 L_wc
        s_or_b32 s15, s15, 1
        L_wcd:
        s_cmp_eq_u32 s85, 2
        s_cbranch_scc0 L_h_np
        s_mov_b32 exec_hi, 0
        s_waitcnt lgkmcnt(0)
        buffer_store_dwordx4 v[40:43], v5, {sr(WS)}, s9 offen sc1
        s_mov_b64 exec, -1
        L_h_np:
        s_lshl_b32 s8, s87, {a.fs}
        s_add_u32 s8, s8, {self.fbase()}
        v_mov_b32 v12, s97
        s_mov_b64 exec, 1
        buffer_store_dword v12, off, {sr(WS)}, s8 sc1
        s_mov_b64 exec, -1
        """)
        if a.oc == 0: self.clears2()
        self.stamp(1)
        A(f"""
        s_cmp_lt_i32 s98, 0
        s_cbranch_scc1 L_h_nwo
        s_mov_b32 m0, {L_WO}
        s_mov_b32 s8, 0
        L_h_wo:
        s_waitcnt vmcnt({a.dw-1})
        buffer_load_dwordx4 v0, {sr(WO)}, s8 offen {a.wof} lds
        s_add_u32 m0, m0, 1024
        s_sub_u32 s9, m0, {L_WO}
        s_and_b32 s10, s9, 0x1fff
        s_cselect_b32 s10, 0, {(a.hm[1]-1)*128*1280}
        s_add_u32 s8, s8, s10
        s_add_u32 s8, s8, 20480
        s_cmp_lt_u32 s9, 32768
        s_cbranch_scc1 L_h_wo
        L_h_nwo:
        """)
        A(f"v_and_b32 v14, 0x7c, v6\ns_lshl_b32 s43, s4, 7\ns_add_u32 s43, s43, {WS_FLG}")
        ids = lambda r: f"buffer_load_dword v{r}, v14, {sr(WS)}, s43 offen sc1"
        A("s_bitcmp1_b32 s85, 0\ns_cbranch_scc0 L_h_getq0")
        A(f"""
        v_and_b32 v8, 7, v3
        v_lshrrev_b32 v9, 3, v3
        v_mul_u32_u24 v12, 10240, v9
        v_lshl_add_u32 v12, v8, 6, v12
        v_lshl_add_u32 v12, v2, 4, v12
        v_lshlrev_b32 v196, 8, v8
        v_lshl_add_u32 v196, v9, 6, v196
        v_lshl_add_u32 v196, v2, 4, v196
        v_add_u32 v196, {L_BN}, v196
        v_add_u32 v197, {L_BN}, v5
        v_lshlrev_b32 v198, 10, v2
        v_lshl_add_u32 v198, v3, 4, v198
        s_and_b32 s10, s5, 1
        s_mul_i32 s8, s10, 5120
        s_add_u32 s42, s8, 2560
        s_lshr_b32 s11, s99, 1
        s_and_b32 s9, s5, 15
        s_lshl_b32 s9, s9, 2
        s_add_u32 s9, s9, s43
        s_add_u32 s9, s9, {WS_QF - WS_FLG}
        s_lshl_b32 s11, s11, 13
        s_lshl_b32 s10, s10, 9
        s_add_u32 s11, s11, s10
        s_and_b32 s10, s99, 1
        s_lshl_b32 s10, s10, 8
        s_add_u32 s11, s11, s10
        s_add_u32 s11, s11, {hex(WS_QP)}
        s_add_u32 s10, s11, 4096
        """)
        loads = [f"buffer_load_dwordx4 {q4(24+4*k)}, v12, {sr(WS)}, {'s8' if k < 5 else 's42'} offen offset:{(k%5)*512} sc1" for k in range(10)]
        self.sleep(a.wa - a.lead)
        if a.mode: A("v_mov_b32 v240, 1\nds_write_b32 v15, v240")
        self.sleep(a.lead)
        self.poll(loads, range(24, 64), 241, 2, sleep=a.s1)
        A(ids(12))
        self.stamp(2)
        A("v_cmp_lt_u32 vcc, 7, v3\ns_waitcnt lgkmcnt(0)")
        ACC = [8, 20, 248, 252]
        for k in range(11):
            if k < 10:
                for j in (4*k, 4*k+2):
                    self.unpack(240, 241, 24+j); self.unpack(242, 243, 25+j)
                    for r in range(4): A(f"v_add_f32_dpp v{244+r}, v{240+r}, v{240+r} row_ror:8 {DPPF}")
                    A(f"v_cvt_pk_bf16_f32 v{24+j}, v244, v245\nv_cvt_pk_bf16_f32 v{25+j}, v246, v247")
            if k >= 1:
                for nt in range(4):
                    A(f"{MF} {q4(ACC[nt])}, {q4(AF(k-1, nt))}, {q4(24+4*(k-1))}, {'0' if k == 1 else q4(ACC[nt])}")
        A("s_nop 5")
        for j in range(2):
            for r in range(4): A(f"v_cndmask_b32 v{24+4*j+r}, v{ACC[2*j]+r}, v{ACC[2*j+1]+r}, vcc")
        A("""
        ds_write_b128 v196, v[24:27]
        ds_write_b128 v196, v[28:31] offset:128
        ds_read_b128 v[32:35], v197
        ds_read_b128 v[36:39], v197 offset:1024
        s_waitcnt vmcnt(0)
        """)
        self.samexcd(12)
        A("s_waitcnt lgkmcnt(0)")
        self.store2([f"buffer_store_dwordx4 v[32:35], v198, {sr(WS)}, s11 offen", f"buffer_store_dwordx4 v[36:39], v198, {sr(WS)}, s10 offen",
                     f"s_mov_b64 exec, 1\ns_waitcnt vmcnt(0)\nbuffer_store_dword v1, off, {sr(WS)}, s9"], 12)
        A("s_mov_b64 exec, -1")
        self.stamp(8)
        self.sleep(a.w3)
        A("s_branch L_h_getq\nL_h_getq0:")
        A("s_waitcnt vmcnt(0) lgkmcnt(0)")
        A("s_cmp_lt_i32 s98, 0\ns_cbranch_scc0 L_h_getq")
        for i in range(16):
            A(f"s_waitcnt vmcnt({a.dm-1})")
            vload(i)
        self.sleep(a.w2 - a.lead)
        if a.mode: A("v_mov_b32 v240, 1\nds_write_b32 v15, v240")
        self.sleep(a.lead)
        A(f"""
        L_h_getq:
        v_lshlrev_b32 v12, 2, v13
        s_and_b32 s9, s5, 3
        s_lshl_b32 s9, s9, 4
        s_add_u32 s9, s9, s43
        s_add_u32 s9, s9, {WS_QF - WS_FLG}
        {ids(45)}
        """)
        self.poll([f"buffer_load_dword v44, v12, {sr(WS)}, s9 offen sc1"], [44], 45, 4, sleep=a.s2)
        A(f"""
        v_lshlrev_b32 v12, 3, v1
        s_lshl_b32 s8, s87, 10
        s_add_u32 s8, s8, {hex(WS_QP)}
        buffer_load_dwordx2 v[40:41], v12, {sr(WS)}, s8 offen sc1
        buffer_load_dwordx2 v[42:43], v12, {sr(WS)}, s8 offen offset:512 sc1
        v_mov_b32 v46, s97
        v_mov_b32 v48, -1
        v_mov_b32 v49, -1
        v_mov_b32 v50, -1
        v_mov_b32 v51, -1
        """)
        self.samexcd(45)
        A("s_cbranch_scc0 L_h_cw")
        self.clears1("", "a")
        A("s_branch L_h_cd\nL_h_cw:")
        self.clears1("sc1", "b")
        A("L_h_cd:")
        A(f"""
        v_add_f32 v32, v40, v42
        v_add_f32 v33, v41, v43
        v_cvt_pk_bf16_f32 v32, v32, v33
        ds_write_b32 v6, v32 offset:{L_Q}
        s_waitcnt lgkmcnt(0)
        ds_write_b32 v15, v15
        """)
        self.stamp(3)
        A(f"""
        s_setprio 0
        s_cmp_lt_i32 s98, 0
        s_cbranch_scc1 L_h_nv
        """)
        for i in range(16):
            A(f"s_waitcnt vmcnt({a.dh-1})")
            vload(i)
        A(f"""
        L_h_nv:
        s_cmp_eq_u32 s100, 1
        s_cbranch_scc0 L_h_ncs
        s_mov_b32 m0, {L_CS}
        s_mov_b32 s8, {WS_MOD + 60*512}
        L_h_cs:
        buffer_load_dwordx4 v5, {sr(WS)}, s8 offen sc1 lds
        s_add_u32 m0, m0, 1024
        s_add_u32 s8, s8, 1024
        s_cmp_lt_u32 s8, {WS_MOD + 100*512}
        s_cbranch_scc1 L_h_cs
        """)
        if a.w2e:
            self.w2addr(8, 9, 10)
            A(f"""
            s_mov_b32 m0, {L_W2}
            s_mov_b32 s8, 0
            L_h_w2:
            s_waitcnt vmcnt({a.dh})
            buffer_load_dwordx4 v8, {sr(TB)}, s8 offen nt lds
            buffer_load_dwordx4 v9, {sr(TB)}, s8 offen offset:1024 nt lds
            s_add_u32 m0, m0, 2048
            s_add_u32 s8, s8, {8*1280}
            s_cmp_eq_u32 s8, {64*1280}
            s_cselect_b32 s8, 256, s8
            s_cselect_b32 s9, s93, 0
            s_cmp_eq_u32 s9, 2
            s_cbranch_scc1 L_h_ncs
            s_cmp_lt_u32 m0, {L_W2 + 32768}
            s_cbranch_scc1 L_h_w2
            """)
        A("L_h_ncs:")
        if a.cpf == 3: A(f"""
        s_getpc_b64 s[8:9]
        L_pc:
        s_add_u32 s8, s8, L_tail - L_pc
        s_addc_u32 s9, s9, 0
        v_lshlrev_b32 v8, 7, v1
        v_min_u32 v8, L_end - L_tail, v8
        v_mov_b32 v9, s9
        v_add_co_u32 v8, vcc, s8, v8
        s_nop 1
        v_addc_co_u32 v9, vcc, 0, v9, vcc
        global_load_dword v23, v[8:9], off
        """)
        self.spin(8, 7, 2048)
        A(f"v_add_u32 v8, {L_KH}, v5")
        for i in range(32): A(f"ds_read_b128 {q4(64+4*i)}, v8 offset:{i*1024}")

    def w1addr(self, ve, vo, vt):
        self.A(f"""
        v_lshrrev_b32 v{vo}, 3, v1
        v_mul_u32_u24 v{vo}, 3456, v{vo}
        v_and_b32 v{vt}, 1, v2
        v_lshlrev_b32 v{vt}, 1, v{vt}
        v_and_b32 v{ve}, 7, v1
        v_xor_b32 v{ve}, v{ve}, v{vt}
        v_xor_b32 v{vt}, 4, v{ve}
        v_lshl_add_u32 v{ve}, v{ve}, 4, v{vo}
        v_lshl_add_u32 v{vo}, v{vt}, 4, v{vo}
        v_add_u32 v{vo}, {8*3456 - 1024}, v{vo}
        """)
    def w2addr(self, ve, vo, vt):
        self.A(f"""
        v_lshlrev_b32 v{vt}, 1, v2
        v_xor_b32 v{vt}, v{vt}, v3
        v_mul_u32_u24 v{vo}, 1280, v2
        v_lshl_add_u32 v{ve}, v{vt}, 4, v{vo}
        v_xor_b32 v{vt}, 8, v{vt}
        v_lshl_add_u32 v{vo}, v{vt}, 4, v{vo}
        v_add_u32 v{vo}, {5120 - 1024}, v{vo}
        """)
    def w1loop(self, lab, ve, vo, so, end, thr=0):
        self.A(f"""
        {lab}:
        {f"s_waitcnt vmcnt({thr})" if thr else ""}
        buffer_load_dwordx4 v{ve}, {sr(TA)}, {so} offen {self.a.w1f} lds
        buffer_load_dwordx4 v{vo}, {sr(TA)}, {so} offen offset:1024 {self.a.w1f} lds
        s_add_u32 m0, m0, 2048
        s_add_u32 {so}, {so}, {16*3456}
        s_cmp_lt_u32 m0, {end}
        s_cbranch_scc1 {lab}
        """)
    def gen(self):
        A = self.A; a = self.a
        d, d0, nm = a.depth, a.d0, a.nm
        KR = 64
        VR = [192 + 4*i for i in range(16)] + [64 + 4*i for i in range(16)]
        so = lambda i: f"s_mul_i32 s86, s13, {i*1024}"
        def kload(i): A(f"{so(i)}\nbuffer_load_dwordx4 {q4(KR+4*i)}, v4, {sr(K)}, s86 offen nt")
        def vload(i): A(f"{so(i)}\nbuffer_load_dwordx4 {q4(VR[i])}, v5, {sr(V)}, s86 offen nt")
        def hload(u):
            A(f"s_add_u32 s8, s88, {7*u*1024}\ns_add_u32 m0, s8, {L_KH}\n" + (f"s_add_u32 s8, s8, {224*1024}" if a.w7 else "s_lshl_b32 s8, s8, 3"))
            A(f"buffer_load_dwordx4 v4, {sr(KH)}, s8 offen nt lds")
        kseq = []
        for i in range(32):
            kseq.append(("K", i))
            if not a.hpos and i % 6 == 5 and i//6 < 5: kseq.append(("H", i//6))
            if a.hpos and i == a.hpos: kseq += [("H", u) for u in range(5)]
        for i in range(16): kseq.append(("V", i))
        def issue(op): {"K": kload, "V": vload, "H": hload}[op[0]](op[1])

        self.prologue()
        assert all(op[0] == "K" for op in kseq[:nm])
        A("s_cmp_eq_u32 s3, 0\ns_cbranch_scc1 L_c_j")
        for i in range(nm): kload(i)
        A("L_c_j:")
        self.setup2()
        if a.cpf == 1: A(f"""
        s_cmp_eq_u32 s3, 0
        s_cbranch_scc0 L_npf
        s_getpc_b64 s[8:9]
        L_pc:
        s_and_b32 s10, s5, 7
        s_mul_i32 s10, s10, {a.pad//8}
        s_sub_u32 s8, s8, L_pc - {NAME}_kernel
        s_subb_u32 s9, s9, 0
        v_lshlrev_b32 v8, 7, v1
        v_add_u32 v8, s10, v8
        v_mov_b32 v9, s9
        v_add_co_u32 v8, vcc, s8, v8
        s_nop 1
        v_addc_co_u32 v9, vcc, 0, v9, vcc
        s_mov_b64 exec, {hex((1 << (a.pad//1024)) - 1)}
        global_load_dword v62, v[8:9], off
        s_mov_b64 exec, -1
        L_npf:
        """)
        A(f"s_cmp_eq_u32 s85, 2\ns_cbranch_scc0 L_c_a\ns_waitcnt vmcnt({5+nm})")
        A("s_cmp_eq_u32 s3, 0\ns_cbranch_scc0 L_c_i1\ns_waitcnt vmcnt(5)\nL_c_i1:")
        self.init1()
        A("L_c_a:\ns_cmp_eq_u32 s3, 0\ns_cbranch_scc1 L_helper")
        A(f"s_lshl_b32 s88, s3, 10\ns_sub_u32 s88, s88, 1024\ns_mov_b64 vcc, {0 if a.mode else -1}\ns_waitcnt vmcnt({nm}) lgkmcnt(0)")
        self.bump(4)
        if a.rows: A(f"s_bitcmp1_b32 {a.rows}, s5\ns_cselect_b64 vcc, 0, -1")
        if a.par: A(f"s_bitcmp1_b32 {a.par}, s97\ns_cselect_b32 s92, -1, 1")
        hdone = kseq.index(("H", 4)) + d
        assert hdone < len(kseq)
        for n, op in enumerate(kseq):
            if n < nm: continue
            if n >= len(kseq) - a.nfree: pass
            elif n < a.n0 or d == d0: A(f"s_waitcnt vmcnt({d0-1})")
            else:
                if (n - a.n0) % a.chk == 0 and n <= a.nref and not a.rows:
                    if n > a.n0: A("s_waitcnt lgkmcnt(0)\n" + ("v_cmp_eq_u32 vcc, 1, v14" if a.mode else "v_cmp_gt_u32 vcc, 2, v14"))
                    A("ds_read_b32 v14, v15")
                lb = self.newlab("Ld")
                A(f"s_cbranch_vccz {lb}\ns_waitcnt vmcnt({d0-1})\n{lb}:\ns_waitcnt vmcnt({(a.de if n < a.ne else d)-1})")
            if n == hdone: self.bump(8)
            issue(op)
            if n in (16, 32, 48): self.stamp(n//16)
        self.spin(0, 2, 1024)
        A("s_branch L_qk")
        self.helper(vload)
        A("L_qk:")
        A(f"""
        v_lshlrev_b32 v8, 6, v13
        v_lshl_add_u32 v8, v2, 4, v8
        ds_read_b128 v[24:27], v8 offset:{L_Q}
        v_lshrrev_b32 v9, 2, v3
        s_waitcnt lgkmcnt(0)
        """)
        for t in range(4):
            A(f"v_cmp_eq_u32 vcc, {t}, v9\ns_nop 1")
            for r in range(4): A(f"v_cndmask_b32 v{32+4*t+r}, 0, v{24+r}, vcc")
        A("s_waitcnt vmcnt(16)\ns_nop 0")
        for half in range(2):
            for gg in range(4):
                for t in range(4):
                    i = 16*half + 4*gg + t
                    A(f"{MF} {q4(48+4*gg)}, {q4(KR+4*i)}, {q4(32+4*t)}, {'0' if t == 0 else q4(48+4*gg)}")
            if half == 0:
                for i in range(16, 16 + a.d1): vload(i)
            A("s_nop 7")
            for j in range(4):
                for gg in range(4):
                    g = half*4 + gg
                    if j == 0: A(f"v_mov_b32_dpp v{24+g}, v{48+4*gg} quad_perm:[0,0,0,0] {DPPF}")
                    else: A(f"v_add_f32_dpp v{24+g}, v{48+4*gg+j}, v{24+g} quad_perm:[{j},{j},{j},{j}] {DPPF}")
            A("s_nop 1")
        self.stamp(4)
        self.softmax1()
        def abuild(i):
            for r in range(4):
                A(f"v_and_b32_dpp v{32+4*(i%2)+r}, v{24+i//4}, v{16+r} row_newbcast:{4*(i%4)} {DPPF}")
        def pv(i, wait=None):
            if i + 1 < 32: abuild(i+1)
            else: A("s_nop 1")
            if wait is not None: A(f"s_waitcnt vmcnt({wait})")
            A(f"{MF} v[20:23], {q4(32+4*(i%2))}, {q4(VR[i])}, {'0' if i == 0 else 'v[20:23]'}")
        done = 0
        for i in range(16 + a.d1, 32):
            if i == a.ism: self.small_loads()
            ex = 2 if a.ism <= i < a.ism + a.d2 else 0
            A(f"s_waitcnt vmcnt({a.d2-1+ex})")
            vload(i)
            if i == a.i2:
                self.softmax2(); abuild(0)
            if i >= a.i2:
                while done <= i - a.d2: pv(done); done += 1
        assert 16 + a.d1 <= a.ism < 32 - a.d2
        self.stamp(5)
        if a.i2 > 31:
            self.softmax2(); abuild(0)
            while done <= 31 - a.d2: pv(done); done += 1
        self.tail_prep()
        while done < 32: pv(done, 31 - done); done += 1
        A("L_tail:")
        self.tail1()
        self.reducer()
        self.mlp()
        self.finish()
        self.subs()
        L = self.L
        if a.cpf == 1: L.append(f".fill ({a.pad} - (. - {NAME}_kernel))/4, 4, 0xbf800000")
        L += ['.section .rodata,"a"', ".p2align 6", f".amdhsa_kernel {NAME}_kernel",
              "  .amdhsa_next_free_vgpr 256", "  .amdhsa_next_free_sgpr 102", "  .amdhsa_accum_offset 256",
              "  .amdhsa_group_segment_fixed_size 0", "  .amdhsa_kernarg_size 104", "  .amdhsa_user_sgpr_count 2",
              "  .amdhsa_user_sgpr_kernarg_segment_ptr 1", "  .amdhsa_system_sgpr_workgroup_id_x 1", ".end_amdhsa_kernel"]
        return "\n".join(L) + "\n"

    def softmax1(self):
        A = self.A
        A(f"s_mov_b32 s8, {hex(SCALE)}")
        for g in range(0, 8, 2):
            A(f"v_cvt_pk_bf16_f32 v8, v{24+g}, v{25+g}")
            self.unpack(24+g, 25+g, 8)
            A(f"v_mul_f32 v{24+g}, s8, v{24+g}\nv_mul_f32 v{25+g}, s8, v{25+g}")
            A(f"v_cvt_pk_bf16_f32 v8, v{24+g}, v{25+g}")
            self.unpack(24+g, 25+g, 8)
        def wred(op, sdst):
            for c in (f"row_ror:4 {DPPF}", f"row_ror:8 {DPPF}", "row_bcast:15 row_mask:0xa bank_mask:0xf", "row_bcast:31 row_mask:0xc bank_mask:0xf"):
                A(f"s_nop 1\n{op}_dpp v8, v8, v8 {c}")
            A(f"s_nop 1\nv_readlane_b32 {sdst}, v8, 63")
        A("v_max3_f32 v8, v24, v25, v26\nv_max3_f32 v8, v8, v27, v28\nv_max3_f32 v8, v8, v29, v30\nv_max_f32 v8, v8, v31")
        wred("v_max_f32", "s95")
        A(f"s_mov_b32 s8, {hex(LOG2E)}\ns_nop 1")
        for g in range(8): A(f"v_subrev_f32 v{24+g}, s95, v{24+g}")
        for g in range(8): A(f"v_mul_f32 v{24+g}, s8, v{24+g}")
        for g in range(8): A(f"v_exp_f32 v{24+g}, v{24+g}")
        A("""
        s_nop 0
        v_add_f32 v8, v24, v25
        v_add_f32 v9, v26, v27
        v_add_f32 v10, v28, v29
        v_add_f32 v11, v30, v31
        v_add_f32 v8, v8, v9
        v_add_f32 v10, v10, v11
        v_add_f32 v8, v8, v10
        """)
        wred("v_add_f32", "s10")
        A(f"""
        s_lshl_b32 s11, s3, 3
        v_mov_b32 v10, s95
        v_mov_b32 v9, s11
        v_mov_b32 v11, s10
        ds_write_b64 v9, v[10:11] offset:{L_SM}
        s_waitcnt lgkmcnt(0)
        """)
        self.bump(12)
    def softmax2(self):
        A = self.A
        self.spin(12, 8, 4096)
        A(f"""
        v_and_b32 v9, 7, v1
        v_lshlrev_b32 v9, 3, v9
        s_mov_b32 s8, {hex(LOG2E)}
        ds_read_b64 v[10:11], v9 offset:{L_SM}
        s_waitcnt lgkmcnt(0)
        v_max_f32_dpp v8, v10, v10 row_ror:4 {DPPF}
        s_nop 1
        v_max_f32_dpp v8, v8, v8 row_ror:2 {DPPF}
        s_nop 1
        v_max_f32_dpp v8, v8, v8 row_ror:1 {DPPF}
        v_sub_f32 v10, v10, v8
        v_sub_f32 v12, s95, v8
        v_mul_f32 v10, s8, v10
        v_mul_f32 v12, s8, v12
        v_exp_f32 v10, v10
        v_exp_f32 v12, v12
        s_nop 0
        v_mul_f32 v10, v10, v11
        s_nop 1
        v_add_f32_dpp v10, v10, v10 quad_perm:[1,0,3,2] {DPPF}
        s_nop 1
        v_add_f32_dpp v10, v10, v10 quad_perm:[2,3,0,1] {DPPF}
        s_nop 1
        v_add_f32_dpp v10, v10, v10 row_half_mirror {DPPF}
        v_rcp_f32 v10, v10
        s_nop 0
        v_mul_f32 v10, v10, v12
        """)
        for g in range(8): A(f"v_mul_f32 v{24+g}, v10, v{24+g}")
        for g in range(8): A(f"v_cvt_pk_bf16_f32 v{24+g}, v{24+g}, v{24+g}")
        A("s_nop 1")

    def flg(self): return f"s_lshl_b32 s10, s4, {self.a.fs+5}\ns_add_u32 s10, s10, {WS_FLB}\nbuffer_load_dword v132, v129, {sr(WS)}, s10 offen sc1"
    def cntb(self): return f"buffer_load_dword v128, off, {sr(DBG)}, 0 offset:128 sc1"
    def fbase(self): return WS_FLG
    def chk_b(self):
        a_, b_ = self.newlab("Lb"), self.newlab("Lbd")
        self.A(f"""
        s_mov_b32 s14, {self.a.limit}
        {a_}:
        v_readfirstlane_b32 s8, v128
        s_nop 0
        s_cmp_ge_u32 s8, {NCLR}
        s_cbranch_scc1 {b_}
        {self.cntb()}
        s_waitcnt vmcnt(0)
        s_sub_u32 s14, s14, 1
        s_cbranch_scc0 {a_}
        s_or_b32 s15, s15, 8
        {b_}:
        """)
    def mlp_small(self):
        o = []
        for i in range(5): o.append(f"s_mov_b32 s9, {WS_MOD + 80*512 + i*2048}\nbuffer_load_dword v{133+i}, v7, {sr(WS)}, s9 offen sc1")
        for i in range(5): o.append(f"s_mov_b32 s9, {WS_MOD + 60*512 + i*2048}\nbuffer_load_dword v{138+i}, v7, {sr(WS)}, s9 offen sc1")
        return o
    def red_small(self):
        return [f"buffer_load_dword v143, v148, {sr(WS)}, s42 offen sc1", f"buffer_load_dword v144, v149, {sr(WS)}, s43 offen sc1"]
    def small_loads(self):
        A = self.A
        A(f"""
        v_and_b32 v146, 7, v1
        v_and_b32 v147, 1, v2
        v_lshlrev_b32 v147, 2, v147
        v_lshl_add_u32 v148, v146, 3, v147
        v_lshl_add_u32 v149, v146, 6, v147
        v_and_b32 v129, 31, v1
        v_lshlrev_b32 v129, {self.a.fs}, v129
        """)
        A(self.flg()); A(self.cntb())

    def oloads(self): return [f"buffer_load_dwordx4 {q4(200+4*k)}, v42, {sr(WS)}, s89 offen offset:{k*64} sc1" for k in range(2)]
    def tail_prep(self):
        A = self.A
        A(f"""
        s_lshl_b32 s8, s3, 9
        v_lshlrev_b32 v40, 5, v3
        v_lshl_add_u32 v40, v2, 4, v40
        v_add_u32 v40, s8, v40
        v_lshlrev_b32 v41, 3, v1
        s_lshl_b32 s88, s87, 8
        s_add_u32 s88, s88, {hex(WS_O)}
        v_lshlrev_b32 v42, 8, v146
        v_lshl_add_u32 v42, v2, 4, v42
        v_lshrrev_b32 v9, 3, v1
        v_lshlrev_b32 v45, 10, v9
        v_lshl_add_u32 v45, v146, 4, v45
        s_cmp_lt_i32 s98, 0
        s_cbranch_scc1 L_tp_done
        s_lshl_b32 s8, s3, 10
        s_add_u32 s8, s8, {L_TB}
        v_lshrrev_b32 v8, 3, v3
        v_lshlrev_b32 v48, 7, v146
        v_lshl_add_u32 v48, v8, 6, v48
        v_lshl_add_u32 v48, v2, 4, v48
        v_add_u32 v48, s8, v48
        v_add_u32 v49, {L_TB}, v5
        s_lshl_b32 s89, s4, 13
        s_lshr_b32 s8, s3, 1
        s_lshl_b32 s8, s8, 11
        s_add_u32 s89, s89, s8
        s_and_b32 s8, s3, 1
        s_lshl_b32 s8, s8, 7
        s_add_u32 s89, s89, s8
        s_add_u32 s89, s89, {hex(WS_O)}
        s_lshl_b32 s94, s96, 10
        s_add_u32 s94, s94, {hex(WS_AP)}
        s_lshl_b32 s92, s98, 13
        s_lshl_b32 s8, s3, 7
        s_add_u32 s92, s92, s8
        s_add_u32 s92, s92, {hex(WS_AP)}
        s_lshl_b32 s43, s98, 9
        s_lshl_b32 s9, s3, 6
        s_add_u32 s42, s43, s9
        s_add_u32 s91, s42, s90
        s_add_u32 s42, s42, {WS_MOD + 40*512}
        s_lshl_b32 s9, s4, 3
        s_add_u32 s43, s43, s9
        s_add_u32 s99, s43, s90
        s_add_u32 s43, s43, {WS_MOD + 100*512}
        s_mul_i32 s9, s3, 1280
        s_lshl_b32 s10, s98, 6
        s_add_u32 s9, s9, s10
        buffer_load_dword v145, v148, {sr(X)}, s9 offen
        v_lshrrev_b32 v8, 1, v2
        v_lshlrev_b32 v8, 4, v8
        v_sub_u32 v14, 16, v8
        v_lshrrev_b32 v8, 2, v3
        v_lshl_add_u32 v8, v2, 3, v8
        v_lshlrev_b32 v8, 6, v8
        v_lshl_add_u32 v8, v13, 3, v8
        s_lshl_b32 s8, s3, 12
        s_add_u32 s8, s8, {L_WO}
        v_add_u32 v8, s8, v8
        """)
        for l in self.red_small(): A(l)
        for k in range(2):
            for m in range(2):
                r = 152 + 8*k + 4*m
                A(f"ds_read_b64_tr_b16 {q2(r)}, v8 offset:{k*2048 + m*32}")
                A(f"ds_read_b64_tr_b16 {q2(r+2)}, v8 offset:{k*2048 + m*32 + 256}")
        self.poll([self.flg()], [132], 8, 8, first_loaded=True)
        self.chk_b()
        for l in self.oloads(): A(l)
        A("L_tp_done:")

    def sum8(self, addr, base, step):
        A = self.A
        if self.a.stamps: A("s_waitcnt lgkmcnt(0)")
        for j in range(8): A(f"ds_read_b128 {q4(64+4*j)}, {addr} offset:{base + j*step}")
        for j in range(0, 8, 2):
            A(f"s_waitcnt lgkmcnt({6-j})")
            for r in (0, 2): self.pk("add", 64+4*j+r, 64+4*j+r, q2(68+4*j+r))
            if j == 2:
                for r in (0, 2): self.pk("add", 64+r, 64+r, q2(72+r))
        for r in (0, 2): self.pk("add", 80+r, 80+r, q2(88+r))
        for r in (0, 2): self.pk("add", 64+r, 64+r, q2(80+r))
    def red_fin(self):
        self.A(f"""
        v_permlane32_swap_b32 v64, v65
        v_permlane32_swap_b32 v66, v67
        v_add_f32 v64, v64, v65
        v_add_f32 v66, v66, v67
        s_nop 1
        v_permlane16_swap_b32 v64, v66
        v_add_f32 v64, v64, v66
        s_nop 1
        v_add_f32_dpp v64, v64, v64 row_ror:8 {DPPF}
        v_cvt_pk_bf16_f32 v64, 0, v64
        v_mul_f32 v64, v64, v208
        v_cvt_pk_bf16_f32 v64, 0, v64
        v_add_f32 v64, v64, v209
        v_mov_b32 v65, v64
        s_nop 1
        v_permlane32_swap_b32 v64, v65
        v_cvt_pk_bf16_f32 v68, v64, v65
        v_cvt_pk_bf16_f32 v69, v64, v65
        s_nop 1
        v_permlane16_swap_b32 v68, v69
        """)

    def tpf(self):
        A = self.A; a = self.a
        if a.pf:
            A("s_cmp_eq_u32 s100, 1\ns_cbranch_scc0 L_h_npf\ns_cmp_eq_u32 s3, 0\ns_cbranch_scc0 L_h_npf")
            self.w1addr(8, 9, 10)
            A(f"s_mov_b32 m0, {L_W1}\ns_mov_b32 s8, 0")
            self.w1loop("L_h_pf", 8, 9, "s8", L_W1 + a.pf*2048, a.dp)
            A("L_h_npf:")

    def tail1(self):
        A = self.A; a = self.a
        A(f"""
        s_mov_b32 exec_hi, 0
        s_nop 6
        ds_write_b128 v40, v[20:23] offset:{L_R1}
        s_mov_b64 exec, -1
        """)
        self.samexcd(132)
        A("s_cselect_b32 s95, 1, 0")
        if a.oc == 1:
            A("s_cmp_eq_u32 s3, 0\ns_cbranch_scc0 L_h_no2")
            self.clears2()
            A("s_waitcnt vmcnt(0)\nL_h_no2:")
        if not a.pfe: self.tpf()
        A("s_waitcnt lgkmcnt(0)\ns_barrier")
        self.stamp(6)
        A("s_cmp_eq_u32 s3, 0\ns_cbranch_scc0 L_opub\ns_mov_b32 exec_hi, 0")
        self.sum8("v5", L_R1, 512)
        A("v_cvt_pk_bf16_f32 v46, v64, v65\nv_cvt_pk_bf16_f32 v47, v66, v67\nv_min_u32 v46, -2, v46\nv_min_u32 v47, -2, v47\ns_cmp_eq_u32 s95, 1")
        self.store2([f"buffer_store_dwordx2 v[46:47], v41, {sr(WS)}, s88 offen"], 132)
        A("s_mov_b64 exec, -1\nL_opub:")
        self.stamp(5)
        if a.notail: A("s_branch L_fin")
        A("s_cmp_eq_u32 s100, 1\ns_cbranch_scc1 L_mlp\ns_cmp_eq_u32 s100, 2\ns_cbranch_scc0 L_fin")

    def reducer(self):
        A = self.A; a = self.a
        self.poll(self.red_small(), [143, 144], 8, 8, first_loaded=True)
        A("""
        v_lshlrev_b32 v208, v14, v143
        v_and_b32 v208, 0xffff0000, v208
        v_lshlrev_b32 v209, v14, v145
        v_and_b32 v209, 0xffff0000, v209
        """)
        self.poll(self.oloads(), range(200, 208), 8, 512, first_loaded=True, sleep=a.so)
        for k in range(2):
            for m in range(2):
                A(f"{MF} {q4(96+4*m)}, {q4(152+8*k+4*m)}, {q4(200+4*k)}, {'0' if k == 0 else q4(96+4*m)}")
        A("v_cmp_lt_u32 vcc, 7, v3\ns_nop 6")
        for r in range(4): A(f"v_cndmask_b32 v{96+r}, v{96+r}, v{100+r}, vcc")
        A("ds_write_b128 v48, v[96:99]\ns_waitcnt lgkmcnt(0)\ns_barrier\ns_cmp_eq_u32 s3, 0\ns_cbranch_scc0 L_apdone")
        self.sum8("v49", 0, 1024)
        for r in range(4): A(f"v_min_u32 v{96+r}, -2, v{64+r}")
        A(f"buffer_store_dwordx4 v[96:99], v5, {sr(WS)}, s94 offen sc1\nL_apdone:")
        self.stamp(7)
        self.sleep(a.wap)
        self.poll([f"buffer_load_dwordx4 v[64:67], v45, {sr(WS)}, s92 offen sc1"], range(64, 68), 8, 16, sleep=a.sr)
        self.red_fin()
        A("v_min_u32 v68, -2, v68\nv_min_u32 v69, -2, v69\ns_mov_b64 exec, 0xff\ns_cmp_eq_u32 s95, 1")
        self.store2([f"buffer_store_dwordx2 v[68:69], v41, {sr(WS)}, s91 offen"], 132)
        A("s_mov_b64 exec, -1")
        self.stamp(8)
        A(f"""
        s_cmp_eq_u32 s3, 7
        s_cbranch_scc0 L_fin
        v_lshlrev_b32 v208, v14, v144
        v_and_b32 v208, 0xffff0000, v208
        v_mul_u32_u24 v10, 20480, v9
        v_lshl_add_u32 v10, v146, 4, v10
        v_mul_u32_u24 v12, 1280, v1
        s_lshl_b32 s8, s96, 7
        s_add_u32 s8, s8, {hex(WS_OP)}
        s_add_u32 s9, s8, {8*20480}
        s_add_u32 s10, s8, {16*20480}
        s_add_u32 s11, s8, {24*20480}
        s_lshl_b32 s88, s96, 3
        """)
        self.poll([f"buffer_load_dword v145, v149, {sr(WS)}, s99 offen sc1"], [145], 13, 32, sleep=2)
        A("v_lshlrev_b32 v209, v14, v145\nv_and_b32 v209, 0xffff0000, v209")
        self.sleep(a.wop)
        loads = [f"buffer_load_dwordx4 {q4(64+4*i)}, v10, {sr(WS)}, s{8+i} offen sc1" for i in range(4)]
        self.poll(loads, range(64, 80), 13, 16, sleep=a.sr)
        for a_, b_ in ((64, 68), (72, 76), (64, 72)):
            for r in (0, 2): self.pk("add", a_+r, a_+r, q2(b_+r))
        A("s_nop 0")
        self.red_fin()
        A(f"""
        s_mov_b64 exec, 0xff
        buffer_store_dwordx2 v[68:69], v12, {sr(OUT)}, s88 offen {a.of}
        s_mov_b64 exec, -1
        """)
        self.stamp(9)
        A("s_branch L_fin")

    def mlp(self):
        A = self.A; a = self.a
        W1F, W2F, AC, GR = 64, 104, 136, 152
        np_ = (40 - a.pf)//8; assert (40 - a.pf) % 8 == 0 and a.pf <= 32
        A("L_mlp:")
        self.w1addr(15, 14, 12)
        A(f"""
        s_mul_i32 s86, s3, {np_*16*3456}
        s_add_u32 s86, s86, {a.pf*16*3456}
        s_mul_i32 s87, s3, {np_*2048}
        s_add_u32 m0, s87, {L_W1 + a.pf*2048}
        s_add_u32 s87, s87, {L_W1 + a.pf*2048 + np_*2048}
        s_barrier
        """)
        if a.oc == 2:
            A("s_cmp_eq_u32 s3, 0\ns_cbranch_scc0 L_h_no2")
            self.clears2()
            A("L_h_no2:")
        self.w1loop("L_t1", 15, 14, "s86", "s87")
        if not a.w2e:
            self.w2addr(15, 14, 12)
            A(f"""
            s_lshl_b32 s87, s3, 11
            s_add_u32 m0, s87, {L_W2}
            s_mul_i32 s86, s3, {8*1280}
            buffer_load_dwordx4 v15, {sr(TB)}, s86 offen nt lds
            buffer_load_dwordx4 v14, {sr(TB)}, s86 offen offset:1024 nt lds
            s_cmp_eq_u32 s93, 2
            s_cbranch_scc1 L_mlp_nt
            s_add_u32 m0, m0, 16384
            s_add_u32 s86, s86, 256
            buffer_load_dwordx4 v15, {sr(TB)}, s86 offen nt lds
            buffer_load_dwordx4 v14, {sr(TB)}, s86 offen offset:1024 nt lds
            L_mlp_nt:
            """)
        A(f"v_add_u32 v8, {L_CS}, v7")
        for i in range(5): A(f"ds_read_b32 v{133+i}, v8 offset:{10240 + i*2048}")
        for i in range(5): A(f"ds_read_b32 v{138+i}, v8 offset:{i*2048}")
        A("s_waitcnt lgkmcnt(0)")
        self.poll([self.flg()] + self.mlp_small(), list(range(132, 143)), 8, 64, first_loaded=True)
        for i in range(5):
            self.unpack(208+2*i, 209+2*i, 133+i)
            A(f"v_add_f32 v{208+2*i}, 1.0, v{208+2*i}\nv_add_f32 v{209+2*i}, 1.0, v{209+2*i}")
            A(f"v_cvt_pk_bf16_f32 v8, v{208+2*i}, v{209+2*i}")
            self.unpack(208+2*i, 209+2*i, 8)
            self.unpack(218+2*i, 219+2*i, 138+i)
        A(f"""
        v_lshrrev_b32 v8, 2, v3
        v_lshlrev_b32 v10, 10, v2
        v_lshl_add_u32 v10, v8, 7, v10
        v_lshl_add_u32 v10, v13, 3, v10
        s_lshr_b32 s8, s3, 1
        s_mul_i32 s9, s8, 20480
        s_add_u32 s9, s9, {L_W1}
        v_add_u32 v10, s9, v10
        v_and_b32 v9, 1, v2
        v_lshrrev_b32 v12, 3, v3
        v_lshl_add_u32 v12, v9, 1, v12
        s_and_b32 s10, s3, 1
        s_lshl_b32 s10, s10, 1
        v_xor_b32 v12, s10, v12
        v_xor_b32 v184, 1, v12
        v_lshl_add_u32 v184, v184, 5, v10
        v_lshl_add_u32 v10, v12, 5, v10
        v_lshl_add_u32 v11, v2, 2, v8
        v_lshlrev_b32 v11, 8, v11
        v_lshl_add_u32 v11, v13, 3, v11
        v_add_u32 v11, {L_W2}, v11
        v_lshl_add_u32 v12, v9, 2, v8
        s_and_b32 s9, s3, 3
        s_lshl_b32 s9, s9, 1
        v_xor_b32 v12, s9, v12
        v_xor_b32 v185, 1, v12
        v_lshl_add_u32 v185, v185, 5, v11
        v_lshl_add_u32 v11, v12, 5, v11
        v_lshlrev_b32 v186, 6, v146
        v_lshl_add_u32 v186, v2, 4, v186
        s_mul_i32 s9, s8, 2560
        v_add_u32 v186, s9, v186
        s_lshl_b32 s9, s3, 11
        s_add_u32 s9, s9, {L_G1}
        v_add_u32 v187, s9, v5
        v_lshrrev_b32 v9, 3, v3
        v_lshlrev_b32 v188, 10, v9
        v_lshl_add_u32 v188, v2, 8, v188
        v_lshl_add_u32 v188, v146, 4, v188
        v_add_u32 v188, {L_G1}, v188
        v_lshlrev_b32 v190, 4, v146
        v_lshl_add_u32 v190, v2, 7, v190
        s_add_u32 s43, s90, 4096
        s_add_u32 s89, s90, 8192
        s_lshl_b32 s9, s3, 10
        s_add_u32 s42, s101, s9
        s_mov_b32 s86, 0x00ff00ff
        s_mov_b32 s87, 0x00ff00ff
        s_add_u32 s88, s42, 4096
        """)
        if a.dry: A("s_mov_b32 s99, 0\ns_branch L_mc\nL_mb:\ns_mov_b32 s99, 1")
        A("s_waitcnt vmcnt(0)")
        A("""
        s_barrier
        """)
        self.stamp(1)
        loads = [f"buffer_load_dword v{24+i}, v7, {sr(WS)}, {['s90','s43','s89'][i//2]} offen offset:{(i%2)*2048} sc1" for i in range(5)]
        for l in loads: A(l)
        for k in range(5):
            for t in range(2):
                r = W1F + 8*k + 4*t
                A(f"ds_read_b64_tr_b16 {q2(r)}, {'v184' if t else 'v10'} offset:{k*4096}")
                A(f"ds_read_b64_tr_b16 {q2(r+2)}, {'v184' if t else 'v10'} offset:{k*4096 + 512}")
        A("s_cmp_ge_u32 s3, 4\ns_cbranch_scc1 L_now2")
        for m in range(4):
            for j in range(2):
                r = W2F + 8*m + 4*j
                A(f"ds_read_b64_tr_b16 {q2(r)}, {'v185' if m % 2 else 'v11'} offset:{(m//2)*16384 + j*8192}")
                A(f"ds_read_b64_tr_b16 {q2(r+2)}, {'v185' if m % 2 else 'v11'} offset:{(m//2)*16384 + j*8192 + 4096}")
        A("L_now2:\ns_waitcnt vmcnt(0)")
        self.poll(loads, range(24, 29), 8, 128, first_loaded=True, sleep=a.sx)
        self.stamp(8)
        A("L_mc:")
        if a.fast:
            self.ln_body(True)
            for i in range(5): A(f"v_pk_fma_f32 {q2(32+2*i)}, {q2(32+2*i)}, {q2(208+2*i)}, {q2(218+2*i)}")
        else:
            self.ln_body(False, pack=False)
            self.rnd(range(32, 42))
            for i in range(5): self.pk("mul", 32+2*i, 32+2*i, q2(208+2*i))
            self.rnd(range(32, 42))
            for i in range(5): self.pk("add", 32+2*i, 32+2*i, q2(218+2*i))
        for i in range(5):
            A(f"v_cvt_pk_bf16_f32 v{24+i}, v{32+2*i}, v{33+2*i}")
            A(f"ds_write_b32 v7, v{24+i} offset:{L_ACT + i*2048}")
        A("s_waitcnt lgkmcnt(0)\ns_barrier")
        for k in range(5): A(f"ds_read_b128 {q4(32+4*k)}, v186 offset:{L_ACT + k*512}")
        for k in range(5):
            A(f"s_waitcnt lgkmcnt({4-k})")
            for t in range(2):
                A(f"{MF} {q4(AC+4*t)}, {q4(W1F+8*k+4*t)}, {q4(32+4*k)}, {'0' if k == 0 else q4(AC+4*t)}")
        A(f"s_nop 6\nds_write_b128 v187, {q4(AC)}\nds_write_b128 v187, {q4(AC+4)} offset:1024\ns_waitcnt lgkmcnt(0)\ns_barrier")
        A("s_cmp_ge_u32 s3, 4\ns_cbranch_scc1 " + ("L_m4" if a.dry else "L_fin"))
        for j in range(2):
            for k in range(4): A(f"ds_read_b128 {q4(GR+16*j+4*k)}, v188 offset:{k*4096 + j*2048}")
        for j in range(2):
            b0 = GR + 16*j
            A(f"s_waitcnt lgkmcnt({4-4*j})")
            for a_, b_ in ((0, 4), (8, 12), (0, 8)):
                for r in (0, 2): self.pk("add", b0+a_+r, b0+a_+r, q2(b0+b_+r))
            for r in range(4): A(f"v_cvt_pk_bf16_f32 v{32+4*j+r}, 0, v{b0+r}")
        A(f"s_mov_b32 s8, {hex(NLOG2E)}")
        for r in range(0, 8, 2): self.pk("mul", 40+r, 32+r, "s[8:9]", "op_sel_hi:[1,0]")
        for r in range(8): A(f"v_exp_f32 v{40+r}, v{40+r}")
        for r in range(0, 8, 2): self.pk("add", 40+r, 40+r, "1.0", "op_sel_hi:[1,0]")
        for r in range(8): A(f"v_rcp_f32 v{40+r}, v{40+r}")
        for r in range(0, 8, 2): self.pk("mul", 32+r, 32+r, q2(40+r))
        A(f"""
        v_cvt_pk_bf16_f32 v24, v32, v33
        v_cvt_pk_bf16_f32 v25, v34, v35
        v_cvt_pk_bf16_f32 v28, v36, v37
        v_cvt_pk_bf16_f32 v29, v38, v39
        v_mov_b32_dpp v26, v24 row_ror:8 {DPPF}
        v_mov_b32_dpp v27, v25 row_ror:8 {DPPF}
        v_mov_b32_dpp v30, v28 row_ror:8 {DPPF}
        v_mov_b32_dpp v31, v29 row_ror:8 {DPPF}
        """)
        for hf in range(2):
            for j in range(2):
                for m in (2*hf, 2*hf+1):
                    A(f"{MF} {q4(AC+4*m)}, {q4(W2F+8*m+4*j)}, {q4(24+4*j)}, {'0' if j == 0 else q4(AC+4*m)}")
        if a.dry: A("s_cmp_eq_u32 s99, 0\ns_cbranch_scc1 L_mb")
        A("s_mov_b64 exec, s[86:87]\ns_cmp_eq_u32 s93, 2\ns_nop 0")
        for m in range(4):
            if m == 2: A("s_cbranch_scc1 L_opd")
            for r in range(4): A(f"v_min_u32 v{AC+4*m+r}, -2, v{AC+4*m+r}")
            A(f"buffer_store_dwordx4 {q4(AC+4*m)}, v190, {sr(WS)}, {'s42' if m < 2 else 's88'} offen offset:{(m%2)*512} sc1")
        A("L_opd:")
        A("s_mov_b64 exec, -1")
        self.stamp(9)
        if a.dry: A("s_branch L_fin\nL_m4:\ns_cmp_eq_u32 s99, 0\ns_cbranch_scc1 L_mb")

    def finish(self):
        A = self.A
        A("L_fin:\ns_cmp_eq_u32 s15, 0\ns_cbranch_scc1 L_noerr")
        A(f"v_mov_b32 v8, s15\ns_mov_b64 exec, 1\nbuffer_atomic_or v8, off, {sr(DBG)}, 0 offset:4 sc1\ns_mov_b64 exec, -1\nL_noerr:")
        if self.a.fix: A(f"""
        s_cmp_eq_u32 s2, 0
        s_cbranch_scc0 L_end
        s_add_u32 s8, s16, {self.a.fix*100}
        L_fixw:
        s_sleep 4
        s_memrealtime s[10:11]
        s_waitcnt lgkmcnt(0)
        s_sub_u32 s10, s8, s10
        s_cmp_gt_i32 s10, 0
        s_cbranch_scc1 L_fixw
        """)
        if self.a.stamps:
            self.stamp(10)
            A("s_waitcnt lgkmcnt(0)")
            self.srdo(STS, f"s{WS}", f"s{WS+1}", hex(STAMP_OFF), "0x100000")
            A("s_mov_b32 s38, s97\ns_lshl_b32 s39, s100, 8\ns_or_b32 s39, s39, s85")
            A(f"s_mul_i32 s8, s2, {12*8*2}")
            A("s_cmp_eq_u32 s3, 0\ns_cbranch_scc1 L_st\ns_cmp_eq_u32 s3, 7\ns_cbranch_scc0 L_end\ns_add_u32 s8, s8, 96\nL_st:\ns_mov_b64 exec, 1")
            for k in range(12):
                A(f"v_mov_b32 v8, s{16+2*k}\nv_mov_b32 v9, s{17+2*k}\nbuffer_store_dwordx2 v[8:9], off, {sr(STS)}, s8 offset:{8*k}\ns_nop 1")
        A("L_end:\ns_endpgm")

    def subs(self):
        A = self.A
        pass
    def rnd(self, regs):
        for r in regs: self.A(f"v_cvt_pk_bf16_f32 v{r}, 0, v{r}")
    def ln_body(self, fast, pack=True):
        A = self.A
        for i in range(5):
            self.unpack(32+2*i, 33+2*i, 24+i)
            if i == 0: A("v_readfirstlane_b32 s8, v32")
        NEG = "op_sel_hi:[1,0] neg_lo:[0,1] neg_hi:[0,1]"
        for i in range(5): self.pk("add", 42+2*i, 32+2*i, "s[8:9]", NEG)
        self.pk("add", 52, 42, "v[44:45]"); self.pk("mul", 54, 42, "v[42:43]")
        for i in range(1, 5):
            if i > 1: self.pk("add", 52, 52, q2(42+2*i))
            A(f"v_pk_fma_f32 v[54:55], {q2(42+2*i)}, {q2(42+2*i)}, v[54:55]")
        A("v_add_f32 v52, v52, v53\nv_add_f32 v53, v54, v55\ns_nop 0")
        for c in (f"row_ror:1 {DPPF}", f"row_ror:2 {DPPF}", f"row_ror:4 {DPPF}", f"row_ror:8 {DPPF}",
                  "row_bcast:15 row_mask:0xa bank_mask:0xf", "row_bcast:31 row_mask:0xc bank_mask:0xf"):
            A(f"v_add_f32_dpp v52, v52, v52 {c}\nv_add_f32_dpp v53, v53, v53 {c}\ns_nop 0")
        A(f"""
        v_readlane_b32 s9, v52, 63
        v_readlane_b32 s10, v53, 63
        v_mov_b32 v54, {hex(INV640)}
        s_nop 0
        v_mul_f32 v52, s9, v54
        v_mul_f32 v53, s10, v54
        v_fma_f32 v53, -v52, v52, v53
        v_add_f32 v52, s8, v52
        v_max_f32 v53, 0, v53
        v_cvt_pk_bf16_f32 v52, 0, v52
        v_cvt_pk_bf16_f32 v54, 0, v53
        v_add_f32 v54, {hex(EPS)}, v54
        v_cvt_pk_bf16_f32 v54, 0, v54
        v_sqrt_f32 v54, v54
        """)
        for i in range(5): self.pk("add", 32+2*i, 32+2*i, "v[52:53]", NEG)
        A("v_cvt_pk_bf16_f32 v54, 0, v54\nv_rcp_f32 v54, v54")
        if fast: A("s_nop 0")
        else: self.rnd(range(32, 42))
        for i in range(5): self.pk("mul", 32+2*i, 32+2*i, "v[54:55]", "op_sel_hi:[1,0]")
        if not fast and pack:
            for i in range(5): A(f"v_cvt_pk_bf16_f32 v{24+i}, v{32+2*i}, v{33+2*i}")

if __name__ == "__main__":
    ap = argparse.ArgumentParser()
    ap.add_argument("-o", default="k.s"); ap.add_argument("--stamps", action="store_true")
    ap.add_argument("--fast", action="store_true"); ap.add_argument("--nolocal", action="store_true"); ap.add_argument("--notail", action="store_true")
    for n, v in dict(dp=0, dry=0, i2=26, fix=0, w2e=0, pfe=0, cpf=3, oc=0, cl=0, sc=2, nfree=3, fs=2, w7=1, hpos=0, rows=0, remap=1, dw=10, dm=4, nref=100, dl=4, wap=16, mode=0, lead=0, de=6, ne=0, dh=12, pf=0, rx=0, ry=0, par=0, diag=0, limit=40000, pad=20480, depth=3, d0=3, nm=3, n0=16, chk=3, d1=4, d2=8, ism=21, wa=0, w2=0, w3=0,
                     s1=8, s2=2, sr=0, sx=0, so=0, wx=20, wop=0).items():
        ap.add_argument("--" + n, type=int, default=v)
    ap.add_argument("--wof", default="")
    ap.add_argument("--w1f", default=""); ap.add_argument("--w2f", default="nt")
    ap.add_argument("--of", default=""); ap.add_argument("--x", default=""); ap.add_argument("--cf", default="sc1")
    ap.add_argument("--hm", default="4,1")
    a = ap.parse_args(); a.hm = [int(v) for v in a.hm.split(",")]
    txt = G(a).gen()
    if 's' in a.x: txt = "\n".join(l for l in txt.split("\n") if not ("buffer_store" in l and "s[52:55]" in l))
    drop = lambda pred: "\n".join(l for l in txt.split("\n") if not pred(l))
    if 'e' in a.x: txt = drop(lambda l: "buffer_atomic_or" in l)
    if 'S' in a.x: txt = drop(lambda l: "buffer_store" in l and "sc1" in l)
    if 'A' in a.x: txt = drop(lambda l: "s[80:83]" in l)
    if 'O' in a.x: txt = drop(lambda l: "buffer_store_dwordx2 v[46:47]" in l)
    if 'L' in a.x: txt = drop(lambda l: "buffer_load_dwordx4 v[128:131]" in l)
    if 'M' in a.x: txt = drop(lambda l: "buffer_load_dword v132" in l)
    if 'f' in a.x: txt = drop(lambda l: "buffer_store_dword v12, off" in l)
    if 'F' in a.x: txt = drop(lambda l: "buffer_store_dword v1, off" in l)
    if 'g' in a.x: txt = drop(lambda l: "buffer_store_dwordx4 v[192:195]" in l)
    if 'i' in a.x: txt = drop(lambda l: "buffer_store_dwordx4 v[8:11]" in l)
    if 'p' in a.x: txt = drop(lambda l: "buffer_store_dwordx4 v[40:43]" in l)
    if 'q' in a.x: txt = drop(lambda l: "buffer_store_dwordx4 v[32:35]" in l or "buffer_store_dwordx4 v[36:39]" in l)
    if 'l' in a.x: txt = "\n".join(l for l in txt.split("\n") if not ("buffer_load" in l and "s[52:55]" in l))
    open(a.o, "w").write(txt)
```

```python
import argparse
NAME = "adaLN_cond__sliding_block_cached__dense_activation_silu__decode"

WS_MOD  = 0x00000
WS_FLG  = 61440
WS_FLB  = 62464
WS_QF   = 63488
NCLR    = 8
WS_X1   = 0x40000
WS_O    = 0x30000
WS_AP   = 0x60000
WS_QP   = 0x100000
WS_OP   = 0x180000
WS_END  = WS_OP + 27*20480
STAMP_OFF = 0x20000000
L_Q, L_SM, L_FL = 0, 256, 384
L_ACT, L_XN, L_TA = 1024, 11264, 21504
L_KH  = 62464
L_W1  = L_TA
L_W2  = L_W1 + 81920
L_WO  = L_W2
L_G1  = L_W2 + 32768
L_TB  = L_G1
L_BN  = L_G1 + 16384
L_CS  = L_G1
L_END = L_BN + 4096
L_R1  = L_XN
assert L_KH + 35*1024 <= L_WO and L_END <= 163840
LOG2E, NLOG2E, SCALE, INV640, EPS = 0x3fb8aa3b, 0xbfb8aa3b, 0x3db504f3, 0x3acccccd, 0x3727c5ac
K, V, WS, WO, TA, TB, X, C, OUT, DBG, T0 = 44, 48, 52, 56, 60, 64, 68, 72, 76, 80, 92
KH = C
STS = 40
sr = lambda r: f"s[{r}:{r+3}]"
DPPF = "row_mask:0xf bank_mask:0xf"
MF = "v_mfma_f32_16x16x32_bf16"
q4 = lambda r: f"v[{r}:{r+3}]"
q2 = lambda r: f"v[{r}:{r+1}]"

class G:
    def __init__(self, a):
        self.L = []; self.lab = 0; self.a = a
    def A(self, s):
        for x in s.split("\n"):
            x = x.strip()
            if x: self.L.append(("" if x.endswith(":") else "    ") + x)
    def newlab(self, p="L"):
        self.lab += 1; return f"{p}_{self.lab}"
    def stamp(self, k, diag=0):
        if self.a.stamps and diag == self.a.diag: self.A(f"s_memrealtime s[{16+2*k}:{17+2*k}]")
    def srd(self, d, lo, hi, size):
        self.A(f"s_mov_b32 s{d}, {lo}\ns_mov_b32 s{d+1}, {hi}\ns_mov_b32 s{d+2}, {size}\ns_mov_b32 s{d+3}, 0x20000")
    def srdo(self, d, lo, hi, off, size):
        self.A(f"s_add_u32 s{d}, {lo}, {off}\ns_addc_u32 s{d+1}, {hi}, 0\ns_mov_b32 s{d+2}, {size}\ns_mov_b32 s{d+3}, 0x20000")
    def unpack(self, lo, hi, src):
        self.A(f"v_lshlrev_b32 v{lo}, 16, v{src}\nv_and_b32 v{hi}, 0xffff0000, v{src}")
    def pk(self, op, d, a, b, mods=""):
        self.A(f"v_pk_{op}_f32 {q2(d)}, {q2(a)}, {b} {mods}")
    def maxtree(self, dst, regs):
        regs = list(regs); A = self.A
        if len(regs) == 2:
            A(f"v_max_u32 v{dst}, v{regs[0]}, v{regs[1]}"); return
        A(f"v_max3_u32 v{dst}, v{regs[0]}, v{regs[1]}, v{regs[2]}"); regs = regs[3:]
        while len(regs) >= 2:
            A(f"v_max3_u32 v{dst}, v{dst}, v{regs[0]}, v{regs[1]}"); regs = regs[2:]
        if regs: A(f"v_max_u32 v{dst}, v{dst}, v{regs[0]}")
    def poll(self, loads, regs, tmp, code, first_loaded=False, sleep=1):
        A = self.A; regs = list(regs)
        lp = self.newlab("Lpoll"); ck = self.newlab("Lchk"); dn = self.newlab("Lpd")
        A(f"s_mov_b32 s14, {0 if 'e' in self.a.x else self.a.limit}")
        if first_loaded: A(f"s_branch {ck}")
        A(f"{lp}:")
        for l in loads: A(l)
        A("s_waitcnt vmcnt(0)")
        A(f"{ck}:")
        if len(regs) == 1: tmp = regs[0]
        else: self.maxtree(tmp, regs)
        A(f"v_cmp_eq_u32 vcc, -1, v{tmp}\ns_cbranch_vccz {dn}\ns_mov_b64 exec, vcc")
        if sleep: A(f"s_sleep {sleep}")
        A(f"s_sub_u32 s14, s14, 1\ns_cbranch_scc0 {lp}\ns_or_b32 s15, s15, {code}\n{dn}:\ns_mov_b64 exec, -1")
    def sleep(self, n):
        while n > 0:
            self.A(f"s_sleep {min(n, 120)}"); n -= 120
    def spin(self, off, target, code, vt=12, va=15):
        a = self.newlab("Lsp"); b = self.newlab("Lspd")
        self.A(f"""
        s_mov_b32 s14, {self.a.limit*8}
        {a}:
        ds_read_b32 v{vt}, v{va} offset:{off}
        s_waitcnt lgkmcnt(0)
        v_readfirstlane_b32 s8, v{vt}
        s_nop 0
        s_cmp_ge_u32 s8, {target}
        s_cbranch_scc1 {b}
        s_sleep 1
        s_sub_u32 s14, s14, 1
        s_cbranch_scc0 {a}
        s_or_b32 s15, s15, {code}
        {b}:
        """)
    def bump(self, off, vt=12, va=15):
        self.A(f"v_mov_b32 v{vt}, 1\ns_mov_b64 exec, 1\nds_add_u32 v{va}, v{vt} offset:{off}\ns_mov_b64 exec, -1")
    def silu(self, regs, tmps):
        A = self.A
        for r, t in zip(regs, tmps): A(f"v_mul_f32 v{t}, {hex(NLOG2E)}, v{r}")
        for t in tmps: A(f"v_exp_f32 v{t}, v{t}")
        A("s_nop 0")
        for t in tmps: A(f"v_add_f32 v{t}, 1.0, v{t}")
        for t in tmps: A(f"v_rcp_f32 v{t}, v{t}")
        A("s_nop 0")
        for r, t in zip(regs, tmps): A(f"v_mul_f32 v{r}, v{r}, v{t}")
    def store2(self, stores, cond_reg):
        a = self.newlab("Lwt"); b = self.newlab("Lsd")
        self.A(f"s_cbranch_scc0 {a}")
        for s in stores: self.A(s)
        self.A(f"s_branch {b}\n{a}:")
        for s in stores: self.A(s + " sc1")
        self.A(f"{b}:")
    def samexcd(self, reg):
        if self.a.nolocal: self.A("s_cmp_eq_u32 s3, 99")
        elif 'z' in self.a.x: self.A("s_cmp_eq_u32 s3, s3")
        else: self.A(f"v_cmp_ne_u32 vcc, s97, v{reg}\ns_cmp_eq_u64 vcc, 0")

    def prologue(self, kload):
        A = self.A; a = self.a
        ek = -(-(WS_FLG + (256 << a.fs)) // 8192)
        self.L += [f"; @launch grid=(256,1,1) block=(512,1,1) lds={L_END}",
                   '.amdgcn_target "amdgcn-amd-amdhsa--gfx950"', ".text", f".globl {NAME}_kernel", ".p2align 8",
                   f".type {NAME}_kernel,@function", f"{NAME}_kernel:"]
        A("""
        s_cmp_ge_u32 s2, 256
        s_cbranch_scc1 L_end
        s_load_dwordx16 s[16:31], s[0:1], 0
        s_load_dwordx8 s[32:39], s[0:1], 64
        s_load_dwordx2 s[40:41], s[0:1], 96
        """)
        if a.stamps or a.fix: A("s_memrealtime s[42:43]")
        A(f"""
        v_lshrrev_b32 v1, 6, v0
        s_and_b32 s4, s2, 7
        v_readfirstlane_b32 s3, v1
        """)
        A(f"""
        v_and_b32 v1, 63, v0
        v_lshrrev_b32 v2, 4, v1
        v_and_b32 v3, 15, v1
        v_lshlrev_b32 v4, 6, v3
        v_lshl_add_u32 v4, v2, 4, v4
        v_lshlrev_b32 v5, 4, v1
        v_lshlrev_b32 v6, 2, v1
        v_and_b32 v13, 3, v1
        s_lshr_b32 s5, s2, 3
        s_lshl_b32 s6, s4, 2
        s_and_b32 s8, s5, 3
        s_add_u32 s6, s6, s8
        s_lshr_b32 s7, s5, 2
        """)
        hm = a.hm
        A(f"""
        s_mul_i32 s84, s8, {hm[1]}
        s_mul_i32 s9, s4, {hm[0]}
        s_add_u32 s84, s84, s9
        s_lshl_b32 s8, s7, 5
        s_add_u32 s84, s84, s8
        s_lshl_b32 s14, s84, 20
        """)
        if a.w7: A(f"""
        s_lshl_b32 s9, s3, 10
        s_sub_u32 s9, s9, 1024
        s_cmp_eq_u32 s3, 0
        s_cselect_b32 s9, {224*1024}, s9
        s_cselect_b32 s13, 1, 7
        """)
        else: A("s_lshl_b32 s9, s3, 10\ns_mov_b32 s13, 8")
        A(f"""
        s_sub_u32 s12, 0x40000, s9
        s_add_u32 s14, s14, s9
        s_add_u32 s14, s14, 0xC0000
        """)
        if a.n00:
            A("s_waitcnt lgkmcnt(0)")
            self.srdo(K, "s18", "s19", "s14", "s12")
            A("s_cmp_eq_u32 s3, 0\ns_cbranch_scc1 L_p_k0")
            for i in range(a.n00): kload(i)
            A("L_p_k0:")
        A(f"""
        s_mov_b32 s15, 0
        s_mul_i32 s97, s3, 1280
        s_and_b32 s8, s5, 15
        s_lshr_b32 s8, s8, 1
        s_lshl_b32 s9, s8, 3
        s_add_u32 s9, s9, s4
        s_lshl_b32 s91, s9, 1
        s_and_b32 s10, s5, 1
        s_add_u32 s91, s91, s10
        s_mul_i32 s11, s3, 5120
        s_add_u32 m0, s11, {L_TA}
        v_mov_b32 v15, {L_FL}
        v_mov_b32 v8, 0
        v_mov_b32 v9, 0
        v_mov_b32 v10, 0
        v_mov_b32 v11, 0
        ds_write_b128 v15, v[8:11]
        s_nop 1
        v_mov_b32 v8, -1
        v_mov_b32 v9, -1
        v_mov_b32 v10, -1
        v_mov_b32 v11, -1
        s_cmp_lt_u32 s5, 16
        s_cbranch_scc1 L_p_mod
        s_mov_b32 s85, 1
        v_lshrrev_b32 v12, 3, v1
        v_lshlrev_b32 v12, 13, v12
        v_and_b32 v14, 7, v1
        v_lshl_add_u32 v12, v14, 4, v12
        s_lshl_b32 s99, s4, 3
        s_add_u32 s99, s99, s8
        s_lshr_b32 s9, s8, 1
        s_mul_i32 s9, s9, {hm[1]*256}
        s_mul_i32 s11, s4, {hm[0]*256}
        s_add_u32 s9, s9, s11
        s_and_b32 s11, s8, 1
        s_lshl_b32 s11, s11, 7
        s_add_u32 s9, s9, s11
        s_mul_i32 s10, s10, {320*8192}
        s_add_u32 s9, s9, s10
        s_mov_b32 s11, {8*8192}
        s_waitcnt lgkmcnt(0)
        s_add_u32 s{T0}, s22, s9
        s_addc_u32 s{T0+1}, s23, 0
        s_sub_u32 s{T0+2}, {640*8192}, s9
        s_branch L_p_j
        L_p_mod:
        s_mov_b32 s85, 2
        v_lshrrev_b32 v12, 2, v1
        v_mul_u32_u24 v12, 7680, v12
        v_lshl_add_u32 v12, v13, 4, v12
        s_lshl_b32 s9, s91, 6
        s_mov_b32 s11, {16*7680}
        """)
        if 'm' in a.x: A(f"""
        v_lshrrev_b32 v12, 3, v1
        v_mul_u32_u24 v12, 7680, v12
        v_and_b32 v14, 7, v1
        v_lshl_add_u32 v12, v14, 4, v12
        s_lshr_b32 s9, s91, 1
        s_lshl_b32 s9, s9, 7
        s_mul_i32 s10, s10, {320*7680}
        s_add_u32 s9, s9, s10
        s_mov_b32 s11, {8*7680}
        """)
        A(f"""
        s_mov_b32 s99, 0
        s_waitcnt lgkmcnt(0)
        s_add_u32 s{T0}, s34, s9
        s_addc_u32 s{T0+1}, s35, 0
        s_sub_u32 s{T0+2}, {640*7680}, s9
        s_cmp_lt_u32 s91, 120
        s_cbranch_scc1 L_p_j
        s_mov_b32 s85, 8
        s_mov_b32 s{T0+2}, 0
        L_p_j:
        s_mov_b32 s{T0+3}, 0x20000
        """)
        if 'n' in a.x: A(f"s_mov_b32 s{T0+2}, 0")
        self.srd(WS, "s40", "s41", hex(WS_END)); self.srd(DBG, "s38", "s39", 256)
        self.srd(X, "s16", "s17", 10240); self.srd(C, "s32", "s33", 10240)
        A(f"""
        s_lshl_b32 s87, s6, 3
        s_add_u32 s87, s87, s7
        s_cmp_eq_u32 s3, 0
        s_cbranch_scc0 L_p_nh
        s_setprio 3
        s_cmp_eq_u32 s85, 8
        s_cbranch_scc0 L_p_nc
        """)
        if 'A' in a.delay:
            for _ in range(12): A("s_sleep 120")
        A(f"""
        s_sub_u32 s8, s91, 120
        s_mul_i32 s8, s8, {ek*1024}
        """)
        for i in range(ek):
            if i and i % 4 == 0: A("s_add_u32 s8, s8, 4096")
            A(f"buffer_store_dwordx4 v[8:11], v5, {sr(WS)}, s8 offen offset:{(i%4)*1024} sc1")
        A(f"""
        s_waitcnt vmcnt(0)
        v_mov_b32 v14, 1
        s_mov_b64 exec, 1
        buffer_atomic_add v14, off, {sr(DBG)}, 0 sc1
        s_mov_b64 exec, -1
        s_sub_u32 s8, s91, 120
        s_mul_i32 s8, s8, 20480
        s_add_u32 s8, s8, {hex(WS_AP)}
        s_add_u32 s9, s8, 20480
        L_p_c2:
        buffer_store_dwordx4 v[8:11], v5, {sr(WS)}, s8 offen sc1
        s_add_u32 s8, s8, 1024
        s_cmp_lt_u32 s8, s9
        s_cbranch_scc1 L_p_c2
        L_p_nc:
        L_p_nh:
        s_cmp_eq_u32 s85, 2
        s_cbranch_scc0 L_p_nxc
        """)
        A("s_sub_u32 s8, s91, 20\ns_cmp_lt_u32 s8, 20\ns_cbranch_scc0 L_p_nx")
        for i in range(5): A(f"buffer_load_dword v{24+i}, v6, {sr(X)}, s97 offen offset:{i*256}")
        A("L_p_nx:")
        for i in range(5): A(f"buffer_load_dword v{56+i}, v6, {sr(C)}, s97 offen offset:{i*256}")
        A("L_p_nxc:\ns_mul_i32 s8, s3, s11\ns_mul_i32 s8, s8, 5")
        for u in range(5):
            A(f"buffer_load_dwordx4 v12, {sr(T0)}, s8 offen nt lds")
            if u < 4: A("s_add_u32 m0, m0, 1024\ns_add_u32 s8, s8, s11")
        if not a.n00: self.srdo(K, "s18", "s19", "s14", "s12")
        self.stamp(10, 7)
        A("s_waitcnt lgkmcnt(0)\ns_barrier")

    def setup2(self):
        A = self.A
        self.srdo(V, "s20", "s21", "s14", "s12")
        A(f"""
        s_sub_i32 s98, s5, 12
        """)
        if self.a.remap: A("""
        s_and_b32 s8, s98, 3
        s_lshl_b32 s8, s8, 1
        s_lshr_b32 s9, s98, 2
        s_add_u32 s8, s8, s9
        s_cmp_lt_u32 s98, 8
        s_cselect_b32 s98, s8, s98
        """)
        A(f"""
        s_max_i32 s9, s98, 0
        s_lshl_b32 s9, s9, 6
        s_mul_i32 s8, s4, {self.a.hm[0]*128*1280}
        s_add_u32 s8, s8, s9
        s_add_u32 s{WO}, s24, s8
        s_addc_u32 s{WO+1}, s25, 0
        s_sub_u32 s{WO+2}, {4096*1280}, s8
        s_mov_b32 s{WO+3}, 0x20000
        """)
        if 'o' in self.a.x: A(f"s_mov_b32 s{WO+2}, 0")
        self.srd(OUT, "s36", "s37", 10240)
        A("s_lshl_b32 s8, s84, 20\ns_add_u32 s8, s8, 0xC0000")
        self.srdo(KH, "s18", "s19", "s8", "0x40000")
        A(f"""
        s_mul_i32 s8, s5, 86
        s_lshr_b32 s8, s8, 8
        s_mul_i32 s9, s8, 3
        s_sub_u32 s93, s5, s9
        s_lshl_b32 s8, s8, 3
        s_add_u32 s8, s8, s4
        s_lshl_b32 s10, s8, 7
        s_add_u32 s{TA}, s28, s10
        s_addc_u32 s{TA+1}, s29, 0
        s_sub_u32 s{TA+2}, {640*3456}, s10
        s_mov_b32 s{TA+3}, 0x20000
        s_mul_i32 s10, s8, {64*1280}
        s_lshl_b32 s11, s93, 9
        s_add_u32 s10, s10, s11
        s_add_u32 s{TB}, s30, s10
        s_addc_u32 s{TB+1}, s31, 0
        s_sub_u32 s{TB+2}, {64*1280}, s11
        s_mov_b32 s{TB+3}, 0x20000
        s_mul_i32 s101, s8, 20480
        s_lshl_b32 s11, s93, 13
        s_add_u32 s101, s101, s11
        s_add_u32 s101, s101, {hex(WS_OP)}
        s_cmp_lt_u32 s8, 27
        s_cselect_b32 s100, 1, 0
        s_cmp_ge_i32 s98, 0
        s_cselect_b32 s100, 2, s100
        s_mul_i32 s90, s4, 10240
        s_add_u32 s90, s90, {hex(WS_X1)}
        s_lshl_b32 s96, s98, 3
        s_add_u32 s96, s96, s4
        s_getreg_b32 s97, hwreg(HW_REG_XCC_ID)
        s_and_b32 s97, s97, 15
        s_lshl_b32 s10, s3, 6
        v_lshlrev_b32 v7, 9, v2
        v_lshl_add_u32 v7, v3, 2, v7
        v_add_u32 v7, s10, v7
        v_lshrrev_b32 v0, 2, v1
        v_mul_u32_u24 v0, 1280, v0
        v_lshl_add_u32 v0, v13, 4, v0
        v_and_b32 v8, 1, v3
        v_lshlrev_b32 v8, 4, v8
        v_mov_b32 v9, 0xffff
        v_lshlrev_b32 v9, v8, v9
        v_lshrrev_b32 v8, 1, v3
        """)
        for r in range(4):
            A(f"v_cmp_eq_u32 vcc, {r}, v8\ns_nop 1\nv_cndmask_b32 v{16+r}, 0, v9, vcc")
        if 'w' in self.a.x: A(f"""
        v_lshrrev_b32 v0, 3, v1
        v_mul_u32_u24 v0, 1280, v0
        v_and_b32 v8, 7, v1
        v_lshl_add_u32 v0, v8, 4, v0
        s_and_b32 s8, s98, 1
        s_mul_i32 s8, s8, {8*1280 - 64}
        v_add_u32 v0, s8, v0
        """)
        if self.a.stamps or self.a.fix: A("s_mov_b32 s16, s42\ns_mov_b32 s17, s43")

    def init1(self):
        A = self.A
        for i in range(5): self.unpack(32+2*i, 33+2*i, 56+i)
        self.silu(list(range(32, 42)), list(range(44, 54)))
        for i in range(5):
            A(f"v_cvt_pk_bf16_f32 v{56+i}, v{32+2*i}, v{33+2*i}")
            A(f"ds_write_b32 v7, v{56+i} offset:{L_ACT + i*2048}")
        A("s_sub_u32 s8, s91, 20\ns_cmp_lt_u32 s8, 20\ns_cbranch_scc0 L_c_a")
        self.ln_body(False)
        for i in range(5): A(f"ds_write_b32 v7, v{24+i} offset:{L_XN + i*2048}")

    def clears1(self, fl, tag):
        self.A(f"""
        s_lshl_b32 s8, s87, 8
        s_add_u32 s8, s8, {hex(WS_O)}
        s_mov_b64 exec, 0xffff
        buffer_store_dwordx4 v[48:51], v5, {sr(WS)}, s8 offen {fl}
        s_cmp_eq_u32 s100, 2
        s_cbranch_scc0 L_h_nx{tag}
        s_lshl_b32 s8, s98, 9
        s_add_u32 s8, s8, s90
        s_mov_b32 exec_lo, -1
        buffer_store_dwordx4 v[48:51], v5, {sr(WS)}, s8 offen {fl}
        L_h_nx{tag}:
        s_lshl_b32 s8, s87, 2
        s_add_u32 s8, s8, {WS_FLB}
        s_mov_b64 exec, 1
        s_waitcnt vmcnt(0)
        buffer_store_dword v46, off, {sr(WS)}, s8 {fl}
        s_mov_b64 exec, -1
        """)
    def clears2(self):
        A = self.A
        A("v_mov_b32 v192, -1\nv_mov_b32 v193, -1\nv_mov_b32 v194, -1\nv_mov_b32 v195, -1\ns_cmp_eq_u32 s100, 1\ns_cbranch_scc0 L_h_no")
        for i in range(4): A(f"buffer_store_dwordx4 v[192:195], v5, {sr(WS)}, s101 offen offset:{i*1024} sc1")
        A("s_cmp_eq_u32 s93, 2\ns_cbranch_scc1 L_h_no\ns_add_u32 s8, s101, 4096")
        for i in range(4): A(f"buffer_store_dwordx4 v[192:195], v5, {sr(WS)}, s8 offen offset:{i*1024} sc1")
        A("L_h_no:")

    def helper(self, vload):
        A = self.A; a = self.a
        AF = lambda k, nt: (64 + 4*(k*4+nt)) if k < 8 else (208 + 4*((k-8)*4+nt))
        A("L_helper:")
        if 'B' in a.delay:
            A(f"""s_cmp_eq_u32 s85, 8\ns_cbranch_scc0 L_dlB""")
            for _ in range(12): A("s_sleep 120")
            A("L_dlB:")
        if 'M' in a.delay:
            A(f"""s_cmp_eq_u32 s85, 2\ns_cbranch_scc0 L_dlM\ns_cmp_ge_u32 s91, 40\ns_cbranch_scc0 L_dlM\ns_bitcmp1_b32 s91, 1\ns_cbranch_scc0 L_dlM""")
            for _ in range(12): A("s_sleep 120")
            A("L_dlM:")
        if 'Q' in a.delay:
            A(f"""s_cmp_eq_u32 s5, 19\ns_cbranch_scc0 L_dlQ""")
            for _ in range(12): A("s_sleep 120")
            A("L_dlQ:")
        A(f"""
        s_waitcnt vmcnt(0)
        s_cmp_eq_u32 s85, 8
        s_cbranch_scc0 L_h_nb
        v_mov_b32 v14, 1
        s_mov_b64 exec, 1
        buffer_atomic_add v14, off, {sr(DBG)}, 0 offset:128 sc1
        s_mov_b64 exec, -1
        L_h_nb:
        """)
        cld = f"buffer_load_dword v12, off, {sr(DBG)}, 0 sc1"
        if a.cl == 0: A(cld)
        self.spin(4, 7, 256, vt=14)
        if a.cl == 1: A(cld)
        if a.cl == 2: A(f"s_cmp_eq_u32 s85, 2\ns_cbranch_scc0 L_h_c2\n{cld}\nL_h_c2:")
        self.stamp(9)
        A(f"""
        v_lshrrev_b32 v8, 2, v3
        s_cmp_eq_u32 s85, 2
        s_cbranch_scc1 L_h_mod
        v_lshlrev_b32 v10, 10, v2
        v_lshl_add_u32 v10, v8, 7, v10
        v_lshl_add_u32 v10, v13, 3, v10
        """)
        for k in range(10):
            for nt in range(4):
                r = AF(k, nt)
                A(f"ds_read_b64_tr_b16 {q2(r)}, v10 offset:{L_TA + k*4096 + nt*32}")
                A(f"ds_read_b64_tr_b16 {q2(r+2)}, v10 offset:{L_TA + k*4096 + nt*32 + 512}")
        if a.cl == 2: A(f"s_waitcnt lgkmcnt(0)\n{cld}")
        A(f"""
        s_branch L_h_cnt
        L_h_mod:
        v_lshlrev_b32 v10, 9, v2
        v_lshl_add_u32 v10, v8, 6, v10
        v_lshl_add_u32 v10, v13, 3, v10
        """)
        def rd(i):
            A(f"ds_read_b128 {q4(24+4*i)}, v4 offset:{L_ACT + i*1024}")
            for par in range(2):
                for nt in range(2):
                    r = 64 + 4*((2*i+par)*2+nt)
                    A(f"ds_read_b64_tr_b16 {q2(r)}, v10 offset:{L_TA + (2*i+par)*2048 + nt*32}")
                    A(f"ds_read_b64_tr_b16 {q2(r+2)}, v10 offset:{L_TA + (2*i+par)*2048 + nt*32 + 256}")
        if a.stamps: A("s_waitcnt lgkmcnt(0)")
        rd(0)
        for i in range(10):
            if i < 9:
                rd(i+1); A("s_waitcnt lgkmcnt(9)")
            else: A("s_waitcnt lgkmcnt(0)")
            for par in range(2):
                for nt in range(2):
                    r = 64 + 4*((2*i+par)*2+nt); a_ = 224 + 8*par + 4*nt
                    A(f"{MF} {q4(a_)}, {q4(r)}, {q4(24+4*i)}, {'0' if i == 0 else q4(a_)}")
        A(f"""
        v_and_b32 v8, 7, v3
        v_lshrrev_b32 v9, 3, v3
        v_lshlrev_b32 v11, 6, v8
        v_lshl_add_u32 v11, v9, 5, v11
        v_lshl_add_u32 v11, v2, 3, v11
        s_lshl_b32 s9, s91, 9
        s_add_u32 s8, s9, {L_XN - 20*512}
        v_add_u32 v14, s8, v11
        s_nop 1
        """)
        for r in range(4):
            A(f"v_add_f32_dpp v{24+r}, v{232+r}, v{224+r} row_ror:8 row_mask:0xf bank_mask:0x3")
            A(f"v_add_f32_dpp v{24+r}, v{228+r}, v{236+r} row_ror:8 row_mask:0xf bank_mask:0xc")
        A("v_cvt_pk_bf16_f32 v40, v24, v25\nv_cvt_pk_bf16_f32 v41, v26, v27")
        A("s_sub_u32 s8, s91, 20\ns_cmp_lt_u32 s8, 20\ns_cbranch_scc0 L_h_pub")
        A("ds_read_b64 v[42:43], v14")
        for j in range(2): self.unpack(24+2*j, 25+2*j, 40+j)
        for r in range(4): A(f"v_add_f32 v{24+r}, 1.0, v{24+r}")
        for j in range(2): A(f"v_cvt_pk_bf16_f32 v{40+j}, v{24+2*j}, v{25+2*j}")
        for j in range(2): self.unpack(24+2*j, 25+2*j, 40+j)
        A("s_waitcnt lgkmcnt(0)")
        for j in range(2): self.unpack(28+2*j, 29+2*j, 42+j)
        for r in range(4): A(f"v_mul_f32 v{24+r}, v{24+r}, v{28+r}")
        for j in range(2): A(f"v_cvt_pk_bf16_f32 v{40+j}, v{24+2*j}, v{25+2*j}")
        A(f"""
        L_h_pub:
        v_min_u32 v40, -2, v40
        v_min_u32 v41, -2, v41
        v_add_u32 v11, {L_BN}, v11
        v_add_u32 v14, {L_BN}, v5
        ds_write_b64 v11, v[40:41]
        ds_read_b128 v[40:43], v14
        L_h_cnt:
        s_mov_b32 s14, {a.limit}
        L_wc:
        s_waitcnt vmcnt(0)
        v_readfirstlane_b32 s8, v12
        s_nop 0
        s_cmp_ge_u32 s8, {NCLR}
        s_cbranch_scc1 L_wcd
        s_sleep {a.sc}
        buffer_load_dword v12, off, {sr(DBG)}, 0 sc1
        s_sub_u32 s14, s14, 1
        s_cbranch_scc0 L_wc
        s_or_b32 s15, s15, 1
        L_wcd:
        s_cmp_eq_u32 s85, 2
        s_cbranch_scc0 L_h_np
        s_mov_b32 exec_hi, 0
        s_waitcnt lgkmcnt(0)
        buffer_store_dwordx4 v[40:43], v5, {sr(WS)}, s9 offen sc1
        s_mov_b64 exec, -1
        L_h_np:
        s_lshl_b32 s8, s87, {a.fs}
        s_add_u32 s8, s8, {self.fbase()}
        v_mov_b32 v12, s97
        s_mov_b64 exec, 1
        buffer_store_dword v12, off, {sr(WS)}, s8 sc1
        s_mov_b64 exec, -1
        """)
        if a.oc == 0: self.clears2()
        self.stamp(1)
        A(f"""
        s_cmp_lt_i32 s98, 0
        s_cbranch_scc1 L_h_nwo
        s_mov_b32 m0, {L_WO}
        s_mov_b32 s8, 0
        L_h_wo:
        s_waitcnt vmcnt({a.dw-1})
        buffer_load_dwordx4 v0, {sr(WO)}, s8 offen {a.wof} lds
        s_add_u32 m0, m0, 1024
        s_sub_u32 s9, m0, {L_WO}
        s_and_b32 s10, s9, 0x1fff
        s_cselect_b32 s10, 0, {(a.hm[1]-1)*128*1280}
        s_add_u32 s8, s8, s10
        s_add_u32 s8, s8, 20480
        s_cmp_lt_u32 s9, 32768
        s_cbranch_scc1 L_h_wo
        L_h_nwo:
        """)
        A(f"v_and_b32 v14, 0x7c, v6\ns_lshl_b32 s43, s4, 7\ns_add_u32 s43, s43, {WS_FLG}")
        ids = lambda r: f"buffer_load_dword v{r}, v14, {sr(WS)}, s43 offen sc1"
        A("s_bitcmp1_b32 s85, 0\ns_cbranch_scc0 L_h_getq0")
        A(f"""
        v_and_b32 v8, 7, v3
        v_lshrrev_b32 v9, 3, v3
        v_mul_u32_u24 v12, 10240, v9
        v_lshl_add_u32 v12, v8, 6, v12
        v_lshl_add_u32 v12, v2, 4, v12
        v_lshlrev_b32 v196, 8, v8
        v_lshl_add_u32 v196, v9, 6, v196
        v_lshl_add_u32 v196, v2, 4, v196
        v_add_u32 v196, {L_BN}, v196
        v_add_u32 v197, {L_BN}, v5
        v_lshlrev_b32 v198, 10, v2
        v_lshl_add_u32 v198, v3, 4, v198
        s_and_b32 s10, s5, 1
        s_mul_i32 s8, s10, 5120
        s_add_u32 s42, s8, 2560
        s_lshr_b32 s11, s99, 1
        s_and_b32 s9, s5, 15
        s_lshl_b32 s9, s9, 2
        s_add_u32 s9, s9, s43
        s_add_u32 s9, s9, {WS_QF - WS_FLG}
        s_lshl_b32 s11, s11, 13
        s_lshl_b32 s10, s10, 9
        s_add_u32 s11, s11, s10
        s_and_b32 s10, s99, 1
        s_lshl_b32 s10, s10, 8
        s_add_u32 s11, s11, s10
        s_add_u32 s11, s11, {hex(WS_QP)}
        s_add_u32 s10, s11, 4096
        """)
        loads = [f"buffer_load_dwordx4 {q4(24+4*k)}, v12, {sr(WS)}, {'s8' if k < 5 else 's42'} offen offset:{(k%5)*512} sc1" for k in range(10)]
        self.sleep(a.wa - a.lead)
        if a.mode: A("v_mov_b32 v240, 1\nds_write_b32 v15, v240")
        self.sleep(a.lead)
        self.poll(loads, range(24, 64), 241, 2, sleep=a.s1)
        A(ids(12))
        self.stamp(2)
        A("v_cmp_lt_u32 vcc, 7, v3\ns_waitcnt lgkmcnt(0)")
        ACC = [8, 20, 248, 252]
        for k in range(11):
            if k < 10:
                for j in (4*k, 4*k+2):
                    self.unpack(240, 241, 24+j); self.unpack(242, 243, 25+j)
                    for r in range(4): A(f"v_add_f32_dpp v{244+r}, v{240+r}, v{240+r} row_ror:8 {DPPF}")
                    A(f"v_cvt_pk_bf16_f32 v{24+j}, v244, v245\nv_cvt_pk_bf16_f32 v{25+j}, v246, v247")
            if k >= 1:
                for nt in range(4):
                    A(f"{MF} {q4(ACC[nt])}, {q4(AF(k-1, nt))}, {q4(24+4*(k-1))}, {'0' if k == 1 else q4(ACC[nt])}")
        A("s_nop 5")
        for j in range(2):
            for r in range(4): A(f"v_cndmask_b32 v{24+4*j+r}, v{ACC[2*j]+r}, v{ACC[2*j+1]+r}, vcc")
        A("""
        ds_write_b128 v196, v[24:27]
        ds_write_b128 v196, v[28:31] offset:128
        ds_read_b128 v[32:35], v197
        ds_read_b128 v[36:39], v197 offset:1024
        s_waitcnt vmcnt(0)
        """)
        self.samexcd(12)
        A("s_waitcnt lgkmcnt(0)")
        self.store2([f"buffer_store_dwordx4 v[32:35], v198, {sr(WS)}, s11 offen", f"buffer_store_dwordx4 v[36:39], v198, {sr(WS)}, s10 offen",
                     f"s_mov_b64 exec, 1\ns_waitcnt vmcnt(0)\nbuffer_store_dword v1, off, {sr(WS)}, s9"], 12)
        A("s_mov_b64 exec, -1")
        self.stamp(8)
        self.sleep(a.w3)
        A("s_branch L_h_getq\nL_h_getq0:")
        A("s_waitcnt vmcnt(0) lgkmcnt(0)")
        A("s_cmp_lt_i32 s98, 0\ns_cbranch_scc0 L_h_getq")
        for i in range(16):
            A(f"s_waitcnt vmcnt({a.dm-1})")
            vload(i)
        self.sleep(a.w2 - a.lead)
        if a.mode: A("v_mov_b32 v240, 1\nds_write_b32 v15, v240")
        self.sleep(a.lead)
        A(f"""
        L_h_getq:
        v_lshlrev_b32 v12, 2, v13
        s_and_b32 s9, s5, 3
        s_lshl_b32 s9, s9, 4
        s_add_u32 s9, s9, s43
        s_add_u32 s9, s9, {WS_QF - WS_FLG}
        {ids(45)}
        """)
        self.poll([f"buffer_load_dword v44, v12, {sr(WS)}, s9 offen sc1"], [44], 45, 4, sleep=a.s2)
        A(f"""
        v_lshlrev_b32 v12, 3, v1
        s_lshl_b32 s8, s87, 10
        s_add_u32 s8, s8, {hex(WS_QP)}
        buffer_load_dwordx2 v[40:41], v12, {sr(WS)}, s8 offen sc1
        buffer_load_dwordx2 v[42:43], v12, {sr(WS)}, s8 offen offset:512 sc1
        v_mov_b32 v46, s97
        v_mov_b32 v48, -1
        v_mov_b32 v49, -1
        v_mov_b32 v50, -1
        v_mov_b32 v51, -1
        """)
        if 'F' in a.delay:
            A(f"""s_cmp_eq_u32 s5, 25\ns_cbranch_scc0 L_dlF""")
            for _ in range(12): A("s_sleep 120")
            A("L_dlF:")
        self.samexcd(45)
        A("s_cbranch_scc0 L_h_cw")
        self.clears1("", "a")
        A("s_branch L_h_cd\nL_h_cw:")
        self.clears1("sc1", "b")
        A("L_h_cd:")
        A(f"""
        v_add_f32 v32, v40, v42
        v_add_f32 v33, v41, v43
        v_cvt_pk_bf16_f32 v32, v32, v33
        ds_write_b32 v6, v32 offset:{L_Q}
        s_waitcnt lgkmcnt(0)
        ds_write_b32 v15, v15
        """)
        self.stamp(3)
        A(f"""
        s_setprio 0
        s_cmp_lt_i32 s98, 0
        s_cbranch_scc1 L_h_nv
        """)
        for i in range(16):
            A(f"s_waitcnt vmcnt({a.dh-1})")
            vload(i)
        A(f"""
        L_h_nv:
        s_cmp_eq_u32 s100, 1
        s_cbranch_scc0 L_h_ncs
        s_mov_b32 m0, {L_CS}
        s_mov_b32 s8, {WS_MOD + 60*512}
        L_h_cs:
        buffer_load_dwordx4 v5, {sr(WS)}, s8 offen sc1 lds
        s_add_u32 m0, m0, 1024
        s_add_u32 s8, s8, 1024
        s_cmp_lt_u32 s8, {WS_MOD + 100*512}
        s_cbranch_scc1 L_h_cs
        """)
        if a.w2e:
            self.w2addr(8, 9, 10)
            A(f"""
            s_mov_b32 m0, {L_W2}
            s_mov_b32 s8, 0
            L_h_w2:
            s_waitcnt vmcnt({a.dh})
            buffer_load_dwordx4 v8, {sr(TB)}, s8 offen nt lds
            buffer_load_dwordx4 v9, {sr(TB)}, s8 offen offset:1024 nt lds
            s_add_u32 m0, m0, 2048
            s_add_u32 s8, s8, {8*1280}
            s_cmp_eq_u32 s8, {64*1280}
            s_cselect_b32 s8, 256, s8
            s_cselect_b32 s9, s93, 0
            s_cmp_eq_u32 s9, 2
            s_cbranch_scc1 L_h_ncs
            s_cmp_lt_u32 m0, {L_W2 + 32768}
            s_cbranch_scc1 L_h_w2
            """)
        A("L_h_ncs:")
        if a.cpf == 3: A(f"""
        s_getpc_b64 s[8:9]
        L_pc:
        s_add_u32 s8, s8, L_tail - L_pc
        s_addc_u32 s9, s9, 0
        v_lshlrev_b32 v8, 7, v1
        v_min_u32 v8, L_end - L_tail, v8
        v_mov_b32 v9, s9
        v_add_co_u32 v8, vcc, s8, v8
        s_nop 1
        v_addc_co_u32 v9, vcc, 0, v9, vcc
        global_load_dword v23, v[8:9], off
        """)
        self.spin(8, 7, 2048)
        A(f"v_add_u32 v8, {L_KH}, v5")
        for i in range(32): A(f"ds_read_b128 {q4(64+4*i)}, v8 offset:{i*1024}")

    def w1addr(self, ve, vo, vt):
        self.A(f"""
        v_lshrrev_b32 v{vo}, 3, v1
        v_mul_u32_u24 v{vo}, 3456, v{vo}
        v_and_b32 v{vt}, 1, v2
        v_lshlrev_b32 v{vt}, 1, v{vt}
        v_and_b32 v{ve}, 7, v1
        v_xor_b32 v{ve}, v{ve}, v{vt}
        v_xor_b32 v{vt}, 4, v{ve}
        v_lshl_add_u32 v{ve}, v{ve}, 4, v{vo}
        v_lshl_add_u32 v{vo}, v{vt}, 4, v{vo}
        v_add_u32 v{vo}, {8*3456 - 1024}, v{vo}
        """)
    def w2addr(self, ve, vo, vt):
        self.A(f"""
        v_lshlrev_b32 v{vt}, 1, v2
        v_xor_b32 v{vt}, v{vt}, v3
        v_mul_u32_u24 v{vo}, 1280, v2
        v_lshl_add_u32 v{ve}, v{vt}, 4, v{vo}
        v_xor_b32 v{vt}, 8, v{vt}
        v_lshl_add_u32 v{vo}, v{vt}, 4, v{vo}
        v_add_u32 v{vo}, {5120 - 1024}, v{vo}
        """)
    def w1loop(self, lab, ve, vo, so, end, thr=0):
        self.A(f"""
        {lab}:
        {f"s_waitcnt vmcnt({thr})" if thr else ""}
        buffer_load_dwordx4 v{ve}, {sr(TA)}, {so} offen {self.a.w1f} lds
        buffer_load_dwordx4 v{vo}, {sr(TA)}, {so} offen offset:1024 {self.a.w1f} lds
        s_add_u32 m0, m0, 2048
        s_add_u32 {so}, {so}, {16*3456}
        s_cmp_lt_u32 m0, {end}
        s_cbranch_scc1 {lab}
        """)
    def gen(self):
        A = self.A; a = self.a
        d, d0, nm = a.depth, a.d0, a.nm
        KR = 64
        VR = [192 + 4*i for i in range(16)] + [64 + 4*i for i in range(16)]
        so = lambda i: f"s_mul_i32 s86, s13, {i*1024}"
        def kload(i): A(f"{so(i)}\nbuffer_load_dwordx4 {q4(KR+4*i)}, v4, {sr(K)}, s86 offen nt")
        def vload(i): A(f"{so(i)}\nbuffer_load_dwordx4 {q4(VR[i])}, v5, {sr(V)}, s86 offen nt")
        def hload(u):
            A(f"s_add_u32 s8, s88, {7*u*1024}\ns_add_u32 m0, s8, {L_KH}\n" + (f"s_add_u32 s8, s8, {224*1024}" if a.w7 else "s_lshl_b32 s8, s8, 3"))
            A(f"buffer_load_dwordx4 v4, {sr(KH)}, s8 offen nt lds")
        kseq = []
        for i in range(32):
            kseq.append(("K", i))
            if not a.hpos and i % 6 == 5 and i//6 < 5: kseq.append(("H", i//6))
            if a.hpos and i == a.hpos: kseq += [("H", u) for u in range(5)]
        for i in range(16): kseq.append(("V", i))
        def issue(op): {"K": kload, "V": vload, "H": hload}[op[0]](op[1])

        self.prologue(kload)
        assert all(op[0] == "K" for op in kseq[:nm + a.n00])
        A("s_cmp_eq_u32 s3, 0\ns_cbranch_scc1 L_c_j")
        for i in range(a.n00, a.n00 + nm): kload(i)
        A("L_c_j:")
        self.setup2()
        if a.cpf == 1: A(f"""
        s_cmp_eq_u32 s3, 0
        s_cbranch_scc0 L_npf
        s_getpc_b64 s[8:9]
        L_pc:
        s_and_b32 s10, s5, 7
        s_mul_i32 s10, s10, {a.pad//8}
        s_sub_u32 s8, s8, L_pc - {NAME}_kernel
        s_subb_u32 s9, s9, 0
        v_lshlrev_b32 v8, 7, v1
        v_add_u32 v8, s10, v8
        v_mov_b32 v9, s9
        v_add_co_u32 v8, vcc, s8, v8
        s_nop 1
        v_addc_co_u32 v9, vcc, 0, v9, vcc
        s_mov_b64 exec, {hex((1 << (a.pad//1024)) - 1)}
        global_load_dword v62, v[8:9], off
        s_mov_b64 exec, -1
        L_npf:
        """)
        A(f"s_cmp_eq_u32 s85, 2\ns_cbranch_scc0 L_c_a\ns_waitcnt vmcnt({5+nm})")
        A("s_cmp_eq_u32 s3, 0\ns_cbranch_scc0 L_c_i1\ns_waitcnt vmcnt(5)\nL_c_i1:")
        self.init1()
        A("L_c_a:\ns_cmp_eq_u32 s3, 0\ns_cbranch_scc1 L_helper")
        A(f"s_lshl_b32 s88, s3, 10\ns_sub_u32 s88, s88, 1024\ns_mov_b64 vcc, {0 if a.mode else -1}\ns_waitcnt vmcnt({nm}) lgkmcnt(0)")
        self.bump(4)
        if a.rows: A(f"s_bitcmp1_b32 {a.rows}, s5\ns_cselect_b64 vcc, 0, -1")
        if a.par: A(f"s_bitcmp1_b32 {a.par}, s97\ns_cselect_b32 s92, -1, 1")
        hdone = kseq.index(("H", 4)) + d
        assert hdone < len(kseq)
        for n, op in enumerate(kseq):
            if n < nm + a.n00: continue
            if n >= len(kseq) - a.nfree: pass
            elif n < a.n0 or d == d0: A(f"s_waitcnt vmcnt({d0-1})")
            else:
                if (n - a.n0) % a.chk == 0 and n <= a.nref and not a.rows:
                    if n > a.n0: A("s_waitcnt lgkmcnt(0)\n" + ("v_cmp_eq_u32 vcc, 1, v14" if a.mode else "v_cmp_gt_u32 vcc, 2, v14"))
                    A("ds_read_b32 v14, v15")
                lb = self.newlab("Ld")
                A(f"s_cbranch_vccz {lb}\ns_waitcnt vmcnt({d0-1})\n{lb}:\ns_waitcnt vmcnt({(a.de if n < a.ne else d)-1})")
            if n == hdone: self.bump(8)
            issue(op)
            if n in (16, 32, 48): self.stamp(n//16)
        self.spin(0, 2, 1024)
        A("s_branch L_qk")
        self.helper(vload)
        A("L_qk:")
        A(f"""
        v_lshlrev_b32 v8, 6, v13
        v_lshl_add_u32 v8, v2, 4, v8
        ds_read_b128 v[24:27], v8 offset:{L_Q}
        v_lshrrev_b32 v9, 2, v3
        s_waitcnt lgkmcnt(0)
        """)
        for t in range(4):
            A(f"v_cmp_eq_u32 vcc, {t}, v9\ns_nop 1")
            for r in range(4): A(f"v_cndmask_b32 v{32+4*t+r}, 0, v{24+r}, vcc")
        A("s_waitcnt vmcnt(16)\ns_nop 0")
        for half in range(2):
            for gg in range(4):
                for t in range(4):
                    i = 16*half + 4*gg + t
                    A(f"{MF} {q4(48+4*gg)}, {q4(KR+4*i)}, {q4(32+4*t)}, {'0' if t == 0 else q4(48+4*gg)}")
            if half == 0:
                for i in range(16, 16 + a.d1): vload(i)
            A("s_nop 7")
            for j in range(4):
                for gg in range(4):
                    g = half*4 + gg
                    if j == 0: A(f"v_mov_b32_dpp v{24+g}, v{48+4*gg} quad_perm:[0,0,0,0] {DPPF}")
                    else: A(f"v_add_f32_dpp v{24+g}, v{48+4*gg+j}, v{24+g} quad_perm:[{j},{j},{j},{j}] {DPPF}")
            A("s_nop 1")
        self.stamp(4)
        self.softmax1()
        def abuild(i):
            for r in range(4):
                A(f"v_and_b32_dpp v{32+4*(i%2)+r}, v{24+i//4}, v{16+r} row_newbcast:{4*(i%4)} {DPPF}")
        def pv(i, wait=None):
            if i + 1 < 32: abuild(i+1)
            else: A("s_nop 1")
            if wait is not None: A(f"s_waitcnt vmcnt({wait})")
            A(f"{MF} v[20:23], {q4(32+4*(i%2))}, {q4(VR[i])}, {'0' if i == 0 else 'v[20:23]'}")
        done = 0
        for i in range(16 + a.d1, 32):
            if i == a.ism: self.small_loads()
            ex = 2 if a.ism <= i < a.ism + a.d2 else 0
            A(f"s_waitcnt vmcnt({a.d2-1+ex})")
            vload(i)
            if i == a.i2:
                self.softmax2(); abuild(0)
            if i >= a.i2:
                while done <= i - a.d2: pv(done); done += 1
        assert 16 + a.d1 <= a.ism < 32 - a.d2
        self.stamp(5)
        if a.i2 > 31:
            self.softmax2(); abuild(0)
            while done <= 31 - a.d2: pv(done); done += 1
        self.tail_prep()
        while done < 32: pv(done, 31 - done); done += 1
        A("L_tail:")
        self.tail1()
        self.reducer()
        self.mlp()
        self.finish()
        self.subs()
        L = self.L
        if a.cpf == 1: L.append(f".fill ({a.pad} - (. - {NAME}_kernel))/4, 4, 0xbf800000")
        L += ['.section .rodata,"a"', ".p2align 6", f".amdhsa_kernel {NAME}_kernel",
              "  .amdhsa_next_free_vgpr 256", "  .amdhsa_next_free_sgpr 102", "  .amdhsa_accum_offset 256",
              "  .amdhsa_group_segment_fixed_size 0", "  .amdhsa_kernarg_size 104", "  .amdhsa_user_sgpr_count 2",
              "  .amdhsa_user_sgpr_kernarg_segment_ptr 1", "  .amdhsa_system_sgpr_workgroup_id_x 1", ".end_amdhsa_kernel"]
        return "\n".join(L) + "\n"

    def softmax1(self):
        A = self.A
        A(f"s_mov_b32 s8, {hex(SCALE)}")
        for g in range(0, 8, 2):
            A(f"v_cvt_pk_bf16_f32 v8, v{24+g}, v{25+g}")
            self.unpack(24+g, 25+g, 8)
            A(f"v_mul_f32 v{24+g}, s8, v{24+g}\nv_mul_f32 v{25+g}, s8, v{25+g}")
            A(f"v_cvt_pk_bf16_f32 v8, v{24+g}, v{25+g}")
            self.unpack(24+g, 25+g, 8)
        def wred(op, sdst):
            for c in (f"row_ror:4 {DPPF}", f"row_ror:8 {DPPF}", "row_bcast:15 row_mask:0xa bank_mask:0xf", "row_bcast:31 row_mask:0xc bank_mask:0xf"):
                A(f"s_nop 1\n{op}_dpp v8, v8, v8 {c}")
            A(f"s_nop 1\nv_readlane_b32 {sdst}, v8, 63")
        A("v_max3_f32 v8, v24, v25, v26\nv_max3_f32 v8, v8, v27, v28\nv_max3_f32 v8, v8, v29, v30\nv_max_f32 v8, v8, v31")
        wred("v_max_f32", "s95")
        A(f"s_mov_b32 s8, {hex(LOG2E)}\ns_nop 1")
        for g in range(8): A(f"v_subrev_f32 v{24+g}, s95, v{24+g}")
        for g in range(8): A(f"v_mul_f32 v{24+g}, s8, v{24+g}")
        for g in range(8): A(f"v_exp_f32 v{24+g}, v{24+g}")
        A("""
        s_nop 0
        v_add_f32 v8, v24, v25
        v_add_f32 v9, v26, v27
        v_add_f32 v10, v28, v29
        v_add_f32 v11, v30, v31
        v_add_f32 v8, v8, v9
        v_add_f32 v10, v10, v11
        v_add_f32 v8, v8, v10
        """)
        wred("v_add_f32", "s10")
        A(f"""
        s_lshl_b32 s11, s3, 3
        v_mov_b32 v10, s95
        v_mov_b32 v9, s11
        v_mov_b32 v11, s10
        ds_write_b64 v9, v[10:11] offset:{L_SM}
        s_waitcnt lgkmcnt(0)
        """)
        self.bump(12)
    def softmax2(self):
        A = self.A
        self.spin(12, 8, 4096)
        A(f"""
        v_and_b32 v9, 7, v1
        v_lshlrev_b32 v9, 3, v9
        s_mov_b32 s8, {hex(LOG2E)}
        ds_read_b64 v[10:11], v9 offset:{L_SM}
        s_waitcnt lgkmcnt(0)
        v_max_f32_dpp v8, v10, v10 row_ror:4 {DPPF}
        s_nop 1
        v_max_f32_dpp v8, v8, v8 row_ror:2 {DPPF}
        s_nop 1
        v_max_f32_dpp v8, v8, v8 row_ror:1 {DPPF}
        v_sub_f32 v10, v10, v8
        v_sub_f32 v12, s95, v8
        v_mul_f32 v10, s8, v10
        v_mul_f32 v12, s8, v12
        v_exp_f32 v10, v10
        v_exp_f32 v12, v12
        s_nop 0
        v_mul_f32 v10, v10, v11
        s_nop 1
        v_add_f32_dpp v10, v10, v10 quad_perm:[1,0,3,2] {DPPF}
        s_nop 1
        v_add_f32_dpp v10, v10, v10 quad_perm:[2,3,0,1] {DPPF}
        s_nop 1
        v_add_f32_dpp v10, v10, v10 row_half_mirror {DPPF}
        v_rcp_f32 v10, v10
        s_nop 0
        v_mul_f32 v10, v10, v12
        """)
        for g in range(8): A(f"v_mul_f32 v{24+g}, v10, v{24+g}")
        for g in range(8): A(f"v_cvt_pk_bf16_f32 v{24+g}, v{24+g}, v{24+g}")
        A("s_nop 1")

    def flg(self): return f"s_lshl_b32 s10, s4, {self.a.fs+5}\ns_add_u32 s10, s10, {WS_FLB}\nbuffer_load_dword v132, v129, {sr(WS)}, s10 offen sc1"
    def cntb(self): return f"buffer_load_dword v128, off, {sr(DBG)}, 0 offset:128 sc1"
    def fbase(self): return WS_FLG
    def chk_b(self):
        a_, b_ = self.newlab("Lb"), self.newlab("Lbd")
        self.A(f"""
        s_mov_b32 s14, {self.a.limit}
        {a_}:
        v_readfirstlane_b32 s8, v128
        s_nop 0
        s_cmp_ge_u32 s8, {NCLR}
        s_cbranch_scc1 {b_}
        {self.cntb()}
        s_waitcnt vmcnt(0)
        s_sub_u32 s14, s14, 1
        s_cbranch_scc0 {a_}
        s_or_b32 s15, s15, 8
        {b_}:
        """)
    def mlp_small(self):
        o = []
        for i in range(5): o.append(f"s_mov_b32 s9, {WS_MOD + 80*512 + i*2048}\nbuffer_load_dword v{133+i}, v7, {sr(WS)}, s9 offen sc1")
        for i in range(5): o.append(f"s_mov_b32 s9, {WS_MOD + 60*512 + i*2048}\nbuffer_load_dword v{138+i}, v7, {sr(WS)}, s9 offen sc1")
        return o
    def red_small(self):
        return [f"buffer_load_dword v143, v148, {sr(WS)}, s42 offen sc1", f"buffer_load_dword v144, v149, {sr(WS)}, s43 offen sc1"]
    def small_loads(self):
        A = self.A
        A(f"""
        v_and_b32 v146, 7, v1
        v_and_b32 v147, 1, v2
        v_lshlrev_b32 v147, 2, v147
        v_lshl_add_u32 v148, v146, 3, v147
        v_lshl_add_u32 v149, v146, 6, v147
        v_and_b32 v129, 31, v1
        v_lshlrev_b32 v129, {self.a.fs}, v129
        """)
        A(self.flg()); A(self.cntb())

    def oloads(self): return [f"buffer_load_dwordx4 {q4(200+4*k)}, v42, {sr(WS)}, s89 offen offset:{k*64} sc1" for k in range(2)]
    def tail_prep(self):
        A = self.A
        A(f"""
        s_lshl_b32 s8, s3, 9
        v_lshlrev_b32 v40, 5, v3
        v_lshl_add_u32 v40, v2, 4, v40
        v_add_u32 v40, s8, v40
        v_lshlrev_b32 v41, 3, v1
        s_lshl_b32 s88, s87, 8
        s_add_u32 s88, s88, {hex(WS_O)}
        v_lshlrev_b32 v42, 8, v146
        v_lshl_add_u32 v42, v2, 4, v42
        v_lshrrev_b32 v9, 3, v1
        v_lshlrev_b32 v45, 10, v9
        v_lshl_add_u32 v45, v146, 4, v45
        s_cmp_lt_i32 s98, 0
        s_cbranch_scc1 L_tp_done
        s_lshl_b32 s8, s3, 10
        s_add_u32 s8, s8, {L_TB}
        v_lshrrev_b32 v8, 3, v3
        v_lshlrev_b32 v48, 7, v146
        v_lshl_add_u32 v48, v8, 6, v48
        v_lshl_add_u32 v48, v2, 4, v48
        v_add_u32 v48, s8, v48
        v_add_u32 v49, {L_TB}, v5
        s_lshl_b32 s89, s4, 13
        s_lshr_b32 s8, s3, 1
        s_lshl_b32 s8, s8, 11
        s_add_u32 s89, s89, s8
        s_and_b32 s8, s3, 1
        s_lshl_b32 s8, s8, 7
        s_add_u32 s89, s89, s8
        s_add_u32 s89, s89, {hex(WS_O)}
        s_lshl_b32 s94, s96, 10
        s_add_u32 s94, s94, {hex(WS_AP)}
        s_lshl_b32 s92, s98, 13
        s_lshl_b32 s8, s3, 7
        s_add_u32 s92, s92, s8
        s_add_u32 s92, s92, {hex(WS_AP)}
        s_lshl_b32 s43, s98, 9
        s_lshl_b32 s9, s3, 6
        s_add_u32 s42, s43, s9
        s_add_u32 s91, s42, s90
        s_add_u32 s42, s42, {WS_MOD + 40*512}
        s_lshl_b32 s9, s4, 3
        s_add_u32 s43, s43, s9
        s_add_u32 s99, s43, s90
        s_add_u32 s43, s43, {WS_MOD + 100*512}
        s_mul_i32 s9, s3, 1280
        s_lshl_b32 s10, s98, 6
        s_add_u32 s9, s9, s10
        buffer_load_dword v145, v148, {sr(X)}, s9 offen
        v_lshrrev_b32 v8, 1, v2
        v_lshlrev_b32 v8, 4, v8
        v_sub_u32 v14, 16, v8
        v_lshrrev_b32 v8, 2, v3
        v_lshl_add_u32 v8, v2, 3, v8
        v_lshlrev_b32 v8, 6, v8
        v_lshl_add_u32 v8, v13, 3, v8
        s_lshl_b32 s8, s3, 12
        s_add_u32 s8, s8, {L_WO}
        v_add_u32 v8, s8, v8
        """)
        for l in self.red_small(): A(l)
        for k in range(2):
            for m in range(2):
                r = 152 + 8*k + 4*m
                A(f"ds_read_b64_tr_b16 {q2(r)}, v8 offset:{k*2048 + m*32}")
                A(f"ds_read_b64_tr_b16 {q2(r+2)}, v8 offset:{k*2048 + m*32 + 256}")
        self.poll([self.flg()], [132], 8, 8, first_loaded=True)
        self.chk_b()
        for l in self.oloads(): A(l)
        A("L_tp_done:")

    def sum8(self, addr, base, step):
        A = self.A
        if self.a.stamps: A("s_waitcnt lgkmcnt(0)")
        for j in range(8): A(f"ds_read_b128 {q4(64+4*j)}, {addr} offset:{base + j*step}")
        for j in range(0, 8, 2):
            A(f"s_waitcnt lgkmcnt({6-j})")
            for r in (0, 2): self.pk("add", 64+4*j+r, 64+4*j+r, q2(68+4*j+r))
            if j == 2:
                for r in (0, 2): self.pk("add", 64+r, 64+r, q2(72+r))
        for r in (0, 2): self.pk("add", 80+r, 80+r, q2(88+r))
        for r in (0, 2): self.pk("add", 64+r, 64+r, q2(80+r))
    def red_fin(self):
        self.A(f"""
        v_permlane32_swap_b32 v64, v65
        v_permlane32_swap_b32 v66, v67
        v_add_f32 v64, v64, v65
        v_add_f32 v66, v66, v67
        s_nop 1
        v_permlane16_swap_b32 v64, v66
        v_add_f32 v64, v64, v66
        s_nop 1
        v_add_f32_dpp v64, v64, v64 row_ror:8 {DPPF}
        v_cvt_pk_bf16_f32 v64, 0, v64
        v_mul_f32 v64, v64, v208
        v_cvt_pk_bf16_f32 v64, 0, v64
        v_add_f32 v64, v64, v209
        v_mov_b32 v65, v64
        s_nop 1
        v_permlane32_swap_b32 v64, v65
        v_cvt_pk_bf16_f32 v68, v64, v65
        v_cvt_pk_bf16_f32 v69, v64, v65
        s_nop 1
        v_permlane16_swap_b32 v68, v69
        """)

    def tpf(self):
        A = self.A; a = self.a
        if a.pf:
            A("s_cmp_eq_u32 s100, 1\ns_cbranch_scc0 L_h_npf\ns_cmp_eq_u32 s3, 0\ns_cbranch_scc0 L_h_npf")
            self.w1addr(8, 9, 10)
            A(f"s_mov_b32 m0, {L_W1}\ns_mov_b32 s8, 0")
            self.w1loop("L_h_pf", 8, 9, "s8", L_W1 + a.pf*2048, a.dp)
            A("L_h_npf:")

    def tail1(self):
        A = self.A; a = self.a
        A(f"""
        s_mov_b32 exec_hi, 0
        s_nop 6
        ds_write_b128 v40, v[20:23] offset:{L_R1}
        s_mov_b64 exec, -1
        """)
        self.samexcd(132)
        A("s_cselect_b32 s95, 1, 0")
        if a.oc == 1:
            A("s_cmp_eq_u32 s3, 0\ns_cbranch_scc0 L_h_no2")
            self.clears2()
            A("s_waitcnt vmcnt(0)\nL_h_no2:")
        if not a.pfe: self.tpf()
        A("s_waitcnt lgkmcnt(0)\ns_barrier")
        self.stamp(6)
        A("s_cmp_eq_u32 s3, 0\ns_cbranch_scc0 L_opub\ns_mov_b32 exec_hi, 0")
        self.sum8("v5", L_R1, 512)
        A("v_cvt_pk_bf16_f32 v46, v64, v65\nv_cvt_pk_bf16_f32 v47, v66, v67\nv_min_u32 v46, -2, v46\nv_min_u32 v47, -2, v47\ns_cmp_eq_u32 s95, 1")
        self.store2([f"buffer_store_dwordx2 v[46:47], v41, {sr(WS)}, s88 offen"], 132)
        A("s_mov_b64 exec, -1\nL_opub:")
        self.stamp(5)
        if a.notail: A("s_branch L_fin")
        A("s_cmp_eq_u32 s100, 1\ns_cbranch_scc1 L_mlp\ns_cmp_eq_u32 s100, 2\ns_cbranch_scc0 L_fin")

    def reducer(self):
        A = self.A; a = self.a
        self.poll(self.red_small(), [143, 144], 8, 8, first_loaded=True)
        A("""
        v_lshlrev_b32 v208, v14, v143
        v_and_b32 v208, 0xffff0000, v208
        v_lshlrev_b32 v209, v14, v145
        v_and_b32 v209, 0xffff0000, v209
        """)
        self.poll(self.oloads(), range(200, 208), 8, 512, first_loaded=True, sleep=a.so)
        for k in range(2):
            for m in range(2):
                A(f"{MF} {q4(96+4*m)}, {q4(152+8*k+4*m)}, {q4(200+4*k)}, {'0' if k == 0 else q4(96+4*m)}")
        A("v_cmp_lt_u32 vcc, 7, v3\ns_nop 6")
        for r in range(4): A(f"v_cndmask_b32 v{96+r}, v{96+r}, v{100+r}, vcc")
        A("ds_write_b128 v48, v[96:99]\ns_waitcnt lgkmcnt(0)\ns_barrier\ns_cmp_eq_u32 s3, 0\ns_cbranch_scc0 L_apdone")
        self.sum8("v49", 0, 1024)
        for r in range(4): A(f"v_min_u32 v{96+r}, -2, v{64+r}")
        A(f"buffer_store_dwordx4 v[96:99], v5, {sr(WS)}, s94 offen sc1\nL_apdone:")
        self.stamp(7)
        self.sleep(a.wap)
        self.poll([f"buffer_load_dwordx4 v[64:67], v45, {sr(WS)}, s92 offen sc1"], range(64, 68), 8, 16, sleep=a.sr)
        self.red_fin()
        A("v_min_u32 v68, -2, v68\nv_min_u32 v69, -2, v69\ns_mov_b64 exec, 0xff\ns_cmp_eq_u32 s95, 1")
        self.store2([f"buffer_store_dwordx2 v[68:69], v41, {sr(WS)}, s91 offen"], 132)
        A("s_mov_b64 exec, -1")
        self.stamp(8)
        A(f"""
        s_cmp_eq_u32 s3, 7
        s_cbranch_scc0 L_fin
        v_lshlrev_b32 v208, v14, v144
        v_and_b32 v208, 0xffff0000, v208
        v_mul_u32_u24 v10, 20480, v9
        v_lshl_add_u32 v10, v146, 4, v10
        v_mul_u32_u24 v12, 1280, v1
        s_lshl_b32 s8, s96, 7
        s_add_u32 s8, s8, {hex(WS_OP)}
        s_add_u32 s9, s8, {8*20480}
        s_add_u32 s10, s8, {16*20480}
        s_add_u32 s11, s8, {24*20480}
        s_lshl_b32 s88, s96, 3
        """)
        self.poll([f"buffer_load_dword v145, v149, {sr(WS)}, s99 offen sc1"], [145], 13, 32, sleep=2)
        A("v_lshlrev_b32 v209, v14, v145\nv_and_b32 v209, 0xffff0000, v209")
        self.sleep(a.wop)
        loads = [f"buffer_load_dwordx4 {q4(64+4*i)}, v10, {sr(WS)}, s{8+i} offen sc1" for i in range(4)]
        self.poll(loads, range(64, 80), 13, 16, sleep=a.sr)
        for a_, b_ in ((64, 68), (72, 76), (64, 72)):
            for r in (0, 2): self.pk("add", a_+r, a_+r, q2(b_+r))
        A("s_nop 0")
        self.red_fin()
        A(f"""
        s_mov_b64 exec, 0xff
        buffer_store_dwordx2 v[68:69], v12, {sr(OUT)}, s88 offen {a.of}
        s_mov_b64 exec, -1
        """)
        self.stamp(9)
        A("s_branch L_fin")

    def mlp(self):
        A = self.A; a = self.a
        W1F, W2F, AC, GR = 64, 104, 136, 152
        np_ = (40 - a.pf)//8; assert (40 - a.pf) % 8 == 0 and a.pf <= 32
        A("L_mlp:")
        self.w1addr(15, 14, 12)
        A(f"""
        s_mul_i32 s86, s3, {np_*16*3456}
        s_add_u32 s86, s86, {a.pf*16*3456}
        s_mul_i32 s87, s3, {np_*2048}
        s_add_u32 m0, s87, {L_W1 + a.pf*2048}
        s_add_u32 s87, s87, {L_W1 + a.pf*2048 + np_*2048}
        s_barrier
        """)
        if a.oc == 2:
            A("s_cmp_eq_u32 s3, 0\ns_cbranch_scc0 L_h_no2")
            self.clears2()
            A("L_h_no2:")
        self.w1loop("L_t1", 15, 14, "s86", "s87")
        if not a.w2e:
            self.w2addr(15, 14, 12)
            A(f"""
            s_lshl_b32 s87, s3, 11
            s_add_u32 m0, s87, {L_W2}
            s_mul_i32 s86, s3, {8*1280}
            buffer_load_dwordx4 v15, {sr(TB)}, s86 offen nt lds
            buffer_load_dwordx4 v14, {sr(TB)}, s86 offen offset:1024 nt lds
            s_cmp_eq_u32 s93, 2
            s_cbranch_scc1 L_mlp_nt
            s_add_u32 m0, m0, 16384
            s_add_u32 s86, s86, 256
            buffer_load_dwordx4 v15, {sr(TB)}, s86 offen nt lds
            buffer_load_dwordx4 v14, {sr(TB)}, s86 offen offset:1024 nt lds
            L_mlp_nt:
            """)
        A(f"v_add_u32 v8, {L_CS}, v7")
        for i in range(5): A(f"ds_read_b32 v{133+i}, v8 offset:{10240 + i*2048}")
        for i in range(5): A(f"ds_read_b32 v{138+i}, v8 offset:{i*2048}")
        A("s_waitcnt lgkmcnt(0)")
        self.poll([self.flg()] + self.mlp_small(), list(range(132, 143)), 8, 64, first_loaded=True)
        for i in range(5):
            self.unpack(208+2*i, 209+2*i, 133+i)
            A(f"v_add_f32 v{208+2*i}, 1.0, v{208+2*i}\nv_add_f32 v{209+2*i}, 1.0, v{209+2*i}")
            A(f"v_cvt_pk_bf16_f32 v8, v{208+2*i}, v{209+2*i}")
            self.unpack(208+2*i, 209+2*i, 8)
            self.unpack(218+2*i, 219+2*i, 138+i)
        A(f"""
        v_lshrrev_b32 v8, 2, v3
        v_lshlrev_b32 v10, 10, v2
        v_lshl_add_u32 v10, v8, 7, v10
        v_lshl_add_u32 v10, v13, 3, v10
        s_lshr_b32 s8, s3, 1
        s_mul_i32 s9, s8, 20480
        s_add_u32 s9, s9, {L_W1}
        v_add_u32 v10, s9, v10
        v_and_b32 v9, 1, v2
        v_lshrrev_b32 v12, 3, v3
        v_lshl_add_u32 v12, v9, 1, v12
        s_and_b32 s10, s3, 1
        s_lshl_b32 s10, s10, 1
        v_xor_b32 v12, s10, v12
        v_xor_b32 v184, 1, v12
        v_lshl_add_u32 v184, v184, 5, v10
        v_lshl_add_u32 v10, v12, 5, v10
        v_lshl_add_u32 v11, v2, 2, v8
        v_lshlrev_b32 v11, 8, v11
        v_lshl_add_u32 v11, v13, 3, v11
        v_add_u32 v11, {L_W2}, v11
        v_lshl_add_u32 v12, v9, 2, v8
        s_and_b32 s9, s3, 3
        s_lshl_b32 s9, s9, 1
        v_xor_b32 v12, s9, v12
        v_xor_b32 v185, 1, v12
        v_lshl_add_u32 v185, v185, 5, v11
        v_lshl_add_u32 v11, v12, 5, v11
        v_lshlrev_b32 v186, 6, v146
        v_lshl_add_u32 v186, v2, 4, v186
        s_mul_i32 s9, s8, 2560
        v_add_u32 v186, s9, v186
        s_lshl_b32 s9, s3, 11
        s_add_u32 s9, s9, {L_G1}
        v_add_u32 v187, s9, v5
        v_lshrrev_b32 v9, 3, v3
        v_lshlrev_b32 v188, 10, v9
        v_lshl_add_u32 v188, v2, 8, v188
        v_lshl_add_u32 v188, v146, 4, v188
        v_add_u32 v188, {L_G1}, v188
        v_lshlrev_b32 v190, 4, v146
        v_lshl_add_u32 v190, v2, 7, v190
        s_add_u32 s43, s90, 4096
        s_add_u32 s89, s90, 8192
        s_lshl_b32 s9, s3, 10
        s_add_u32 s42, s101, s9
        s_mov_b32 s86, 0x00ff00ff
        s_mov_b32 s87, 0x00ff00ff
        s_add_u32 s88, s42, 4096
        """)
        if a.dry: A("s_mov_b32 s99, 0\ns_branch L_mc\nL_mb:\ns_mov_b32 s99, 1")
        A("s_waitcnt vmcnt(0)")
        A("""
        s_barrier
        """)
        self.stamp(1)
        loads = [f"buffer_load_dword v{24+i}, v7, {sr(WS)}, {['s90','s43','s89'][i//2]} offen offset:{(i%2)*2048} sc1" for i in range(5)]
        for l in loads: A(l)
        for k in range(5):
            for t in range(2):
                r = W1F + 8*k + 4*t
                A(f"ds_read_b64_tr_b16 {q2(r)}, {'v184' if t else 'v10'} offset:{k*4096}")
                A(f"ds_read_b64_tr_b16 {q2(r+2)}, {'v184' if t else 'v10'} offset:{k*4096 + 512}")
        A("s_cmp_ge_u32 s3, 4\ns_cbranch_scc1 L_now2")
        for m in range(4):
            for j in range(2):
                r = W2F + 8*m + 4*j
                A(f"ds_read_b64_tr_b16 {q2(r)}, {'v185' if m % 2 else 'v11'} offset:{(m//2)*16384 + j*8192}")
                A(f"ds_read_b64_tr_b16 {q2(r+2)}, {'v185' if m % 2 else 'v11'} offset:{(m//2)*16384 + j*8192 + 4096}")
        A("L_now2:\ns_waitcnt vmcnt(0)")
        self.poll(loads, range(24, 29), 8, 128, first_loaded=True, sleep=a.sx)
        self.stamp(8)
        A("L_mc:")
        if a.fast:
            self.ln_body(True)
            for i in range(5): A(f"v_pk_fma_f32 {q2(32+2*i)}, {q2(32+2*i)}, {q2(208+2*i)}, {q2(218+2*i)}")
        else:
            self.ln_body(False, pack=False)
            self.rnd(range(32, 42))
            for i in range(5): self.pk("mul", 32+2*i, 32+2*i, q2(208+2*i))
            self.rnd(range(32, 42))
            for i in range(5): self.pk("add", 32+2*i, 32+2*i, q2(218+2*i))
        for i in range(5):
            A(f"v_cvt_pk_bf16_f32 v{24+i}, v{32+2*i}, v{33+2*i}")
            A(f"ds_write_b32 v7, v{24+i} offset:{L_ACT + i*2048}")
        A("s_waitcnt lgkmcnt(0)\ns_barrier")
        for k in range(5): A(f"ds_read_b128 {q4(32+4*k)}, v186 offset:{L_ACT + k*512}")
        for k in range(5):
            A(f"s_waitcnt lgkmcnt({4-k})")
            for t in range(2):
                A(f"{MF} {q4(AC+4*t)}, {q4(W1F+8*k+4*t)}, {q4(32+4*k)}, {'0' if k == 0 else q4(AC+4*t)}")
        A(f"s_nop 6\nds_write_b128 v187, {q4(AC)}\nds_write_b128 v187, {q4(AC+4)} offset:1024\ns_waitcnt lgkmcnt(0)\ns_barrier")
        A("s_cmp_ge_u32 s3, 4\ns_cbranch_scc1 " + ("L_m4" if a.dry else "L_fin"))
        for j in range(2):
            for k in range(4): A(f"ds_read_b128 {q4(GR+16*j+4*k)}, v188 offset:{k*4096 + j*2048}")
        for j in range(2):
            b0 = GR + 16*j
            A(f"s_waitcnt lgkmcnt({4-4*j})")
            for a_, b_ in ((0, 4), (8, 12), (0, 8)):
                for r in (0, 2): self.pk("add", b0+a_+r, b0+a_+r, q2(b0+b_+r))
            for r in range(4): A(f"v_cvt_pk_bf16_f32 v{32+4*j+r}, 0, v{b0+r}")
        A(f"s_mov_b32 s8, {hex(NLOG2E)}")
        for r in range(0, 8, 2): self.pk("mul", 40+r, 32+r, "s[8:9]", "op_sel_hi:[1,0]")
        for r in range(8): A(f"v_exp_f32 v{40+r}, v{40+r}")
        for r in range(0, 8, 2): self.pk("add", 40+r, 40+r, "1.0", "op_sel_hi:[1,0]")
        for r in range(8): A(f"v_rcp_f32 v{40+r}, v{40+r}")
        for r in range(0, 8, 2): self.pk("mul", 32+r, 32+r, q2(40+r))
        A(f"""
        v_cvt_pk_bf16_f32 v24, v32, v33
        v_cvt_pk_bf16_f32 v25, v34, v35
        v_cvt_pk_bf16_f32 v28, v36, v37
        v_cvt_pk_bf16_f32 v29, v38, v39
        v_mov_b32_dpp v26, v24 row_ror:8 {DPPF}
        v_mov_b32_dpp v27, v25 row_ror:8 {DPPF}
        v_mov_b32_dpp v30, v28 row_ror:8 {DPPF}
        v_mov_b32_dpp v31, v29 row_ror:8 {DPPF}
        """)
        for hf in range(2):
            for j in range(2):
                for m in (2*hf, 2*hf+1):
                    A(f"{MF} {q4(AC+4*m)}, {q4(W2F+8*m+4*j)}, {q4(24+4*j)}, {'0' if j == 0 else q4(AC+4*m)}")
        if a.dry: A("s_cmp_eq_u32 s99, 0\ns_cbranch_scc1 L_mb")
        A("s_mov_b64 exec, s[86:87]\ns_cmp_eq_u32 s93, 2\ns_nop 0")
        for m in range(4):
            if m == 2: A("s_cbranch_scc1 L_opd")
            for r in range(4): A(f"v_min_u32 v{AC+4*m+r}, -2, v{AC+4*m+r}")
            A(f"buffer_store_dwordx4 {q4(AC+4*m)}, v190, {sr(WS)}, {'s42' if m < 2 else 's88'} offen offset:{(m%2)*512} sc1")
        A("L_opd:")
        A("s_mov_b64 exec, -1")
        self.stamp(9)
        if a.dry: A("s_branch L_fin\nL_m4:\ns_cmp_eq_u32 s99, 0\ns_cbranch_scc1 L_mb")

    def finish(self):
        A = self.A
        A("L_fin:\ns_cmp_eq_u32 s15, 0\ns_cbranch_scc1 L_noerr")
        A(f"v_mov_b32 v8, s15\ns_mov_b64 exec, 1\nbuffer_atomic_or v8, off, {sr(DBG)}, 0 offset:4 sc1\ns_mov_b64 exec, -1\nL_noerr:")
        if self.a.fix: A(f"""
        s_cmp_eq_u32 s2, 0
        s_cbranch_scc0 L_end
        s_add_u32 s8, s16, {self.a.fix*100}
        L_fixw:
        s_sleep 4
        s_memrealtime s[10:11]
        s_waitcnt lgkmcnt(0)
        s_sub_u32 s10, s8, s10
        s_cmp_gt_i32 s10, 0
        s_cbranch_scc1 L_fixw
        """)
        if self.a.stamps:
            self.stamp(10)
            A("s_waitcnt lgkmcnt(0)")
            self.srdo(STS, f"s{WS}", f"s{WS+1}", hex(STAMP_OFF), "0x100000")
            A("s_mov_b32 s38, s97\ns_lshl_b32 s39, s100, 8\ns_or_b32 s39, s39, s85")
            A(f"s_mul_i32 s8, s2, {12*8*2}")
            A("s_cmp_eq_u32 s3, 0\ns_cbranch_scc1 L_st\ns_cmp_eq_u32 s3, 7\ns_cbranch_scc0 L_end\ns_add_u32 s8, s8, 96\nL_st:\ns_mov_b64 exec, 1")
            for k in range(12):
                A(f"v_mov_b32 v8, s{16+2*k}\nv_mov_b32 v9, s{17+2*k}\nbuffer_store_dwordx2 v[8:9], off, {sr(STS)}, s8 offset:{8*k}\ns_nop 1")
        A("L_end:\ns_endpgm")

    def subs(self):
        A = self.A
        pass
    def rnd(self, regs):
        for r in regs: self.A(f"v_cvt_pk_bf16_f32 v{r}, 0, v{r}")
    def ln_body(self, fast, pack=True):
        A = self.A
        for i in range(5):
            self.unpack(32+2*i, 33+2*i, 24+i)
            if i == 0: A("v_readfirstlane_b32 s8, v32")
        NEG = "op_sel_hi:[1,0] neg_lo:[0,1] neg_hi:[0,1]"
        for i in range(5): self.pk("add", 42+2*i, 32+2*i, "s[8:9]", NEG)
        self.pk("add", 52, 42, "v[44:45]"); self.pk("mul", 54, 42, "v[42:43]")
        for i in range(1, 5):
            if i > 1: self.pk("add", 52, 52, q2(42+2*i))
            A(f"v_pk_fma_f32 v[54:55], {q2(42+2*i)}, {q2(42+2*i)}, v[54:55]")
        A("v_add_f32 v52, v52, v53\nv_add_f32 v53, v54, v55\ns_nop 0")
        for c in (f"row_ror:1 {DPPF}", f"row_ror:2 {DPPF}", f"row_ror:4 {DPPF}", f"row_ror:8 {DPPF}",
                  "row_bcast:15 row_mask:0xa bank_mask:0xf", "row_bcast:31 row_mask:0xc bank_mask:0xf"):
            A(f"v_add_f32_dpp v52, v52, v52 {c}\nv_add_f32_dpp v53, v53, v53 {c}\ns_nop 0")
        A(f"""
        v_readlane_b32 s9, v52, 63
        v_readlane_b32 s10, v53, 63
        v_mov_b32 v54, {hex(INV640)}
        s_nop 0
        v_mul_f32 v52, s9, v54
        v_mul_f32 v53, s10, v54
        v_fma_f32 v53, -v52, v52, v53
        v_add_f32 v52, s8, v52
        v_max_f32 v53, 0, v53
        v_cvt_pk_bf16_f32 v52, 0, v52
        v_cvt_pk_bf16_f32 v54, 0, v53
        v_add_f32 v54, {hex(EPS)}, v54
        v_cvt_pk_bf16_f32 v54, 0, v54
        v_sqrt_f32 v54, v54
        """)
        for i in range(5): self.pk("add", 32+2*i, 32+2*i, "v[52:53]", NEG)
        A("v_cvt_pk_bf16_f32 v54, 0, v54\nv_rcp_f32 v54, v54")
        if fast: A("s_nop 0")
        else: self.rnd(range(32, 42))
        for i in range(5): self.pk("mul", 32+2*i, 32+2*i, "v[54:55]", "op_sel_hi:[1,0]")
        if not fast and pack:
            for i in range(5): A(f"v_cvt_pk_bf16_f32 v{24+i}, v{32+2*i}, v{33+2*i}")

if __name__ == "__main__":
    ap = argparse.ArgumentParser()
    ap.add_argument("-o", default="k.s"); ap.add_argument("--stamps", action="store_true")
    ap.add_argument("--fast", action="store_true"); ap.add_argument("--nolocal", action="store_true"); ap.add_argument("--notail", action="store_true")
    for n, v in dict(dp=0, n00=0, dry=0, i2=26, fix=0, w2e=0, pfe=0, cpf=3, oc=0, cl=0, sc=2, nfree=3, fs=2, w7=1, hpos=0, rows=0, remap=1, dw=10, dm=4, nref=100, dl=4, wap=16, mode=0, lead=0, de=6, ne=0, dh=12, pf=0, rx=0, ry=0, par=0, diag=0, limit=400000, pad=20480, depth=3, d0=3, nm=3, n0=16, chk=3, d1=4, d2=8, ism=21, wa=0, w2=0, w3=0,
                     s1=8, s2=2, sr=0, sx=0, so=0, wx=20, wop=0).items():
        ap.add_argument("--" + n, type=int, default=v)
    ap.add_argument("--wof", default="")
    ap.add_argument("--w1f", default=""); ap.add_argument("--w2f", default="nt")
    ap.add_argument("--delay", default=""); ap.add_argument("--of", default=""); ap.add_argument("--x", default=""); ap.add_argument("--cf", default="sc1")
    ap.add_argument("--hm", default="4,1")
    a = ap.parse_args(); a.hm = [int(v) for v in a.hm.split(",")]
    txt = G(a).gen()
    if 's' in a.x: txt = "\n".join(l for l in txt.split("\n") if not ("buffer_store" in l and "s[52:55]" in l))
    drop = lambda pred: "\n".join(l for l in txt.split("\n") if not pred(l))
    if 'e' in a.x: txt = drop(lambda l: "buffer_atomic_or" in l)
    if 'S' in a.x: txt = drop(lambda l: "buffer_store" in l and "sc1" in l)
    if 'A' in a.x: txt = drop(lambda l: "s[80:83]" in l)
    if 'O' in a.x: txt = drop(lambda l: "buffer_store_dwordx2 v[46:47]" in l)
    if 'L' in a.x: txt = drop(lambda l: "buffer_load_dwordx4 v[128:131]" in l)
    if 'M' in a.x: txt = drop(lambda l: "buffer_load_dword v132" in l)
    if 'f' in a.x: txt = drop(lambda l: "buffer_store_dword v12, off" in l)
    if 'F' in a.x: txt = drop(lambda l: "buffer_store_dword v1, off" in l)
    if 'g' in a.x: txt = drop(lambda l: "buffer_store_dwordx4 v[192:195]" in l)
    if 'i' in a.x: txt = drop(lambda l: "buffer_store_dwordx4 v[8:11]" in l)
    if 'p' in a.x: txt = drop(lambda l: "buffer_store_dwordx4 v[40:43]" in l)
    if 'q' in a.x: txt = drop(lambda l: "buffer_store_dwordx4 v[32:35]" in l or "buffer_store_dwordx4 v[36:39]" in l)
    if 'l' in a.x: txt = "\n".join(l for l in txt.split("\n") if not ("buffer_load" in l and "s[52:55]" in l))
    open(a.o, "w").write(txt)
```

```python
import argparse
NAME = "adaLN_cond__sliding_block_cached__dense_activation_silu__decode"

WS_MOD  = 0x00000
WS_FLG  = 61440
WS_FLB  = 62464
WS_QF   = 63488
NCLR    = 8
WS_X1   = 0x40000
WS_O    = 0x30000
WS_AP   = 0x60000
WS_QP   = 0x100000
WS_OP   = 0x180000
WS_END  = WS_OP + 27*20480
STAMP_OFF = 0x20000000
L_Q, L_SM, L_FL = 0, 256, 384
L_ACT, L_XN, L_TA = 1024, 11264, 21504
L_KH  = 62464
L_W1  = L_TA
L_W2  = L_W1 + 81920
L_WO  = L_W2
L_G1  = L_W2 + 32768
L_TB  = L_G1
L_BN  = L_G1 + 16384
L_CS  = L_G1
L_END = L_BN + 4096
L_R1  = L_XN
assert L_KH + 35*1024 <= L_WO and L_END <= 163840
LOG2E, NLOG2E, SCALE, INV640, EPS = 0x3fb8aa3b, 0xbfb8aa3b, 0x3db504f3, 0x3acccccd, 0x3727c5ac
K, V, WS, WO, TA, TB, X, C, OUT, DBG, T0 = 44, 48, 52, 56, 60, 64, 68, 72, 76, 80, 92
KH = C
STS = 40
sr = lambda r: f"s[{r}:{r+3}]"
DPPF = "row_mask:0xf bank_mask:0xf"
MF = "v_mfma_f32_16x16x32_bf16"
q4 = lambda r: f"v[{r}:{r+3}]"
q2 = lambda r: f"v[{r}:{r+1}]"

class G:
    def __init__(self, a):
        self.L = []; self.lab = 0; self.a = a
    def A(self, s):
        for x in s.split("\n"):
            x = x.strip()
            if x: self.L.append(("" if x.endswith(":") else "    ") + x)
    def newlab(self, p="L"):
        self.lab += 1; return f"{p}_{self.lab}"
    def stamp(self, k, diag=0):
        if self.a.stamps and diag == self.a.diag: self.A(f"s_memrealtime s[{16+2*k}:{17+2*k}]")
    def srd(self, d, lo, hi, size):
        self.A(f"s_mov_b32 s{d}, {lo}\ns_mov_b32 s{d+1}, {hi}\ns_mov_b32 s{d+2}, {size}\ns_mov_b32 s{d+3}, 0x20000")
    def srdo(self, d, lo, hi, off, size):
        self.A(f"s_add_u32 s{d}, {lo}, {off}\ns_addc_u32 s{d+1}, {hi}, 0\ns_mov_b32 s{d+2}, {size}\ns_mov_b32 s{d+3}, 0x20000")
    def unpack(self, lo, hi, src):
        self.A(f"v_lshlrev_b32 v{lo}, 16, v{src}\nv_and_b32 v{hi}, 0xffff0000, v{src}")
    def pk(self, op, d, a, b, mods=""):
        self.A(f"v_pk_{op}_f32 {q2(d)}, {q2(a)}, {b} {mods}")
    def maxtree(self, dst, regs):
        regs = list(regs); A = self.A
        if len(regs) == 2:
            A(f"v_max_u32 v{dst}, v{regs[0]}, v{regs[1]}"); return
        A(f"v_max3_u32 v{dst}, v{regs[0]}, v{regs[1]}, v{regs[2]}"); regs = regs[3:]
        while len(regs) >= 2:
            A(f"v_max3_u32 v{dst}, v{dst}, v{regs[0]}, v{regs[1]}"); regs = regs[2:]
        if regs: A(f"v_max_u32 v{dst}, v{dst}, v{regs[0]}")
    def poll(self, loads, regs, tmp, code, first_loaded=False, sleep=1):
        A = self.A; regs = list(regs)
        lp = self.newlab("Lpoll"); ck = self.newlab("Lchk"); dn = self.newlab("Lpd")
        A(f"s_mov_b32 s14, {0 if 'e' in self.a.x else self.a.limit}")
        if first_loaded: A(f"s_branch {ck}")
        A(f"{lp}:")
        for l in loads: A(l)
        A("s_waitcnt vmcnt(0)")
        A(f"{ck}:")
        if len(regs) == 1: tmp = regs[0]
        else: self.maxtree(tmp, regs)
        A(f"v_cmp_eq_u32 vcc, -1, v{tmp}\ns_cbranch_vccz {dn}\ns_mov_b64 exec, vcc")
        if sleep: A(f"s_sleep {sleep}")
        A(f"s_sub_u32 s14, s14, 1\ns_cbranch_scc0 {lp}\ns_or_b32 s15, s15, {code}\n{dn}:\ns_mov_b64 exec, -1")
    def sleep(self, n):
        while n > 0:
            self.A(f"s_sleep {min(n, 120)}"); n -= 120
    def spin(self, off, target, code, vt=12, va=15):
        a = self.newlab("Lsp"); b = self.newlab("Lspd")
        self.A(f"""
        s_mov_b32 s14, {self.a.limit*8}
        {a}:
        ds_read_b32 v{vt}, v{va} offset:{off}
        s_waitcnt lgkmcnt(0)
        v_readfirstlane_b32 s8, v{vt}
        s_nop 0
        s_cmp_ge_u32 s8, {target}
        s_cbranch_scc1 {b}
        s_sleep 1
        s_sub_u32 s14, s14, 1
        s_cbranch_scc0 {a}
        s_or_b32 s15, s15, {code}
        {b}:
        """)
    def bump(self, off, vt=12, va=15):
        self.A(f"v_mov_b32 v{vt}, 1\ns_mov_b64 exec, 1\nds_add_u32 v{va}, v{vt} offset:{off}\ns_mov_b64 exec, -1")
    def silu(self, regs, tmps):
        A = self.A
        for r, t in zip(regs, tmps): A(f"v_mul_f32 v{t}, {hex(NLOG2E)}, v{r}")
        for t in tmps: A(f"v_exp_f32 v{t}, v{t}")
        A("s_nop 0")
        for t in tmps: A(f"v_add_f32 v{t}, 1.0, v{t}")
        for t in tmps: A(f"v_rcp_f32 v{t}, v{t}")
        A("s_nop 0")
        for r, t in zip(regs, tmps): A(f"v_mul_f32 v{r}, v{r}, v{t}")
    def store2(self, stores, cond_reg):
        a = self.newlab("Lwt"); b = self.newlab("Lsd")
        self.A(f"s_cbranch_scc0 {a}")
        for s in stores: self.A(s)
        self.A(f"s_branch {b}\n{a}:")
        for s in stores: self.A(s + " sc1")
        self.A(f"{b}:")
    def samexcd(self, reg):
        if self.a.nolocal: self.A("s_cmp_eq_u32 s3, 99")
        elif 'z' in self.a.x: self.A("s_cmp_eq_u32 s3, s3")
        else: self.A(f"v_cmp_ne_u32 vcc, s97, v{reg}\ns_cmp_eq_u64 vcc, 0")

    def prologue(self, kload):
        A = self.A; a = self.a
        ek = -(-(WS_FLG + (256 << a.fs)) // 8192)
        self.L += [f"; @launch grid=(256,1,1) block=(512,1,1) lds={L_END}",
                   '.amdgcn_target "amdgcn-amd-amdhsa--gfx950"', ".text", f".globl {NAME}_kernel", ".p2align 8",
                   f".type {NAME}_kernel,@function", f"{NAME}_kernel:"]
        A("""
        s_cmp_ge_u32 s2, 256
        s_cbranch_scc1 L_end
        s_load_dwordx16 s[16:31], s[0:1], 0
        s_load_dwordx8 s[32:39], s[0:1], 64
        s_load_dwordx2 s[40:41], s[0:1], 96
        """)
        if a.stamps or a.fix: A("s_memrealtime s[42:43]")
        A(f"""
        v_lshrrev_b32 v1, 6, v0
        s_and_b32 s4, s2, 7
        v_readfirstlane_b32 s3, v1
        """)
        A(f"""
        v_and_b32 v1, 63, v0
        v_lshrrev_b32 v2, 4, v1
        v_and_b32 v3, 15, v1
        v_lshlrev_b32 v4, 6, v3
        v_lshl_add_u32 v4, v2, 4, v4
        v_lshlrev_b32 v5, 4, v1
        v_lshlrev_b32 v6, 2, v1
        v_and_b32 v13, 3, v1
        s_lshr_b32 s5, s2, 3
        s_lshl_b32 s6, s4, 2
        s_and_b32 s8, s5, 3
        s_add_u32 s6, s6, s8
        s_lshr_b32 s7, s5, 2
        """)
        hm = a.hm
        A(f"""
        s_mul_i32 s84, s8, {hm[1]}
        s_mul_i32 s9, s4, {hm[0]}
        s_add_u32 s84, s84, s9
        s_lshl_b32 s8, s7, 5
        s_add_u32 s84, s84, s8
        s_lshl_b32 s14, s84, 20
        """)
        if a.w7: A(f"""
        s_lshl_b32 s9, s3, 10
        s_sub_u32 s9, s9, 1024
        s_cmp_eq_u32 s3, 0
        s_cselect_b32 s9, {224*1024}, s9
        s_cselect_b32 s13, 1, 7
        """)
        else: A("s_lshl_b32 s9, s3, 10\ns_mov_b32 s13, 8")
        A(f"""
        s_sub_u32 s12, 0x40000, s9
        s_add_u32 s14, s14, s9
        s_add_u32 s14, s14, 0xC0000
        """)
        if a.n00:
            A("s_waitcnt lgkmcnt(0)")
            self.srdo(K, "s18", "s19", "s14", "s12")
            A("s_cmp_eq_u32 s3, 0\ns_cbranch_scc1 L_p_k0")
            for i in range(a.n00): kload(i)
            A("L_p_k0:")
        A(f"""
        s_mov_b32 s15, 0
        s_mul_i32 s97, s3, 1280
        s_and_b32 s8, s5, 15
        s_lshr_b32 s8, s8, 1
        s_lshl_b32 s9, s8, 3
        s_add_u32 s9, s9, s4
        s_lshl_b32 s91, s9, 1
        s_and_b32 s10, s5, 1
        s_add_u32 s91, s91, s10
        s_mul_i32 s11, s3, 5120
        s_add_u32 m0, s11, {L_TA}
        v_mov_b32 v15, {L_FL}
        v_mov_b32 v8, 0
        v_mov_b32 v9, 0
        v_mov_b32 v10, 0
        v_mov_b32 v11, 0
        ds_write_b128 v15, v[8:11]
        s_nop 1
        v_mov_b32 v8, -1
        v_mov_b32 v9, -1
        v_mov_b32 v10, -1
        v_mov_b32 v11, -1
        s_cmp_lt_u32 s5, 16
        s_cbranch_scc1 L_p_mod
        s_mov_b32 s85, 1
        v_lshrrev_b32 v12, 3, v1
        v_lshlrev_b32 v12, 13, v12
        v_and_b32 v14, 7, v1
        v_lshl_add_u32 v12, v14, 4, v12
        s_lshl_b32 s99, s4, 3
        s_add_u32 s99, s99, s8
        s_lshr_b32 s9, s8, 1
        s_mul_i32 s9, s9, {hm[1]*256}
        s_mul_i32 s11, s4, {hm[0]*256}
        s_add_u32 s9, s9, s11
        s_and_b32 s11, s8, 1
        s_lshl_b32 s11, s11, 7
        s_add_u32 s9, s9, s11
        s_mul_i32 s10, s10, {320*8192}
        s_add_u32 s9, s9, s10
        s_mov_b32 s11, {8*8192}
        s_waitcnt lgkmcnt(0)
        s_add_u32 s{T0}, s22, s9
        s_addc_u32 s{T0+1}, s23, 0
        s_sub_u32 s{T0+2}, {640*8192}, s9
        s_branch L_p_j
        L_p_mod:
        s_mov_b32 s85, 2
        v_lshrrev_b32 v12, 2, v1
        v_mul_u32_u24 v12, 7680, v12
        v_lshl_add_u32 v12, v13, 4, v12
        s_lshl_b32 s9, s91, 6
        s_mov_b32 s11, {16*7680}
        """)
        if 'm' in a.x: A(f"""
        v_lshrrev_b32 v12, 3, v1
        v_mul_u32_u24 v12, 7680, v12
        v_and_b32 v14, 7, v1
        v_lshl_add_u32 v12, v14, 4, v12
        s_lshr_b32 s9, s91, 1
        s_lshl_b32 s9, s9, 7
        s_mul_i32 s10, s10, {320*7680}
        s_add_u32 s9, s9, s10
        s_mov_b32 s11, {8*7680}
        """)
        A(f"""
        s_mov_b32 s99, 0
        s_waitcnt lgkmcnt(0)
        s_add_u32 s{T0}, s34, s9
        s_addc_u32 s{T0+1}, s35, 0
        s_sub_u32 s{T0+2}, {640*7680}, s9
        s_cmp_lt_u32 s91, 120
        s_cbranch_scc1 L_p_j
        s_mov_b32 s85, 8
        s_mov_b32 s{T0+2}, 0
        L_p_j:
        s_mov_b32 s{T0+3}, 0x20000
        """)
        if 'n' in a.x: A(f"s_mov_b32 s{T0+2}, 0")
        self.srd(WS, "s40", "s41", hex(WS_END)); self.srd(DBG, "s38", "s39", 256)
        self.srd(X, "s16", "s17", 10240); self.srd(C, "s32", "s33", 10240)
        A(f"""
        s_lshl_b32 s87, s6, 3
        s_add_u32 s87, s87, s7
        s_cmp_eq_u32 s3, 0
        s_cbranch_scc0 L_p_nh
        s_setprio 3
        s_cmp_eq_u32 s85, 8
        s_cbranch_scc0 L_p_nc
        """)
        if 'A' in a.delay:
            for _ in range(12): A("s_sleep 120")
        A(f"""
        s_sub_u32 s8, s91, 120
        s_mul_i32 s8, s8, {ek*1024}
        """)
        for i in range(ek):
            if i and i % 4 == 0: A("s_add_u32 s8, s8, 4096")
            A(f"buffer_store_dwordx4 v[8:11], v5, {sr(WS)}, s8 offen offset:{(i%4)*1024} sc1")
        A(f"""
        s_waitcnt vmcnt(0)
        v_mov_b32 v14, 1
        s_mov_b64 exec, 1
        buffer_atomic_add v14, off, {sr(DBG)}, 0 sc1
        s_mov_b64 exec, -1
        s_sub_u32 s8, s91, 120
        s_mul_i32 s8, s8, 20480
        s_add_u32 s8, s8, {hex(WS_AP)}
        s_add_u32 s9, s8, 20480
        L_p_c2:
        buffer_store_dwordx4 v[8:11], v5, {sr(WS)}, s8 offen sc1
        s_add_u32 s8, s8, 1024
        s_cmp_lt_u32 s8, s9
        s_cbranch_scc1 L_p_c2
        L_p_nc:
        L_p_nh:
        s_cmp_eq_u32 s85, 2
        s_cbranch_scc0 L_p_nxc
        """)
        A("s_sub_u32 s8, s91, 20\ns_cmp_lt_u32 s8, 20\ns_cbranch_scc0 L_p_nx")
        for i in range(5): A(f"buffer_load_dword v{24+i}, v6, {sr(X)}, s97 offen offset:{i*256}")
        A("L_p_nx:")
        for i in range(5): A(f"buffer_load_dword v{56+i}, v6, {sr(C)}, s97 offen offset:{i*256}")
        A("L_p_nxc:\ns_mul_i32 s8, s3, s11\ns_mul_i32 s8, s8, 5")
        for u in range(5):
            A(f"buffer_load_dwordx4 v12, {sr(T0)}, s8 offen nt lds")
            if u < 4: A("s_add_u32 m0, m0, 1024\ns_add_u32 s8, s8, s11")
        if not a.n00: self.srdo(K, "s18", "s19", "s14", "s12")
        self.stamp(10, 7)
        A("s_waitcnt lgkmcnt(0)\ns_barrier")

    def setup2(self):
        A = self.A
        self.srdo(V, "s20", "s21", "s14", "s12")
        A(f"""
        s_sub_i32 s98, s5, 12
        """)
        if self.a.remap: A("""
        s_and_b32 s8, s98, 3
        s_lshl_b32 s8, s8, 1
        s_lshr_b32 s9, s98, 2
        s_add_u32 s8, s8, s9
        s_cmp_lt_u32 s98, 8
        s_cselect_b32 s98, s8, s98
        """)
        A(f"""
        s_max_i32 s9, s98, 0
        s_lshl_b32 s9, s9, 6
        s_mul_i32 s8, s4, {self.a.hm[0]*128*1280}
        s_add_u32 s8, s8, s9
        s_add_u32 s{WO}, s24, s8
        s_addc_u32 s{WO+1}, s25, 0
        s_sub_u32 s{WO+2}, {4096*1280}, s8
        s_mov_b32 s{WO+3}, 0x20000
        """)
        if 'o' in self.a.x: A(f"s_mov_b32 s{WO+2}, 0")
        self.srd(OUT, "s36", "s37", 10240)
        A("s_lshl_b32 s8, s84, 20\ns_add_u32 s8, s8, 0xC0000")
        self.srdo(KH, "s18", "s19", "s8", "0x40000")
        A(f"""
        s_mul_i32 s8, s5, 86
        s_lshr_b32 s8, s8, 8
        s_mul_i32 s9, s8, 3
        s_sub_u32 s93, s5, s9
        s_lshl_b32 s8, s8, 3
        s_add_u32 s8, s8, s4
        s_lshl_b32 s10, s8, 7
        s_add_u32 s{TA}, s28, s10
        s_addc_u32 s{TA+1}, s29, 0
        s_sub_u32 s{TA+2}, {640*3456}, s10
        s_mov_b32 s{TA+3}, 0x20000
        s_mul_i32 s10, s8, {64*1280}
        s_lshl_b32 s11, s93, 9
        s_add_u32 s10, s10, s11
        s_add_u32 s{TB}, s30, s10
        s_addc_u32 s{TB+1}, s31, 0
        s_sub_u32 s{TB+2}, {64*1280}, s11
        s_mov_b32 s{TB+3}, 0x20000
        s_mul_i32 s101, s8, 20480
        s_lshl_b32 s11, s93, 13
        s_add_u32 s101, s101, s11
        s_add_u32 s101, s101, {hex(WS_OP)}
        s_cmp_lt_u32 s8, 27
        s_cselect_b32 s100, 1, 0
        s_cmp_ge_i32 s98, 0
        s_cselect_b32 s100, 2, s100
        s_mul_i32 s90, s4, 10240
        s_add_u32 s90, s90, {hex(WS_X1)}
        s_lshl_b32 s96, s98, 3
        s_add_u32 s96, s96, s4
        s_getreg_b32 s97, hwreg(HW_REG_XCC_ID)
        s_and_b32 s97, s97, 15
        s_lshl_b32 s10, s3, 6
        v_lshlrev_b32 v7, 9, v2
        v_lshl_add_u32 v7, v3, 2, v7
        v_add_u32 v7, s10, v7
        v_lshrrev_b32 v0, 2, v1
        v_mul_u32_u24 v0, 1280, v0
        v_lshl_add_u32 v0, v13, 4, v0
        v_and_b32 v8, 1, v3
        v_lshlrev_b32 v8, 4, v8
        v_mov_b32 v9, 0xffff
        v_lshlrev_b32 v9, v8, v9
        v_lshrrev_b32 v8, 1, v3
        """)
        for r in range(4):
            A(f"v_cmp_eq_u32 vcc, {r}, v8\ns_nop 1\nv_cndmask_b32 v{16+r}, 0, v9, vcc")
        if 'w' in self.a.x: A(f"""
        v_lshrrev_b32 v0, 3, v1
        v_mul_u32_u24 v0, 1280, v0
        v_and_b32 v8, 7, v1
        v_lshl_add_u32 v0, v8, 4, v0
        s_and_b32 s8, s98, 1
        s_mul_i32 s8, s8, {8*1280 - 64}
        v_add_u32 v0, s8, v0
        """)
        if self.a.stamps or self.a.fix: A("s_mov_b32 s16, s42\ns_mov_b32 s17, s43")

    def init1(self):
        A = self.A
        for i in range(5): self.unpack(32+2*i, 33+2*i, 56+i)
        self.silu(list(range(32, 42)), list(range(44, 54)))
        for i in range(5):
            A(f"v_cvt_pk_bf16_f32 v{56+i}, v{32+2*i}, v{33+2*i}")
            A(f"ds_write_b32 v7, v{56+i} offset:{L_ACT + i*2048}")
        A("s_sub_u32 s8, s91, 20\ns_cmp_lt_u32 s8, 20\ns_cbranch_scc0 L_c_a")
        self.ln_body(False)
        for i in range(5): A(f"ds_write_b32 v7, v{24+i} offset:{L_XN + i*2048}")

    def clears1(self, fl, tag):
        self.A(f"""
        s_lshl_b32 s8, s87, 8
        s_add_u32 s8, s8, {hex(WS_O)}
        s_mov_b64 exec, 0xffff
        buffer_store_dwordx4 v[48:51], v5, {sr(WS)}, s8 offen {fl}
        s_cmp_eq_u32 s100, 2
        s_cbranch_scc0 L_h_nx{tag}
        s_lshl_b32 s8, s98, 9
        s_add_u32 s8, s8, s90
        s_mov_b32 exec_lo, -1
        buffer_store_dwordx4 v[48:51], v5, {sr(WS)}, s8 offen {fl}
        L_h_nx{tag}:
        s_lshl_b32 s8, s87, 2
        s_add_u32 s8, s8, {WS_FLB}
        s_mov_b64 exec, 1
        s_waitcnt vmcnt(0)
        buffer_store_dword v46, off, {sr(WS)}, s8 {fl}
        s_mov_b64 exec, -1
        """)
    def clears2(self):
        A = self.A
        A("v_mov_b32 v192, -1\nv_mov_b32 v193, -1\nv_mov_b32 v194, -1\nv_mov_b32 v195, -1\ns_cmp_eq_u32 s100, 1\ns_cbranch_scc0 L_h_no")
        for i in range(4): A(f"buffer_store_dwordx4 v[192:195], v5, {sr(WS)}, s101 offen offset:{i*1024} sc1")
        A("s_cmp_eq_u32 s93, 2\ns_cbranch_scc1 L_h_no\ns_add_u32 s8, s101, 4096")
        for i in range(4): A(f"buffer_store_dwordx4 v[192:195], v5, {sr(WS)}, s8 offen offset:{i*1024} sc1")
        A("L_h_no:")

    def helper(self, vload):
        A = self.A; a = self.a
        AF = lambda k, nt: (64 + 4*(k*4+nt)) if k < 8 else (208 + 4*((k-8)*4+nt))
        A("L_helper:")
        if 'B' in a.delay:
            A(f"""s_cmp_eq_u32 s85, 8\ns_cbranch_scc0 L_dlB""")
            for _ in range(12): A("s_sleep 120")
            A("L_dlB:")
        if 'M' in a.delay:
            A(f"""s_cmp_eq_u32 s85, 2\ns_cbranch_scc0 L_dlM\ns_cmp_ge_u32 s91, 40\ns_cbranch_scc0 L_dlM\ns_bitcmp1_b32 s91, 1\ns_cbranch_scc0 L_dlM""")
            for _ in range(12): A("s_sleep 120")
            A("L_dlM:")
        if 'Q' in a.delay:
            A(f"""s_cmp_eq_u32 s5, 19\ns_cbranch_scc0 L_dlQ""")
            for _ in range(12): A("s_sleep 120")
            A("L_dlQ:")
        A(f"""
        s_waitcnt vmcnt(0)
        s_cmp_eq_u32 s85, 8
        s_cbranch_scc0 L_h_nb
        v_mov_b32 v14, 1
        s_mov_b64 exec, 1
        buffer_atomic_add v14, off, {sr(DBG)}, 0 offset:128 sc1
        s_mov_b64 exec, -1
        L_h_nb:
        """)
        cld = f"buffer_load_dword v12, off, {sr(DBG)}, 0 sc1"
        if a.cl == 0: A(cld)
        self.spin(4, 7, 256, vt=14)
        if a.cl == 1: A(cld)
        if a.cl == 2: A(f"s_cmp_eq_u32 s85, 2\ns_cbranch_scc0 L_h_c2\n{cld}\nL_h_c2:")
        self.stamp(9)
        A(f"""
        v_lshrrev_b32 v8, 2, v3
        s_cmp_eq_u32 s85, 2
        s_cbranch_scc1 L_h_mod
        v_lshlrev_b32 v10, 10, v2
        v_lshl_add_u32 v10, v8, 7, v10
        v_lshl_add_u32 v10, v13, 3, v10
        """)
        for k in range(10):
            for nt in range(4):
                r = AF(k, nt)
                A(f"ds_read_b64_tr_b16 {q2(r)}, v10 offset:{L_TA + k*4096 + nt*32}")
                A(f"ds_read_b64_tr_b16 {q2(r+2)}, v10 offset:{L_TA + k*4096 + nt*32 + 512}")
        if a.cl == 2: A(f"s_waitcnt lgkmcnt(0)\n{cld}")
        A(f"""
        s_branch L_h_cnt
        L_h_mod:
        v_lshlrev_b32 v10, 9, v2
        v_lshl_add_u32 v10, v8, 6, v10
        v_lshl_add_u32 v10, v13, 3, v10
        """)
        def rd(i):
            A(f"ds_read_b128 {q4(24+4*i)}, v4 offset:{L_ACT + i*1024}")
            for par in range(2):
                for nt in range(2):
                    r = 64 + 4*((2*i+par)*2+nt)
                    A(f"ds_read_b64_tr_b16 {q2(r)}, v10 offset:{L_TA + (2*i+par)*2048 + nt*32}")
                    A(f"ds_read_b64_tr_b16 {q2(r+2)}, v10 offset:{L_TA + (2*i+par)*2048 + nt*32 + 256}")
        if a.stamps: A("s_waitcnt lgkmcnt(0)")
        rd(0)
        for i in range(10):
            if i < 9:
                rd(i+1); A("s_waitcnt lgkmcnt(9)")
            else: A("s_waitcnt lgkmcnt(0)")
            for par in range(2):
                for nt in range(2):
                    r = 64 + 4*((2*i+par)*2+nt); a_ = 224 + 8*par + 4*nt
                    A(f"{MF} {q4(a_)}, {q4(r)}, {q4(24+4*i)}, {'0' if i == 0 else q4(a_)}")
        A(f"""
        v_and_b32 v8, 7, v3
        v_lshrrev_b32 v9, 3, v3
        v_lshlrev_b32 v11, 6, v8
        v_lshl_add_u32 v11, v9, 5, v11
        v_lshl_add_u32 v11, v2, 3, v11
        s_lshl_b32 s9, s91, 9
        s_add_u32 s8, s9, {L_XN - 20*512}
        v_add_u32 v14, s8, v11
        s_nop 1
        """)
        for r in range(4):
            A(f"v_add_f32_dpp v{24+r}, v{232+r}, v{224+r} row_ror:8 row_mask:0xf bank_mask:0x3")
            A(f"v_add_f32_dpp v{24+r}, v{228+r}, v{236+r} row_ror:8 row_mask:0xf bank_mask:0xc")
        A("v_cvt_pk_bf16_f32 v40, v24, v25\nv_cvt_pk_bf16_f32 v41, v26, v27")
        A("s_sub_u32 s8, s91, 20\ns_cmp_lt_u32 s8, 20\ns_cbranch_scc0 L_h_pub")
        A("ds_read_b64 v[42:43], v14")
        for j in range(2): self.unpack(24+2*j, 25+2*j, 40+j)
        for r in range(4): A(f"v_add_f32 v{24+r}, 1.0, v{24+r}")
        for j in range(2): A(f"v_cvt_pk_bf16_f32 v{40+j}, v{24+2*j}, v{25+2*j}")
        for j in range(2): self.unpack(24+2*j, 25+2*j, 40+j)
        A("s_waitcnt lgkmcnt(0)")
        for j in range(2): self.unpack(28+2*j, 29+2*j, 42+j)
        for r in range(4): A(f"v_mul_f32 v{24+r}, v{24+r}, v{28+r}")
        for j in range(2): A(f"v_cvt_pk_bf16_f32 v{40+j}, v{24+2*j}, v{25+2*j}")
        A(f"""
        L_h_pub:
        v_min_u32 v40, -2, v40
        v_min_u32 v41, -2, v41
        v_add_u32 v11, {L_BN}, v11
        v_add_u32 v14, {L_BN}, v5
        ds_write_b64 v11, v[40:41]
        ds_read_b128 v[40:43], v14
        L_h_cnt:
        s_mov_b32 s14, {a.limit}
        L_wc:
        s_waitcnt vmcnt(0)
        v_readfirstlane_b32 s8, v12
        s_nop 0
        s_cmp_ge_u32 s8, {NCLR}
        s_cbranch_scc1 L_wcd
        s_sleep {a.sc}
        buffer_load_dword v12, off, {sr(DBG)}, 0 sc1
        s_sub_u32 s14, s14, 1
        s_cbranch_scc0 L_wc
        s_or_b32 s15, s15, 1
        L_wcd:
        s_cmp_eq_u32 s85, 2
        s_cbranch_scc0 L_h_np
        s_mov_b32 exec_hi, 0
        s_waitcnt lgkmcnt(0)
        buffer_store_dwordx4 v[40:43], v5, {sr(WS)}, s9 offen sc1
        s_mov_b64 exec, -1
        L_h_np:
        s_lshl_b32 s8, s87, {a.fs}
        s_add_u32 s8, s8, {self.fbase()}
        v_mov_b32 v12, s97
        s_mov_b64 exec, 1
        buffer_store_dword v12, off, {sr(WS)}, s8 sc1
        s_mov_b64 exec, -1
        """)
        if a.oc == 0: self.clears2()
        self.stamp(1)
        A(f"""
        s_cmp_lt_i32 s98, 0
        s_cbranch_scc1 L_h_nwo
        s_mov_b32 m0, {L_WO}
        s_mov_b32 s8, 0
        L_h_wo:
        s_waitcnt vmcnt({a.dw-1})
        buffer_load_dwordx4 v0, {sr(WO)}, s8 offen {a.wof} lds
        s_add_u32 m0, m0, 1024
        s_sub_u32 s9, m0, {L_WO}
        s_and_b32 s10, s9, 0x1fff
        s_cselect_b32 s10, 0, {(a.hm[1]-1)*128*1280}
        s_add_u32 s8, s8, s10
        s_add_u32 s8, s8, 20480
        s_cmp_lt_u32 s9, 32768
        s_cbranch_scc1 L_h_wo
        L_h_nwo:
        """)
        A(f"v_and_b32 v14, 0x7c, v6\ns_lshl_b32 s43, s4, 7\ns_add_u32 s43, s43, {WS_FLG}")
        ids = lambda r: f"buffer_load_dword v{r}, v14, {sr(WS)}, s43 offen sc1"
        A("s_bitcmp1_b32 s85, 0\ns_cbranch_scc0 L_h_getq0")
        A(f"""
        v_and_b32 v8, 7, v3
        v_lshrrev_b32 v9, 3, v3
        v_mul_u32_u24 v12, 10240, v9
        v_lshl_add_u32 v12, v8, 6, v12
        v_lshl_add_u32 v12, v2, 4, v12
        v_lshlrev_b32 v196, 8, v8
        v_lshl_add_u32 v196, v9, 6, v196
        v_lshl_add_u32 v196, v2, 4, v196
        v_add_u32 v196, {L_BN}, v196
        v_add_u32 v197, {L_BN}, v5
        v_lshlrev_b32 v198, 10, v2
        v_lshl_add_u32 v198, v3, 4, v198
        s_and_b32 s10, s5, 1
        s_mul_i32 s8, s10, 5120
        s_add_u32 s42, s8, 2560
        s_lshr_b32 s11, s99, 1
        s_and_b32 s9, s5, 15
        s_lshl_b32 s9, s9, 2
        s_add_u32 s9, s9, s43
        s_add_u32 s9, s9, {WS_QF - WS_FLG}
        s_lshl_b32 s11, s11, 13
        s_lshl_b32 s10, s10, 9
        s_add_u32 s11, s11, s10
        s_and_b32 s10, s99, 1
        s_lshl_b32 s10, s10, 8
        s_add_u32 s11, s11, s10
        s_add_u32 s11, s11, {hex(WS_QP)}
        s_add_u32 s10, s11, 4096
        """)
        loads = [f"buffer_load_dwordx4 {q4(24+4*k)}, v12, {sr(WS)}, {'s8' if k < 5 else 's42'} offen offset:{(k%5)*512} sc1" for k in range(10)]
        self.sleep(a.wa - a.lead)
        if a.mode: A("v_mov_b32 v240, 1\nds_write_b32 v15, v240")
        self.sleep(a.lead)
        self.poll(loads, range(24, 64), 241, 2, sleep=a.s1)
        A(ids(12))
        self.stamp(2)
        A("v_cmp_lt_u32 vcc, 7, v3\ns_waitcnt lgkmcnt(0)")
        ACC = [8, 20, 248, 252]
        for k in range(11):
            if k < 10:
                for j in (4*k, 4*k+2):
                    self.unpack(240, 241, 24+j); self.unpack(242, 243, 25+j)
                    for r in range(4): A(f"v_add_f32_dpp v{244+r}, v{240+r}, v{240+r} row_ror:8 {DPPF}")
                    A(f"v_cvt_pk_bf16_f32 v{24+j}, v244, v245\nv_cvt_pk_bf16_f32 v{25+j}, v246, v247")
            if k >= 1:
                for nt in range(4):
                    A(f"{MF} {q4(ACC[nt])}, {q4(AF(k-1, nt))}, {q4(24+4*(k-1))}, {'0' if k == 1 else q4(ACC[nt])}")
        A("s_nop 5")
        for j in range(2):
            for r in range(4): A(f"v_cndmask_b32 v{24+4*j+r}, v{ACC[2*j]+r}, v{ACC[2*j+1]+r}, vcc")
        A("""
        ds_write_b128 v196, v[24:27]
        ds_write_b128 v196, v[28:31] offset:128
        ds_read_b128 v[32:35], v197
        ds_read_b128 v[36:39], v197 offset:1024
        s_waitcnt vmcnt(0)
        """)
        self.samexcd(12)
        A("s_waitcnt lgkmcnt(0)")
        self.store2([f"buffer_store_dwordx4 v[32:35], v198, {sr(WS)}, s11 offen", f"buffer_store_dwordx4 v[36:39], v198, {sr(WS)}, s10 offen",
                     f"s_mov_b64 exec, 1\ns_waitcnt vmcnt(0)\nbuffer_store_dword v1, off, {sr(WS)}, s9"], 12)
        A("s_mov_b64 exec, -1")
        self.stamp(8)
        self.sleep(a.w3)
        A("s_branch L_h_getq\nL_h_getq0:")
        A("s_waitcnt vmcnt(0) lgkmcnt(0)")
        A("s_cmp_lt_i32 s98, 0\ns_cbranch_scc0 L_h_getq")
        for i in range(16):
            A(f"s_waitcnt vmcnt({a.dm-1})")
            vload(i)
        self.sleep(a.w2 - a.lead)
        if a.mode: A("v_mov_b32 v240, 1\nds_write_b32 v15, v240")
        self.sleep(a.lead)
        A(f"""
        L_h_getq:
        v_lshlrev_b32 v12, 2, v13
        s_and_b32 s9, s5, 3
        s_lshl_b32 s9, s9, 4
        s_add_u32 s9, s9, s43
        s_add_u32 s9, s9, {WS_QF - WS_FLG}
        {ids(45)}
        """)
        self.poll([f"buffer_load_dword v44, v12, {sr(WS)}, s9 offen sc1"], [44], 45, 4, sleep=a.s2)
        A(f"""
        v_lshlrev_b32 v12, 3, v1
        s_lshl_b32 s8, s87, 10
        s_add_u32 s8, s8, {hex(WS_QP)}
        buffer_load_dwordx2 v[40:41], v12, {sr(WS)}, s8 offen sc1
        buffer_load_dwordx2 v[42:43], v12, {sr(WS)}, s8 offen offset:512 sc1
        v_mov_b32 v46, s97
        v_mov_b32 v48, -1
        v_mov_b32 v49, -1
        v_mov_b32 v50, -1
        v_mov_b32 v51, -1
        """)
        if 'F' in a.delay:
            A(f"""s_cmp_eq_u32 s5, 25\ns_cbranch_scc0 L_dlF""")
            for _ in range(12): A("s_sleep 120")
            A("L_dlF:")
        self.samexcd(45)
        A("s_cbranch_scc0 L_h_cw")
        self.clears1("", "a")
        A("s_branch L_h_cd\nL_h_cw:")
        self.clears1("sc1", "b")
        A("L_h_cd:")
        A(f"""
        v_add_f32 v32, v40, v42
        v_add_f32 v33, v41, v43
        v_cvt_pk_bf16_f32 v32, v32, v33
        ds_write_b32 v6, v32 offset:{L_Q}
        s_waitcnt lgkmcnt(0)
        ds_write_b32 v15, v15
        """)
        self.stamp(3)
        A(f"""
        s_setprio 0
        s_cmp_lt_i32 s98, 0
        s_cbranch_scc1 L_h_nv
        """)
        for i in range(16):
            A(f"s_waitcnt vmcnt({a.dh-1})")
            vload(i)
        A(f"""
        L_h_nv:
        s_cmp_eq_u32 s100, 1
        s_cbranch_scc0 L_h_ncs
        s_mov_b32 m0, {L_CS}
        s_mov_b32 s8, {WS_MOD + 60*512}
        L_h_cs:
        buffer_load_dwordx4 v5, {sr(WS)}, s8 offen sc1 lds
        s_add_u32 m0, m0, 1024
        s_add_u32 s8, s8, 1024
        s_cmp_lt_u32 s8, {WS_MOD + 100*512}
        s_cbranch_scc1 L_h_cs
        """)
        if a.w2e:
            self.w2addr(8, 9, 10)
            A(f"""
            s_mov_b32 m0, {L_W2}
            s_mov_b32 s8, 0
            L_h_w2:
            s_waitcnt vmcnt({a.dh})
            buffer_load_dwordx4 v8, {sr(TB)}, s8 offen nt lds
            buffer_load_dwordx4 v9, {sr(TB)}, s8 offen offset:1024 nt lds
            s_add_u32 m0, m0, 2048
            s_add_u32 s8, s8, {8*1280}
            s_cmp_eq_u32 s8, {64*1280}
            s_cselect_b32 s8, 256, s8
            s_cselect_b32 s9, s93, 0
            s_cmp_eq_u32 s9, 2
            s_cbranch_scc1 L_h_ncs
            s_cmp_lt_u32 m0, {L_W2 + 32768}
            s_cbranch_scc1 L_h_w2
            """)
        A("L_h_ncs:")
        if a.cpf == 3: A(f"""
        s_getpc_b64 s[8:9]
        L_pc:
        s_add_u32 s8, s8, L_tail - L_pc
        s_addc_u32 s9, s9, 0
        v_lshlrev_b32 v8, 7, v1
        v_min_u32 v8, L_end - L_tail, v8
        v_mov_b32 v9, s9
        v_add_co_u32 v8, vcc, s8, v8
        s_nop 1
        v_addc_co_u32 v9, vcc, 0, v9, vcc
        global_load_dword v23, v[8:9], off
        """)
        self.spin(8, 7, 2048)
        A(f"v_add_u32 v8, {L_KH}, v5")
        for i in range(32): A(f"ds_read_b128 {q4(64+4*i)}, v8 offset:{i*1024}")

    def w1addr(self, ve, vo, vt):
        self.A(f"""
        v_lshrrev_b32 v{vo}, 3, v1
        v_mul_u32_u24 v{vo}, 3456, v{vo}
        v_and_b32 v{vt}, 1, v2
        v_lshlrev_b32 v{vt}, 1, v{vt}
        v_and_b32 v{ve}, 7, v1
        v_xor_b32 v{ve}, v{ve}, v{vt}
        v_xor_b32 v{vt}, 4, v{ve}
        v_lshl_add_u32 v{ve}, v{ve}, 4, v{vo}
        v_lshl_add_u32 v{vo}, v{vt}, 4, v{vo}
        v_add_u32 v{vo}, {8*3456 - 1024}, v{vo}
        """)
    def w2addr(self, ve, vo, vt):
        self.A(f"""
        v_lshlrev_b32 v{vt}, 1, v2
        v_xor_b32 v{vt}, v{vt}, v3
        v_mul_u32_u24 v{vo}, 1280, v2
        v_lshl_add_u32 v{ve}, v{vt}, 4, v{vo}
        v_xor_b32 v{vt}, 8, v{vt}
        v_lshl_add_u32 v{vo}, v{vt}, 4, v{vo}
        v_add_u32 v{vo}, {5120 - 1024}, v{vo}
        """)
    def w1loop(self, lab, ve, vo, so, end, thr=0):
        self.A(f"""
        {lab}:
        {f"s_waitcnt vmcnt({thr})" if thr else ""}
        buffer_load_dwordx4 v{ve}, {sr(TA)}, {so} offen {self.a.w1f} lds
        buffer_load_dwordx4 v{vo}, {sr(TA)}, {so} offen offset:1024 {self.a.w1f} lds
        s_add_u32 m0, m0, 2048
        s_add_u32 {so}, {so}, {16*3456}
        s_cmp_lt_u32 m0, {end}
        s_cbranch_scc1 {lab}
        """)
    def gen(self):
        A = self.A; a = self.a
        d, d0, nm = a.depth, a.d0, a.nm
        KR = 64
        VR = [192 + 4*i for i in range(16)] + [64 + 4*i for i in range(16)]
        so = lambda i: f"s_mul_i32 s86, s13, {i*1024}"
        def kload(i): A(f"{so(i)}\nbuffer_load_dwordx4 {q4(KR+4*i)}, v4, {sr(K)}, s86 offen nt")
        def vload(i): A(f"{so(i)}\nbuffer_load_dwordx4 {q4(VR[i])}, v5, {sr(V)}, s86 offen nt")
        def hload(u):
            A(f"s_add_u32 s8, s88, {7*u*1024}\ns_add_u32 m0, s8, {L_KH}\n" + (f"s_add_u32 s8, s8, {224*1024}" if a.w7 else "s_lshl_b32 s8, s8, 3"))
            A(f"buffer_load_dwordx4 v4, {sr(KH)}, s8 offen nt lds")
        kseq = []
        for i in range(32):
            kseq.append(("K", i))
            if not a.hpos and i % 6 == 5 and i//6 < 5: kseq.append(("H", i//6))
            if a.hpos and i == a.hpos: kseq += [("H", u) for u in range(5)]
        for i in range(16): kseq.append(("V", i))
        def issue(op): {"K": kload, "V": vload, "H": hload}[op[0]](op[1])

        self.prologue(kload)
        assert all(op[0] == "K" for op in kseq[:nm + a.n00])
        A("s_cmp_eq_u32 s3, 0\ns_cbranch_scc1 L_c_j")
        for i in range(a.n00, a.n00 + nm): kload(i)
        A("L_c_j:")
        self.setup2()
        if a.cpf == 1: A(f"""
        s_cmp_eq_u32 s3, 0
        s_cbranch_scc0 L_npf
        s_getpc_b64 s[8:9]
        L_pc:
        s_and_b32 s10, s5, 7
        s_mul_i32 s10, s10, {a.pad//8}
        s_sub_u32 s8, s8, L_pc - {NAME}_kernel
        s_subb_u32 s9, s9, 0
        v_lshlrev_b32 v8, 7, v1
        v_add_u32 v8, s10, v8
        v_mov_b32 v9, s9
        v_add_co_u32 v8, vcc, s8, v8
        s_nop 1
        v_addc_co_u32 v9, vcc, 0, v9, vcc
        s_mov_b64 exec, {hex((1 << (a.pad//1024)) - 1)}
        global_load_dword v62, v[8:9], off
        s_mov_b64 exec, -1
        L_npf:
        """)
        A(f"s_cmp_eq_u32 s85, 2\ns_cbranch_scc0 L_c_a\ns_waitcnt vmcnt({5+nm})")
        A("s_cmp_eq_u32 s3, 0\ns_cbranch_scc0 L_c_i1\ns_waitcnt vmcnt(5)\nL_c_i1:")
        self.init1()
        A("L_c_a:\ns_cmp_eq_u32 s3, 0\ns_cbranch_scc1 L_helper")
        A(f"s_lshl_b32 s88, s3, 10\ns_sub_u32 s88, s88, 1024\ns_mov_b64 vcc, {0 if a.mode else -1}\ns_waitcnt vmcnt({nm}) lgkmcnt(0)")
        self.bump(4)
        if a.rows: A(f"s_bitcmp1_b32 {a.rows}, s5\ns_cselect_b64 vcc, 0, -1")
        if a.par: A(f"s_bitcmp1_b32 {a.par}, s97\ns_cselect_b32 s92, -1, 1")
        hdone = kseq.index(("H", 4)) + d
        assert hdone < len(kseq)
        for n, op in enumerate(kseq):
            if n < nm + a.n00: continue
            if n >= len(kseq) - a.nfree: pass
            elif n < a.n0 or d == d0: A(f"s_waitcnt vmcnt({d0-1})")
            else:
                if (n - a.n0) % a.chk == 0 and n <= a.nref and not a.rows:
                    if n > a.n0: A("s_waitcnt lgkmcnt(0)\n" + ("v_cmp_eq_u32 vcc, 1, v14" if a.mode else "v_cmp_gt_u32 vcc, 2, v14"))
                    A("ds_read_b32 v14, v15")
                lb = self.newlab("Ld")
                A(f"s_cbranch_vccz {lb}\ns_waitcnt vmcnt({d0-1})\n{lb}:\ns_waitcnt vmcnt({(a.de if n < a.ne else d)-1})")
            if n == hdone: self.bump(8)
            issue(op)
            if n in (16, 32, 48): self.stamp(n//16)
        self.spin(0, 2, 1024)
        A("s_branch L_qk")
        self.helper(vload)
        A("L_qk:")
        A(f"""
        v_lshlrev_b32 v8, 6, v13
        v_lshl_add_u32 v8, v2, 4, v8
        ds_read_b128 v[24:27], v8 offset:{L_Q}
        v_lshrrev_b32 v9, 2, v3
        s_waitcnt lgkmcnt(0)
        """)
        for t in range(4):
            A(f"v_cmp_eq_u32 vcc, {t}, v9\ns_nop 1")
            for r in range(4): A(f"v_cndmask_b32 v{32+4*t+r}, 0, v{24+r}, vcc")
        A("s_waitcnt vmcnt(16)\ns_nop 0")
        for half in range(2):
            for gg in range(4):
                for t in range(4):
                    i = 16*half + 4*gg + t
                    A(f"{MF} {q4(48+4*gg)}, {q4(KR+4*i)}, {q4(32+4*t)}, {'0' if t == 0 else q4(48+4*gg)}")
            if half == 0:
                for i in range(16, 16 + a.d1): vload(i)
            A("s_nop 7")
            for j in range(4):
                for gg in range(4):
                    g = half*4 + gg
                    if j == 0: A(f"v_mov_b32_dpp v{24+g}, v{48+4*gg} quad_perm:[0,0,0,0] {DPPF}")
                    else: A(f"v_add_f32_dpp v{24+g}, v{48+4*gg+j}, v{24+g} quad_perm:[{j},{j},{j},{j}] {DPPF}")
            A("s_nop 1")
        self.stamp(4)
        self.softmax1()
        def abuild(i):
            for r in range(4):
                A(f"v_and_b32_dpp v{32+4*(i%2)+r}, v{24+i//4}, v{16+r} row_newbcast:{4*(i%4)} {DPPF}")
        def pv(i, wait=None):
            if i + 1 < 32: abuild(i+1)
            else: A("s_nop 1")
            if wait is not None: A(f"s_waitcnt vmcnt({wait})")
            A(f"{MF} v[20:23], {q4(32+4*(i%2))}, {q4(VR[i])}, {'0' if i == 0 else 'v[20:23]'}")
        done = 0
        for i in range(16 + a.d1, 32):
            if i == a.ism: self.small_loads()
            ex = 2 if a.ism <= i < a.ism + a.d2 else 0
            A(f"s_waitcnt vmcnt({a.d2-1+ex})")
            vload(i)
            if i == a.i2:
                self.softmax2(); abuild(0)
            if i >= a.i2:
                while done <= i - a.d2: pv(done); done += 1
        assert 16 + a.d1 <= a.ism < 32 - a.d2
        self.stamp(5)
        if a.i2 > 31:
            self.softmax2(); abuild(0)
            while done <= 31 - a.d2: pv(done); done += 1
        self.tail_prep()
        while done < 32: pv(done, 31 - done); done += 1
        A("L_tail:")
        self.tail1()
        self.reducer()
        self.mlp()
        self.finish()
        self.subs()
        L = self.L
        if a.cpf == 1: L.append(f".fill ({a.pad} - (. - {NAME}_kernel))/4, 4, 0xbf800000")
        L += ['.section .rodata,"a"', ".p2align 6", f".amdhsa_kernel {NAME}_kernel",
              "  .amdhsa_next_free_vgpr 256", "  .amdhsa_next_free_sgpr 102", "  .amdhsa_accum_offset 256",
              "  .amdhsa_group_segment_fixed_size 0", "  .amdhsa_kernarg_size 104", "  .amdhsa_user_sgpr_count 2",
              "  .amdhsa_user_sgpr_kernarg_segment_ptr 1", "  .amdhsa_system_sgpr_workgroup_id_x 1", ".end_amdhsa_kernel"]
        return "\n".join(L) + "\n"

    def softmax1(self):
        A = self.A
        A(f"s_mov_b32 s8, {hex(SCALE)}")
        for g in range(0, 8, 2):
            A(f"v_cvt_pk_bf16_f32 v8, v{24+g}, v{25+g}")
            self.unpack(24+g, 25+g, 8)
            A(f"v_mul_f32 v{24+g}, s8, v{24+g}\nv_mul_f32 v{25+g}, s8, v{25+g}")
            A(f"v_cvt_pk_bf16_f32 v8, v{24+g}, v{25+g}")
            self.unpack(24+g, 25+g, 8)
        def wred(op, sdst):
            for c in (f"row_ror:4 {DPPF}", f"row_ror:8 {DPPF}", "row_bcast:15 row_mask:0xa bank_mask:0xf", "row_bcast:31 row_mask:0xc bank_mask:0xf"):
                A(f"s_nop 1\n{op}_dpp v8, v8, v8 {c}")
            A(f"s_nop 1\nv_readlane_b32 {sdst}, v8, 63")
        A("v_max3_f32 v8, v24, v25, v26\nv_max3_f32 v8, v8, v27, v28\nv_max3_f32 v8, v8, v29, v30\nv_max_f32 v8, v8, v31")
        wred("v_max_f32", "s95")
        A(f"s_mov_b32 s8, {hex(LOG2E)}\ns_nop 1")
        for g in range(8): A(f"v_subrev_f32 v{24+g}, s95, v{24+g}")
        for g in range(8): A(f"v_mul_f32 v{24+g}, s8, v{24+g}")
        for g in range(8): A(f"v_exp_f32 v{24+g}, v{24+g}")
        A("""
        s_nop 0
        v_add_f32 v8, v24, v25
        v_add_f32 v9, v26, v27
        v_add_f32 v10, v28, v29
        v_add_f32 v11, v30, v31
        v_add_f32 v8, v8, v9
        v_add_f32 v10, v10, v11
        v_add_f32 v8, v8, v10
        """)
        wred("v_add_f32", "s10")
        A(f"""
        s_lshl_b32 s11, s3, 3
        v_mov_b32 v10, s95
        v_mov_b32 v9, s11
        v_mov_b32 v11, s10
        ds_write_b64 v9, v[10:11] offset:{L_SM}
        s_waitcnt lgkmcnt(0)
        """)
        self.bump(12)
    def softmax2(self):
        A = self.A
        self.spin(12, 8, 4096)
        A(f"""
        v_and_b32 v9, 7, v1
        v_lshlrev_b32 v9, 3, v9
        s_mov_b32 s8, {hex(LOG2E)}
        ds_read_b64 v[10:11], v9 offset:{L_SM}
        s_waitcnt lgkmcnt(0)
        v_max_f32_dpp v8, v10, v10 row_ror:4 {DPPF}
        s_nop 1
        v_max_f32_dpp v8, v8, v8 row_ror:2 {DPPF}
        s_nop 1
        v_max_f32_dpp v8, v8, v8 row_ror:1 {DPPF}
        v_sub_f32 v10, v10, v8
        v_sub_f32 v12, s95, v8
        v_mul_f32 v10, s8, v10
        v_mul_f32 v12, s8, v12
        v_exp_f32 v10, v10
        v_exp_f32 v12, v12
        s_nop 0
        v_mul_f32 v10, v10, v11
        s_nop 1
        v_add_f32_dpp v10, v10, v10 quad_perm:[1,0,3,2] {DPPF}
        s_nop 1
        v_add_f32_dpp v10, v10, v10 quad_perm:[2,3,0,1] {DPPF}
        s_nop 1
        v_add_f32_dpp v10, v10, v10 row_half_mirror {DPPF}
        v_rcp_f32 v10, v10
        s_nop 0
        v_mul_f32 v10, v10, v12
        """)
        for g in range(8): A(f"v_mul_f32 v{24+g}, v10, v{24+g}")
        for g in range(8): A(f"v_cvt_pk_bf16_f32 v{24+g}, v{24+g}, v{24+g}")
        A("s_nop 1")

    def flg(self): return f"s_lshl_b32 s10, s4, {self.a.fs+5}\ns_add_u32 s10, s10, {WS_FLB}\nbuffer_load_dword v132, v129, {sr(WS)}, s10 offen sc1"
    def cntb(self): return f"buffer_load_dword v128, off, {sr(DBG)}, 0 offset:128 sc1"
    def fbase(self): return WS_FLG
    def chk_b(self):
        a_, b_ = self.newlab("Lb"), self.newlab("Lbd")
        self.A(f"""
        s_mov_b32 s14, {self.a.limit}
        {a_}:
        v_readfirstlane_b32 s8, v128
        s_nop 0
        s_cmp_ge_u32 s8, {NCLR}
        s_cbranch_scc1 {b_}
        {self.cntb()}
        s_waitcnt vmcnt(0)
        s_sub_u32 s14, s14, 1
        s_cbranch_scc0 {a_}
        s_or_b32 s15, s15, 8
        {b_}:
        """)
    def mlp_small(self):
        o = []
        for i in range(5): o.append(f"s_mov_b32 s9, {WS_MOD + 80*512 + i*2048}\nbuffer_load_dword v{133+i}, v7, {sr(WS)}, s9 offen sc1")
        for i in range(5): o.append(f"s_mov_b32 s9, {WS_MOD + 60*512 + i*2048}\nbuffer_load_dword v{138+i}, v7, {sr(WS)}, s9 offen sc1")
        return o
    def red_small(self):
        return [f"buffer_load_dword v143, v148, {sr(WS)}, s42 offen sc1", f"buffer_load_dword v144, v149, {sr(WS)}, s43 offen sc1"]
    def small_loads(self):
        A = self.A
        A(f"""
        v_and_b32 v146, 7, v1
        v_and_b32 v147, 1, v2
        v_lshlrev_b32 v147, 2, v147
        v_lshl_add_u32 v148, v146, 3, v147
        v_lshl_add_u32 v149, v146, 6, v147
        v_and_b32 v129, 31, v1
        v_lshlrev_b32 v129, {self.a.fs}, v129
        """)
        A(self.flg()); A(self.cntb())

    def oloads(self): return [f"buffer_load_dwordx4 {q4(200+4*k)}, v42, {sr(WS)}, s89 offen offset:{k*64} sc1" for k in range(2)]
    def tail_prep(self):
        A = self.A
        A(f"""
        s_lshl_b32 s8, s3, 9
        v_lshlrev_b32 v40, 5, v3
        v_lshl_add_u32 v40, v2, 4, v40
        v_add_u32 v40, s8, v40
        v_lshlrev_b32 v41, 3, v1
        s_lshl_b32 s88, s87, 8
        s_add_u32 s88, s88, {hex(WS_O)}
        v_lshlrev_b32 v42, 8, v146
        v_lshl_add_u32 v42, v2, 4, v42
        v_lshrrev_b32 v9, 3, v1
        v_lshlrev_b32 v45, 10, v9
        v_lshl_add_u32 v45, v146, 4, v45
        s_cmp_lt_i32 s98, 0
        s_cbranch_scc1 L_tp_done
        s_lshl_b32 s8, s3, 10
        s_add_u32 s8, s8, {L_TB}
        v_lshrrev_b32 v8, 3, v3
        v_lshlrev_b32 v48, 7, v146
        v_lshl_add_u32 v48, v8, 6, v48
        v_lshl_add_u32 v48, v2, 4, v48
        v_add_u32 v48, s8, v48
        v_add_u32 v49, {L_TB}, v5
        s_lshl_b32 s89, s4, 13
        s_lshr_b32 s8, s3, 1
        s_lshl_b32 s8, s8, 11
        s_add_u32 s89, s89, s8
        s_and_b32 s8, s3, 1
        s_lshl_b32 s8, s8, 7
        s_add_u32 s89, s89, s8
        s_add_u32 s89, s89, {hex(WS_O)}
        s_lshl_b32 s94, s96, 10
        s_add_u32 s94, s94, {hex(WS_AP)}
        s_lshl_b32 s92, s98, 13
        s_lshl_b32 s8, s3, 7
        s_add_u32 s92, s92, s8
        s_add_u32 s92, s92, {hex(WS_AP)}
        s_lshl_b32 s43, s98, 9
        s_lshl_b32 s9, s3, 6
        s_add_u32 s42, s43, s9
        s_add_u32 s91, s42, s90
        s_add_u32 s42, s42, {WS_MOD + 40*512}
        s_lshl_b32 s9, s4, 3
        s_add_u32 s43, s43, s9
        s_add_u32 s99, s43, s90
        s_add_u32 s43, s43, {WS_MOD + 100*512}
        s_mul_i32 s9, s3, 1280
        s_lshl_b32 s10, s98, 6
        s_add_u32 s9, s9, s10
        buffer_load_dword v145, v148, {sr(X)}, s9 offen
        v_lshrrev_b32 v8, 1, v2
        v_lshlrev_b32 v8, 4, v8
        v_sub_u32 v14, 16, v8
        v_lshrrev_b32 v8, 2, v3
        v_lshl_add_u32 v8, v2, 3, v8
        v_lshlrev_b32 v8, 6, v8
        v_lshl_add_u32 v8, v13, 3, v8
        s_lshl_b32 s8, s3, 12
        s_add_u32 s8, s8, {L_WO}
        v_add_u32 v8, s8, v8
        """)
        for l in self.red_small(): A(l)
        for k in range(2):
            for m in range(2):
                r = 152 + 8*k + 4*m
                A(f"ds_read_b64_tr_b16 {q2(r)}, v8 offset:{k*2048 + m*32}")
                A(f"ds_read_b64_tr_b16 {q2(r+2)}, v8 offset:{k*2048 + m*32 + 256}")
        self.poll([self.flg()], [132], 8, 8, first_loaded=True)
        self.chk_b()
        for l in self.oloads(): A(l)
        A("L_tp_done:")

    def sum8(self, addr, base, step):
        A = self.A
        if self.a.stamps: A("s_waitcnt lgkmcnt(0)")
        for j in range(8): A(f"ds_read_b128 {q4(64+4*j)}, {addr} offset:{base + j*step}")
        for j in range(0, 8, 2):
            A(f"s_waitcnt lgkmcnt({6-j})")
            for r in (0, 2): self.pk("add", 64+4*j+r, 64+4*j+r, q2(68+4*j+r))
            if j == 2:
                for r in (0, 2): self.pk("add", 64+r, 64+r, q2(72+r))
        for r in (0, 2): self.pk("add", 80+r, 80+r, q2(88+r))
        for r in (0, 2): self.pk("add", 64+r, 64+r, q2(80+r))
    def red_fin(self):
        self.A(f"""
        v_permlane32_swap_b32 v64, v65
        v_permlane32_swap_b32 v66, v67
        v_add_f32 v64, v64, v65
        v_add_f32 v66, v66, v67
        s_nop 1
        v_permlane16_swap_b32 v64, v66
        v_add_f32 v64, v64, v66
        s_nop 1
        v_add_f32_dpp v64, v64, v64 row_ror:8 {DPPF}
        v_cvt_pk_bf16_f32 v64, 0, v64
        v_mul_f32 v64, v64, v208
        v_cvt_pk_bf16_f32 v64, 0, v64
        v_add_f32 v64, v64, v209
        v_mov_b32 v65, v64
        s_nop 1
        v_permlane32_swap_b32 v64, v65
        v_cvt_pk_bf16_f32 v68, v64, v65
        v_cvt_pk_bf16_f32 v69, v64, v65
        s_nop 1
        v_permlane16_swap_b32 v68, v69
        """)

    def tpf(self):
        A = self.A; a = self.a
        if a.pf:
            A("s_cmp_eq_u32 s100, 1\ns_cbranch_scc0 L_h_npf\ns_cmp_eq_u32 s3, 0\ns_cbranch_scc0 L_h_npf")
            self.w1addr(8, 9, 10)
            A(f"s_mov_b32 m0, {L_W1}\ns_mov_b32 s8, 0")
            self.w1loop("L_h_pf", 8, 9, "s8", L_W1 + a.pf*2048, a.dp)
            A("L_h_npf:")

    def tail1(self):
        A = self.A; a = self.a
        A(f"""
        s_mov_b32 exec_hi, 0
        s_nop 6
        ds_write_b128 v40, v[20:23] offset:{L_R1}
        s_mov_b64 exec, -1
        """)
        self.samexcd(132)
        A("s_cselect_b32 s95, 1, 0")
        if a.oc == 1:
            A("s_cmp_eq_u32 s3, 0\ns_cbranch_scc0 L_h_no2")
            self.clears2()
            A("s_waitcnt vmcnt(0)\nL_h_no2:")
        if not a.pfe: self.tpf()
        A("s_waitcnt lgkmcnt(0)\ns_barrier")
        self.stamp(6)
        if a.wo0:
            A("s_cmp_eq_u32 s3, 0\ns_cbranch_scc1 L_o0")
            self.sleep(a.wo0)
            A("s_branch L_opub\nL_o0:\ns_mov_b32 exec_hi, 0")
        else: A("s_cmp_eq_u32 s3, 0\ns_cbranch_scc0 L_opub\ns_mov_b32 exec_hi, 0")
        if a.tp: A("s_setprio 3")
        self.sum8("v5", L_R1, 512)
        A("v_cvt_pk_bf16_f32 v46, v64, v65\nv_cvt_pk_bf16_f32 v47, v66, v67\nv_min_u32 v46, -2, v46\nv_min_u32 v47, -2, v47\ns_cmp_eq_u32 s95, 1")
        self.store2([f"buffer_store_dwordx2 v[46:47], v41, {sr(WS)}, s88 offen"], 132)
        A("s_mov_b64 exec, -1\nL_opub:")
        self.stamp(5)
        if a.notail: A("s_branch L_fin")
        A("s_cmp_eq_u32 s100, 1\ns_cbranch_scc1 L_mlp\ns_cmp_eq_u32 s100, 2\ns_cbranch_scc0 L_fin")

    def reducer(self):
        A = self.A; a = self.a
        self.poll(self.red_small(), [143, 144], 8, 8, first_loaded=True)
        A("""
        v_lshlrev_b32 v208, v14, v143
        v_and_b32 v208, 0xffff0000, v208
        v_lshlrev_b32 v209, v14, v145
        v_and_b32 v209, 0xffff0000, v209
        """)
        self.poll(self.oloads(), range(200, 208), 8, 512, first_loaded=True, sleep=a.so)
        for k in range(2):
            for m in range(2):
                A(f"{MF} {q4(96+4*m)}, {q4(152+8*k+4*m)}, {q4(200+4*k)}, {'0' if k == 0 else q4(96+4*m)}")
        A("v_cmp_lt_u32 vcc, 7, v3\ns_nop 6")
        for r in range(4): A(f"v_cndmask_b32 v{96+r}, v{96+r}, v{100+r}, vcc")
        A("ds_write_b128 v48, v[96:99]\ns_waitcnt lgkmcnt(0)\ns_barrier\ns_cmp_eq_u32 s3, 0\ns_cbranch_scc0 L_apdone")
        self.sum8("v49", 0, 1024)
        for r in range(4): A(f"v_min_u32 v{96+r}, -2, v{64+r}")
        A(f"buffer_store_dwordx4 v[96:99], v5, {sr(WS)}, s94 offen sc1\nL_apdone:")
        self.stamp(7)
        self.sleep(a.wap)
        self.poll([f"buffer_load_dwordx4 v[64:67], v45, {sr(WS)}, s92 offen sc1"], range(64, 68), 8, 16, sleep=a.sr)
        self.red_fin()
        A("v_min_u32 v68, -2, v68\nv_min_u32 v69, -2, v69\ns_mov_b64 exec, 0xff\ns_cmp_eq_u32 s95, 1")
        self.store2([f"buffer_store_dwordx2 v[68:69], v41, {sr(WS)}, s91 offen"], 132)
        A("s_mov_b64 exec, -1")
        self.stamp(8)
        A(f"""
        s_cmp_eq_u32 s3, 7
        s_cbranch_scc0 L_fin
        v_lshlrev_b32 v208, v14, v144
        v_and_b32 v208, 0xffff0000, v208
        v_mul_u32_u24 v10, 20480, v9
        v_lshl_add_u32 v10, v146, 4, v10
        v_mul_u32_u24 v12, 1280, v1
        s_lshl_b32 s8, s96, 7
        s_add_u32 s8, s8, {hex(WS_OP)}
        s_add_u32 s9, s8, {8*20480}
        s_add_u32 s10, s8, {16*20480}
        s_add_u32 s11, s8, {24*20480}
        s_lshl_b32 s88, s96, 3
        """)
        self.poll([f"buffer_load_dword v145, v149, {sr(WS)}, s99 offen sc1"], [145], 13, 32, sleep=2)
        A("v_lshlrev_b32 v209, v14, v145\nv_and_b32 v209, 0xffff0000, v209")
        self.sleep(a.wop)
        loads = [f"buffer_load_dwordx4 {q4(64+4*i)}, v10, {sr(WS)}, s{8+i} offen sc1" for i in range(4)]
        self.poll(loads, range(64, 80), 13, 16, sleep=a.sr)
        for a_, b_ in ((64, 68), (72, 76), (64, 72)):
            for r in (0, 2): self.pk("add", a_+r, a_+r, q2(b_+r))
        A("s_nop 0")
        self.red_fin()
        A(f"""
        s_mov_b64 exec, 0xff
        buffer_store_dwordx2 v[68:69], v12, {sr(OUT)}, s88 offen {a.of}
        s_mov_b64 exec, -1
        """)
        self.stamp(9)
        A("s_branch L_fin")

    def mlp(self):
        A = self.A; a = self.a
        W1F, W2F, AC, GR = 64, 104, 136, 152
        np_ = (40 - a.pf)//8; assert (40 - a.pf) % 8 == 0 and a.pf <= 32
        A("L_mlp:")
        self.w1addr(15, 14, 12)
        A(f"""
        s_mul_i32 s86, s3, {np_*16*3456}
        s_add_u32 s86, s86, {a.pf*16*3456}
        s_mul_i32 s87, s3, {np_*2048}
        s_add_u32 m0, s87, {L_W1 + a.pf*2048}
        s_add_u32 s87, s87, {L_W1 + a.pf*2048 + np_*2048}
        s_barrier
        """)
        if a.oc == 2:
            A("s_cmp_eq_u32 s3, 0\ns_cbranch_scc0 L_h_no2")
            self.clears2()
            A("L_h_no2:")
        self.w1loop("L_t1", 15, 14, "s86", "s87")
        if not a.w2e:
            self.w2addr(15, 14, 12)
            A(f"""
            s_lshl_b32 s87, s3, 11
            s_add_u32 m0, s87, {L_W2}
            s_mul_i32 s86, s3, {8*1280}
            buffer_load_dwordx4 v15, {sr(TB)}, s86 offen nt lds
            buffer_load_dwordx4 v14, {sr(TB)}, s86 offen offset:1024 nt lds
            s_cmp_eq_u32 s93, 2
            s_cbranch_scc1 L_mlp_nt
            s_add_u32 m0, m0, 16384
            s_add_u32 s86, s86, 256
            buffer_load_dwordx4 v15, {sr(TB)}, s86 offen nt lds
            buffer_load_dwordx4 v14, {sr(TB)}, s86 offen offset:1024 nt lds
            L_mlp_nt:
            """)
        A(f"v_add_u32 v8, {L_CS}, v7")
        for i in range(5): A(f"ds_read_b32 v{133+i}, v8 offset:{10240 + i*2048}")
        for i in range(5): A(f"ds_read_b32 v{138+i}, v8 offset:{i*2048}")
        A("s_waitcnt lgkmcnt(0)")
        self.poll([self.flg()] + self.mlp_small(), list(range(132, 143)), 8, 64, first_loaded=True)
        for i in range(5):
            self.unpack(208+2*i, 209+2*i, 133+i)
            A(f"v_add_f32 v{208+2*i}, 1.0, v{208+2*i}\nv_add_f32 v{209+2*i}, 1.0, v{209+2*i}")
            A(f"v_cvt_pk_bf16_f32 v8, v{208+2*i}, v{209+2*i}")
            self.unpack(208+2*i, 209+2*i, 8)
            self.unpack(218+2*i, 219+2*i, 138+i)
        A(f"""
        v_lshrrev_b32 v8, 2, v3
        v_lshlrev_b32 v10, 10, v2
        v_lshl_add_u32 v10, v8, 7, v10
        v_lshl_add_u32 v10, v13, 3, v10
        s_lshr_b32 s8, s3, 1
        s_mul_i32 s9, s8, 20480
        s_add_u32 s9, s9, {L_W1}
        v_add_u32 v10, s9, v10
        v_and_b32 v9, 1, v2
        v_lshrrev_b32 v12, 3, v3
        v_lshl_add_u32 v12, v9, 1, v12
        s_and_b32 s10, s3, 1
        s_lshl_b32 s10, s10, 1
        v_xor_b32 v12, s10, v12
        v_xor_b32 v184, 1, v12
        v_lshl_add_u32 v184, v184, 5, v10
        v_lshl_add_u32 v10, v12, 5, v10
        v_lshl_add_u32 v11, v2, 2, v8
        v_lshlrev_b32 v11, 8, v11
        v_lshl_add_u32 v11, v13, 3, v11
        v_add_u32 v11, {L_W2}, v11
        v_lshl_add_u32 v12, v9, 2, v8
        s_and_b32 s9, s3, 3
        s_lshl_b32 s9, s9, 1
        v_xor_b32 v12, s9, v12
        v_xor_b32 v185, 1, v12
        v_lshl_add_u32 v185, v185, 5, v11
        v_lshl_add_u32 v11, v12, 5, v11
        v_lshlrev_b32 v186, 6, v146
        v_lshl_add_u32 v186, v2, 4, v186
        s_mul_i32 s9, s8, 2560
        v_add_u32 v186, s9, v186
        s_lshl_b32 s9, s3, 11
        s_add_u32 s9, s9, {L_G1}
        v_add_u32 v187, s9, v5
        v_lshrrev_b32 v9, 3, v3
        v_lshlrev_b32 v188, 10, v9
        v_lshl_add_u32 v188, v2, 8, v188
        v_lshl_add_u32 v188, v146, 4, v188
        v_add_u32 v188, {L_G1}, v188
        v_lshlrev_b32 v190, 4, v146
        v_lshl_add_u32 v190, v2, 7, v190
        s_add_u32 s43, s90, 4096
        s_add_u32 s89, s90, 8192
        s_lshl_b32 s9, s3, 10
        s_add_u32 s42, s101, s9
        s_mov_b32 s86, 0x00ff00ff
        s_mov_b32 s87, 0x00ff00ff
        s_add_u32 s88, s42, 4096
        """)
        if a.dry: A("s_mov_b32 s99, 0\ns_branch L_mc\nL_mb:\ns_mov_b32 s99, 1")
        A("s_waitcnt vmcnt(0)")
        A("""
        s_barrier
        """)
        self.stamp(1)
        loads = [f"buffer_load_dword v{24+i}, v7, {sr(WS)}, {['s90','s43','s89'][i//2]} offen offset:{(i%2)*2048} sc1" for i in range(5)]
        for l in loads: A(l)
        for k in range(5):
            for t in range(2):
                r = W1F + 8*k + 4*t
                A(f"ds_read_b64_tr_b16 {q2(r)}, {'v184' if t else 'v10'} offset:{k*4096}")
                A(f"ds_read_b64_tr_b16 {q2(r+2)}, {'v184' if t else 'v10'} offset:{k*4096 + 512}")
        A("s_cmp_ge_u32 s3, 4\ns_cbranch_scc1 L_now2")
        for m in range(4):
            for j in range(2):
                r = W2F + 8*m + 4*j
                A(f"ds_read_b64_tr_b16 {q2(r)}, {'v185' if m % 2 else 'v11'} offset:{(m//2)*16384 + j*8192}")
                A(f"ds_read_b64_tr_b16 {q2(r+2)}, {'v185' if m % 2 else 'v11'} offset:{(m//2)*16384 + j*8192 + 4096}")
        A("L_now2:\ns_waitcnt vmcnt(0)")
        self.poll(loads, range(24, 29), 8, 128, first_loaded=True, sleep=a.sx)
        self.stamp(8)
        A("L_mc:")
        if a.fast:
            self.ln_body(True)
            for i in range(5): A(f"v_pk_fma_f32 {q2(32+2*i)}, {q2(32+2*i)}, {q2(208+2*i)}, {q2(218+2*i)}")
        else:
            self.ln_body(False, pack=False)
            self.rnd(range(32, 42))
            for i in range(5): self.pk("mul", 32+2*i, 32+2*i, q2(208+2*i))
            self.rnd(range(32, 42))
            for i in range(5): self.pk("add", 32+2*i, 32+2*i, q2(218+2*i))
        for i in range(5):
            A(f"v_cvt_pk_bf16_f32 v{24+i}, v{32+2*i}, v{33+2*i}")
            A(f"ds_write_b32 v7, v{24+i} offset:{L_ACT + i*2048}")
        A("s_waitcnt lgkmcnt(0)\ns_barrier")
        for k in range(5): A(f"ds_read_b128 {q4(32+4*k)}, v186 offset:{L_ACT + k*512}")
        for k in range(5):
            A(f"s_waitcnt lgkmcnt({4-k})")
            for t in range(2):
                A(f"{MF} {q4(AC+4*t)}, {q4(W1F+8*k+4*t)}, {q4(32+4*k)}, {'0' if k == 0 else q4(AC+4*t)}")
        A(f"s_nop 6\nds_write_b128 v187, {q4(AC)}\nds_write_b128 v187, {q4(AC+4)} offset:1024\ns_waitcnt lgkmcnt(0)\ns_barrier")
        A("s_cmp_ge_u32 s3, 4\ns_cbranch_scc1 " + ("L_m4" if a.dry else "L_fin"))
        for j in range(2):
            for k in range(4): A(f"ds_read_b128 {q4(GR+16*j+4*k)}, v188 offset:{k*4096 + j*2048}")
        for j in range(2):
            b0 = GR + 16*j
            A(f"s_waitcnt lgkmcnt({4-4*j})")
            for a_, b_ in ((0, 4), (8, 12), (0, 8)):
                for r in (0, 2): self.pk("add", b0+a_+r, b0+a_+r, q2(b0+b_+r))
            for r in range(4): A(f"v_cvt_pk_bf16_f32 v{32+4*j+r}, 0, v{b0+r}")
        A(f"s_mov_b32 s8, {hex(NLOG2E)}")
        for r in range(0, 8, 2): self.pk("mul", 40+r, 32+r, "s[8:9]", "op_sel_hi:[1,0]")
        for r in range(8): A(f"v_exp_f32 v{40+r}, v{40+r}")
        for r in range(0, 8, 2): self.pk("add", 40+r, 40+r, "1.0", "op_sel_hi:[1,0]")
        for r in range(8): A(f"v_rcp_f32 v{40+r}, v{40+r}")
        for r in range(0, 8, 2): self.pk("mul", 32+r, 32+r, q2(40+r))
        A(f"""
        v_cvt_pk_bf16_f32 v24, v32, v33
        v_cvt_pk_bf16_f32 v25, v34, v35
        v_cvt_pk_bf16_f32 v28, v36, v37
        v_cvt_pk_bf16_f32 v29, v38, v39
        v_mov_b32_dpp v26, v24 row_ror:8 {DPPF}
        v_mov_b32_dpp v27, v25 row_ror:8 {DPPF}
        v_mov_b32_dpp v30, v28 row_ror:8 {DPPF}
        v_mov_b32_dpp v31, v29 row_ror:8 {DPPF}
        """)
        for hf in range(2):
            for j in range(2):
                for m in (2*hf, 2*hf+1):
                    A(f"{MF} {q4(AC+4*m)}, {q4(W2F+8*m+4*j)}, {q4(24+4*j)}, {'0' if j == 0 else q4(AC+4*m)}")
        if a.dry: A("s_cmp_eq_u32 s99, 0\ns_cbranch_scc1 L_mb")
        A("s_mov_b64 exec, s[86:87]\ns_cmp_eq_u32 s93, 2\ns_nop 0")
        for m in range(4):
            if m == 2: A("s_cbranch_scc1 L_opd")
            for r in range(4): A(f"v_min_u32 v{AC+4*m+r}, -2, v{AC+4*m+r}")
            A(f"buffer_store_dwordx4 {q4(AC+4*m)}, v190, {sr(WS)}, {'s42' if m < 2 else 's88'} offen offset:{(m%2)*512} sc1")
        A("L_opd:")
        A("s_mov_b64 exec, -1")
        self.stamp(9)
        if a.dry: A("s_branch L_fin\nL_m4:\ns_cmp_eq_u32 s99, 0\ns_cbranch_scc1 L_mb")

    def finish(self):
        A = self.A
        A("L_fin:\ns_cmp_eq_u32 s15, 0\ns_cbranch_scc1 L_noerr")
        A(f"v_mov_b32 v8, s15\ns_mov_b64 exec, 1\nbuffer_atomic_or v8, off, {sr(DBG)}, 0 offset:4 sc1\ns_mov_b64 exec, -1\nL_noerr:")
        if self.a.fix: A(f"""
        s_cmp_eq_u32 s2, 0
        s_cbranch_scc0 L_end
        s_add_u32 s8, s16, {self.a.fix*100}
        L_fixw:
        s_sleep 4
        s_memrealtime s[10:11]
        s_waitcnt lgkmcnt(0)
        s_sub_u32 s10, s8, s10
        s_cmp_gt_i32 s10, 0
        s_cbranch_scc1 L_fixw
        """)
        if self.a.stamps:
            self.stamp(10)
            A("s_waitcnt lgkmcnt(0)")
            self.srdo(STS, f"s{WS}", f"s{WS+1}", hex(STAMP_OFF), "0x100000")
            A("s_mov_b32 s38, s97\ns_lshl_b32 s39, s100, 8\ns_or_b32 s39, s39, s85")
            A(f"s_mul_i32 s8, s2, {12*8*2}")
            A("s_cmp_eq_u32 s3, 0\ns_cbranch_scc1 L_st\ns_cmp_eq_u32 s3, 7\ns_cbranch_scc0 L_end\ns_add_u32 s8, s8, 96\nL_st:\ns_mov_b64 exec, 1")
            for k in range(12):
                A(f"v_mov_b32 v8, s{16+2*k}\nv_mov_b32 v9, s{17+2*k}\nbuffer_store_dwordx2 v[8:9], off, {sr(STS)}, s8 offset:{8*k}\ns_nop 1")
        A("L_end:\ns_endpgm")

    def subs(self):
        A = self.A
        pass
    def rnd(self, regs):
        for r in regs: self.A(f"v_cvt_pk_bf16_f32 v{r}, 0, v{r}")
    def ln_body(self, fast, pack=True):
        A = self.A
        for i in range(5):
            self.unpack(32+2*i, 33+2*i, 24+i)
            if i == 0: A("v_readfirstlane_b32 s8, v32")
        NEG = "op_sel_hi:[1,0] neg_lo:[0,1] neg_hi:[0,1]"
        for i in range(5): self.pk("add", 42+2*i, 32+2*i, "s[8:9]", NEG)
        self.pk("add", 52, 42, "v[44:45]"); self.pk("mul", 54, 42, "v[42:43]")
        for i in range(1, 5):
            if i > 1: self.pk("add", 52, 52, q2(42+2*i))
            A(f"v_pk_fma_f32 v[54:55], {q2(42+2*i)}, {q2(42+2*i)}, v[54:55]")
        A("v_add_f32 v52, v52, v53\nv_add_f32 v53, v54, v55\ns_nop 0")
        for c in (f"row_ror:1 {DPPF}", f"row_ror:2 {DPPF}", f"row_ror:4 {DPPF}", f"row_ror:8 {DPPF}",
                  "row_bcast:15 row_mask:0xa bank_mask:0xf", "row_bcast:31 row_mask:0xc bank_mask:0xf"):
            A(f"v_add_f32_dpp v52, v52, v52 {c}\nv_add_f32_dpp v53, v53, v53 {c}\ns_nop 0")
        A(f"""
        v_readlane_b32 s9, v52, 63
        v_readlane_b32 s10, v53, 63
        v_mov_b32 v54, {hex(INV640)}
        s_nop 0
        v_mul_f32 v52, s9, v54
        v_mul_f32 v53, s10, v54
        v_fma_f32 v53, -v52, v52, v53
        v_add_f32 v52, s8, v52
        v_max_f32 v53, 0, v53
        v_cvt_pk_bf16_f32 v52, 0, v52
        v_cvt_pk_bf16_f32 v54, 0, v53
        v_add_f32 v54, {hex(EPS)}, v54
        v_cvt_pk_bf16_f32 v54, 0, v54
        v_sqrt_f32 v54, v54
        """)
        for i in range(5): self.pk("add", 32+2*i, 32+2*i, "v[52:53]", NEG)
        A("v_cvt_pk_bf16_f32 v54, 0, v54\nv_rcp_f32 v54, v54")
        if fast: A("s_nop 0")
        else: self.rnd(range(32, 42))
        for i in range(5): self.pk("mul", 32+2*i, 32+2*i, "v[54:55]", "op_sel_hi:[1,0]")
        if not fast and pack:
            for i in range(5): A(f"v_cvt_pk_bf16_f32 v{24+i}, v{32+2*i}, v{33+2*i}")

if __name__ == "__main__":
    ap = argparse.ArgumentParser()
    ap.add_argument("-o", default="k.s"); ap.add_argument("--stamps", action="store_true")
    ap.add_argument("--fast", action="store_true"); ap.add_argument("--nolocal", action="store_true"); ap.add_argument("--notail", action="store_true")
    for n, v in dict(dp=0, wo0=0, tp=0, n00=0, dry=0, i2=26, fix=0, w2e=0, pfe=0, cpf=3, oc=0, cl=0, sc=2, nfree=3, fs=2, w7=1, hpos=0, rows=0, remap=1, dw=10, dm=4, nref=100, dl=4, wap=16, mode=0, lead=0, de=6, ne=0, dh=12, pf=0, rx=0, ry=0, par=0, diag=0, limit=400000, pad=20480, depth=3, d0=3, nm=3, n0=16, chk=3, d1=4, d2=8, ism=21, wa=0, w2=0, w3=0,
                     s1=8, s2=2, sr=0, sx=0, so=0, wx=20, wop=0).items():
        ap.add_argument("--" + n, type=int, default=v)
    ap.add_argument("--wof", default="")
    ap.add_argument("--w1f", default=""); ap.add_argument("--w2f", default="nt")
    ap.add_argument("--delay", default=""); ap.add_argument("--of", default=""); ap.add_argument("--x", default=""); ap.add_argument("--cf", default="sc1")
    ap.add_argument("--hm", default="4,1")
    a = ap.parse_args(); a.hm = [int(v) for v in a.hm.split(",")]
    txt = G(a).gen()
    if 's' in a.x: txt = "\n".join(l for l in txt.split("\n") if not ("buffer_store" in l and "s[52:55]" in l))
    drop = lambda pred: "\n".join(l for l in txt.split("\n") if not pred(l))
    if 'e' in a.x: txt = drop(lambda l: "buffer_atomic_or" in l)
    if 'S' in a.x: txt = drop(lambda l: "buffer_store" in l and "sc1" in l)
    if 'A' in a.x: txt = drop(lambda l: "s[80:83]" in l)
    if 'O' in a.x: txt = drop(lambda l: "buffer_store_dwordx2 v[46:47]" in l)
    if 'L' in a.x: txt = drop(lambda l: "buffer_load_dwordx4 v[128:131]" in l)
    if 'M' in a.x: txt = drop(lambda l: "buffer_load_dword v132" in l)
    if 'f' in a.x: txt = drop(lambda l: "buffer_store_dword v12, off" in l)
    if 'F' in a.x: txt = drop(lambda l: "buffer_store_dword v1, off" in l)
    if 'g' in a.x: txt = drop(lambda l: "buffer_store_dwordx4 v[192:195]" in l)
    if 'i' in a.x: txt = drop(lambda l: "buffer_store_dwordx4 v[8:11]" in l)
    if 'p' in a.x: txt = drop(lambda l: "buffer_store_dwordx4 v[40:43]" in l)
    if 'q' in a.x: txt = drop(lambda l: "buffer_store_dwordx4 v[32:35]" in l or "buffer_store_dwordx4 v[36:39]" in l)
    if 'l' in a.x: txt = "\n".join(l for l in txt.split("\n") if not ("buffer_load" in l and "s[52:55]" in l))
    open(a.o, "w").write(txt)
```
